```python
import torch

def _softmax(x, axis=-1):
    return torch.softmax(x, dim=axis)
def _gelu(x):
    return torch.nn.functional.gelu(x, approximate="tanh")
def _silu(x):
    return torch.nn.functional.silu(x)
def _sigmoid(x):
    return torch.sigmoid(x)
def _layernorm(x, axis=-1, eps=1e-5):
    m = x.mean(dim=axis, keepdim=True)
    v = x.var(dim=axis, keepdim=True, unbiased=False)
    return (x - m) / torch.sqrt(v + eps)
def _scatter_add(tgt, idx, src, axis=0):
    return tgt.clone().index_add_(axis, idx, src)
def _segment_sum(src, seg, n):
    out = torch.zeros((n,) + src.shape[1:], dtype=src.dtype)
    return out.index_add_(0, seg, src)
def _pad(x, pw):
    flat = tuple(v for pair in reversed(pw) for v in pair)
    return torch.nn.functional.pad(x, flat)

kernel_name = 'gated_mix__mha_block__mixer_token_mlp__prompt'

def setup_inputs():

    _w = (lambda a: (lambda t: t.to(torch.bfloat16) if t.is_floating_point() else t)(torch.as_tensor(a)))
    def _A_setup():
        B, S, D, H = 1, 2048, 512, 32
        return {
            "x": _w((lambda *s: torch.randn(*s, dtype=torch.bfloat16) * 0.05)(B, S, D)),
            "wqkv": _w((lambda *s: torch.randn(*s, dtype=torch.bfloat16) * 0.8)(D, 3 * D)),
            "wo": _w((lambda *s: torch.randn(*s, dtype=torch.bfloat16) * 0.05)(D, D)),
        }
    _A_in = _A_setup()

    def _B_setup():
        B, S, D, F = 1, 2048, 512, 1792
        return {
            "x": _w((lambda *s: torch.randn(*s, dtype=torch.bfloat16) * 0.05)(B, S, D)),
            "w1": _w((lambda *s: torch.randn(*s, dtype=torch.bfloat16) * 0.8)(S, F) * (S ** -0.5)),
            "b1": _w((lambda *s: torch.randn(*s, dtype=torch.bfloat16) * 12.8)(F) * 0.02),
            "w2": _w((lambda *s: torch.randn(*s, dtype=torch.bfloat16) * 0.05)(F, S) * (F ** -0.5)),
            "b2": _w((lambda *s: torch.randn(*s, dtype=torch.bfloat16) * 0.8)(S) * 0.02),
        }
    _B_in = _B_setup()

    return {
        "A_x": _A_in["x"],
        "A_wqkv": _A_in["wqkv"],
        "A_wo": _A_in["wo"],
        "B_x": _B_in["x"],
        "B_w1": _B_in["w1"],
        "B_b1": _B_in["b1"],
        "B_w2": _B_in["w2"],
        "B_b2": _B_in["b2"],
        "gate_w": _w((lambda *s: torch.randn(*s, dtype=torch.bfloat16) * 0.05)(512) * 16.0),
    }

def reference(A_x, A_wqkv, A_wo, B_x, B_w1, B_b1, B_w2, B_b2, gate_w):
    def _A_ref(x, wqkv, wo):
        B, S, D = x.shape
        H = 32
        Dh = D // H
        qkv = (lambda x, *d: x.permute(*d))((x @ wqkv).reshape(B, S, 3, H, Dh), 2, 0, 3, 1, 4)
        q, k, v = qkv[0], qkv[1], qkv[2]
        scores = torch.einsum("bhqd,bhkd->bhqk", q, k) * (Dh ** -0.5)
        p = _softmax(scores, axis=-1)
        o = torch.einsum("bhqk,bhkd->bhqd", p, v)
        return (lambda x, *d: x.permute(*d))(o, 0, 2, 1, 3).reshape(B, S, D) @ wo

    def _B_ref(x, w1, b1, w2, b2):
        B, S, D = x.shape
        h = _layernorm(x, axis=-1)
        u = torch.einsum("bsd,sf->bdf", h, w1) + b1
        u = _gelu(u)
        y = torch.einsum("bdf,fs->bds", u, w2) + b2
        return (lambda x, *d: x.permute(*d))(y, 0, 2, 1)

    x = A_x
    g = _sigmoid((x * gate_w).sum(-1, keepdims=True))
    a = _A_ref(x, A_wqkv, A_wo)
    b = _B_ref(x, B_w1, B_b1, B_w2, B_b2)
    return g * a + (1 - g) * b
```

```python
class Asm:
    def __init__(self):
        self.lines = []
        self.vm = []
        self.lg = []
        self._lab = 0

    def __call__(self, s, comment=None):
        for ln in s.strip("\n").split("\n"):
            ln = ln.strip()
            if not ln:
                continue
            if ln.endswith(":") or ln.startswith("."):
                self.lines.append(ln)
            else:
                self.lines.append("    " + ln)
        if comment:
            self.lines[-1] += "    ; " + comment

    def c(self, s):
        self.lines.append("    ; " + s)

    def label(self, base):
        self._lab += 1
        return f"L_{base}_{self._lab}"

    def vmem(self, s, tag):
        self(s)
        self.vm.append(tag)

    def vm_wait(self, tag, extra=""):
        idx = [i for i, t in enumerate(self.vm) if t == tag]
        assert idx, f"no vmem op with tag {tag}"
        n = len(self.vm) - 1 - idx[-1]
        assert n <= 63, f"vmcnt {n} too large"
        self(f"s_waitcnt vmcnt({n}){extra}")
        self.vm = self.vm[idx[-1] + 1:]

    def vm_wait_if(self, tag):
        if tag in self.vm:
            self.vm_wait(tag)

    def vm_drain(self):
        self("s_waitcnt vmcnt(0)")
        self.vm = []

    def lds(self, s, tag):
        self(s)
        self.lg.append(tag)

    def lg_wait(self, tag):
        idx = [i for i, t in enumerate(self.lg) if t == tag]
        assert idx, f"no lds op with tag {tag}"
        n = len(self.lg) - 1 - idx[-1]
        assert n <= 15, f"lgkmcnt {n} too large"
        self(f"s_waitcnt lgkmcnt({n})")
        self.lg = self.lg[idx[-1] + 1:]

    def lg_drain(self):
        self("s_waitcnt lgkmcnt(0)")
        self.lg = []

    def text(self):
        return "\n".join(self.lines) + "\n"


def vr(base, n=1):
    return f"v{base}" if n == 1 else f"v[{base}:{base + n - 1}]"


def sr(base, n=1):
    return f"s{base}" if n == 1 else f"s[{base}:{base + n - 1}]"


def f32bits(x):
    import struct
    return "0x%08x" % struct.unpack("<I", struct.pack("<f", x))[0]
```

```python
import math
import sys
from asmlib import Asm, vr, sr, f32bits

NAME = "gated_mix__mha_block__mixer_token_mlp__prompt"

WS_H = 0x000000
WS_K = 0x200000
WS_V = 0x400000
WS_Q = 0x600000
WS_U = 0x800000
WS_O = 0xA00000
WS_G = 0xC00000
WS_SIZE = 0x1000000

S_WAVE, S_XCD, S_IDX, S_HP, S_SL = 3, 4, 5, 6, 7
R_X, R_WQKV, R_WO, R_W1, R_W2, R_WS, R_OUT, R_B1, R_B2, R_GW = 40, 44, 48, 52, 56, 60, 64, 68, 72, 76

LOG2E = math.log2(math.e)


def srd(a, r, ptr, nbytes):
    a(f"s_mov_b32 s{r}, s{ptr}")
    a(f"s_mov_b32 s{r+1}, s{ptr+1}")
    a(f"s_mov_b32 s{r+2}, {nbytes:#x}")
    a(f"s_mov_b32 s{r+3}, 0x00020000")


def prologue(a, lexit):
    a("s_cmp_ge_u32 s2, 256")
    a(f"s_cbranch_scc1 {lexit}")
    a("s_load_dwordx16 s[16:31], s[0:1], 0")
    a("s_load_dwordx8 s[32:39], s[0:1], 64")
    a("v_lshrrev_b32 v1, 6, v0")
    a("v_and_b32 v0, 63, v0")
    a(f"v_readfirstlane_b32 s{S_WAVE}, v1")
    a(f"s_and_b32 s{S_XCD}, s2, 7")
    a(f"s_lshr_b32 s{S_IDX}, s2, 3")
    a(f"s_and_b32 s8, s{S_XCD}, 3")
    a("s_lshl_b32 s8, s8, 2")
    a(f"s_and_b32 s9, s{S_IDX}, 3")
    a(f"s_add_u32 s{S_HP}, s8, s9")
    a(f"s_lshr_b32 s8, s{S_XCD}, 2")
    a("s_lshl_b32 s8, s8, 3")
    a(f"s_lshr_b32 s9, s{S_IDX}, 2")
    a(f"s_add_u32 s{S_SL}, s8, s9")
    a("s_waitcnt lgkmcnt(0)")
    srd(a, R_X, 16, 2048 * 512 * 2)
    srd(a, R_WQKV, 18, 512 * 1536 * 2)
    srd(a, R_WO, 20, 512 * 512 * 2)
    srd(a, R_W1, 24, 2048 * 1792 * 2)
    srd(a, R_B1, 26, 1792 * 2)
    srd(a, R_W2, 28, 1792 * 2048 * 2)
    srd(a, R_B2, 30, 2048 * 2)
    srd(a, R_GW, 32, 512 * 2)
    srd(a, R_OUT, 34, 2048 * 512 * 2)
    srd(a, R_WS, 38, WS_SIZE)


def wave_reduce_add(a, regs):
    steps = ["row_shr:1 row_mask:0xf bank_mask:0xf bound_ctrl:0",
             "row_shr:2 row_mask:0xf bank_mask:0xf bound_ctrl:0",
             "row_shr:4 row_mask:0xf bank_mask:0xf bound_ctrl:0",
             "row_shr:8 row_mask:0xf bank_mask:0xf bound_ctrl:0",
             "row_bcast:15 row_mask:0xa bank_mask:0xf",
             "row_bcast:31 row_mask:0xc bank_mask:0xf"]
    for st in steps:
        a("s_nop 1")
        for r in regs:
            a(f"v_add_f32_dpp v{r}, v{r}, v{r} {st}")
    a("s_nop 1")


P_SLOT = 28672
P_NSLOT = 5
P_LN = P_SLOT * P_NSLOT
P_XCH = 3 * P_SLOT
LDS_TOTAL = 163840


def ln_issue(a):
    a.c("LN loads")
    a(f"s_lshl_b32 s8, s{S_SL}, 7")
    a(f"s_lshl_b32 s9, s{S_HP}, 3")
    a("s_add_u32 s80, s8, s9", "s80 = row0")
    a(f"s_add_u32 s8, s80, s{S_WAVE}")
    a("s_lshl_b32 s8, s8, 10", "row byte offset")
    a("v_lshlrev_b32 v1, 4, v0", "lane*16")
    a.vmem(f"buffer_load_dwordx4 v[2:5], v1, s[{R_X}:{R_X+3}], s8 offen", "ln")
    a.vmem(f"buffer_load_dwordx4 v[6:9], v1, s[{R_GW}:{R_GW+3}], 0 offen", "ln")


def ln_compute(a):
    a.c("LN compute")
    a.vm_wait("ln")
    for i in range(4):
        a(f"v_lshlrev_b32 v{10+2*i}, 16, v{2+i}")
        a(f"v_and_b32 v{11+2*i}, 0xffff0000, v{2+i}")
        a(f"v_lshlrev_b32 v{18+2*i}, 16, v{6+i}")
        a(f"v_and_b32 v{19+2*i}, 0xffff0000, v{6+i}")
    a("v_add_f32 v26, v10, v11")
    a("v_mul_f32 v27, v10, v18")
    for i in range(2, 8):
        a(f"v_add_f32 v26, v26, v{10+i}")
    for i in range(1, 8):
        a(f"v_fmac_f32 v27, v{10+i}, v{18+i}")
    wave_reduce_add(a, [26, 27])
    a("v_readlane_b32 s8, v26, 63")
    a("v_readlane_b32 s9, v27, 63")
    a("s_nop 1")
    a(f"v_mov_b32 v28, {f32bits(1.0/512)}")
    a("v_mul_f32 v28, s8, v28", "mean")
    for i in range(8):
        a(f"v_sub_f32 v{10+i}, v{10+i}, v28")
    a("v_mul_f32 v26, v10, v10")
    for i in range(1, 8):
        a(f"v_fmac_f32 v26, v{10+i}, v{10+i}")
    a(f"v_mov_b32 v40, {f32bits(-LOG2E)}")
    a("v_mul_f32 v40, s9, v40")
    a("v_exp_f32 v40, v40")
    wave_reduce_add(a, [26])
    a("v_add_f32 v40, 1.0, v40")
    a("v_readlane_b32 s8, v26, 63")
    a("v_rcp_f32 v40, v40")
    a(f"v_mov_b32 v28, {f32bits(1.0/512)}")
    a(f"v_mov_b32 v29, {f32bits(1e-5)}")
    a("v_fma_f32 v28, s8, v28, v29", "var + eps")
    a("v_rsq_f32 v28, v28")
    a("s_nop 0")
    for i in range(8):
        a(f"v_mul_f32 v{10+i}, v{10+i}, v28")
    for i in range(4):
        a(f"v_cvt_pk_bf16_f32 v{18+i}, v{10+2*i}, v{11+2*i}")
    a("v_mul_u32_u24 v30, 144, v0")
    a(f"s_lshl_b32 s8, s{S_WAVE}, 1")
    a(f"s_add_u32 s8, s8, {P_LN}")
    a("v_add_u32 v30, s8, v30")
    for i in range(4):
        a.lds(f"ds_write_b16 v30, v{18+i} offset:{32*i}", "lnw")
        a.lds(f"ds_write_b16_d16_hi v30, v{18+i} offset:{32*i+16}", "lnw")


def ln_store(a, sc=""):
    a.c("LN store")
    a("v_lshrrev_b32 v30, 3, v0")
    a("v_mul_u32_u24 v30, 144, v30")
    a("v_and_b32 v31, 7, v0")
    a("v_lshl_add_u32 v30, v31, 4, v30")
    a(f"s_mul_i32 s8, s{S_WAVE}, {8*144}")
    a(f"s_add_u32 s8, s8, {P_LN}")
    a("v_add_u32 v30, s8, v30")
    a.lds("ds_read_b128 v[32:35], v30", "lnr")
    a("v_lshrrev_b32 v31, 5, v0")
    a("v_lshlrev_b32 v31, 10, v31")
    a("v_and_b32 v36, 31, v0")
    a("v_lshl_add_u32 v31, v36, 4, v31")
    a(f"s_lshl_b32 s8, s{S_WAVE}, 18")
    a("s_lshr_b32 s9, s80, 4")
    a("s_lshl_b32 s9, s9, 11")
    a("s_add_u32 s8, s8, s9")
    a("s_and_b32 s9, s80, 8")
    a("s_lshl_b32 s9, s9, 6")
    a("s_add_u32 s8, s8, s9")
    if WS_H:
        a(f"s_add_u32 s8, s8, {WS_H}")
    a(f"s_add_u32 s9, s80, s{S_WAVE}")
    a("s_lshl_b32 s9, s9, 2")
    a(f"s_add_u32 s9, s9, {WS_G}")
    a("v_mov_b32 v36, 0")
    a.lg_wait("lnr")
    a.vmem(f"buffer_store_dwordx4 v[32:35], v31, s[{R_WS}:{R_WS+3}], s8 offen {sc}", "hst")
    a("s_mov_b64 exec, 1")
    a.vmem(f"buffer_store_dword v40, v36, s[{R_WS}:{R_WS+3}], s9 offen {sc}", "hst")
    a("s_mov_b64 exec, -1")


PV_ACCQ, PV_ACCK, PV_ACCV = 64, 80, 96
PV_X = 112
PV_W = 120
PV_XA = 144
PV_WA = 150
PV_DMA = 156


def proj(a, par):
    a.c(f"projection role {par}")
    a(f"s_and_b32 s81, s{S_WAVE}, 3", "t = wave&3")
    if par == 0:
        a("v_lshrrev_b32 v41, 3, v0")
        a("v_lshlrev_b32 v41, 10, v41", "(l>>3)*1024")
        a("v_and_b32 v42, 7, v0")
        a("v_lshrrev_b32 v43, 4, v0")
        a("v_xor_b32 v42, v42, v43", "(l&7)^(l>>4)")
        a(f"v_lshl_add_u32 v{PV_DMA}, v42, 4, v41")
        a("v_xor_b32 v42, 4, v42")
        a(f"v_lshl_add_u32 v{PV_DMA+1}, v42, 4, v41")
        a(f"v_add_u32 v{PV_DMA+2}, {2*7168}, v{PV_DMA}")
        a(f"v_add_u32 v{PV_DMA+3}, {3*7168}, v{PV_DMA+1}")
        a(f"v_add_u32 v{PV_DMA+1}, {7168}, v{PV_DMA+1}")
        a(f"s_lshl_b32 s82, s{S_SL}, 17")
        a("s_lshl_b32 s8, s81, 15")
        a("s_add_u32 s82, s82, s8")
        a("s_lshl_b32 s83, s81, 12")
    else:
        a("v_lshrrev_b32 v41, 2, v0")
        a("v_mul_u32_u24 v41, 3072, v41")
        a("v_and_b32 v42, 3, v0")
        a(f"v_lshl_add_u32 v{PV_DMA}, v42, 4, v41")
        a(f"s_mul_i32 s82, s81, {16*3072}")
        a(f"s_lshl_b32 s8, s{S_HP}, 6")
        a("s_add_u32 s82, s82, s8")
        a("s_mul_i32 s83, s81, 3072")
        a("s_add_u32 s83, s83, 16384")

    def issue(c):
        slot = c % P_NSLOT
        a(f"s_add_u32 m0, s83, {slot*P_SLOT}")
        if par == 0:
            a(f"s_add_u32 s8, s82, {c*128}")
            for q in range(4):
                a.vmem(f"buffer_load_dwordx4 v{PV_DMA+q}, s[{R_X}:{R_X+3}], s8 offen offset:{q*1024} lds", f"ch{c}")
        else:
            a(f"s_add_u32 s8, s82, {c*64*3072}")
            for seg in range(3):
                a.vmem(f"buffer_load_dwordx4 v{PV_DMA}, s[{R_WQKV}:{R_WQKV+3}], s8 offen offset:{seg*1024} lds", f"ch{c}")

    ln_issue(a)
    for c in range(P_NSLOT):
        issue(c)
    a.c("lds read addresses")
    a("v_and_b32 v41, 31, v0", "i")
    a("v_lshrrev_b32 v42, 5, v0", "h'")
    a("v_bfe_u32 v43, v0, 1, 3", "(i>>1)&7")
    a(f"v_or_b32 v44, {2*par}, v42", "kc = 2*ks + h'")
    a("v_xor_b32 v44, v44, v43")
    a("v_lshlrev_b32 v45, 7, v41", "i*128")
    a("s_lshl_b32 s8, s81, 12", "t*32*128")
    a("v_add_u32 v45, s8, v45")
    a(f"v_lshl_add_u32 v{PV_XA}, v44, 4, v45")
    a(f"v_xor_b32 v{PV_XA+1}, 64, v{PV_XA}")
    a("v_lshlrev_b32 v44, 9, v42")
    a("v_bfe_u32 v45, v0, 2, 2")
    a("v_lshl_add_u32 v44, v45, 6, v44")
    a("v_bfe_u32 v45, v0, 4, 1")
    a("v_lshl_add_u32 v44, v45, 5, v44")
    a("v_and_b32 v45, 3, v0")
    a("v_lshl_add_u32 v44, v45, 3, v44")
    a(f"v_add_u32 v{PV_WA}, {16384 + par*3072}, v44")
    for g in (1, 2):
        a(f"v_add_u32 v{PV_XA+2*g}, {g*2*P_SLOT}, v{PV_XA}")
        a(f"v_add_u32 v{PV_XA+2*g+1}, {g*2*P_SLOT}, v{PV_XA+1}")
        a(f"v_add_u32 v{PV_WA+g}, {g*2*P_SLOT}, v{PV_WA}")
    for r in range(48):
        a(f"v_mov_b32 v{PV_ACCQ+r}, 0")
    ln_compute(a)
    for c in range(8):
        slot = c % P_NSLOT
        g, so = slot // 2, (slot % 2) * P_SLOT
        a.c(f"chunk {c}")
        a.vm_wait(f"ch{c}")
        if c == 0:
            a.lg_drain()
        a("s_barrier")
        if c >= 1 and c + 4 < 8:
            issue(c + 4)
        for k2 in range(2):
            a.lds(f"ds_read_b128 {vr(PV_X+4*k2,4)}, v{PV_XA+2*g+k2} offset:{so}", f"r{k2}")
            for seg in range(3):
                off = so + k2 * 6144 + seg * 1024
                a.lds(f"ds_read_b64_tr_b16 {vr(PV_W+12*k2+4*seg,2)}, v{PV_WA+g} offset:{off}", f"r{k2}")
                a.lds(f"ds_read_b64_tr_b16 {vr(PV_W+12*k2+4*seg+2,2)}, v{PV_WA+g} offset:{off+256}", f"r{k2}")
        for k2 in range(2):
            a.lg_wait(f"r{k2}")
            x = vr(PV_X + 4 * k2, 4)
            a(f"v_mfma_f32_32x32x16_bf16 {vr(PV_ACCQ,16)}, {vr(PV_W+12*k2,4)}, {x}, {vr(PV_ACCQ,16)}")
            a(f"v_mfma_f32_32x32x16_bf16 {vr(PV_ACCK,16)}, {vr(PV_W+12*k2+4,4)}, {x}, {vr(PV_ACCK,16)}")
            a(f"v_mfma_f32_32x32x16_bf16 {vr(PV_ACCV,16)}, {x}, {vr(PV_W+12*k2+8,4)}, {vr(PV_ACCV,16)}")
        if c == 0:
            ln_store(a)
    a.c("exchange partial sums")
    a("v_lshlrev_b32 v41, 4, v0")
    a("s_lshl_b32 s8, s81, 13")
    a(f"s_add_u32 s8, s8, {P_XCH}")
    a("v_add_u32 v42, s8, v41", "KV exch addr")
    a("s_lshl_b32 s8, s81, 12")
    a(f"s_add_u32 s8, s8, {P_XCH+32768}")
    a("v_add_u32 v43, s8, v41", "Q exch addr")
    a("s_nop 7")
    a("s_nop 3")
    if par == 0:
        for q in range(8):
            a.lds(f"ds_write_b128 v42, {vr(PV_ACCK+4*q,4)} offset:{q*1024}", "xw")
    else:
        for q in range(4):
            a.lds(f"ds_write_b128 v43, {vr(PV_ACCQ+4*q,4)} offset:{q*1024}", "xw")
    a.lg_drain()
    a("s_barrier")
    a(f"s_lshl_b32 s84, s{S_SL}, 2")
    a("s_add_u32 s84, s84, s81", "tile")
    if par == 0:
        for q in range(4):
            a.lds(f"ds_read_b128 {vr(112+4*q,4)}, v43 offset:{q*1024}", "xr")
        a(f"s_mov_b32 s9, {f32bits(0.25*LOG2E)}")
        a.lg_drain()
        for r in range(16):
            a(f"v_add_f32 v{PV_ACCQ+r}, v{PV_ACCQ+r}, v{112+r}")
        for r in range(16):
            a(f"v_mul_f32 v{PV_ACCQ+r}, s9, v{PV_ACCQ+r}")
        for r in range(8):
            a(f"v_cvt_pk_bf16_f32 v{112+r}, v{PV_ACCQ+2*r}, v{PV_ACCQ+2*r+1}")
        a(f"s_lshl_b32 s8, s{S_HP}, 17")
        a("s_lshl_b32 s9, s84, 10")
        a("s_add_u32 s8, s8, s9")
        a(f"s_add_u32 s8, s8, {WS_Q}")
        a("s_add_u32 s9, s8, 0x10000")
        a.vmem(f"buffer_store_dwordx4 v[112:115], v41, s[{R_WS}:{R_WS+3}], s8 offen", "st")
        a.vmem(f"buffer_store_dwordx4 v[116:119], v41, s[{R_WS}:{R_WS+3}], s9 offen", "st")
    else:
        for q in range(8):
            a.lds(f"ds_read_b128 {vr(112+4*q,4)}, v42 offset:{q*1024}", "xr")
        a.lg_drain()
        for r in range(32):
            a(f"v_add_f32 v{PV_ACCK+r}, v{PV_ACCK+r}, v{112+r}")
        for r in range(16):
            a(f"v_cvt_pk_bf16_f32 v{112+r}, v{PV_ACCK+2*r}, v{PV_ACCK+2*r+1}")
        a(f"s_lshl_b32 s8, s{S_HP}, 17")
        a("s_lshl_b32 s9, s84, 10")
        a("s_add_u32 s10, s8, s9")
        a(f"s_add_u32 s10, s10, {WS_K}")
        a("s_add_u32 s11, s10, 0x10000")
        a("s_lshl_b32 s9, s84, 11")
        a("s_add_u32 s12, s8, s9")
        a(f"s_add_u32 s12, s12, {WS_V}")
        a.vmem(f"buffer_store_dwordx4 v[112:115], v41, s[{R_WS}:{R_WS+3}], s10 offen", "st")
        a.vmem(f"buffer_store_dwordx4 v[116:119], v41, s[{R_WS}:{R_WS+3}], s11 offen", "st")
        a.vmem(f"buffer_store_dwordx4 v[120:123], v41, s[{R_WS}:{R_WS+3}], s12 offen", "st")
        a.vmem(f"buffer_store_dwordx4 v[124:127], v41, s[{R_WS}:{R_WS+3}], s12 offen offset:1024", "st")


M_RING = 0
M_RED = 65536
M_ATT = M_RED + 69632
M_CNT = M_ATT + 18432
assert M_CNT + 256 <= LDS_TOTAL


def lds_sync(a, cnt_off, target, vt, vone, addval=None, sres="s8"):
    lab = a.label("sync")
    a.lg_drain()
    a(f"v_mov_b32 v{vt}, {cnt_off}")
    a("s_mov_b64 exec, 1")
    a(f"ds_add_u32 v{vt}, v{vone}")
    a("s_mov_b64 exec, -1")
    a(f"{lab}:")
    a(f"ds_read_b32 v{vt+1}, v{vt}")
    a("s_waitcnt lgkmcnt(0)")
    a(f"v_readfirstlane_b32 {sres}, v{vt+1}")
    a(f"s_and_b32 s9, {sres}, 0xffff")
    a(f"s_cmp_ge_u32 s9, {target}")
    lab2 = a.label("syncdone")
    a(f"s_cbranch_scc1 {lab2}")
    a("s_sleep 1")
    a(f"s_branch {lab}")
    a(f"{lab2}:")


AV_Q, AV_O, AV_C, AV_S, AV_P = 16, 32, 96, 160, 192
AV_K, AV_V = 200, 216
AV_KA, AV_VA = 2, 3
S_VMASK = 86


def mfma(d, A, B, C):
    return f"v_mfma_f32_32x32x16_bf16 {vr(d,16)}, {vr(A,4)}, {vr(B,4)}, {C if isinstance(C,str) else vr(C,16)}"


def attention(a):
    a.c("attention role")
    a("s_setprio 3")
    a(f"s_and_b32 s80, s{S_WAVE}, 1", "kh")
    a(f"s_lshr_b32 s81, s{S_WAVE}, 1", "e")
    a(f"s_lshl_b32 s82, s{S_HP}, 1")
    a("s_add_u32 s82, s82, s81", "head")
    a(f"v_lshlrev_b32 v{AV_KA}, 4, v0")
    a("s_lshl_b32 s8, s81, 8")
    a(f"v_add_u32 v{AV_VA}, s8, v{AV_KA}", "V lane addr (+256 for head 1)")
    a(f"s_mov_b32 s{S_VMASK}, 0xffff")
    a(f"s_mov_b32 s{S_VMASK+1}, 0xffff")
    a("s_lshl_b32 s83, s82, 16")
    a(f"s_add_u32 s83, s83, {WS_K}", "K base (head)")
    a(f"s_lshl_b32 s84, s{S_HP}, 17")
    a(f"s_add_u32 s84, s84, {WS_V}", "V base (hp)")
    a("s_lshl_b32 s8, s82, 16")
    a(f"s_lshl_b32 s9, s{S_SL}, 12")
    a("s_add_u32 s8, s8, s9")
    a(f"s_add_u32 s8, s8, {WS_Q}")
    for i in range(4):
        a(f"buffer_load_dwordx4 {vr(AV_Q+4*i,4)}, v{AV_KA}, s[{R_WS}:{R_WS+3}], s8 offen offset:{i*1024}")
    a("v_and_b32 v4, 27, v0", "lane&31 with bit2 cleared")
    a("v_mov_b32 v5, 0x3f803f80")
    a("v_cmp_eq_u32 vcc, 16, v4")
    a("s_nop 1")
    a("v_cndmask_b32 v4, 0, v5, vcc")
    for r in range(32):
        a(f"v_mov_b32 v{AV_V+r}, v4")
    a("v_mov_b32 v1, 1")
    a("s_mov_b32 s88, 1", "T = number of key tiles for the max estimate")
    a("s_mov_b32 s89, 2", "sync target")
    lredo = a.label("redo")
    a(f"{lredo}:")
    a.c("max pass over s88 key tiles")
    for i in range(4):
        a(f"v_mov_b32 v{4+i}, 0xff800000")
    a("s_mov_b32 s8, s83")
    a("s_mov_b32 s9, s88")
    lmax = a.label("maxloop")
    a(f"{lmax}:")
    a(f"buffer_load_dwordx4 {vr(AV_K,4)}, v{AV_KA}, s[{R_WS}:{R_WS+3}], s8 offen")
    a("s_waitcnt vmcnt(0)")
    for i in range(4):
        a(mfma(AV_O + 16 * i, AV_K, AV_Q + 4 * i, "0"))
    a("s_nop 9")
    for i in range(4):
        for r in range(8):
            a(f"v_max3_f32 v{4+i}, v{AV_O+16*i+2*r}, v{AV_O+16*i+2*r+1}, v{4+i}")
    a("s_add_u32 s8, s8, 1024")
    a("s_sub_u32 s9, s9, 1")
    a("s_cmp_lg_u32 s9, 0")
    a(f"s_cbranch_scc1 {lmax}")
    a("s_lshl_b32 s8, s80, 10")
    a("s_add_u32 s90, s83, s8", "K ptr")
    a("s_lshl_b32 s8, s80, 11")
    a("s_add_u32 s91, s84, s8", "V ptr")

    def kvload(buf):
        a(f"buffer_load_dwordx4 {vr(AV_K+4*buf,4)}, v{AV_KA}, s[{R_WS}:{R_WS+3}], s90 offen")
        a(f"s_mov_b64 exec, s[{S_VMASK}:{S_VMASK+1}]")
        a(f"buffer_load_dwordx4 {vr(AV_V+8*buf,4)}, v{AV_VA}, s[{R_WS}:{R_WS+3}], s91 offen")
        a(f"buffer_load_dwordx4 {vr(AV_V+8*buf+4,4)}, v{AV_VA}, s[{R_WS}:{R_WS+3}], s91 offen offset:1024")
        a("s_mov_b64 exec, -1")
        a("s_add_u32 s90, s90, 2048")
        a("s_add_u32 s91, s91, 4096")

    for n in range(3):
        kvload(n)
    for i in range(4):
        a(f"v_mov_b32 v{8+i}, v{4+i}")
    a("s_nop 1")
    for i in range(4):
        a(f"v_permlane32_swap_b32 v{4+i}, v{8+i}")
    a("s_nop 1")
    for i in range(4):
        a(f"v_max_f32 v{4+i}, v{4+i}, v{8+i}")
    for i in range(4):
        for r in range(16):
            a(f"v_sub_f32 v{AV_C+16*i+r}, 0, v{4+i}")
    for r in range(64):
        a(f"v_mov_b32 v{AV_O+r}, 0")
    for r in range(8):
        a(f"v_mov_b32 v{AV_P+r}, 0")
    a("s_waitcnt vmcnt(6)")
    a(mfma(AV_S, AV_K, AV_Q, AV_C))
    a("s_mov_b32 s92, 8")
    a("s_nop 10")
    lloop = a.label("attn")
    a(".p2align 6")
    a(f"{lloop}:")
    for u in range(16):
        n, i = u // 4, u % 4
        cur, nxt = AV_S + 16 * (u % 2), AV_S + 16 * ((u + 1) % 2)
        pn, pi = ((u - 1) % 16) // 4, (u - 1) % 4
        nn, ni = ((u + 1) % 16) // 4, (u + 1) % 4
        E = lambda r: a(f"v_exp_f32 v{cur+r}, v{cur+r}")
        C = lambda r: a(f"v_cvt_pk_bf16_f32 v{AV_P+r}, v{cur+2*r}, v{cur+2*r+1}")
        E(0)
        E(1)
        a(mfma(AV_O + 16 * pi, AV_V + 8 * pn + 4, AV_P + 4, AV_O + 16 * pi))
        if i == 1:
            buf = (n + 3) % 4
            E(2)
            a(f"buffer_load_dwordx4 {vr(AV_K+4*buf,4)}, v{AV_KA}, s[{R_WS}:{R_WS+3}], s90 offen")
            E(3)
            a(f"s_mov_b64 exec, s[{S_VMASK}:{S_VMASK+1}]")
            a(f"buffer_load_dwordx4 {vr(AV_V+8*buf,4)}, v{AV_VA}, s[{R_WS}:{R_WS+3}], s91 offen")
            a(f"buffer_load_dwordx4 {vr(AV_V+8*buf+4,4)}, v{AV_VA}, s[{R_WS}:{R_WS+3}], s91 offen offset:1024")
            a("s_mov_b64 exec, -1")
            E(4)
            a("s_add_u32 s90, s90, 2048")
            E(5)
            a("s_add_u32 s91, s91, 4096")
            E(6)
            E(7)
        else:
            for r in range(2, 8):
                E(r)
        if i == 3:
            a("s_waitcnt vmcnt(6)")
        a(mfma(nxt, AV_K + 4 * nn, AV_Q + 4 * ni, AV_C + 16 * ni))
        for r in range(4):
            C(r)
        for r in range(8, 12):
            E(r)
        a(mfma(AV_O + 16 * i, AV_V + 8 * n, AV_P, AV_O + 16 * i))
        for r in range(12, 16):
            E(r)
        if u == 15:
            a("s_sub_u32 s92, s92, 1")
            a("s_cmp_lg_u32 s92, 0")
        for r in range(4, 8):
            C(r)
    a(f"s_cbranch_scc1 {lloop}")
    a("s_nop 0")
    a(mfma(AV_O + 48, AV_V + 24 + 4, AV_P + 4, AV_O + 48))
    a("s_waitcnt vmcnt(0)")
    a("s_nop 10")
    a.c("check + combine")
    a(f"v_max_f32 v4, v{AV_O+8}, v{AV_O+24}")
    a(f"v_max3_f32 v4, v{AV_O+40}, v{AV_O+56}, v4")
    a(f"v_add_f32 v5, v{AV_O+8}, v{AV_O+24}")
    a(f"v_add_f32 v6, v{AV_O+40}, v{AV_O+56}")
    a("v_add_f32 v5, v5, v6")
    a(f"v_mov_b32 v6, {f32bits(2.0**60)}")
    a("v_cmp_nlt_f32 vcc, v5, v6")
    a("s_cmp_lg_u64 vcc, 0")
    a("s_cselect_b32 s8, 0x10001, 1")
    a("v_mov_b32 v1, s8")
    a(f"s_mul_i32 s8, s{S_WAVE}, 4608")
    a(f"s_add_u32 s8, s8, {M_ATT}")
    a(f"v_add_u32 v4, s8, v{AV_KA}", "my send area + lane*16")
    a("v_lshlrev_b32 v5, 2, v0")
    a("v_add_u32 v5, s8, v5", "lane*4")
    a(f"s_xor_b32 s8, s{S_WAVE}, 1")
    a("s_mul_i32 s8, s8, 4608")
    a(f"s_add_u32 s8, s8, {M_ATT}")
    a(f"v_add_u32 v6, s8, v{AV_KA}", "partner area")
    a("v_lshlrev_b32 v7, 2, v0")
    a("v_add_u32 v7, s8, v7")
    lk1, ljoin = a.label("kh1"), a.label("khj")
    a("s_cmp_eq_u32 s80, 1")
    a(f"s_cbranch_scc1 {lk1}")
    for j in range(2):
        o = AV_O + 16 * (2 + j)
        a(f"ds_write_b128 v4, {vr(o,4)} offset:{j*2304}")
        a(f"ds_write_b128 v4, {vr(o+4,4)} offset:{j*2304+1024}")
        a(f"ds_write_b32 v5, v{o+8} offset:{j*2304+2048}")
    a(f"s_branch {ljoin}")
    a(f"{lk1}:")
    for j in range(2):
        o = AV_O + 16 * j
        a(f"ds_write_b128 v4, {vr(o,4)} offset:{j*2304}")
        a(f"ds_write_b128 v4, {vr(o+4,4)} offset:{j*2304+1024}")
        a(f"ds_write_b32 v5, v{o+8} offset:{j*2304+2048}")
    a("s_waitcnt lgkmcnt(0)")
    for j in range(2):
        for r in range(9):
            a(f"v_mov_b32 v{AV_O+16*j+r}, v{AV_O+16*(2+j)+r}")
    a(f"{ljoin}:")
    lab, lab2 = a.label("asy"), a.label("asyd")
    a("s_waitcnt lgkmcnt(0)")
    a("s_lshl_b32 s8, s81, 2")
    a(f"s_add_u32 s8, s8, {M_CNT}")
    a("v_mov_b32 v8, s8")
    a("s_mov_b64 exec, 1")
    a("ds_add_u32 v8, v1")
    a("s_mov_b64 exec, -1")
    a(f"{lab}:")
    a("ds_read_b32 v9, v8")
    a("s_waitcnt lgkmcnt(0)")
    a("v_readfirstlane_b32 s8, v9")
    a("s_and_b32 s9, s8, 0xffff")
    a("s_cmp_ge_u32 s9, s89")
    a(f"s_cbranch_scc1 {lab2}")
    a("s_sleep 1")
    a(f"s_branch {lab}")
    a(f"{lab2}:")
    lok = a.label("aok")
    a("s_lshr_b32 s9, s8, 16")
    a("s_cmp_eq_u32 s9, 0")
    a(f"s_cbranch_scc1 {lok}")
    a("s_cmp_lg_u32 s88, 1", "already on the exact path: accept")
    a(f"s_cbranch_scc1 {lok}")
    a("s_mov_b32 s88, 64")
    a("s_mov_b32 s89, 4")
    a(f"s_branch {lredo}")
    a(f"{lok}:")
    for j in range(2):
        t = AV_S + 16 * j
        a(f"ds_read_b128 {vr(t,4)}, v6 offset:{j*2304}")
        a(f"ds_read_b128 {vr(t+4,4)}, v6 offset:{j*2304+1024}")
        a(f"ds_read_b32 v{t+8}, v7 offset:{j*2304+2048}")
    a(f"s_lshl_b32 s8, s{S_SL}, 1")
    a("s_add_u32 s8, s8, s80")
    a("s_lshl_b32 s8, s8, 5")
    a("s_add_u32 s8, s8, s82")
    a("s_lshl_b32 s8, s8, 11")
    a(f"s_add_u32 s8, s8, {WS_O}")
    a("s_waitcnt lgkmcnt(0)")
    for j in range(2):
        for r in range(9):
            a(f"v_add_f32 v{AV_O+16*j+r}, v{AV_O+16*j+r}, v{AV_S+16*j+r}")
    for j in range(2):
        a(f"v_rcp_f32 v{AV_O+16*j+8}, v{AV_O+16*j+8}")
    a("s_nop 0")
    for j in range(2):
        for r in range(8):
            a(f"v_mul_f32 v{AV_O+16*j+r}, v{AV_O+16*j+r}, v{AV_O+16*j+8}")
        for r in range(4):
            a(f"v_cvt_pk_bf16_f32 v{AV_P+4*j+r}, v{AV_O+16*j+2*r}, v{AV_O+16*j+2*r+1}")
    for j in range(2):
        a(f"buffer_store_dwordx4 {vr(AV_P+4*j,4)}, v{AV_KA}, s[{R_WS}:{R_WS+3}], s8 offen offset:{j*1024}")


GV_ACC = 16
GV_ACC2 = 80
GV_D = 144
GV_T = 208
GV_DMA = 2
GV_TA = 5
GV_DA = 9
GV_MISC = 224
DEPTH = 8


def gemm_setup(a):
    a(f"s_and_b32 s80, s{S_WAVE}, 3", "w'")
    a("v_lshrrev_b32 v11, 3, v0")
    a("v_and_b32 v12, 7, v0")
    a("v_bfe_u32 v13, v0, 4, 1")
    a("v_lshlrev_b32 v13, 2, v13")
    a("v_xor_b32 v12, v12, v13")
    a("v_lshlrev_b32 v12, 4, v12")
    a(f"v_mul_u32_u24 v{GV_DMA}, 3584, v11")
    a(f"v_add_u32 v{GV_DMA}, v{GV_DMA}, v12")
    a(f"v_lshl_add_u32 v{GV_DMA+1}, v11, 12, v12")
    a(f"v_lshl_add_u32 v{GV_DMA+2}, v11, 10, v12")
    a("v_bfe_u32 v11, v0, 2, 2", "r")
    a("v_lshlrev_b32 v12, 7, v11")
    a("v_bfe_u32 v11, v0, 3, 1", "r>>1")
    a("v_lshl_add_u32 v12, v11, 6, v12")
    a("v_bfe_u32 v11, v0, 4, 1")
    a("v_lshl_add_u32 v12, v11, 5, v12")
    a("v_and_b32 v11, 3, v0")
    a("v_lshl_add_u32 v12, v11, 3, v12")
    a("s_lshl_b32 s81, s80, 14")
    if M_RING:
        a(f"s_add_u32 s81, s81, {M_RING}")
    a("v_add_u32 v12, s81, v12")
    a("v_lshrrev_b32 v11, 5, v0", "h'")
    a(f"v_lshl_add_u32 v{GV_TA}, v11, 10, v12", "G1 mapping rows 8h'+r")
    a(f"v_lshl_add_u32 v{GV_TA+2}, v11, 9, v12", "G2 mapping rows 4h'+r")
    a(f"v_xor_b32 v{GV_TA+3}, 64, v{GV_TA+2}")
    a("s_lshr_b32 s8, s80, 1")
    a("s_lshl_b32 s8, s8, 6")
    a(f"v_xor_b32 v{GV_TA}, s8, v{GV_TA}")
    a(f"v_xor_b32 v{GV_TA+1}, 64, v{GV_TA}")
    a("v_mov_b32 v1, 1")


class Stream:
    def __init__(self, a):
        self.a = a
        self.steps = []
        self.issued = 0

    def add(self, rsrc, vreg, sbase, nsteps, rowstride):
        for k in range(nsteps):
            self.steps.append((rsrc, vreg, sbase, k * 16 * rowstride, rowstride))

    def issue_upto(self, n):
        a = self.a
        while self.issued < min(n, len(self.steps)):
            k = self.issued
            rsrc, vreg, sbase, off, rs = self.steps[k]
            slot = k % DEPTH
            a(f"s_add_u32 m0, s81, {slot*2048}")
            a(f"s_add_u32 s8, s{sbase}, {off}")
            a.vmem(f"buffer_load_dwordx4 v{vreg}, s[{rsrc}:{rsrc+3}], s8 offen lds", f"T{k}")
            a(f"s_add_u32 m0, s81, {slot*2048+1024}")
            a(f"s_add_u32 s8, s{sbase}, {off + 8*rs}")
            a.vmem(f"buffer_load_dwordx4 v{vreg}, s[{rsrc}:{rsrc+3}], s8 offen lds", f"T{k}")
            self.issued += 1


def gemm_phase(a, st, k0, nsteps, sD, acc, t_is_A, ta, rd2, sc=""):
    def dload(k):
        buf = k % DEPTH
        a(f"s_add_u32 s8, s{sD}, {k*2048}")
        for x in range(2):
            a.vmem(f"buffer_load_dwordx4 {vr(GV_D+8*buf+4*x,4)}, v{GV_DA+x}, s[{R_WS}:{R_WS+3}], s8 offen {sc}", f"D{k0+k}")

    def tread(k):
        slot = (k0 + k) % DEPTH
        tb = GV_T + 8 * (k % 2)
        for x in range(2):
            a.lds(f"ds_read_b64_tr_b16 {vr(tb+4*x,2)}, v{ta+x} offset:{slot*2048}", f"tr{k}")
            a.lds(f"ds_read_b64_tr_b16 {vr(tb+4*x+2,2)}, v{ta+x} offset:{slot*2048+rd2}", f"tr{k}")

    st.issue_upto(k0 + DEPTH - 1)
    for k in range(min(DEPTH - 1, nsteps)):
        dload(k)
    a.vm_wait_if(f"T{k0}")
    tread(0)
    for k in range(nsteps):
        st.issue_upto(k0 + k + DEPTH)
        if k + DEPTH - 1 < nsteps:
            dload(k + DEPTH - 1)
        if k + 1 < nsteps:
            a.vm_wait_if(f"T{k0+k+1}")
            tread(k + 1)
        a.vm_wait_if(f"D{k0+k}")
        a.lg_wait(f"tr{k}")
        tb = GV_T + 8 * (k % 2)
        db = GV_D + 8 * (k % DEPTH)
        for x in range(2):
            for y in range(2):
                if t_is_A:
                    d = acc + 16 * (2 * x + y)
                    a(mfma(d, tb + 4 * x, db + 4 * y, d))
                else:
                    d = acc + 16 * (2 * y + x)
                    a(mfma(d, db + 4 * y, tb + 4 * x, d))


def g1(a, lskip):
    a.c("GEMM1")
    a(f"s_cmp_ge_u32 s{S_IDX}, 28")
    a(f"s_cbranch_scc1 {lskip}")
    gemm_setup(a)
    a(f"s_and_b32 s8, s{S_XCD}, 1")
    a("s_lshl_b32 s8, s8, 2")
    a(f"s_and_b32 s9, s{S_IDX}, 3")
    a("s_add_u32 s82, s8, s9", "dt")
    a(f"s_lshr_b32 s8, s{S_XCD}, 1")
    a("s_mul_i32 s8, s8, 7")
    a(f"s_lshr_b32 s9, s{S_IDX}, 2")
    a("s_add_u32 s83, s8, s9", "ft")
    a(f"s_mul_i32 s84, s80, {512*3584}")
    a("s_lshl_b32 s8, s83, 7")
    a("s_add_u32 s84, s84, s8")
    a("s_lshl_b32 s85, s82, 18")
    a("s_lshl_b32 s8, s80, 16")
    a("s_add_u32 s85, s85, s8")
    if WS_H:
        a(f"s_add_u32 s85, s85, {WS_H}")
    a("s_and_b32 s8, s80, 1")
    a("s_lshl_b32 s8, s8, 10")
    a(f"v_lshlrev_b32 v{GV_DA}, 4, v0")
    a(f"v_add_u32 v{GV_DA}, s8, v{GV_DA}")
    a(f"v_xor_b32 v{GV_DA+1}, 1024, v{GV_DA}")
    a("v_lshrrev_b32 v11, 5, v0")
    a("v_lshlrev_b32 v11, 3, v11", "h'*8 bytes")
    a("s_lshl_b32 s8, s83, 7")
    a("s_lshr_b32 s9, s80, 1")
    a("s_lshl_b32 s9, s9, 6")
    a("s_add_u32 s8, s8, s9")
    for g in range(4):
        a.vmem(f"buffer_load_dwordx2 {vr(GV_MISC+2*g,2)}, v11, s[{R_B1}:{R_B1+3}], s8 offen offset:{16*g}", "b1")
    st = Stream(a)
    st.add(R_W1, GV_DMA, 84, 32, 3584)
    st.issue_upto(DEPTH - 1)
    for r in range(16, 64):
        a(f"v_mov_b32 v{GV_ACC+r}, 0")
    a.vm_wait("b1")
    for g in range(4):
        for hh in range(2):
            a(f"v_lshlrev_b32 v{GV_ACC+4*g+2*hh}, 16, v{GV_MISC+2*g+hh}")
            a(f"v_and_b32 v{GV_ACC+4*g+2*hh+1}, 0xffff0000, v{GV_MISC+2*g+hh}")
    gemm_phase(a, st, 0, 32, 85, GV_ACC, True, GV_TA, 512)
    a.c("G1 reduction")
    a("v_lshlrev_b32 v11, 4, v0")
    for v in range(1, 4):
        a(f"s_xor_b32 s8, s80, {v}")
        a("s_mul_i32 s8, s8, 12288")
        a(f"s_add_u32 s8, s8, {M_RED + (v-1)*4096}")
        a(f"v_add_u32 v{11+v}, s8, v11")
    a("s_mul_i32 s8, s80, 12288")
    a(f"s_add_u32 s8, s8, {M_RED}")
    a("v_add_u32 v15, s8, v11")
    a("s_nop 4")
    for v in range(1, 4):
        for q in range(4):
            a.lds(f"ds_write_b128 v{11+v}, {vr(GV_ACC+16*v+4*q,4)} offset:{q*1024}", "rw")
    lds_sync(a, M_CNT + 16, 4, GV_MISC, 1)
    for v in range(3):
        for q in range(4):
            a.lds(f"ds_read_b128 {vr(GV_ACC+16+16*v+4*q,4)}, v15 offset:{v*4096+q*1024}", f"rr{v}")
    for v in range(3):
        a.lg_wait(f"rr{v}")
        for r in range(16):
            a(f"v_add_f32 v{GV_ACC+r}, v{GV_ACC+r}, v{GV_ACC+16+16*v+r}")
    c0 = -2.0 * math.sqrt(2.0 / math.pi) * LOG2E
    c1 = c0 * 0.044715
    a(f"s_mov_b32 s8, {f32bits(c1)}")
    a(f"v_mov_b32 v12, {f32bits(c0)}")
    T = GV_ACC + 16
    for r in range(16):
        a(f"v_mul_f32 v{T+r}, v{GV_ACC+r}, v{GV_ACC+r}")
    for r in range(16):
        a(f"v_fma_f32 v{T+r}, v{T+r}, s8, v12")
    for r in range(16):
        a(f"v_mul_f32 v{T+r}, v{T+r}, v{GV_ACC+r}")
    for r in range(16):
        a(f"v_exp_f32 v{T+r}, v{T+r}")
    for r in range(16):
        a(f"v_add_f32 v{T+r}, 1.0, v{T+r}")
    for r in range(16):
        a(f"v_rcp_f32 v{T+r}, v{T+r}")
    for r in range(16):
        a(f"v_mul_f32 v{T+r}, v{T+r}, v{GV_ACC+r}")
    for r in range(8):
        a(f"v_cvt_pk_bf16_f32 v{GV_ACC+r}, v{T+2*r}, v{T+2*r+1}")
    a("s_mul_i32 s8, s82, 112")
    a("s_lshl_b32 s9, s83, 2")
    a("s_add_u32 s8, s8, s9")
    a("s_and_b32 s9, s80, 2")
    a("s_add_u32 s8, s8, s9")
    a("s_lshl_b32 s8, s8, 11")
    a(f"s_add_u32 s8, s8, {WS_U}")
    a.vmem(f"buffer_store_dwordx4 {vr(GV_ACC,4)}, v{GV_DA}, s[{R_WS}:{R_WS+3}], s8 offen", "ust")
    a.vmem(f"buffer_store_dwordx4 {vr(GV_ACC+4,4)}, v{GV_DA}, s[{R_WS}:{R_WS+3}], s8 offen offset:2048", "ust")


def g2(a):
    a.c("GEMM2")
    gemm_setup(a)
    a(f"s_lshl_b32 s8, s{S_XCD}, 2")
    a(f"s_and_b32 s9, s{S_IDX}, 3")
    a("s_add_u32 s82, s8, s9", "st")
    a(f"s_lshr_b32 s83, s{S_IDX}, 2", "dt")
    a(f"s_mul_i32 s84, s80, {448*4096}")
    a("s_lshl_b32 s8, s82, 7")
    a("s_add_u32 s84, s84, s8")
    a("s_lshl_b32 s86, s80, 17")
    a("s_lshl_b32 s8, s83, 7")
    a("s_add_u32 s86, s86, s8")
    a("s_mul_i32 s85, s83, 112")
    a("s_mul_i32 s8, s80, 28")
    a("s_add_u32 s85, s85, s8")
    a("s_lshl_b32 s85, s85, 11")
    a(f"s_add_u32 s85, s85, {WS_U}")
    a("s_lshl_b32 s87, s82, 16")
    a("s_lshl_b32 s8, s80, 14")
    a("s_add_u32 s87, s87, s8")
    a(f"s_add_u32 s87, s87, {WS_O}")
    a(f"v_lshlrev_b32 v{GV_DA}, 4, v0")
    a(f"v_add_u32 v{GV_DA+1}, 1024, v{GV_DA}")
    a("v_and_b32 v11, 31, v0")
    a("v_lshlrev_b32 v12, 1, v11")
    a("v_lshlrev_b32 v13, 2, v11")
    a("s_lshl_b32 s8, s82, 7")
    a("s_lshl_b32 s9, s82, 8")
    a(f"s_add_u32 s9, s9, {WS_G}")
    for b in range(2):
        a.vmem(f"buffer_load_ushort v{GV_MISC+b}, v12, s[{R_B2}:{R_B2+3}], s8 offen offset:{64*b}", "b2")
        a.vmem(f"buffer_load_dword v{GV_MISC+2+b}, v13, s[{R_WS}:{R_WS+3}], s9 offen offset:{128*b}", "b2")
    st = Stream(a)
    st.add(R_W2, GV_DMA + 1, 84, 28, 4096)
    st.add(R_WO, GV_DMA + 2, 86, 8, 1024)
    st.issue_upto(DEPTH - 1)
    for r in range(64):
        a(f"v_mov_b32 v{GV_ACC2+r}, 0")
    a.vm_wait("b2")
    for b in range(2):
        a(f"v_lshlrev_b32 v{GV_MISC+b}, 16, v{GV_MISC+b}")
        a(f"v_mul_f32 v{GV_MISC+b}, 0.25, v{GV_MISC+b}") if False else None
    a(f"s_mov_b32 s8, {f32bits(0.25)}")
    for b in range(2):
        a(f"v_mul_f32 v{GV_MISC+b}, s8, v{GV_MISC+b}")
        a(f"v_sub_f32 v{GV_MISC+4+b}, 1.0, v{GV_MISC+2+b}", "1-g")
    for aa in range(2):
        for b in range(2):
            for r in range(16):
                a(f"v_mov_b32 v{GV_ACC+16*(2*aa+b)+r}, v{GV_MISC+b}")
    gemm_phase(a, st, 0, 28, 85, GV_ACC, False, GV_TA + 2, 1024)
    gemm_phase(a, st, 28, 8, 87, GV_ACC2, True, GV_TA + 2, 1024)
    a.c("combine + final reduction")
    for aa in range(2):
        for b in range(2):
            for r in range(16):
                i = 16 * (2 * aa + b) + r
                a(f"v_mul_f32 v{GV_ACC+i}, v{GV_ACC+i}, v{GV_MISC+4+b}")
    for aa in range(2):
        for b in range(2):
            for r in range(16):
                i = 16 * (2 * aa + b) + r
                a(f"v_fmac_f32 v{GV_ACC+i}, v{GV_ACC2+i}, v{GV_MISC+2+b}")
    a("v_and_b32 v11, 31, v0")
    a("v_mul_u32_u24 v11, 272, v11")
    a("v_lshrrev_b32 v12, 5, v0")
    a("v_lshl_add_u32 v11, v12, 4, v11")
    a("s_mul_i32 s8, s80, 17408")
    a(f"s_add_u32 s8, s8, {M_RED}")
    a("v_add_u32 v11, s8, v11")
    for aa in range(2):
        for b in range(2):
            for g in range(4):
                a.lds(f"ds_write_b128 v11, {vr(GV_ACC+16*(2*aa+b)+4*g,4)} offset:{b*32*272 + aa*128 + g*32}", "fw")
            if b == 1:
                a.lg_drain()
    lds_sync(a, M_CNT + 20, 4, GV_MISC + 8, 1)
    a("v_lshrrev_b32 v11, 3, v0")
    a("v_mul_u32_u24 v12, 272, v11")
    a("v_and_b32 v13, 7, v0")
    a("v_lshl_add_u32 v12, v13, 5, v12")
    a(f"s_mul_i32 s8, s80, {16*272}")
    a(f"s_add_u32 s8, s8, {M_RED}")
    a("v_add_u32 v12, s8, v12")
    for m in range(2):
        for p in range(4):
            for hh in range(2):
                a.lds(f"ds_read_b128 {vr(GV_ACC+32*m+8*p+4*hh,4)}, v12 offset:{p*17408 + m*8*272 + hh*16}", f"fr{m}")
        if m == 0:
            pass
    a("v_lshlrev_b32 v11, 10, v11")
    a("v_lshl_add_u32 v11, v13, 4, v11")
    a("s_lshl_b32 s8, s82, 16")
    a("s_lshl_b32 s9, s80, 14")
    a("s_add_u32 s8, s8, s9")
    a("s_lshl_b32 s9, s83, 7")
    a("s_add_u32 s8, s8, s9")
    a("s_add_u32 s9, s8, 8192")
    for m in range(2):
        a.lg_wait(f"fr{m}")
        B = GV_ACC + 32 * m
        for r in range(8):
            a(f"v_add_f32 v{B+r}, v{B+r}, v{B+8+r}")
            a(f"v_add_f32 v{B+16+r}, v{B+16+r}, v{B+24+r}")
        for r in range(8):
            a(f"v_add_f32 v{B+r}, v{B+r}, v{B+16+r}")
        for r in range(4):
            a(f"v_cvt_pk_bf16_f32 v{B+8+r}, v{B+2*r}, v{B+2*r+1}")
        a.vmem(f"buffer_store_dwordx4 {vr(B+8,4)}, v11, s[{R_OUT}:{R_OUT+3}], s{8+m} offen", "ost")


def zero_counters(a):
    a(f"v_lshlrev_b32 v1, 2, v0")
    a(f"v_add_u32 v1, {M_CNT}, v1")
    a("v_mov_b32 v2, 0")
    a("ds_write_b32 v1, v2")
    a("s_waitcnt lgkmcnt(0)")
    a("s_barrier")


def kernel_header(a, name):
    a(".text")
    a(f".globl {name}")
    a(".p2align 8")
    a(f".type {name},@function")
    a(f"{name}:")


def descriptor(name, vgpr=256):
    return f""".section .rodata,"a"
.p2align 6
.amdhsa_kernel {name}
  .amdhsa_next_free_vgpr {vgpr}
  .amdhsa_next_free_sgpr 102
  .amdhsa_accum_offset {vgpr}
  .amdhsa_group_segment_fixed_size 0
  .amdhsa_kernarg_size 96
  .amdhsa_user_sgpr_count 2
  .amdhsa_user_sgpr_kernarg_segment_ptr 1
  .amdhsa_system_sgpr_workgroup_id_x 1
.end_amdhsa_kernel
"""


def build():
    head = f"""; generated by gen/gen1.py
; @launch kernel=k1_kernel grid=(256,1,1) block=(512,1,1) lds={LDS_TOTAL}
; @launch kernel=k2_kernel grid=(256,1,1) block=(512,1,1) lds={LDS_TOTAL}
; @launch kernel=k3_kernel grid=(256,1,1) block=(256,1,1) lds={LDS_TOTAL}
.amdgcn_target "amdgcn-amd-amdhsa--gfx950"
"""
    a = Asm()
    kernel_header(a, "k1_kernel")
    prologue(a, "L_k1_exit")
    a(f"s_cmp_ge_u32 s{S_WAVE}, 4")
    a("s_cbranch_scc1 L_k1_b")
    a.vm, a.lg = [], []
    proj(a, 0)
    a("s_endpgm")
    a("L_k1_b:")
    a.vm, a.lg = [], []
    proj(a, 1)
    a("L_k1_exit:")
    a("s_endpgm")
    kernel_header(a, "k2_kernel")
    prologue(a, "L_k2_exit")
    zero_counters(a)
    a(f"s_cmp_ge_u32 s{S_WAVE}, 4")
    a("s_cbranch_scc1 L_k2_b")
    a.vm, a.lg = [], []
    attention(a)
    a("s_endpgm")
    a("L_k2_b:")
    a.vm, a.lg = [], []
    g1(a, "L_k2_exit")
    a("L_k2_exit:")
    a("s_endpgm")
    kernel_header(a, "k3_kernel")
    prologue(a, "L_k3_exit")
    zero_counters(a)
    a.vm, a.lg = [], []
    g2(a)
    a("L_k3_exit:")
    a("s_endpgm")
    return head + a.text() + descriptor("k1_kernel") + descriptor("k2_kernel") + descriptor("k3_kernel")


if __name__ == "__main__":
    out = sys.argv[1] if len(sys.argv) > 1 else f"cdna_kernels/{NAME}.s"
    open(out, "w").write(build())
    print("wrote", out)
```

```python
import math
import sys
from asmlib import Asm, vr, sr, f32bits

NAME = "gated_mix__mha_block__mixer_token_mlp__prompt"

WS_H = 0x000000
WS_K = 0x200000
WS_V = 0x400000
WS_Q = 0x600000
WS_U = 0x800000
WS_O = 0xA00000
WS_G = 0xC00000
WS_SIZE = 0x1000000

S_WAVE, S_XCD, S_IDX, S_HP, S_SL = 3, 4, 5, 6, 7
R_X, R_WQKV, R_WO, R_W1, R_W2, R_WS, R_OUT, R_B1, R_B2, R_GW = 40, 44, 48, 52, 56, 60, 64, 68, 72, 76

LOG2E = math.log2(math.e)


STAMPS = False
WS_STAMP = 0xD00000
KIDX = [0]


def stamp(a, idx):
    if not STAMPS:
        return
    a("s_memrealtime s[98:99]")
    a("s_memtime s[100:101]")
    a(f"s_lshl_b32 s97, s2, 3")
    a(f"s_add_u32 s97, s97, s{S_WAVE}")
    a("s_lshl_b32 s97, s97, 7")
    a(f"s_add_u32 s97, s97, {WS_STAMP + KIDX[0]*0x40000 + idx*8}")
    a("s_waitcnt lgkmcnt(0)")
    a.lg = []
    a("v_mov_b32 v254, s98")
    a("v_mov_b32 v255, s100")
    a("v_mov_b32 v253, 0")
    a("s_mov_b64 exec, 1")
    a.vmem(f"buffer_store_dwordx2 v[254:255], v253, s[{R_WS}:{R_WS+3}], s97 offen", "stamp")
    a("s_mov_b64 exec, -1")


def srd(a, r, ptr, nbytes):
    a(f"s_mov_b32 s{r}, s{ptr}")
    a(f"s_mov_b32 s{r+1}, s{ptr+1}")
    a(f"s_mov_b32 s{r+2}, {nbytes:#x}")
    a(f"s_mov_b32 s{r+3}, 0x00020000")


def prologue(a, lexit):
    a("s_cmp_ge_u32 s2, 256")
    a(f"s_cbranch_scc1 {lexit}")
    a("s_load_dwordx16 s[16:31], s[0:1], 0")
    a("s_load_dwordx8 s[32:39], s[0:1], 64")
    a("v_lshrrev_b32 v1, 6, v0")
    a("v_and_b32 v0, 63, v0")
    a(f"v_readfirstlane_b32 s{S_WAVE}, v1")
    a(f"s_and_b32 s{S_XCD}, s2, 7")
    a(f"s_lshr_b32 s{S_IDX}, s2, 3")
    a(f"s_and_b32 s8, s{S_XCD}, 3")
    a("s_lshl_b32 s8, s8, 2")
    a(f"s_and_b32 s9, s{S_IDX}, 3")
    a(f"s_add_u32 s{S_HP}, s8, s9")
    a(f"s_lshr_b32 s8, s{S_XCD}, 2")
    a("s_lshl_b32 s8, s8, 3")
    a(f"s_lshr_b32 s9, s{S_IDX}, 2")
    a(f"s_add_u32 s{S_SL}, s8, s9")
    a("s_waitcnt lgkmcnt(0)")
    srd(a, R_X, 16, 2048 * 512 * 2)
    srd(a, R_WQKV, 18, 512 * 1536 * 2)
    srd(a, R_WO, 20, 512 * 512 * 2)
    srd(a, R_W1, 24, 2048 * 1792 * 2)
    srd(a, R_B1, 26, 1792 * 2)
    srd(a, R_W2, 28, 1792 * 2048 * 2)
    srd(a, R_B2, 30, 2048 * 2)
    srd(a, R_GW, 32, 512 * 2)
    srd(a, R_OUT, 34, 2048 * 512 * 2)
    srd(a, R_WS, 38, WS_SIZE)


def wave_reduce_add(a, regs):
    steps = ["row_shr:1 row_mask:0xf bank_mask:0xf bound_ctrl:0",
             "row_shr:2 row_mask:0xf bank_mask:0xf bound_ctrl:0",
             "row_shr:4 row_mask:0xf bank_mask:0xf bound_ctrl:0",
             "row_shr:8 row_mask:0xf bank_mask:0xf bound_ctrl:0",
             "row_bcast:15 row_mask:0xa bank_mask:0xf",
             "row_bcast:31 row_mask:0xc bank_mask:0xf"]
    for st in steps:
        a("s_nop 1")
        for r in regs:
            a(f"v_add_f32_dpp v{r}, v{r}, v{r} {st}")
    a("s_nop 1")


P_SLOT = 28672
P_NSLOT = 5
P_LN = P_SLOT * P_NSLOT
P_XCH = 3 * P_SLOT
LDS_TOTAL = 163840


def ln_issue(a):
    a.c("LN loads")
    a(f"s_lshl_b32 s8, s{S_SL}, 7")
    a(f"s_lshl_b32 s9, s{S_HP}, 3")
    a("s_add_u32 s80, s8, s9", "s80 = row0")
    a(f"s_add_u32 s8, s80, s{S_WAVE}")
    a("s_lshl_b32 s8, s8, 10", "row byte offset")
    a("v_lshlrev_b32 v1, 4, v0", "lane*16")
    a.vmem(f"buffer_load_dwordx4 v[2:5], v1, s[{R_X}:{R_X+3}], s8 offen", "ln")
    a.vmem(f"buffer_load_dwordx4 v[6:9], v1, s[{R_GW}:{R_GW+3}], 0 offen", "ln")


def ln_compute(a):
    a.c("LN compute")
    a.vm_wait("ln")
    for i in range(4):
        a(f"v_lshlrev_b32 v{10+2*i}, 16, v{2+i}")
        a(f"v_and_b32 v{11+2*i}, 0xffff0000, v{2+i}")
        a(f"v_lshlrev_b32 v{18+2*i}, 16, v{6+i}")
        a(f"v_and_b32 v{19+2*i}, 0xffff0000, v{6+i}")
    a("v_add_f32 v26, v10, v11")
    a("v_mul_f32 v27, v10, v18")
    for i in range(2, 8):
        a(f"v_add_f32 v26, v26, v{10+i}")
    for i in range(1, 8):
        a(f"v_fmac_f32 v27, v{10+i}, v{18+i}")
    wave_reduce_add(a, [26, 27])
    a("v_readlane_b32 s8, v26, 63")
    a("v_readlane_b32 s9, v27, 63")
    a("s_nop 1")
    a(f"v_mov_b32 v28, {f32bits(1.0/512)}")
    a("v_mul_f32 v28, s8, v28", "mean")
    for i in range(8):
        a(f"v_sub_f32 v{10+i}, v{10+i}, v28")
    a("v_mul_f32 v26, v10, v10")
    for i in range(1, 8):
        a(f"v_fmac_f32 v26, v{10+i}, v{10+i}")
    a(f"v_mov_b32 v40, {f32bits(-LOG2E)}")
    a("v_mul_f32 v40, s9, v40")
    a("v_exp_f32 v40, v40")
    wave_reduce_add(a, [26])
    a("v_add_f32 v40, 1.0, v40")
    a("v_readlane_b32 s8, v26, 63")
    a("v_rcp_f32 v40, v40")
    a(f"v_mov_b32 v28, {f32bits(1.0/512)}")
    a(f"v_mov_b32 v29, {f32bits(1e-5)}")
    a("v_fma_f32 v28, s8, v28, v29", "var + eps")
    a("v_rsq_f32 v28, v28")
    a("s_nop 0")
    for i in range(8):
        a(f"v_mul_f32 v{10+i}, v{10+i}, v28")
    for i in range(4):
        a(f"v_cvt_pk_bf16_f32 v{18+i}, v{10+2*i}, v{11+2*i}")
    a("v_mul_u32_u24 v30, 144, v0")
    a(f"s_lshl_b32 s8, s{S_WAVE}, 1")
    a(f"s_add_u32 s8, s8, {P_LN}")
    a("v_add_u32 v30, s8, v30")
    for i in range(4):
        a.lds(f"ds_write_b16 v30, v{18+i} offset:{32*i}", "lnw")
        a.lds(f"ds_write_b16_d16_hi v30, v{18+i} offset:{32*i+16}", "lnw")


def ln_store(a, sc=""):
    a.c("LN store")
    a("v_lshrrev_b32 v30, 3, v0")
    a("v_mul_u32_u24 v30, 144, v30")
    a("v_and_b32 v31, 7, v0")
    a("v_lshl_add_u32 v30, v31, 4, v30")
    a(f"s_mul_i32 s8, s{S_WAVE}, {8*144}")
    a(f"s_add_u32 s8, s8, {P_LN}")
    a("v_add_u32 v30, s8, v30")
    a.lds("ds_read_b128 v[32:35], v30", "lnr")
    a("v_lshrrev_b32 v31, 5, v0")
    a("v_lshlrev_b32 v31, 10, v31")
    a("v_and_b32 v36, 31, v0")
    a("v_lshl_add_u32 v31, v36, 4, v31")
    a(f"s_lshl_b32 s8, s{S_WAVE}, 18")
    a("s_lshr_b32 s9, s80, 4")
    a("s_lshl_b32 s9, s9, 11")
    a("s_add_u32 s8, s8, s9")
    a("s_and_b32 s9, s80, 8")
    a("s_lshl_b32 s9, s9, 6")
    a("s_add_u32 s8, s8, s9")
    if WS_H:
        a(f"s_add_u32 s8, s8, {WS_H}")
    a(f"s_add_u32 s9, s80, s{S_WAVE}")
    a("s_lshl_b32 s9, s9, 2")
    a(f"s_add_u32 s9, s9, {WS_G}")
    a("v_mov_b32 v36, 0")
    a.lg_wait("lnr")
    a.vmem(f"buffer_store_dwordx4 v[32:35], v31, s[{R_WS}:{R_WS+3}], s8 offen {sc}", "hst")
    a("s_mov_b64 exec, 1")
    a.vmem(f"buffer_store_dword v40, v36, s[{R_WS}:{R_WS+3}], s9 offen {sc}", "hst")
    a("s_mov_b64 exec, -1")


PV_ACCQ, PV_ACCK, PV_ACCV = 64, 80, 96
PV_X = 112
PV_W = 120
PV_XA = 144
PV_WA = 150
PV_DMA = 156


def proj(a, par):
    a.c(f"projection role {par}")
    a(f"s_and_b32 s81, s{S_WAVE}, 3", "t = wave&3")
    if par == 0:
        a("v_lshrrev_b32 v41, 3, v0")
        a("v_lshlrev_b32 v41, 10, v41", "(l>>3)*1024")
        a("v_and_b32 v42, 7, v0")
        a("v_lshrrev_b32 v43, 4, v0")
        a("v_xor_b32 v42, v42, v43", "(l&7)^(l>>4)")
        a(f"v_lshl_add_u32 v{PV_DMA}, v42, 4, v41")
        a("v_xor_b32 v42, 4, v42")
        a(f"v_lshl_add_u32 v{PV_DMA+1}, v42, 4, v41")
        a(f"v_add_u32 v{PV_DMA+2}, {2*7168}, v{PV_DMA}")
        a(f"v_add_u32 v{PV_DMA+3}, {3*7168}, v{PV_DMA+1}")
        a(f"v_add_u32 v{PV_DMA+1}, {7168}, v{PV_DMA+1}")
        a(f"s_lshl_b32 s82, s{S_SL}, 17")
        a("s_lshl_b32 s8, s81, 15")
        a("s_add_u32 s82, s82, s8")
        a("s_lshl_b32 s83, s81, 12")
    else:
        a("v_lshrrev_b32 v41, 2, v0")
        a("v_mul_u32_u24 v41, 3072, v41")
        a("v_and_b32 v42, 3, v0")
        a(f"v_lshl_add_u32 v{PV_DMA}, v42, 4, v41")
        a(f"s_mul_i32 s82, s81, {16*3072}")
        a(f"s_lshl_b32 s8, s{S_HP}, 6")
        a("s_add_u32 s82, s82, s8")
        a("s_mul_i32 s83, s81, 3072")
        a("s_add_u32 s83, s83, 16384")

    def issue(c):
        slot = c % P_NSLOT
        a(f"s_add_u32 m0, s83, {slot*P_SLOT}")
        if par == 0:
            a(f"s_add_u32 s8, s82, {c*128}")
            for q in range(4):
                a.vmem(f"buffer_load_dwordx4 v{PV_DMA+q}, s[{R_X}:{R_X+3}], s8 offen offset:{q*1024} lds", f"ch{c}")
        else:
            a(f"s_add_u32 s8, s82, {c*64*3072}")
            for seg in range(3):
                a.vmem(f"buffer_load_dwordx4 v{PV_DMA}, s[{R_WQKV}:{R_WQKV+3}], s8 offen offset:{seg*1024} lds", f"ch{c}")

    stamp(a, 0)
    ln_issue(a)
    for c in range(P_NSLOT):
        issue(c)
    stamp(a, 1)
    a.c("lds read addresses")
    a("v_and_b32 v41, 31, v0", "i")
    a("v_lshrrev_b32 v42, 5, v0", "h'")
    a("v_bfe_u32 v43, v0, 1, 3", "(i>>1)&7")
    a(f"v_or_b32 v44, {2*par}, v42", "kc = 2*ks + h'")
    a("v_xor_b32 v44, v44, v43")
    a("v_lshlrev_b32 v45, 7, v41", "i*128")
    a("s_lshl_b32 s8, s81, 12", "t*32*128")
    a("v_add_u32 v45, s8, v45")
    a(f"v_lshl_add_u32 v{PV_XA}, v44, 4, v45")
    a(f"v_xor_b32 v{PV_XA+1}, 64, v{PV_XA}")
    a("v_lshlrev_b32 v44, 9, v42")
    a("v_bfe_u32 v45, v0, 2, 2")
    a("v_lshl_add_u32 v44, v45, 6, v44")
    a("v_bfe_u32 v45, v0, 4, 1")
    a("v_lshl_add_u32 v44, v45, 5, v44")
    a("v_and_b32 v45, 3, v0")
    a("v_lshl_add_u32 v44, v45, 3, v44")
    a(f"v_add_u32 v{PV_WA}, {16384 + par*3072}, v44")
    for g in (1, 2):
        a(f"v_add_u32 v{PV_XA+2*g}, {g*2*P_SLOT}, v{PV_XA}")
        a(f"v_add_u32 v{PV_XA+2*g+1}, {g*2*P_SLOT}, v{PV_XA+1}")
        a(f"v_add_u32 v{PV_WA+g}, {g*2*P_SLOT}, v{PV_WA}")
    for r in range(48):
        a(f"v_mov_b32 v{PV_ACCQ+r}, 0")
    ln_compute(a)
    stamp(a, 2)
    for c in range(8):
        slot = c % P_NSLOT
        g, so = slot // 2, (slot % 2) * P_SLOT
        a.c(f"chunk {c}")
        a.vm_wait(f"ch{c}")
        if c == 0:
            a.lg_drain()
        a("s_barrier")
        if c >= 1 and c + 4 < 8:
            issue(c + 4)
        for k2 in range(2):
            a.lds(f"ds_read_b128 {vr(PV_X+4*k2,4)}, v{PV_XA+2*g+k2} offset:{so}", f"r{k2}")
            for seg in range(3):
                off = so + k2 * 6144 + seg * 1024
                a.lds(f"ds_read_b64_tr_b16 {vr(PV_W+12*k2+4*seg,2)}, v{PV_WA+g} offset:{off}", f"r{k2}")
                a.lds(f"ds_read_b64_tr_b16 {vr(PV_W+12*k2+4*seg+2,2)}, v{PV_WA+g} offset:{off+256}", f"r{k2}")
        for k2 in range(2):
            a.lg_wait(f"r{k2}")
            x = vr(PV_X + 4 * k2, 4)
            a(f"v_mfma_f32_32x32x16_bf16 {vr(PV_ACCQ,16)}, {vr(PV_W+12*k2,4)}, {x}, {vr(PV_ACCQ,16)}")
            a(f"v_mfma_f32_32x32x16_bf16 {vr(PV_ACCK,16)}, {vr(PV_W+12*k2+4,4)}, {x}, {vr(PV_ACCK,16)}")
            a(f"v_mfma_f32_32x32x16_bf16 {vr(PV_ACCV,16)}, {x}, {vr(PV_W+12*k2+8,4)}, {vr(PV_ACCV,16)}")
        if c == 0:
            ln_store(a)
        stamp(a, 3 + c)
    a.c("exchange partial sums")
    a("v_lshlrev_b32 v41, 4, v0")
    a("s_lshl_b32 s8, s81, 13")
    a(f"s_add_u32 s8, s8, {P_XCH}")
    a("v_add_u32 v42, s8, v41", "KV exch addr")
    a("s_lshl_b32 s8, s81, 12")
    a(f"s_add_u32 s8, s8, {P_XCH+32768}")
    a("v_add_u32 v43, s8, v41", "Q exch addr")
    a("s_nop 7")
    a("s_nop 3")
    if par == 0:
        for q in range(8):
            a.lds(f"ds_write_b128 v42, {vr(PV_ACCK+4*q,4)} offset:{q*1024}", "xw")
    else:
        for q in range(4):
            a.lds(f"ds_write_b128 v43, {vr(PV_ACCQ+4*q,4)} offset:{q*1024}", "xw")
    a.lg_drain()
    a("s_barrier")
    a(f"s_lshl_b32 s84, s{S_SL}, 2")
    a("s_add_u32 s84, s84, s81", "tile")
    if par == 0:
        for q in range(4):
            a.lds(f"ds_read_b128 {vr(112+4*q,4)}, v43 offset:{q*1024}", "xr")
        a(f"s_mov_b32 s9, {f32bits(0.25*LOG2E)}")
        a.lg_drain()
        for r in range(16):
            a(f"v_add_f32 v{PV_ACCQ+r}, v{PV_ACCQ+r}, v{112+r}")
        for r in range(16):
            a(f"v_mul_f32 v{PV_ACCQ+r}, s9, v{PV_ACCQ+r}")
        for r in range(8):
            a(f"v_cvt_pk_bf16_f32 v{112+r}, v{PV_ACCQ+2*r}, v{PV_ACCQ+2*r+1}")
        a(f"s_lshl_b32 s8, s{S_HP}, 17")
        a("s_lshl_b32 s9, s84, 10")
        a("s_add_u32 s8, s8, s9")
        a(f"s_add_u32 s8, s8, {WS_Q}")
        a("s_add_u32 s9, s8, 0x10000")
        a.vmem(f"buffer_store_dwordx4 v[112:115], v41, s[{R_WS}:{R_WS+3}], s8 offen", "st")
        a.vmem(f"buffer_store_dwordx4 v[116:119], v41, s[{R_WS}:{R_WS+3}], s9 offen", "st")
    else:
        for q in range(8):
            a.lds(f"ds_read_b128 {vr(112+4*q,4)}, v42 offset:{q*1024}", "xr")
        a.lg_drain()
        for r in range(32):
            a(f"v_add_f32 v{PV_ACCK+r}, v{PV_ACCK+r}, v{112+r}")
        for r in range(16):
            a(f"v_cvt_pk_bf16_f32 v{112+r}, v{PV_ACCK+2*r}, v{PV_ACCK+2*r+1}")
        a(f"s_lshl_b32 s8, s{S_HP}, 17")
        a("s_lshl_b32 s9, s84, 10")
        a("s_add_u32 s10, s8, s9")
        a(f"s_add_u32 s10, s10, {WS_K}")
        a("s_add_u32 s11, s10, 0x10000")
        a("s_lshl_b32 s9, s84, 11")
        a("s_add_u32 s12, s8, s9")
        a(f"s_add_u32 s12, s12, {WS_V}")
        a.vmem(f"buffer_store_dwordx4 v[112:115], v41, s[{R_WS}:{R_WS+3}], s10 offen", "st")
        a.vmem(f"buffer_store_dwordx4 v[116:119], v41, s[{R_WS}:{R_WS+3}], s11 offen", "st")
        a.vmem(f"buffer_store_dwordx4 v[120:123], v41, s[{R_WS}:{R_WS+3}], s12 offen", "st")
        a.vmem(f"buffer_store_dwordx4 v[124:127], v41, s[{R_WS}:{R_WS+3}], s12 offen offset:1024", "st")


M_RING = 0
M_RED = 65536
M_ATT = M_RED + 69632
M_CNT = M_ATT + 18432
assert M_CNT + 256 <= LDS_TOTAL


def lds_sync(a, cnt_off, target, vt, vone, addval=None, sres="s8"):
    lab = a.label("sync")
    a.lg_drain()
    a(f"v_mov_b32 v{vt}, {cnt_off}")
    a("s_mov_b64 exec, 1")
    a(f"ds_add_u32 v{vt}, v{vone}")
    a("s_mov_b64 exec, -1")
    a(f"{lab}:")
    a(f"ds_read_b32 v{vt+1}, v{vt}")
    a("s_waitcnt lgkmcnt(0)")
    a(f"v_readfirstlane_b32 {sres}, v{vt+1}")
    a(f"s_and_b32 s9, {sres}, 0xffff")
    a(f"s_cmp_ge_u32 s9, {target}")
    lab2 = a.label("syncdone")
    a(f"s_cbranch_scc1 {lab2}")
    a("s_sleep 1")
    a(f"s_branch {lab}")
    a(f"{lab2}:")


AV_Q, AV_O, AV_C, AV_S, AV_P = 16, 32, 96, 160, 192
AV_K, AV_V = 200, 216
AV_KA, AV_VA = 2, 3
S_VMASK = 86


def mfma(d, A, B, C):
    return f"v_mfma_f32_32x32x16_bf16 {vr(d,16)}, {vr(A,4)}, {vr(B,4)}, {C if isinstance(C,str) else vr(C,16)}"


def attention(a):
    a.c("attention role")
    stamp(a, 0)
    a("s_setprio 3")
    a(f"s_and_b32 s80, s{S_WAVE}, 1", "kh")
    a(f"s_lshr_b32 s81, s{S_WAVE}, 1", "e")
    a(f"s_lshl_b32 s82, s{S_HP}, 1")
    a("s_add_u32 s82, s82, s81", "head")
    a(f"v_lshlrev_b32 v{AV_KA}, 4, v0")
    a("s_lshl_b32 s8, s81, 8")
    a(f"v_add_u32 v{AV_VA}, s8, v{AV_KA}", "V lane addr (+256 for head 1)")
    a(f"s_mov_b32 s{S_VMASK}, 0xffff")
    a(f"s_mov_b32 s{S_VMASK+1}, 0xffff")
    a("s_lshl_b32 s83, s82, 16")
    a(f"s_add_u32 s83, s83, {WS_K}", "K base (head)")
    a(f"s_lshl_b32 s84, s{S_HP}, 17")
    a(f"s_add_u32 s84, s84, {WS_V}", "V base (hp)")
    a("s_lshl_b32 s8, s82, 16")
    a(f"s_lshl_b32 s9, s{S_SL}, 12")
    a("s_add_u32 s8, s8, s9")
    a(f"s_add_u32 s8, s8, {WS_Q}")
    for i in range(4):
        a(f"buffer_load_dwordx4 {vr(AV_Q+4*i,4)}, v{AV_KA}, s[{R_WS}:{R_WS+3}], s8 offen offset:{i*1024}")
    a("v_and_b32 v4, 27, v0", "lane&31 with bit2 cleared")
    a("v_mov_b32 v5, 0x3f803f80")
    a("v_cmp_eq_u32 vcc, 16, v4")
    a("s_nop 1")
    a("v_cndmask_b32 v4, 0, v5, vcc")
    for r in range(32):
        a(f"v_mov_b32 v{AV_V+r}, v4")
    a("v_mov_b32 v1, 1")
    a("s_mov_b32 s88, 1", "T = number of key tiles for the max estimate")
    a("s_mov_b32 s89, 2", "sync target")
    lredo = a.label("redo")
    a(f"{lredo}:")
    a.c("max pass over s88 key tiles")
    for i in range(4):
        a(f"v_mov_b32 v{4+i}, 0xff800000")
    a("s_mov_b32 s8, s83")
    a("s_mov_b32 s9, s88")
    lmax = a.label("maxloop")
    a(f"{lmax}:")
    a(f"buffer_load_dwordx4 {vr(AV_K,4)}, v{AV_KA}, s[{R_WS}:{R_WS+3}], s8 offen")
    a("s_waitcnt vmcnt(0)")
    for i in range(4):
        a(mfma(AV_O + 16 * i, AV_K, AV_Q + 4 * i, "0"))
    a("s_nop 9")
    for i in range(4):
        for r in range(8):
            a(f"v_max3_f32 v{4+i}, v{AV_O+16*i+2*r}, v{AV_O+16*i+2*r+1}, v{4+i}")
    a("s_add_u32 s8, s8, 1024")
    a("s_sub_u32 s9, s9, 1")
    a("s_cmp_lg_u32 s9, 0")
    a(f"s_cbranch_scc1 {lmax}")
    stamp(a, 1)
    a("s_lshl_b32 s8, s80, 10")
    a("s_add_u32 s90, s83, s8", "K ptr")
    a("s_lshl_b32 s8, s80, 11")
    a("s_add_u32 s91, s84, s8", "V ptr")

    def kvload(buf):
        a(f"buffer_load_dwordx4 {vr(AV_K+4*buf,4)}, v{AV_KA}, s[{R_WS}:{R_WS+3}], s90 offen")
        a(f"s_mov_b64 exec, s[{S_VMASK}:{S_VMASK+1}]")
        a(f"buffer_load_dwordx4 {vr(AV_V+8*buf,4)}, v{AV_VA}, s[{R_WS}:{R_WS+3}], s91 offen")
        a(f"buffer_load_dwordx4 {vr(AV_V+8*buf+4,4)}, v{AV_VA}, s[{R_WS}:{R_WS+3}], s91 offen offset:1024")
        a("s_mov_b64 exec, -1")
        a("s_add_u32 s90, s90, 2048")
        a("s_add_u32 s91, s91, 4096")

    for n in range(3):
        kvload(n)
    for i in range(4):
        a(f"v_mov_b32 v{8+i}, v{4+i}")
    a("s_nop 1")
    for i in range(4):
        a(f"v_permlane32_swap_b32 v{4+i}, v{8+i}")
    a("s_nop 1")
    for i in range(4):
        a(f"v_max_f32 v{4+i}, v{4+i}, v{8+i}")
    for i in range(4):
        for r in range(16):
            a(f"v_sub_f32 v{AV_C+16*i+r}, 0, v{4+i}")
    for r in range(64):
        a(f"v_mov_b32 v{AV_O+r}, 0")
    for r in range(8):
        a(f"v_mov_b32 v{AV_P+r}, 0")
    a("s_waitcnt vmcnt(6)")
    a(mfma(AV_S, AV_K, AV_Q, AV_C))
    a("s_mov_b32 s92, 8")
    a("s_nop 10")
    lloop = a.label("attn")
    a(".p2align 6")
    a(f"{lloop}:")
    for u in range(16):
        n, i = u // 4, u % 4
        cur, nxt = AV_S + 16 * (u % 2), AV_S + 16 * ((u + 1) % 2)
        pn, pi = ((u - 1) % 16) // 4, (u - 1) % 4
        nn, ni = ((u + 1) % 16) // 4, (u + 1) % 4
        E = lambda r: a(f"v_exp_f32 v{cur+r}, v{cur+r}")
        C = lambda r: a(f"v_cvt_pk_bf16_f32 v{AV_P+r}, v{cur+2*r}, v{cur+2*r+1}")
        E(0)
        E(1)
        a(mfma(AV_O + 16 * pi, AV_V + 8 * pn + 4, AV_P + 4, AV_O + 16 * pi))
        if i == 1:
            buf = (n + 3) % 4
            E(2)
            a(f"buffer_load_dwordx4 {vr(AV_K+4*buf,4)}, v{AV_KA}, s[{R_WS}:{R_WS+3}], s90 offen")
            E(3)
            a(f"s_mov_b64 exec, s[{S_VMASK}:{S_VMASK+1}]")
            a(f"buffer_load_dwordx4 {vr(AV_V+8*buf,4)}, v{AV_VA}, s[{R_WS}:{R_WS+3}], s91 offen")
            a(f"buffer_load_dwordx4 {vr(AV_V+8*buf+4,4)}, v{AV_VA}, s[{R_WS}:{R_WS+3}], s91 offen offset:1024")
            a("s_mov_b64 exec, -1")
            E(4)
            a("s_add_u32 s90, s90, 2048")
            E(5)
            a("s_add_u32 s91, s91, 4096")
            E(6)
            E(7)
        else:
            for r in range(2, 8):
                E(r)
        if i == 3:
            a("s_waitcnt vmcnt(6)")
        a(mfma(nxt, AV_K + 4 * nn, AV_Q + 4 * ni, AV_C + 16 * ni))
        for r in range(4):
            C(r)
        for r in range(8, 12):
            E(r)
        a(mfma(AV_O + 16 * i, AV_V + 8 * n, AV_P, AV_O + 16 * i))
        for r in range(12, 16):
            E(r)
        if u == 15:
            a("s_sub_u32 s92, s92, 1")
            a("s_cmp_lg_u32 s92, 0")
        for r in range(4, 8):
            C(r)
    a(f"s_cbranch_scc1 {lloop}")
    a("s_nop 0")
    a(mfma(AV_O + 48, AV_V + 24 + 4, AV_P + 4, AV_O + 48))
    a("s_waitcnt vmcnt(0)")
    a("s_nop 10")
    stamp(a, 2)
    a.c("check + combine")
    a(f"v_max_f32 v4, v{AV_O+8}, v{AV_O+24}")
    a(f"v_max3_f32 v4, v{AV_O+40}, v{AV_O+56}, v4")
    a(f"v_add_f32 v5, v{AV_O+8}, v{AV_O+24}")
    a(f"v_add_f32 v6, v{AV_O+40}, v{AV_O+56}")
    a("v_add_f32 v5, v5, v6")
    a(f"v_mov_b32 v6, {f32bits(2.0**60)}")
    a("v_cmp_nlt_f32 vcc, v5, v6")
    a("s_cmp_lg_u64 vcc, 0")
    a("s_cselect_b32 s8, 0x10001, 1")
    a("v_mov_b32 v1, s8")
    a(f"s_mul_i32 s8, s{S_WAVE}, 4608")
    a(f"s_add_u32 s8, s8, {M_ATT}")
    a(f"v_add_u32 v4, s8, v{AV_KA}", "my send area + lane*16")
    a("v_lshlrev_b32 v5, 2, v0")
    a("v_add_u32 v5, s8, v5", "lane*4")
    a(f"s_xor_b32 s8, s{S_WAVE}, 1")
    a("s_mul_i32 s8, s8, 4608")
    a(f"s_add_u32 s8, s8, {M_ATT}")
    a(f"v_add_u32 v6, s8, v{AV_KA}", "partner area")
    a("v_lshlrev_b32 v7, 2, v0")
    a("v_add_u32 v7, s8, v7")
    lk1, ljoin = a.label("kh1"), a.label("khj")
    a("s_cmp_eq_u32 s80, 1")
    a(f"s_cbranch_scc1 {lk1}")
    for j in range(2):
        o = AV_O + 16 * (2 + j)
        a(f"ds_write_b128 v4, {vr(o,4)} offset:{j*2304}")
        a(f"ds_write_b128 v4, {vr(o+4,4)} offset:{j*2304+1024}")
        a(f"ds_write_b32 v5, v{o+8} offset:{j*2304+2048}")
    a(f"s_branch {ljoin}")
    a(f"{lk1}:")
    for j in range(2):
        o = AV_O + 16 * j
        a(f"ds_write_b128 v4, {vr(o,4)} offset:{j*2304}")
        a(f"ds_write_b128 v4, {vr(o+4,4)} offset:{j*2304+1024}")
        a(f"ds_write_b32 v5, v{o+8} offset:{j*2304+2048}")
    a("s_waitcnt lgkmcnt(0)")
    for j in range(2):
        for r in range(9):
            a(f"v_mov_b32 v{AV_O+16*j+r}, v{AV_O+16*(2+j)+r}")
    a(f"{ljoin}:")
    lab, lab2 = a.label("asy"), a.label("asyd")
    a("s_waitcnt lgkmcnt(0)")
    a("s_lshl_b32 s8, s81, 2")
    a(f"s_add_u32 s8, s8, {M_CNT}")
    a("v_mov_b32 v8, s8")
    a("s_mov_b64 exec, 1")
    a("ds_add_u32 v8, v1")
    a("s_mov_b64 exec, -1")
    a(f"{lab}:")
    a("ds_read_b32 v9, v8")
    a("s_waitcnt lgkmcnt(0)")
    a("v_readfirstlane_b32 s8, v9")
    a("s_and_b32 s9, s8, 0xffff")
    a("s_cmp_ge_u32 s9, s89")
    a(f"s_cbranch_scc1 {lab2}")
    a("s_sleep 1")
    a(f"s_branch {lab}")
    a(f"{lab2}:")
    lok = a.label("aok")
    a("s_lshr_b32 s9, s8, 16")
    a("s_cmp_eq_u32 s9, 0")
    a(f"s_cbranch_scc1 {lok}")
    a("s_cmp_lg_u32 s88, 1", "already on the exact path: accept")
    a(f"s_cbranch_scc1 {lok}")
    a("s_mov_b32 s88, 64")
    a("s_mov_b32 s89, 4")
    a(f"s_branch {lredo}")
    a(f"{lok}:")
    for j in range(2):
        t = AV_S + 16 * j
        a(f"ds_read_b128 {vr(t,4)}, v6 offset:{j*2304}")
        a(f"ds_read_b128 {vr(t+4,4)}, v6 offset:{j*2304+1024}")
        a(f"ds_read_b32 v{t+8}, v7 offset:{j*2304+2048}")
    a(f"s_lshl_b32 s8, s{S_SL}, 1")
    a("s_add_u32 s8, s8, s80")
    a("s_lshl_b32 s8, s8, 5")
    a("s_add_u32 s8, s8, s82")
    a("s_lshl_b32 s8, s8, 11")
    a(f"s_add_u32 s8, s8, {WS_O}")
    a("s_waitcnt lgkmcnt(0)")
    for j in range(2):
        for r in range(9):
            a(f"v_add_f32 v{AV_O+16*j+r}, v{AV_O+16*j+r}, v{AV_S+16*j+r}")
    for j in range(2):
        a(f"v_rcp_f32 v{AV_O+16*j+8}, v{AV_O+16*j+8}")
    a("s_nop 0")
    for j in range(2):
        for r in range(8):
            a(f"v_mul_f32 v{AV_O+16*j+r}, v{AV_O+16*j+r}, v{AV_O+16*j+8}")
        for r in range(4):
            a(f"v_cvt_pk_bf16_f32 v{AV_P+4*j+r}, v{AV_O+16*j+2*r}, v{AV_O+16*j+2*r+1}")
    for j in range(2):
        a(f"buffer_store_dwordx4 {vr(AV_P+4*j,4)}, v{AV_KA}, s[{R_WS}:{R_WS+3}], s8 offen offset:{j*1024}")


GV_ACC = 16
GV_ACC2 = 80
GV_D = 144
GV_T = 208
GV_DMA = 2
GV_TA = 5
GV_DA = 9
GV_MISC = 224
DEPTH = 8


def gemm_setup(a):
    a(f"s_and_b32 s80, s{S_WAVE}, 3", "w'")
    a("v_lshrrev_b32 v11, 3, v0")
    a("v_and_b32 v12, 7, v0")
    a("v_bfe_u32 v13, v0, 4, 1")
    a("v_lshlrev_b32 v13, 2, v13")
    a("v_xor_b32 v12, v12, v13")
    a("v_lshlrev_b32 v12, 4, v12")
    a(f"v_mul_u32_u24 v{GV_DMA}, 3584, v11")
    a(f"v_add_u32 v{GV_DMA}, v{GV_DMA}, v12")
    a(f"v_lshl_add_u32 v{GV_DMA+1}, v11, 12, v12")
    a(f"v_lshl_add_u32 v{GV_DMA+2}, v11, 10, v12")
    a("v_bfe_u32 v11, v0, 2, 2", "r")
    a("v_lshlrev_b32 v12, 7, v11")
    a("v_bfe_u32 v11, v0, 3, 1", "r>>1")
    a("v_lshl_add_u32 v12, v11, 6, v12")
    a("v_bfe_u32 v11, v0, 4, 1")
    a("v_lshl_add_u32 v12, v11, 5, v12")
    a("v_and_b32 v11, 3, v0")
    a("v_lshl_add_u32 v12, v11, 3, v12")
    a("s_lshl_b32 s81, s80, 14")
    if M_RING:
        a(f"s_add_u32 s81, s81, {M_RING}")
    a("v_add_u32 v12, s81, v12")
    a("v_lshrrev_b32 v11, 5, v0", "h'")
    a(f"v_lshl_add_u32 v{GV_TA}, v11, 10, v12", "G1 mapping rows 8h'+r")
    a(f"v_lshl_add_u32 v{GV_TA+2}, v11, 9, v12", "G2 mapping rows 4h'+r")
    a(f"v_xor_b32 v{GV_TA+3}, 64, v{GV_TA+2}")
    a("s_lshr_b32 s8, s80, 1")
    a("s_lshl_b32 s8, s8, 6")
    a(f"v_xor_b32 v{GV_TA}, s8, v{GV_TA}")
    a(f"v_xor_b32 v{GV_TA+1}, 64, v{GV_TA}")
    a("v_mov_b32 v1, 1")


class Stream:
    def __init__(self, a):
        self.a = a
        self.steps = []
        self.issued = 0

    def add(self, rsrc, vreg, sbase, nsteps, rowstride):
        for k in range(nsteps):
            self.steps.append((rsrc, vreg, sbase, k * 16 * rowstride, rowstride))

    def issue_upto(self, n):
        a = self.a
        while self.issued < min(n, len(self.steps)):
            k = self.issued
            rsrc, vreg, sbase, off, rs = self.steps[k]
            slot = k % DEPTH
            a(f"s_add_u32 m0, s81, {slot*2048}")
            a(f"s_add_u32 s8, s{sbase}, {off}")
            a.vmem(f"buffer_load_dwordx4 v{vreg}, s[{rsrc}:{rsrc+3}], s8 offen lds", f"T{k}")
            a(f"s_add_u32 m0, s81, {slot*2048+1024}")
            a(f"s_add_u32 s8, s{sbase}, {off + 8*rs}")
            a.vmem(f"buffer_load_dwordx4 v{vreg}, s[{rsrc}:{rsrc+3}], s8 offen lds", f"T{k}")
            self.issued += 1


def gemm_phase(a, st, k0, nsteps, sD, acc, t_is_A, ta, rd2, sc=""):
    def dload(k):
        buf = k % DEPTH
        a(f"s_add_u32 s8, s{sD}, {k*2048}")
        for x in range(2):
            a.vmem(f"buffer_load_dwordx4 {vr(GV_D+8*buf+4*x,4)}, v{GV_DA+x}, s[{R_WS}:{R_WS+3}], s8 offen {sc}", f"D{k0+k}")

    def tread(k):
        slot = (k0 + k) % DEPTH
        tb = GV_T + 8 * (k % 2)
        for x in range(2):
            a.lds(f"ds_read_b64_tr_b16 {vr(tb+4*x,2)}, v{ta+x} offset:{slot*2048}", f"tr{k}")
            a.lds(f"ds_read_b64_tr_b16 {vr(tb+4*x+2,2)}, v{ta+x} offset:{slot*2048+rd2}", f"tr{k}")

    st.issue_upto(k0 + DEPTH - 1)
    for k in range(min(DEPTH - 1, nsteps)):
        dload(k)
    a.vm_wait_if(f"T{k0}")
    tread(0)
    for k in range(nsteps):
        st.issue_upto(k0 + k + DEPTH)
        if k + DEPTH - 1 < nsteps:
            dload(k + DEPTH - 1)
        if k + 1 < nsteps:
            a.vm_wait_if(f"T{k0+k+1}")
            tread(k + 1)
        a.vm_wait_if(f"D{k0+k}")
        a.lg_wait(f"tr{k}")
        tb = GV_T + 8 * (k % 2)
        db = GV_D + 8 * (k % DEPTH)
        for x in range(2):
            for y in range(2):
                if t_is_A:
                    d = acc + 16 * (2 * x + y)
                    a(mfma(d, tb + 4 * x, db + 4 * y, d))
                else:
                    d = acc + 16 * (2 * y + x)
                    a(mfma(d, db + 4 * y, tb + 4 * x, d))


def g1(a, lskip):
    a.c("GEMM1")
    a(f"s_cmp_ge_u32 s{S_IDX}, 28")
    a(f"s_cbranch_scc1 {lskip}")
    stamp(a, 0)
    gemm_setup(a)
    a(f"s_and_b32 s8, s{S_XCD}, 1")
    a("s_lshl_b32 s8, s8, 2")
    a(f"s_and_b32 s9, s{S_IDX}, 3")
    a("s_add_u32 s82, s8, s9", "dt")
    a(f"s_lshr_b32 s8, s{S_XCD}, 1")
    a("s_mul_i32 s8, s8, 7")
    a(f"s_lshr_b32 s9, s{S_IDX}, 2")
    a("s_add_u32 s83, s8, s9", "ft")
    a(f"s_mul_i32 s84, s80, {512*3584}")
    a("s_lshl_b32 s8, s83, 7")
    a("s_add_u32 s84, s84, s8")
    a("s_lshl_b32 s85, s82, 18")
    a("s_lshl_b32 s8, s80, 16")
    a("s_add_u32 s85, s85, s8")
    if WS_H:
        a(f"s_add_u32 s85, s85, {WS_H}")
    a("s_and_b32 s8, s80, 1")
    a("s_lshl_b32 s8, s8, 10")
    a(f"v_lshlrev_b32 v{GV_DA}, 4, v0")
    a(f"v_add_u32 v{GV_DA}, s8, v{GV_DA}")
    a(f"v_xor_b32 v{GV_DA+1}, 1024, v{GV_DA}")
    a("v_lshrrev_b32 v11, 5, v0")
    a("v_lshlrev_b32 v11, 3, v11", "h'*8 bytes")
    a("s_lshl_b32 s8, s83, 7")
    a("s_lshr_b32 s9, s80, 1")
    a("s_lshl_b32 s9, s9, 6")
    a("s_add_u32 s8, s8, s9")
    for g in range(4):
        a.vmem(f"buffer_load_dwordx2 {vr(GV_MISC+2*g,2)}, v11, s[{R_B1}:{R_B1+3}], s8 offen offset:{16*g}", "b1")
    st = Stream(a)
    st.add(R_W1, GV_DMA, 84, 32, 3584)
    st.issue_upto(DEPTH - 1)
    for r in range(16, 64):
        a(f"v_mov_b32 v{GV_ACC+r}, 0")
    a.vm_wait("b1")
    for g in range(4):
        for hh in range(2):
            a(f"v_lshlrev_b32 v{GV_ACC+4*g+2*hh}, 16, v{GV_MISC+2*g+hh}")
            a(f"v_and_b32 v{GV_ACC+4*g+2*hh+1}, 0xffff0000, v{GV_MISC+2*g+hh}")
    stamp(a, 1)
    gemm_phase(a, st, 0, 32, 85, GV_ACC, True, GV_TA, 512)
    stamp(a, 2)
    a.c("G1 reduction")
    a("v_lshlrev_b32 v11, 4, v0")
    for v in range(1, 4):
        a(f"s_xor_b32 s8, s80, {v}")
        a("s_mul_i32 s8, s8, 12288")
        a(f"s_add_u32 s8, s8, {M_RED + (v-1)*4096}")
        a(f"v_add_u32 v{11+v}, s8, v11")
    a("s_mul_i32 s8, s80, 12288")
    a(f"s_add_u32 s8, s8, {M_RED}")
    a("v_add_u32 v15, s8, v11")
    a("s_nop 4")
    for v in range(1, 4):
        for q in range(4):
            a.lds(f"ds_write_b128 v{11+v}, {vr(GV_ACC+16*v+4*q,4)} offset:{q*1024}", "rw")
    lds_sync(a, M_CNT + 16, 4, GV_MISC, 1)
    for v in range(3):
        for q in range(4):
            a.lds(f"ds_read_b128 {vr(GV_ACC+16+16*v+4*q,4)}, v15 offset:{v*4096+q*1024}", f"rr{v}")
    for v in range(3):
        a.lg_wait(f"rr{v}")
        for r in range(16):
            a(f"v_add_f32 v{GV_ACC+r}, v{GV_ACC+r}, v{GV_ACC+16+16*v+r}")
    c0 = -2.0 * math.sqrt(2.0 / math.pi) * LOG2E
    c1 = c0 * 0.044715
    a(f"s_mov_b32 s8, {f32bits(c1)}")
    a(f"v_mov_b32 v12, {f32bits(c0)}")
    T = GV_ACC + 16
    for r in range(16):
        a(f"v_mul_f32 v{T+r}, v{GV_ACC+r}, v{GV_ACC+r}")
    for r in range(16):
        a(f"v_fma_f32 v{T+r}, v{T+r}, s8, v12")
    for r in range(16):
        a(f"v_mul_f32 v{T+r}, v{T+r}, v{GV_ACC+r}")
    for r in range(16):
        a(f"v_exp_f32 v{T+r}, v{T+r}")
    for r in range(16):
        a(f"v_add_f32 v{T+r}, 1.0, v{T+r}")
    for r in range(16):
        a(f"v_rcp_f32 v{T+r}, v{T+r}")
    for r in range(16):
        a(f"v_mul_f32 v{T+r}, v{T+r}, v{GV_ACC+r}")
    for r in range(8):
        a(f"v_cvt_pk_bf16_f32 v{GV_ACC+r}, v{T+2*r}, v{T+2*r+1}")
    a("s_mul_i32 s8, s82, 112")
    a("s_lshl_b32 s9, s83, 2")
    a("s_add_u32 s8, s8, s9")
    a("s_and_b32 s9, s80, 2")
    a("s_add_u32 s8, s8, s9")
    a("s_lshl_b32 s8, s8, 11")
    a(f"s_add_u32 s8, s8, {WS_U}")
    a.vmem(f"buffer_store_dwordx4 {vr(GV_ACC,4)}, v{GV_DA}, s[{R_WS}:{R_WS+3}], s8 offen", "ust")
    a.vmem(f"buffer_store_dwordx4 {vr(GV_ACC+4,4)}, v{GV_DA}, s[{R_WS}:{R_WS+3}], s8 offen offset:2048", "ust")


def g2(a):
    a.c("GEMM2")
    stamp(a, 0)
    gemm_setup(a)
    a(f"s_lshl_b32 s8, s{S_XCD}, 2")
    a(f"s_and_b32 s9, s{S_IDX}, 3")
    a("s_add_u32 s82, s8, s9", "st")
    a(f"s_lshr_b32 s83, s{S_IDX}, 2", "dt")
    a(f"s_mul_i32 s84, s80, {448*4096}")
    a("s_lshl_b32 s8, s82, 7")
    a("s_add_u32 s84, s84, s8")
    a("s_lshl_b32 s86, s80, 17")
    a("s_lshl_b32 s8, s83, 7")
    a("s_add_u32 s86, s86, s8")
    a("s_mul_i32 s85, s83, 112")
    a("s_mul_i32 s8, s80, 28")
    a("s_add_u32 s85, s85, s8")
    a("s_lshl_b32 s85, s85, 11")
    a(f"s_add_u32 s85, s85, {WS_U}")
    a("s_lshl_b32 s87, s82, 16")
    a("s_lshl_b32 s8, s80, 14")
    a("s_add_u32 s87, s87, s8")
    a(f"s_add_u32 s87, s87, {WS_O}")
    a(f"v_lshlrev_b32 v{GV_DA}, 4, v0")
    a(f"v_add_u32 v{GV_DA+1}, 1024, v{GV_DA}")
    a("v_and_b32 v11, 31, v0")
    a("v_lshlrev_b32 v12, 1, v11")
    a("v_lshlrev_b32 v13, 2, v11")
    a("s_lshl_b32 s8, s82, 7")
    a("s_lshl_b32 s9, s82, 8")
    a(f"s_add_u32 s9, s9, {WS_G}")
    for b in range(2):
        a.vmem(f"buffer_load_ushort v{GV_MISC+b}, v12, s[{R_B2}:{R_B2+3}], s8 offen offset:{64*b}", "b2")
        a.vmem(f"buffer_load_dword v{GV_MISC+2+b}, v13, s[{R_WS}:{R_WS+3}], s9 offen offset:{128*b}", "b2")
    st = Stream(a)
    st.add(R_W2, GV_DMA + 1, 84, 28, 4096)
    st.add(R_WO, GV_DMA + 2, 86, 8, 1024)
    st.issue_upto(DEPTH - 1)
    for r in range(64):
        a(f"v_mov_b32 v{GV_ACC2+r}, 0")
    a.vm_wait("b2")
    for b in range(2):
        a(f"v_lshlrev_b32 v{GV_MISC+b}, 16, v{GV_MISC+b}")
        a(f"v_mul_f32 v{GV_MISC+b}, 0.25, v{GV_MISC+b}") if False else None
    a(f"s_mov_b32 s8, {f32bits(0.25)}")
    for b in range(2):
        a(f"v_mul_f32 v{GV_MISC+b}, s8, v{GV_MISC+b}")
        a(f"v_sub_f32 v{GV_MISC+4+b}, 1.0, v{GV_MISC+2+b}", "1-g")
    for aa in range(2):
        for b in range(2):
            for r in range(16):
                a(f"v_mov_b32 v{GV_ACC+16*(2*aa+b)+r}, v{GV_MISC+b}")
    stamp(a, 1)
    gemm_phase(a, st, 0, 28, 85, GV_ACC, False, GV_TA + 2, 1024)
    stamp(a, 2)
    gemm_phase(a, st, 28, 8, 87, GV_ACC2, True, GV_TA + 2, 1024)
    stamp(a, 3)
    a.c("combine + final reduction")
    for aa in range(2):
        for b in range(2):
            for r in range(16):
                i = 16 * (2 * aa + b) + r
                a(f"v_mul_f32 v{GV_ACC+i}, v{GV_ACC+i}, v{GV_MISC+4+b}")
    for aa in range(2):
        for b in range(2):
            for r in range(16):
                i = 16 * (2 * aa + b) + r
                a(f"v_fmac_f32 v{GV_ACC+i}, v{GV_ACC2+i}, v{GV_MISC+2+b}")
    a("v_and_b32 v11, 31, v0")
    a("v_mul_u32_u24 v11, 272, v11")
    a("v_lshrrev_b32 v12, 5, v0")
    a("v_lshl_add_u32 v11, v12, 4, v11")
    a("s_mul_i32 s8, s80, 17408")
    a(f"s_add_u32 s8, s8, {M_RED}")
    a("v_add_u32 v11, s8, v11")
    for aa in range(2):
        for b in range(2):
            for g in range(4):
                a.lds(f"ds_write_b128 v11, {vr(GV_ACC+16*(2*aa+b)+4*g,4)} offset:{b*32*272 + aa*128 + g*32}", "fw")
            if b == 1:
                a.lg_drain()
    lds_sync(a, M_CNT + 20, 4, GV_MISC + 8, 1)
    a("v_lshrrev_b32 v11, 3, v0")
    a("v_mul_u32_u24 v12, 272, v11")
    a("v_and_b32 v13, 7, v0")
    a("v_lshl_add_u32 v12, v13, 5, v12")
    a(f"s_mul_i32 s8, s80, {16*272}")
    a(f"s_add_u32 s8, s8, {M_RED}")
    a("v_add_u32 v12, s8, v12")
    for m in range(2):
        for p in range(4):
            for hh in range(2):
                a.lds(f"ds_read_b128 {vr(GV_ACC+32*m+8*p+4*hh,4)}, v12 offset:{p*17408 + m*8*272 + hh*16}", f"fr{m}")
        if m == 0:
            pass
    a("v_lshlrev_b32 v11, 10, v11")
    a("v_lshl_add_u32 v11, v13, 4, v11")
    a("s_lshl_b32 s8, s82, 16")
    a("s_lshl_b32 s9, s80, 14")
    a("s_add_u32 s8, s8, s9")
    a("s_lshl_b32 s9, s83, 7")
    a("s_add_u32 s8, s8, s9")
    a("s_add_u32 s9, s8, 8192")
    for m in range(2):
        a.lg_wait(f"fr{m}")
        B = GV_ACC + 32 * m
        for r in range(8):
            a(f"v_add_f32 v{B+r}, v{B+r}, v{B+8+r}")
            a(f"v_add_f32 v{B+16+r}, v{B+16+r}, v{B+24+r}")
        for r in range(8):
            a(f"v_add_f32 v{B+r}, v{B+r}, v{B+16+r}")
        for r in range(4):
            a(f"v_cvt_pk_bf16_f32 v{B+8+r}, v{B+2*r}, v{B+2*r+1}")
        a.vmem(f"buffer_store_dwordx4 {vr(B+8,4)}, v11, s[{R_OUT}:{R_OUT+3}], s{8+m} offen", "ost")


def zero_counters(a):
    a(f"v_lshlrev_b32 v1, 2, v0")
    a(f"v_add_u32 v1, {M_CNT}, v1")
    a("v_mov_b32 v2, 0")
    a("ds_write_b32 v1, v2")
    a("s_waitcnt lgkmcnt(0)")
    a("s_barrier")


def kernel_header(a, name):
    a(".text")
    a(f".globl {name}")
    a(".p2align 8")
    a(f".type {name},@function")
    a(f"{name}:")


def descriptor(name, vgpr=256):
    return f""".section .rodata,"a"
.p2align 6
.amdhsa_kernel {name}
  .amdhsa_next_free_vgpr {vgpr}
  .amdhsa_next_free_sgpr 102
  .amdhsa_accum_offset {vgpr}
  .amdhsa_group_segment_fixed_size 0
  .amdhsa_kernarg_size 96
  .amdhsa_user_sgpr_count 2
  .amdhsa_user_sgpr_kernarg_segment_ptr 1
  .amdhsa_system_sgpr_workgroup_id_x 1
.end_amdhsa_kernel
"""


def build():
    head = f"""; generated by gen/gen1.py
; @launch kernel=k1_kernel grid=(256,1,1) block=(512,1,1) lds={LDS_TOTAL}
; @launch kernel=k2_kernel grid=(256,1,1) block=(512,1,1) lds={LDS_TOTAL}
; @launch kernel=k3_kernel grid=(256,1,1) block=(256,1,1) lds={LDS_TOTAL}
.amdgcn_target "amdgcn-amd-amdhsa--gfx950"
"""
    a = Asm()
    kernel_header(a, "k1_kernel")
    prologue(a, "L_k1_exit")
    a(f"s_cmp_ge_u32 s{S_WAVE}, 4")
    a("s_cbranch_scc1 L_k1_b")
    a.vm, a.lg = [], []
    proj(a, 0)
    stamp(a, 11)
    a.vm_drain()
    stamp(a, 12)
    a("s_endpgm")
    a("L_k1_b:")
    a.vm, a.lg = [], []
    proj(a, 1)
    stamp(a, 11)
    a.vm_drain()
    stamp(a, 12)
    a("L_k1_exit:")
    a("s_endpgm")
    KIDX[0] = 1
    kernel_header(a, "k2_kernel")
    prologue(a, "L_k2_exit")
    zero_counters(a)
    a(f"s_cmp_ge_u32 s{S_WAVE}, 4")
    a("s_cbranch_scc1 L_k2_b")
    a.vm, a.lg = [], []
    attention(a)
    stamp(a, 3)
    a.vm_drain()
    stamp(a, 4)
    a("s_endpgm")
    a("L_k2_b:")
    a.vm, a.lg = [], []
    g1(a, "L_k2_exit")
    stamp(a, 3)
    a.vm_drain()
    stamp(a, 4)
    a("L_k2_exit:")
    a("s_endpgm")
    KIDX[0] = 2
    kernel_header(a, "k3_kernel")
    prologue(a, "L_k3_exit")
    zero_counters(a)
    a.vm, a.lg = [], []
    g2(a)
    stamp(a, 4)
    a.vm_drain()
    stamp(a, 5)
    a("L_k3_exit:")
    a("s_endpgm")
    return head + a.text() + descriptor("k1_kernel") + descriptor("k2_kernel") + descriptor("k3_kernel")


if __name__ == "__main__":
    out = sys.argv[1] if len(sys.argv) > 1 else f"cdna_kernels/{NAME}.s"
    if "stamps" in sys.argv:
        STAMPS = True
    open(out, "w").write(build())
    print("wrote", out)
```

```python
import math
import sys
from asmlib import Asm, vr, sr, f32bits

NAME = "gated_mix__mha_block__mixer_token_mlp__prompt"

OPT = dict(stamps=False, depth=4, prio_att=2)

WS_H = 0x000000
WS_K = 0x200000
WS_V = 0x400000
WS_U = 0x800000
WS_O = 0xA00000
WS_G = 0xC00000
WS_FH = 0xC10000
WS_FKV = 0xC11000
WS_FU = 0xC14000
WS_FO = 0xC18000
WS_STAMP = 0xD00000
WS_SIZE = 0x1000000

S_WAVE, S_XCD, S_IDX, S_HP, S_SL = 3, 4, 5, 6, 7
S_TAG = 14
R_X, R_WQKV, R_WO, R_W1, R_W2, R_WS, R_OUT, R_B1, R_B2, R_GW = 40, 44, 48, 52, 56, 60, 64, 68, 72, 76
R_DBG = 92
LOG2E = math.log2(math.e)

P_XS = 0
P_WS = 49152
P_LN = 86016
L_Q = 95232
L_K = L_Q + 8192
L_V = L_K + 8192
M_RING = L_V + 8192
M_CNT = M_RING + 32768
M_RED = 0
M_ATT = 69632
LDS_TOTAL = 163840
assert M_ATT + 18432 <= L_Q and M_CNT + 256 <= LDS_TOTAL


def stamp(a, idx):
    if not OPT["stamps"]:
        return
    a("s_memrealtime s[98:99]")
    a("s_memtime s[100:101]")
    a("s_lshl_b32 s97, s2, 3")
    a(f"s_add_u32 s97, s97, s{S_WAVE}")
    a("s_lshl_b32 s97, s97, 7")
    a(f"s_add_u32 s97, s97, {WS_STAMP + idx*8}")
    a("s_waitcnt lgkmcnt(0)")
    a.lg = []
    a("v_mov_b32 v254, s98")
    a("v_mov_b32 v255, s100")
    a("v_mov_b32 v253, 0")
    a("s_mov_b64 exec, 1")
    a.vmem(f"buffer_store_dwordx2 v[254:255], v253, s[{R_WS}:{R_WS+3}], s97 offen", "stamp")
    a("s_mov_b64 exec, -1")


def srd(a, r, ptr, nbytes):
    a(f"s_mov_b32 s{r}, s{ptr}")
    a(f"s_mov_b32 s{r+1}, s{ptr+1}")
    a(f"s_mov_b32 s{r+2}, {nbytes:#x}")
    a(f"s_mov_b32 s{r+3}, 0x00020000")


def rs(r):
    return f"s[{r}:{r+3}]"


def mfma(d, A, B, C):
    return f"v_mfma_f32_32x32x16_bf16 {vr(d,16)}, {vr(A,4)}, {vr(B,4)}, {C if isinstance(C,str) else vr(C,16)}"


def prologue(a, lexit):
    a("s_cmp_ge_u32 s2, 256")
    a(f"s_cbranch_scc1 {lexit}")
    a("s_load_dwordx16 s[16:31], s[0:1], 0")
    a("s_load_dwordx8 s[32:39], s[0:1], 64")
    a("s_memrealtime s[12:13]")
    a("v_lshrrev_b32 v1, 6, v0")
    a("v_and_b32 v0, 63, v0")
    a(f"v_readfirstlane_b32 s{S_WAVE}, v1")
    a(f"s_and_b32 s{S_XCD}, s2, 7")
    a(f"s_lshr_b32 s{S_IDX}, s2, 3")
    a(f"s_and_b32 s8, s{S_XCD}, 3")
    a("s_lshl_b32 s8, s8, 2")
    a(f"s_and_b32 s9, s{S_IDX}, 3")
    a(f"s_add_u32 s{S_HP}, s8, s9")
    a(f"s_lshr_b32 s8, s{S_XCD}, 2")
    a("s_lshl_b32 s8, s8, 3")
    a(f"s_lshr_b32 s9, s{S_IDX}, 2")
    a(f"s_add_u32 s{S_SL}, s8, s9")
    a("s_waitcnt lgkmcnt(0)")
    srd(a, R_DBG, 36, 256)
    lab = a.label("notag")
    a(f"s_or_b32 s8, s2, s{S_WAVE}")
    a("s_cmp_lg_u32 s8, 0")
    a(f"s_cbranch_scc1 {lab}")
    a("s_or_b32 s8, s12, 1")
    a("v_mov_b32 v2, s8")
    a("v_mov_b32 v3, s13")
    a("v_mov_b32 v1, 0")
    a("s_mov_b64 exec, 1")
    a(f"buffer_store_dwordx2 v[2:3], v1, {rs(R_DBG)}, 0 offen sc1")
    a("s_mov_b64 exec, -1")
    a(f"{lab}:")
    srd(a, R_X, 16, 2048 * 512 * 2)
    srd(a, R_WQKV, 18, 512 * 1536 * 2)
    srd(a, R_GW, 32, 512 * 2)
    srd(a, R_WS, 38, WS_SIZE)


def late_srds(a):
    srd(a, R_WO, 20, 512 * 512 * 2)
    srd(a, R_W1, 24, 2048 * 1792 * 2)
    srd(a, R_B1, 26, 1792 * 2)
    srd(a, R_W2, 28, 1792 * 2048 * 2)
    srd(a, R_B2, 30, 2048 * 2)
    srd(a, R_OUT, 34, 2048 * 512 * 2)


def wave_reduce_add(a, regs):
    steps = ["row_shr:1 row_mask:0xf bank_mask:0xf bound_ctrl:0",
             "row_shr:2 row_mask:0xf bank_mask:0xf bound_ctrl:0",
             "row_shr:4 row_mask:0xf bank_mask:0xf bound_ctrl:0",
             "row_shr:8 row_mask:0xf bank_mask:0xf bound_ctrl:0",
             "row_bcast:15 row_mask:0xa bank_mask:0xf",
             "row_bcast:31 row_mask:0xc bank_mask:0xf"]
    for st in steps:
        a("s_nop 1" if len(regs) == 1 else "s_nop 0")
        for r in regs:
            a(f"v_add_f32_dpp v{r}, v{r}, v{r} {st}")
    a("s_nop 1")


def ln_issue(a):
    a.c("LN loads")
    a(f"s_lshl_b32 s8, s{S_SL}, 7")
    a(f"s_lshl_b32 s9, s{S_HP}, 3")
    a("s_add_u32 s80, s8, s9", "s80 = row0")
    a(f"s_add_u32 s8, s80, s{S_WAVE}")
    a("s_lshl_b32 s8, s8, 10")
    a("v_lshlrev_b32 v1, 4, v0", "lane*16")
    a.vmem(f"buffer_load_dwordx4 v[2:5], v1, {rs(R_X)}, s8 offen", "ln")
    a.vmem(f"buffer_load_dwordx4 v[6:9], v1, {rs(R_GW)}, 0 offen", "ln")


def ln_compute(a):
    a.c("LN compute")
    a.vm_wait("ln")
    for i in range(4):
        a(f"v_lshlrev_b32 v{10+2*i}, 16, v{2+i}")
        a(f"v_and_b32 v{11+2*i}, 0xffff0000, v{2+i}")
        a(f"v_lshlrev_b32 v{18+2*i}, 16, v{6+i}")
        a(f"v_and_b32 v{19+2*i}, 0xffff0000, v{6+i}")
    a("v_add_f32 v26, v10, v11")
    a("v_mul_f32 v27, v10, v18")
    for i in range(1, 8):
        if i >= 2:
            a(f"v_add_f32 v26, v26, v{10+i}")
        a(f"v_fmac_f32 v27, v{10+i}, v{18+i}")
    a("s_nop 0")
    wave_reduce_add(a, [26, 27])
    a("v_readlane_b32 s8, v26, 63")
    a("v_readlane_b32 s9, v27, 63")
    a(f"v_mov_b32 v28, {f32bits(1.0/512)}")
    a(f"v_mov_b32 v40, {f32bits(-LOG2E)}")
    a("v_mul_f32 v28, s8, v28", "mean")
    a("v_mul_f32 v40, s9, v40")
    for i in range(8):
        a(f"v_sub_f32 v{10+i}, v{10+i}, v28")
    a("v_exp_f32 v40, v40")
    a("v_mul_f32 v26, v10, v10")
    for i in range(1, 8):
        a(f"v_fmac_f32 v26, v{10+i}, v{10+i}")
    wave_reduce_add(a, [26])
    a("v_readlane_b32 s8, v26, 63")
    a("v_add_f32 v40, 1.0, v40")
    a(f"v_mov_b32 v28, {f32bits(1.0/512)}")
    a(f"v_mov_b32 v29, {f32bits(1e-5)}")
    a("v_fma_f32 v28, s8, v28, v29", "var + eps")
    a("v_rsq_f32 v28, v28")
    a("v_rcp_f32 v40, v40", "g")
    for i in range(8):
        a(f"v_mul_f32 v{10+i}, v{10+i}, v28")
    for i in range(4):
        a(f"v_cvt_pk_bf16_f32 v{18+i}, v{10+2*i}, v{11+2*i}")
    a("v_mul_u32_u24 v30, 144, v0")
    a(f"s_lshl_b32 s8, s{S_WAVE}, 1")
    a(f"s_add_u32 s8, s8, {P_LN}")
    a("v_add_u32 v30, s8, v30")
    for i in range(4):
        a.lds(f"ds_write_b16 v30, v{18+i} offset:{32*i}", "lnw")
        a.lds(f"ds_write_b16_d16_hi v30, v{18+i} offset:{32*i+16}", "lnw")


def ln_store(a):
    a.c("LN store")
    a("v_lshrrev_b32 v30, 3, v0")
    a("v_mul_u32_u24 v30, 144, v30")
    a("v_and_b32 v31, 7, v0")
    a("v_lshl_add_u32 v30, v31, 4, v30")
    a(f"s_mul_i32 s8, s{S_WAVE}, {8*144}")
    a(f"s_add_u32 s8, s8, {P_LN}")
    a("v_add_u32 v30, s8, v30")
    a.lds("ds_read_b128 v[32:35], v30", "lnr")
    a("v_lshrrev_b32 v31, 5, v0")
    a("v_lshlrev_b32 v31, 10, v31")
    a("v_and_b32 v36, 31, v0")
    a("v_lshl_add_u32 v31, v36, 4, v31")
    a(f"s_lshl_b32 s8, s{S_WAVE}, 18")
    a("s_lshr_b32 s9, s80, 4")
    a("s_lshl_b32 s9, s9, 11")
    a("s_add_u32 s8, s8, s9")
    a("s_and_b32 s9, s80, 8")
    a("s_lshl_b32 s9, s9, 6")
    a("s_add_u32 s8, s8, s9")
    a(f"s_add_u32 s9, s80, s{S_WAVE}")
    a("s_lshl_b32 s9, s9, 2")
    a(f"s_add_u32 s9, s9, {WS_G}")
    a("v_mov_b32 v36, 0")
    a.lg_wait("lnr")
    a.vmem(f"buffer_store_dwordx4 v[32:35], v31, {rs(R_WS)}, s8 offen sc1", "hst")
    a("s_mov_b64 exec, 1")
    a.vmem(f"buffer_store_dword v40, v36, {rs(R_WS)}, s9 offen sc1", "hst")
    a("s_mov_b64 exec, -1")
    a.vmem(f"buffer_load_dwordx2 v[42:43], v36, {rs(R_DBG)}, 0 offen sc1", "tag")


SPIN = 200000


def spin_guard(a, lab):
    a("s_sub_u32 s17, s17, 1")
    a("s_cmp_lg_u32 s17, 0")
    a(f"s_cbranch_scc1 {lab}")
    a("s_endpgm")


def tag_get(a):
    l1, l2 = a.label("tagl"), a.label("tagok")
    a(f"s_mov_b32 s17, {SPIN}")
    a(f"{l1}:")
    a(f"v_readfirstlane_b32 s{S_TAG}, v42")
    a(f"v_readfirstlane_b32 s{S_TAG+1}, v43")
    a(f"s_cmp_lg_u32 s{S_TAG}, 0")
    a(f"s_cbranch_scc1 {l2}")
    a(f"buffer_load_dwordx2 v[42:43], v36, {rs(R_DBG)}, 0 offen sc1")
    a("s_waitcnt vmcnt(0)")
    spin_guard(a, l1)
    a(f"{l2}:")


def flag_set(a, soff, vz, vt):
    a(f"v_mov_b32 v{vt}, s{S_TAG}")
    a(f"v_mov_b32 v{vt+1}, s{S_TAG+1}")
    a(f"v_mov_b32 v{vz}, 0")
    a("s_mov_b64 exec, 1")
    a.vmem(f"buffer_store_dwordx2 v[{vt}:{vt+1}], v{vz}, {rs(R_WS)}, {soff} offen sc1", "flag")
    a("s_mov_b64 exec, -1")


def flag_wait(a, soff, vaddr, vt, mask_lo, mask_hi, sleep=2):
    l1, l2 = a.label("poll"), a.label("pollok")
    a(f"s_mov_b32 s17, {SPIN}")
    a(f"{l1}:")
    a(f"buffer_load_dwordx2 v[{vt}:{vt+1}], v{vaddr}, {rs(R_WS)}, {soff} offen sc1")
    a("s_waitcnt vmcnt(0)")
    a.vm = []
    a(f"v_cmp_ne_u64 vcc, s[{S_TAG}:{S_TAG+1}], v[{vt}:{vt+1}]")
    a(f"s_and_b32 s10, vcc_lo, {mask_lo}")
    a(f"s_and_b32 s11, vcc_hi, {mask_hi}")
    a("s_or_b32 s10, s10, s11")
    a("s_cmp_eq_u32 s10, 0")
    a(f"s_cbranch_scc1 {l2}")
    a(f"s_sleep {sleep}")
    spin_guard(a, l1)
    a(f"{l2}:")


def lds_arrive(a, cnt_off, vt, vone):
    a.lg_drain()
    a(f"v_mov_b32 v{vt}, {cnt_off}")
    a("s_mov_b64 exec, 1")
    a(f"ds_add_u32 v{vt}, v{vone}")
    a("s_mov_b64 exec, -1")


def lds_wait(a, cnt_off, target, vt):
    lab, lab2 = a.label("sy"), a.label("syd")
    a(f"v_mov_b32 v{vt}, {cnt_off}")
    a(f"s_mov_b32 s17, {SPIN*8}")
    a(f"{lab}:")
    a(f"ds_read_b32 v{vt+1}, v{vt}")
    a("s_waitcnt lgkmcnt(0)")
    a.lg = []
    a(f"v_readfirstlane_b32 s8, v{vt+1}")
    a(f"s_cmp_ge_u32 s8, {target}")
    a(f"s_cbranch_scc1 {lab2}")
    a("s_sleep 1")
    spin_guard(a, lab)
    a(f"{lab2}:")


AV_Q, AV_O, AV_C, AV_S, AV_P = 16, 32, 96, 160, 192
AV_K, AV_V = 200, 212
AV_KA, AV_VA = 2, 3
R_K, R_V = 84, 88

GV_ACC, GV_D, GV_WO, GV_T, GV_Y, GV_MISC = 16, 80, 144, 208, 224, 240
GV_DMA = 2
GV_TA = 5
GV_DA = 9


def proj(a, par):
    a.c(f"projection role {par}")
    if par == 0:
        ACC, XF, WF, XA, WA, DMA = 96, 112, 128, 160, 164, 166
    else:
        ACC, XF, WF, XA, WA, DMA = 80, 112, 128, 160, 164, 166
    a(f"s_and_b32 s81, s{S_WAVE}, 3", "t = wave&3")
    a(f"s_and_b32 s8, s{S_IDX}, 3")
    a("s_lshl_b32 s8, s8, 1")
    a(f"s_lshr_b32 s9, s{S_IDX}, 2")
    a("s_add_u32 s85, s8, s9", "chunk cursor")
    if par == 0:
        a("v_lshrrev_b32 v41, 3, v0")
        a("v_lshlrev_b32 v41, 10, v41")
        a("v_and_b32 v42, 7, v0")
        a("v_lshrrev_b32 v43, 4, v0")
        a("v_xor_b32 v42, v42, v43")
        a(f"v_lshl_add_u32 v{DMA}, v42, 4, v41")
        a("v_xor_b32 v42, 4, v42")
        a(f"v_lshl_add_u32 v{DMA+1}, v42, 4, v41")
        a(f"v_add_u32 v{DMA+2}, {2*7168}, v{DMA}")
        a(f"v_add_u32 v{DMA+3}, {3*7168}, v{DMA+1}")
        a(f"v_add_u32 v{DMA+1}, {7168}, v{DMA+1}")
        a(f"s_lshl_b32 s82, s{S_SL}, 17")
        a("s_lshl_b32 s8, s81, 15")
        a("s_add_u32 s82, s82, s8")
        a("s_lshl_b32 s83, s81, 12")
    else:
        a("v_lshrrev_b32 v41, 2, v0")
        a("v_mul_u32_u24 v41, 3072, v41")
        a("v_and_b32 v42, 3, v0")
        a(f"v_lshl_add_u32 v{DMA}, v42, 4, v41")
        a(f"s_mul_i32 s82, s81, {16*3072}")
        a(f"s_lshl_b32 s8, s{S_HP}, 6")
        a("s_add_u32 s82, s82, s8")
        a("s_mul_i32 s83, s81, 3072")
        a(f"s_add_u32 s83, s83, {P_WS}")

    def issue(c):
        slot = c % 3
        a("s_and_b32 s8, s85, 7")
        a("s_add_u32 s85, s85, 1")
        if par == 0:
            a("s_lshl_b32 s8, s8, 7")
            a(f"s_add_u32 m0, s83, {P_XS + slot*16384}")
            a("s_add_u32 s8, s8, s82")
            for q in range(4):
                a.vmem(f"buffer_load_dwordx4 v{DMA+q}, {rs(R_X)}, s8 offen offset:{q*1024} lds", f"ch{c}")
        else:
            a(f"s_mul_i32 s8, s8, {64*3072}")
            a(f"s_add_u32 m0, s83, {slot*12288}")
            a("s_add_u32 s8, s8, s82")
            for seg in range(3):
                a.vmem(f"buffer_load_dwordx4 v{DMA}, {rs(R_WQKV)}, s8 offen offset:{seg*1024} lds", f"ch{c}")

    stamp(a, 0)
    ln_issue(a)
    issue(0)
    issue(1)
    late_srds(a)
    a("v_lshlrev_b32 v41, 2, v0")
    a(f"v_add_u32 v41, {M_CNT}, v41")
    a("v_mov_b32 v42, 0")
    a.lds("ds_write_b32 v41, v42", "cz")
    a.c("lds read addresses")
    a("v_and_b32 v41, 31, v0", "i")
    a("v_lshrrev_b32 v42, 5, v0", "h'")
    a("v_bfe_u32 v43, v0, 1, 3", "(i>>1)&7")
    a("v_xor_b32 v44, v42, v43")
    a("v_lshlrev_b32 v45, 7, v41")
    a("s_lshl_b32 s8, s81, 12")
    a("v_add_u32 v45, s8, v45")
    a(f"v_lshl_add_u32 v{XA}, v44, 4, v45")
    for ks in range(1, 4):
        a(f"v_xor_b32 v{XA+ks}, {32*ks}, v{XA}")
    a("v_lshlrev_b32 v44, 9, v42")
    a("v_bfe_u32 v45, v0, 2, 2")
    a("v_lshl_add_u32 v44, v45, 6, v44")
    a("v_bfe_u32 v45, v0, 4, 1")
    a("v_lshl_add_u32 v44, v45, 5, v44")
    a("v_and_b32 v45, 3, v0")
    a("v_lshl_add_u32 v44, v45, 3, v44")
    a(f"v_add_u32 v{WA}, {P_WS}, v44")
    nacc = 16 if par == 0 else 32
    for r in range(nacc):
        a(f"v_mov_b32 v{ACC+r}, 0")
    ln_compute(a)
    stamp(a, 1)
    for c in range(8):
        slot = c % 3
        a.c(f"chunk {c}")
        a.vm_wait(f"ch{c}")
        if c == 0:
            a.lg_drain()
        a("s_barrier")
        if c == 0:
            stamp(a, 2)
        segs = [0] if par == 0 else [1, 2]
        for ks in range(4):
            a.lds(f"ds_read_b128 {vr(XF+4*ks,4)}, v{XA+ks} offset:{P_XS + slot*16384}", f"r{ks}")
            for si, seg in enumerate(segs):
                off = slot * 12288 + ks * 3072 + seg * 1024
                w = WF + 8 * ks + 4 * si
                a.lds(f"ds_read_b64_tr_b16 {vr(w,2)}, v{WA} offset:{off}", f"r{ks}")
                a.lds(f"ds_read_b64_tr_b16 {vr(w+2,2)}, v{WA} offset:{off+256}", f"r{ks}")
            if par == 1 and ks == 2:
                a.lg_wait("r0")
                a(mfma(ACC, WF, XF, ACC))
                a(mfma(ACC + 16, XF, WF + 4, ACC + 16))
        for ks in range(4):
            if par == 1 and ks == 0:
                continue
            a.lg_wait(f"r{ks}")
            if par == 0:
                a(mfma(ACC, WF + 8 * ks, XF + 4 * ks, ACC))
            else:
                a(mfma(ACC, WF + 8 * ks, XF + 4 * ks, ACC))
                a(mfma(ACC + 16, XF + 4 * ks, WF + 8 * ks + 4, ACC + 16))
        if c == 0:
            ln_store(a)
        if c == 2:
            tag_get(a)
            if par == 1:
                lab = a.label("nofh")
                a("s_cmp_lg_u32 s81, 0")
                a(f"s_cbranch_scc1 {lab}")
                a(f"s_add_u32 s8, s80, {WS_FH}", "row0/8*8")
                n0 = len(a.vm)
                flag_set(a, "s8", 44, 46)
                a.vm = a.vm[:n0]
                a(f"{lab}:")
        if c + 2 < 8:
            issue(c + 2)
        if c == 1 and par == 0:
            for r in range(64):
                a(f"v_mov_b32 v{AV_O+r}, 0") if not (AV_O + r in range(36, 48)) else None
    stamp(a, 3)
    a.c("projection epilogue")
    a("v_lshlrev_b32 v41, 4, v0")
    a(f"s_lshl_b32 s84, s{S_SL}, 2")
    a("s_add_u32 s84, s84, s81", "tile")
    a("s_lshl_b32 s8, s81, 10")
    if par == 0:
        a(f"s_add_u32 s8, s8, {L_Q}")
        a("v_add_u32 v42, s8, v41")
        a(f"s_mov_b32 s9, {f32bits(0.25*LOG2E)}")
        a("s_nop 6")
        for r in range(16):
            a(f"v_mul_f32 v{ACC+r}, s9, v{ACC+r}")
        for r in range(8):
            a(f"v_cvt_pk_bf16_f32 v{XF+r}, v{ACC+2*r}, v{ACC+2*r+1}")
        a.lds(f"ds_write_b128 v42, {vr(XF,4)}", "qw")
        a.lds(f"ds_write_b128 v42, {vr(XF+4,4)} offset:4096", "qw")
    else:
        a(f"s_add_u32 s9, s8, {L_K}")
        a("v_add_u32 v42, s9, v41")
        a("s_lshl_b32 s8, s8, 1")
        a(f"s_add_u32 s8, s8, {L_V}")
        a("v_add_u32 v43, s8, v41")
        a(f"s_lshl_b32 s8, s{S_HP}, 17")
        a("s_lshl_b32 s9, s84, 10")
        a("s_add_u32 s10, s8, s9")
        a(f"s_add_u32 s10, s10, {WS_K}")
        a("s_add_u32 s11, s10, 0x10000")
        a(f"s_lshl_b32 s8, s{S_HP}, 18")
        a("s_lshl_b32 s9, s84, 12")
        a("s_add_u32 s12, s8, s9")
        a(f"s_add_u32 s12, s12, {WS_V}")
        for r in range(16):
            a(f"v_cvt_pk_bf16_f32 v{XF+r}, v{ACC+2*r}, v{ACC+2*r+1}")
        a.vmem(f"buffer_store_dwordx4 {vr(XF,4)}, v41, {rs(R_WS)}, s10 offen sc1", "kvst")
        a.vmem(f"buffer_store_dwordx4 {vr(XF+4,4)}, v41, {rs(R_WS)}, s11 offen sc1", "kvst")
        a.vmem(f"buffer_store_dwordx4 {vr(XF+8,4)}, v41, {rs(R_WS)}, s12 offen sc1", "kvst")
        a.vmem(f"buffer_store_dwordx4 {vr(XF+12,4)}, v41, {rs(R_WS)}, s12 offen offset:1024 sc1", "kvst")
        a.lds(f"ds_write_b128 v42, {vr(XF,4)}", "kw")
        a.lds(f"ds_write_b128 v42, {vr(XF+4,4)} offset:4096", "kw")
        a.lds(f"ds_write_b128 v43, {vr(XF+8,4)}", "kw")
        a.lds(f"ds_write_b128 v43, {vr(XF+12,4)} offset:1024", "kw")
        for r in range(4):
            a(f"v_mov_b32 v{44+r}, 0x3f803f80")
        a("v_lshlrev_b32 v48, 10, v0")
        a("s_mov_b64 exec, 3")
        a.vmem(f"buffer_store_dwordx4 v[44:47], v48, {rs(R_WS)}, s12 offen offset:2048 sc1", "kvst")
        a("s_mov_b64 exec, -1")
    a.lg_drain()
    a("s_barrier")


def attn_body(a, u_list, kbuf, loads):
    for (n, i, pn, pi, nn, ni, par) in u_list:
        cur, nxt = AV_S + 16 * par, AV_S + 16 * (1 - par)
        E = lambda r: a(f"v_exp_f32 v{cur+r}, v{cur+r}")
        C = lambda r: a(f"v_cvt_pk_bf16_f32 v{AV_P+r}, v{cur+2*r}, v{cur+2*r+1}")
        E(0)
        E(1)
        a(mfma(AV_O + 16 * pi, AV_V + 8 * kbuf(pn) + 4, AV_P + 4, AV_O + 16 * pi))
        for x in loads(n, i, 0):
            a(x)
        for r in range(2, 8):
            E(r)
        if nn is not None:
            a(mfma(nxt, AV_K + 4 * kbuf(nn), AV_Q + 4 * ni, AV_C + 16 * ni))
            for x in loads(n, i, 1):
                a(x)
        else:
            a("s_nop 0")
        for r in range(4):
            C(r)
        for r in range(8, 12):
            E(r)
        a(mfma(AV_O + 16 * i, AV_V + 8 * kbuf(n), AV_P, AV_O + 16 * i))
        for x in loads(n, i, 2):
            a(x)
        for r in range(12, 16):
            E(r)
        for r in range(4, 8):
            C(r)


def attention(a):
    a.c("attention role")
    stamp(a, 4)
    a(f"s_setprio {OPT['prio_att']}")
    a(f"s_and_b32 s80, s{S_WAVE}, 1", "kh")
    a(f"s_lshr_b32 s81, s{S_WAVE}, 1", "e")
    a(f"v_lshlrev_b32 v{AV_KA}, 4, v0")
    a("s_lshl_b32 s8, s81, 12")
    a(f"s_add_u32 s9, s8, {L_Q}")
    a(f"v_add_u32 v4, s9, v{AV_KA}")
    for i in range(4):
        a(f"ds_read_b128 {vr(AV_Q+4*i,4)}, v4 offset:{i*1024}")
    a(f"ds_read_b128 {vr(AV_K+8,4)}, v4 offset:8192", "K tile 0 of my head")
    a(f"s_lshl_b32 s82, s{S_HP}, 1")
    a("s_add_u32 s82, s82, s81", "head")
    a("s_lshl_b32 s8, s82, 16")
    a(f"s_add_u32 s8, s8, {WS_K}")
    a(f"s_add_u32 s{R_K}, s38, s8")
    a(f"s_addc_u32 s{R_K+1}, s39, 0")
    a(f"s_mov_b32 s{R_K+2}, 0x10000")
    a(f"s_mov_b32 s{R_K+3}, 0x00020000")
    a(f"s_lshl_b32 s8, s{S_HP}, 18")
    a(f"s_add_u32 s8, s8, {WS_V}")
    a(f"s_add_u32 s{R_V}, s38, s8")
    a(f"s_addc_u32 s{R_V+1}, s39, 0")
    a(f"s_mov_b32 s{R_V+2}, 0x40000")
    a(f"s_mov_b32 s{R_V+3}, 0x00020000")
    a("s_lshl_b32 s8, s81, 8")
    a(f"v_add_u32 v5, s8, v{AV_KA}")
    a("v_and_b32 v6, 27, v0")
    a("v_mov_b32 v7, 0x3f803f80")
    a("v_cmp_eq_u32 vcc, 16, v6")
    a("v_mov_b32 v8, 0x80000000")
    a("v_mov_b32 v9, 2048")
    a("v_cndmask_b32 v7, 0, v7, vcc", "const lanes value")
    a("v_cndmask_b32 v8, v8, v9, vcc")
    a("v_and_b32 v6, 16, v0")
    a("v_cmp_eq_u32 vcc, 0, v6")
    a("s_lshl_b32 s9, s80, 10")
    a("s_lshl_b32 s10, s80, 11")
    a(f"v_cndmask_b32 v{AV_VA}, v8, v5, vcc")
    a(f"v_add_u32 v10, s9, v4", "own K lds addr base (L_Q + e*4096 + kh*1024 + lane*16)")
    a(f"s_add_u32 s10, s10, {L_V}")
    a("v_add_u32 v11, s10, v5", "own V lds addr")
    for r in range(36, 48):
        a(f"v_mov_b32 v{r}, 0")
    a("s_mov_b32 s96, 0", "0: fast pass, 1: exact-max pass")
    a("s_mov_b32 s83, 2", "pair sync target")
    a.c("max estimate from own key tile 0")
    a("s_waitcnt lgkmcnt(0)")
    for i in range(4):
        a(mfma(AV_C + 16 * i, AV_K + 8, AV_Q + 4 * i, "0"))
    for r in range(24):
        a(f"v_mov_b32 v{AV_V+r}, v7")
    for i in range(4):
        a(f"v_max3_f32 v{12+i}, v{AV_C+16*i}, v{AV_C+16*i+1}, v{AV_C+16*i+2}")
        for r in range(6):
            a(f"v_max3_f32 v{12+i}, v{AV_C+16*i+3+2*r}, v{AV_C+16*i+4+2*r}, v{12+i}")
        a(f"v_max_f32 v{12+i}, v{AV_C+16*i+15}, v{12+i}")
    lredo = a.label("redo")
    a(f"{lredo}:")
    a(f"ds_read_b128 {vr(AV_K,4)}, v10 offset:8192")
    a(f"ds_read_b128 {vr(AV_K+4,4)}, v10 offset:{8192+2048}")
    a("s_mov_b32 exec_lo, 0xffff")
    a("s_mov_b32 exec_hi, 0xffff")
    for b in range(2):
        for f in range(2):
            a(f"ds_read_b128 {vr(AV_V+8*b+4*f,4)}, v11 offset:{b*4096+f*1024}")
    a("s_mov_b64 exec, -1")
    for i in range(4):
        a(f"v_mov_b32 v{AV_S+i}, v{12+i}")
    a("s_nop 1")
    for i in range(4):
        a(f"v_permlane32_swap_b32 v{12+i}, v{AV_S+i}")
    a("s_nop 1")
    for i in range(4):
        a(f"v_max_f32 v{12+i}, v{12+i}, v{AV_S+i}")
    for r in range(16):
        a(f"v_sub_f32 v{AV_C+r}, 0, v12")
    for r in range(4, 8):
        a(f"v_mov_b32 v{AV_P+r}, 0")
    a("s_waitcnt lgkmcnt(0)")
    a(mfma(AV_S, AV_K, AV_Q, AV_C))
    for i in range(1, 4):
        for r in range(16):
            a(f"v_sub_f32 v{AV_C+16*i+r}, 0, v{12+i}")
    stamp(a, 5)
    a.c("phase A")
    kbuf = lambda n: n % 3
    ul = []
    for u in range(8):
        n, i = u // 4, u % 4
        pn, pi = (2, 3) if u == 0 else ((u - 1) // 4, (u - 1) % 4)
        nn, ni = ((u + 1) // 4, (u + 1) % 4) if u < 7 else (None, None)
        ul.append((n, i, pn, pi, nn, ni, u % 2))
    attn_body(a, ul, kbuf, lambda n, i, s: [])
    stamp(a, 6)
    a("v_lshlrev_b32 v4, 3, v0")
    a(f"s_lshl_b32 s8, s{S_HP}, 9")
    a(f"s_add_u32 s8, s8, {WS_FKV}")
    a("s_lshl_b32 s9, 0x55555555, s80")
    flag_wait(a, "s8", 4, 8, "s9", "s9", sleep=1)
    stamp(a, 7)
    KS, VS = "s12", "s13"
    a(f"s_lshl_b32 {KS}, s{S_SL}, 2")
    a(f"s_add_u32 {KS}, {KS}, s80")
    a(f"s_add_u32 {KS}, {KS}, 4")
    a(f"s_lshl_b32 {KS}, {KS}, 10")
    a(f"s_and_b32 {KS}, {KS}, 0xffff")

    def kv_instrs(buf):
        return [f"buffer_load_dwordx4 {vr(AV_K+4*buf,4)}, v{AV_KA}, {rs(R_K)}, {KS} offen sc1",
                f"buffer_load_dwordx4 {vr(AV_V+8*buf,4)}, v{AV_VA}, {rs(R_V)}, {VS} offen sc1",
                f"buffer_load_dwordx4 {vr(AV_V+8*buf+4,4)}, v{AV_VA}, {rs(R_V)}, {VS} offen offset:1024 sc1"]
    adv = [f"s_add_u32 {KS}, {KS}, 2048", f"s_and_b32 {KS}, {KS}, 0xffff", f"s_lshl_b32 {VS}, {KS}, 2"]
    a(adv[2])
    for buf in (2, 0):
        for x in kv_instrs(buf):
            a(x)
        for x in adv:
            a(x)
    a("s_mov_b32 s16, 5")
    a("s_waitcnt vmcnt(3)")
    a(mfma(AV_S, AV_K + 8, AV_Q, AV_C))
    a("s_nop 10")
    lloop = a.label("attn")
    a(".p2align 6")
    a(f"{lloop}:")
    ul = []
    for u in range(24):
        n, i = 2 + u // 4, u % 4
        pn, pi = 2 + (u - 1) // 4, (u - 1) % 4
        nn, ni = 2 + (u + 1) // 4, (u + 1) % 4
        ul.append((n, i, pn, pi, nn, ni, u % 2))

    def loads(n, i, slot):
        kv = kv_instrs((n + 2) % 3)
        L = []
        if i == 0 and slot == 1:
            L = [kv[0]]
        elif i == 0 and slot == 2:
            L = [kv[1]]
        elif i == 1 and slot == 0:
            L = [kv[2]]
        elif i == 1 and slot == 1:
            L = [adv[0]]
        elif i == 1 and slot == 2:
            L = [adv[1]]
        elif i == 2 and slot == 0:
            L = [adv[2]]
        elif i == 3 and slot == 0:
            L = ["s_waitcnt vmcnt(3)"]
        elif n == 7 and i == 3 and slot == 1:
            L = ["s_sub_u32 s16, s16, 1"]
        elif n == 7 and i == 3 and slot == 2:
            L = ["s_cmp_lg_u32 s16, 0"]
        return L
    attn_body(a, ul, kbuf, loads)
    a(f"s_cbranch_scc1 {lloop}")
    a("s_nop 0")
    a(mfma(AV_O + 48, AV_V + 8 * kbuf(31) + 4, AV_P + 4, AV_O + 48))
    a("s_waitcnt vmcnt(0)")
    stamp(a, 8)
    a.c("check + combine")
    a(f"s_mul_i32 s8, s{S_WAVE}, 4608")
    a(f"s_add_u32 s8, s8, {M_ATT}")
    a(f"v_add_u32 v4, s8, v{AV_KA}")
    a("v_lshlrev_b32 v5, 2, v0")
    a("v_add_u32 v5, s8, v5")
    a(f"s_xor_b32 s8, s{S_WAVE}, 1")
    a("s_mul_i32 s8, s8, 4608")
    a(f"s_add_u32 s8, s8, {M_ATT}")
    a(f"v_add_u32 v6, s8, v{AV_KA}")
    a("v_lshlrev_b32 v7, 2, v0")
    a("v_add_u32 v7, s8, v7")
    a("s_nop 1")
    a(f"v_add_f32 v8, v{AV_O+8}, v{AV_O+24}")
    a(f"v_add_f32 v9, v{AV_O+40}, v{AV_O+56}")
    a("v_add_f32 v8, v8, v9")
    a(f"v_mov_b32 v9, {f32bits(2.0**60)}")
    a("v_cmp_nlt_f32 vcc, v8, v9")
    a("s_cmp_lg_u64 vcc, 0")
    a("s_cselect_b32 s8, 0x10001, 1")
    a("v_mov_b32 v1, s8")
    lk1, ljoin = a.label("kh1"), a.label("khj")
    a("s_cmp_eq_u32 s80, 1")
    a(f"s_cbranch_scc1 {lk1}")
    for j in range(2):
        o = AV_O + 16 * (2 + j)
        a(f"ds_write_b128 v4, {vr(o,4)} offset:{j*2304}")
        a(f"ds_write_b128 v4, {vr(o+4,4)} offset:{j*2304+1024}")
        a(f"ds_write_b32 v5, v{o+8} offset:{j*2304+2048}")
    a(f"s_branch {ljoin}")
    a(f"{lk1}:")
    for j in range(2):
        o = AV_O + 16 * j
        a(f"ds_write_b128 v4, {vr(o,4)} offset:{j*2304}")
        a(f"ds_write_b128 v4, {vr(o+4,4)} offset:{j*2304+1024}")
        a(f"ds_write_b32 v5, v{o+8} offset:{j*2304+2048}")
    a("s_waitcnt lgkmcnt(0)")
    for j in range(2):
        for r in range(9):
            a(f"v_mov_b32 v{AV_O+16*j+r}, v{AV_O+16*(2+j)+r}")
    a(f"{ljoin}:")
    lab, lab2 = a.label("asy"), a.label("asyd")
    a("s_lshl_b32 s8, s81, 2")
    a(f"s_add_u32 s8, s8, {M_CNT}")
    a("v_mov_b32 v8, s8")
    a("s_mov_b64 exec, 1")
    a("ds_add_u32 v8, v1")
    a("s_mov_b64 exec, -1")
    a(f"s_mov_b32 s17, {SPIN*16}")
    a(f"{lab}:")
    a("ds_read_b32 v9, v8")
    a("s_waitcnt lgkmcnt(0)")
    a("v_readfirstlane_b32 s8, v9")
    a("s_and_b32 s9, s8, 0xffff")
    a("s_cmp_ge_u32 s9, s83")
    a(f"s_cbranch_scc1 {lab2}")
    spin_guard(a, lab)
    a(f"{lab2}:")
    lok, lslow = a.label("aok"), a.label("aslow")
    a("s_lshr_b32 s9, s8, 16")
    a("s_cmp_lg_u32 s9, 0")
    a(f"s_cbranch_scc1 {lslow}")
    a(f"{lok}:")
    for j in range(2):
        t = AV_S + 16 * j
        a(f"ds_read_b128 {vr(t,4)}, v6 offset:{j*2304}")
        a(f"ds_read_b128 {vr(t+4,4)}, v6 offset:{j*2304+1024}")
        a(f"ds_read_b32 v{t+8}, v7 offset:{j*2304+2048}")
    a(f"s_lshl_b32 s8, s{S_SL}, 1")
    a("s_add_u32 s8, s8, s80")
    a("s_lshl_b32 s8, s8, 5")
    a("s_add_u32 s8, s8, s82", "st*32 + head")
    a("s_lshl_b32 s9, s8, 3")
    a(f"s_add_u32 s9, s9, {WS_FO}")
    a("s_lshl_b32 s8, s8, 11")
    a(f"s_add_u32 s8, s8, {WS_O}")
    a("s_waitcnt lgkmcnt(0)")
    for j in range(2):
        a(f"v_add_f32 v{AV_O+16*j+8}, v{AV_O+16*j+8}, v{AV_S+16*j+8}")
    for j in range(2):
        a(f"v_rcp_f32 v{AV_O+16*j+8}, v{AV_O+16*j+8}")
    for j in range(2):
        for r in range(8):
            a(f"v_add_f32 v{AV_O+16*j+r}, v{AV_O+16*j+r}, v{AV_S+16*j+r}")
    for j in range(2):
        for r in range(8):
            a(f"v_mul_f32 v{AV_O+16*j+r}, v{AV_O+16*j+r}, v{AV_O+16*j+8}")
        for r in range(4):
            a(f"v_cvt_pk_bf16_f32 v{AV_P+4*j+r}, v{AV_O+16*j+2*r}, v{AV_O+16*j+2*r+1}")
        a(f"buffer_store_dwordx4 {vr(AV_P+4*j,4)}, v{AV_KA}, {rs(R_WS)}, s8 offen offset:{j*1024} sc1")
    a("s_waitcnt vmcnt(0)")
    flag_set(a, "s9", 4, 6)
    stamp(a, 9)
    a("s_endpgm")
    a(f"{lslow}:")
    a("s_cmp_lg_u32 s96, 0")
    a(f"s_cbranch_scc1 {lok}")
    a("s_mov_b32 s96, 1")
    a("s_mov_b32 s83, 4")
    a("v_lshlrev_b32 v4, 3, v0")
    a(f"s_lshl_b32 s8, s{S_HP}, 9")
    a(f"s_add_u32 s8, s8, {WS_FKV}")
    flag_wait(a, "s8", 4, 8, "-1", "-1")
    for i in range(4):
        a(f"v_mov_b32 v{12+i}, 0xff800000")
    a("s_mov_b32 s8, 0")
    lmax = a.label("maxloop")
    a(f"{lmax}:")
    a(f"buffer_load_dwordx4 {vr(AV_K,4)}, v{AV_KA}, {rs(R_K)}, s8 offen sc1")
    a("s_waitcnt vmcnt(0)")
    for i in range(4):
        a(mfma(AV_C + 16 * i, AV_K, AV_Q + 4 * i, "0"))
    a("s_nop 9")
    for i in range(4):
        for r in range(8):
            a(f"v_max3_f32 v{12+i}, v{AV_C+16*i+2*r}, v{AV_C+16*i+2*r+1}, v{12+i}")
    a("s_add_u32 s8, s8, 1024")
    a("s_cmp_lt_u32 s8, 0x10000")
    a(f"s_cbranch_scc1 {lmax}")
    for r in range(64):
        a(f"v_mov_b32 v{AV_O+r}, 0")
    a(f"s_branch {lredo}")


class Rot:
    def __init__(self, a, cur, beg, end, stride):
        self.a, self.cur, self.beg, self.end, self.stride = a, cur, beg, end, stride

    def init(self, srot, n):
        a = self.a
        a(f"s_add_u32 s{self.end}, s{self.beg}, {n*self.stride}")
        a(f"s_mul_i32 s{self.cur}, s{srot}, {self.stride}")
        a(f"s_add_u32 s{self.cur}, s{self.cur}, s{self.beg}")

    def adv(self):
        a = self.a
        a(f"s_add_u32 s{self.cur}, s{self.cur}, {self.stride}")
        a(f"s_cmp_eq_u32 s{self.cur}, s{self.end}")
        a(f"s_cselect_b32 s{self.cur}, s{self.beg}, s{self.cur}")


def gemm_role(a):
    DEPTH = OPT["depth"]
    a.c("GEMM role")
    stamp(a, 4)
    a(f"s_and_b32 s80, s{S_WAVE}, 3", "w'")
    a("v_lshrrev_b32 v11, 3, v0")
    a("v_and_b32 v12, 7, v0")
    a("v_bfe_u32 v13, v0, 4, 1")
    a("v_lshlrev_b32 v13, 2, v13")
    a("v_xor_b32 v12, v12, v13")
    a("v_lshlrev_b32 v12, 4, v12")
    a(f"v_mul_u32_u24 v{GV_DMA}, 3584, v11")
    a(f"v_add_u32 v{GV_DMA}, v{GV_DMA}, v12")
    a(f"v_lshl_add_u32 v{GV_DMA+1}, v11, 12, v12")
    a(f"v_lshl_add_u32 v{GV_DMA+2}, v11, 10, v12")
    a("v_bfe_u32 v11, v0, 2, 2")
    a("v_lshlrev_b32 v12, 7, v11")
    a("v_bfe_u32 v11, v0, 3, 1")
    a("v_lshl_add_u32 v12, v11, 6, v12")
    a("v_bfe_u32 v11, v0, 4, 1")
    a("v_lshl_add_u32 v12, v11, 5, v12")
    a("v_and_b32 v11, 3, v0")
    a("v_lshl_add_u32 v12, v11, 3, v12")
    a("s_lshl_b32 s81, s80, 13")
    a(f"s_add_u32 s81, s81, {M_RING}", "ring base")
    a("v_add_u32 v12, s81, v12")
    a("v_lshrrev_b32 v11, 5, v0")
    a(f"v_lshl_add_u32 v{GV_TA}, v11, 10, v12")
    a(f"v_lshl_add_u32 v{GV_TA+2}, v11, 9, v12")
    a(f"v_xor_b32 v{GV_TA+3}, 64, v{GV_TA+2}")
    a("s_lshr_b32 s8, s80, 1")
    a("s_lshl_b32 s8, s8, 6")
    a(f"v_xor_b32 v{GV_TA}, s8, v{GV_TA}")
    a(f"v_xor_b32 v{GV_TA+1}, 64, v{GV_TA}")
    a("v_mov_b32 v1, 1")

    T = Rot(a, 86, 87, 88, 0)
    D = Rot(a, 89, 90, 91, 2048)
    state = dict(issuedT=0)

    def t_issue(k, rsrc, vreg, rowstride):
        slot = k % DEPTH
        a(f"s_add_u32 m0, s81, {slot*2048}")
        a(f"s_add_u32 s8, s{T.cur}, {8*rowstride - 1024}")
        a.vmem(f"buffer_load_dwordx4 v{vreg}, {rs(rsrc)}, s{T.cur} offen lds", f"T{k}")
        a.vmem(f"buffer_load_dwordx4 v{vreg}, {rs(rsrc)}, s8 offen offset:1024 lds", f"T{k}")
        T.adv()

    def d_issue(k):
        buf = k % DEPTH
        for x in range(2):
            a.vmem(f"buffer_load_dwordx4 {vr(GV_D+8*buf+4*x,4)}, v{GV_DA+x}, {rs(R_WS)}, s{D.cur} offen sc1", f"D{k}")
        D.adv()

    def tread(k, ta, rd2, dst=None):
        slot = k % DEPTH
        tb = GV_T + 8 * (k % 2) if dst is None else dst
        for x in range(2):
            a.lds(f"ds_read_b64_tr_b16 {vr(tb+4*x,2)}, v{ta+x} offset:{slot*2048}", f"tr{k}")
            a.lds(f"ds_read_b64_tr_b16 {vr(tb+4*x+2,2)}, v{ta+x} offset:{slot*2048+rd2}", f"tr{k}")

    def kloop(nsteps, rsrc, vreg, rowstride, t_is_A, ta, rd2):
        for k in range(DEPTH - 1):
            d_issue(k)
        a.vm_wait_if("T0")
        tread(0, ta, rd2)
        for k in range(nsteps):
            if k + DEPTH - 1 < nsteps:
                t_issue(k + DEPTH - 1, rsrc, vreg, rowstride)
                d_issue(k + DEPTH - 1)
            if k + 1 < nsteps:
                a.vm_wait_if(f"T{k+1}")
                tread(k + 1, ta, rd2)
            a.vm_wait_if(f"D{k}")
            a.lg_wait(f"tr{k}")
            tb = GV_T + 8 * (k % 2)
            db = GV_D + 8 * (k % DEPTH)
            for x in range(2):
                for y in range(2):
                    if t_is_A:
                        d = GV_ACC + 16 * (2 * x + y)
                        a(mfma(d, tb + 4 * x, db + 4 * y, d))
                    else:
                        d = GV_ACC + 16 * (2 * y + x)
                        a(mfma(d, db + 4 * y, tb + 4 * x, d))

    lskip1, lskip2 = a.label("skipg1"), a.label("skipg1e")
    a(f"s_and_b32 s8, s{S_XCD}, 1")
    a("s_lshl_b32 s8, s8, 2")
    a(f"s_and_b32 s9, s{S_IDX}, 3")
    a("s_add_u32 s82, s8, s9", "dt (G1)")
    a(f"s_lshr_b32 s8, s{S_XCD}, 1")
    a("s_mul_i32 s8, s8, 7")
    a(f"s_lshr_b32 s10, s{S_IDX}, 2")
    a("s_add_u32 s83, s8, s10", "ft")
    a("s_lshl_b32 s9, s9, 3")
    a("s_mul_i32 s10, s10, 5")
    a("s_add_u32 s9, s9, s10")
    a("s_and_b32 s85, s9, 31", "rot")
    a(f"s_mul_i32 s{T.beg}, s80, {512*3584}")
    a("s_lshl_b32 s8, s83, 7")
    a(f"s_add_u32 s{T.beg}, s{T.beg}, s8")
    T.stride = 16 * 3584
    T.init(85, 32)
    a(f"s_lshl_b32 s{D.beg}, s82, 18")
    a("s_lshl_b32 s8, s80, 16")
    a(f"s_add_u32 s{D.beg}, s{D.beg}, s8")
    D.init(85, 32)
    a(f"s_cmp_ge_u32 s{S_IDX}, 28")
    lnog1 = a.label("nog1")
    a(f"s_cbranch_scc1 {lnog1}")
    vm_save = list(a.vm)
    for k in range(DEPTH - 1):
        t_issue(k, R_W1, GV_DMA, 3584)
    a("v_lshrrev_b32 v11, 5, v0")
    a("v_lshlrev_b32 v11, 3, v11")
    a("s_lshl_b32 s8, s83, 7")
    a("s_lshr_b32 s9, s80, 1")
    a("s_lshl_b32 s9, s9, 6")
    a("s_add_u32 s8, s8, s9")
    for g in range(4):
        a.vmem(f"buffer_load_dwordx2 {vr(GV_Y+2*g,2)}, v11, {rs(R_B1)}, s8 offen offset:{16*g}", "b1")
    a.vm_wait("kvst")
    lkv = a.label("kvflag")
    a(f"s_branch {lkv}")
    a(f"{lnog1}:")
    a("s_waitcnt vmcnt(0)")
    a(f"{lkv}:")
    a(f"s_lshl_b32 s8, s{S_HP}, 6")
    a("s_add_u32 s8, s8, s84")
    a("s_lshl_b32 s8, s8, 3")
    a(f"s_add_u32 s8, s8, {WS_FKV}")
    flag_set(a, "s8", GV_MISC, GV_MISC + 2)
    stamp(a, 5)
    a(f"s_cmp_ge_u32 s{S_IDX}, 28")
    a(f"s_cbranch_scc1 {lskip1}")
    a("s_and_b32 s8, s80, 1")
    a("s_lshl_b32 s8, s8, 10")
    a(f"v_lshlrev_b32 v{GV_DA}, 4, v0")
    a(f"v_add_u32 v{GV_DA}, s8, v{GV_DA}")
    a(f"v_xor_b32 v{GV_DA+1}, 1024, v{GV_DA}")
    for r in range(16, 64):
        a(f"v_mov_b32 v{GV_ACC+r}, 0")
    a(f"v_lshlrev_b32 v{GV_MISC}, 3, v0")
    a("s_lshl_b32 s9, s80, 9")
    a(f"s_add_u32 s9, s9, {WS_FH}")
    flag_wait(a, "s9", GV_MISC, GV_MISC + 2, "-1", "-1")
    for g in range(4):
        for hh in range(2):
            a(f"v_lshlrev_b32 v{GV_ACC+4*g+2*hh}, 16, v{GV_Y+2*g+hh}")
            a(f"v_and_b32 v{GV_ACC+4*g+2*hh+1}, 0xffff0000, v{GV_Y+2*g+hh}")
    a("s_setprio 0")
    stamp(a, 6)
    kloop(32, R_W1, GV_DMA, 3584, True, GV_TA, 512)
    a("s_setprio 3")
    stamp(a, 7)
    a(f"{lskip1}:")
    a(f"s_lshl_b32 s8, s{S_XCD}, 2")
    a(f"s_and_b32 s9, s{S_IDX}, 3")
    a("s_add_u32 s12, s8, s9", "st")
    a(f"s_lshr_b32 s13, s{S_IDX}, 2", "dt (G2)")
    a("s_mul_i32 s9, s9, 7")
    a("s_mul_i32 s10, s13, 7")
    a("s_lshr_b32 s10, s10, 1")
    a("s_add_u32 s85, s9, s10")
    a("s_sub_u32 s9, s85, 28")
    a("s_cmp_ge_u32 s85, 28")
    a("s_cselect_b32 s85, s9, s85", "rot mod 28")
    a(f"s_mul_i32 s{T.beg}, s80, {448*4096}")
    a("s_lshl_b32 s8, s12, 7")
    a(f"s_add_u32 s{T.beg}, s{T.beg}, s8")
    T.stride = 16 * 4096
    T.init(85, 28)
    a(f"s_mul_i32 s{D.beg}, s13, 112")
    a("s_mul_i32 s8, s80, 28")
    a(f"s_add_u32 s{D.beg}, s{D.beg}, s8")
    a(f"s_lshl_b32 s{D.beg}, s{D.beg}, 11")
    a(f"s_add_u32 s{D.beg}, s{D.beg}, {WS_U}")
    D.init(85, 28)
    for k in range(DEPTH - 1):
        t_issue(k, R_W2, GV_DMA + 1, 4096)
    a(f"s_cmp_ge_u32 s{S_IDX}, 28")
    a(f"s_cbranch_scc1 {lskip2}")
    a.c("G1 reduction")
    a("v_lshlrev_b32 v11, 4, v0")
    for v in range(1, 4):
        a(f"s_xor_b32 s8, s80, {v}")
        a("s_mul_i32 s8, s8, 12288")
        a(f"s_add_u32 s8, s8, {M_RED + (v-1)*4096}")
        a(f"v_add_u32 v{11+v}, s8, v11")
    a("s_mul_i32 s8, s80, 12288")
    a(f"s_add_u32 s8, s8, {M_RED}")
    a("v_add_u32 v15, s8, v11")
    for v in range(1, 4):
        for q in range(4):
            a.lds(f"ds_write_b128 v{11+v}, {vr(GV_ACC+16*v+4*q,4)} offset:{q*1024}", "rw")
    lds_arrive(a, M_CNT + 16, GV_MISC, 1)
    lds_wait(a, M_CNT + 16, 4, GV_MISC)
    for v in range(3):
        for q in range(4):
            a.lds(f"ds_read_b128 {vr(GV_ACC+16+16*v+4*q,4)}, v15 offset:{v*4096+q*1024}", f"rr{v}")
    for v in range(3):
        a.lg_wait(f"rr{v}")
        for r in range(16):
            a(f"v_add_f32 v{GV_ACC+r}, v{GV_ACC+r}, v{GV_ACC+16+16*v+r}")
    c0 = -2.0 * math.sqrt(2.0 / math.pi) * LOG2E
    c1 = c0 * 0.044715
    a(f"s_mov_b32 s8, {f32bits(c1)}")
    a(f"v_mov_b32 v12, {f32bits(c0)}")
    TT = GV_ACC + 16
    for r in range(16):
        a(f"v_mul_f32 v{TT+r}, v{GV_ACC+r}, v{GV_ACC+r}")
    for r in range(16):
        a(f"v_fma_f32 v{TT+r}, v{TT+r}, s8, v12")
    for r in range(16):
        a(f"v_mul_f32 v{TT+r}, v{TT+r}, v{GV_ACC+r}")
    for r in range(16):
        a(f"v_exp_f32 v{TT+r}, v{TT+r}")
    for r in range(16):
        a(f"v_add_f32 v{TT+r}, 1.0, v{TT+r}")
    for r in range(16):
        a(f"v_rcp_f32 v{TT+r}, v{TT+r}")
    for r in range(16):
        a(f"v_mul_f32 v{TT+r}, v{TT+r}, v{GV_ACC+r}")
    for r in range(8):
        a(f"v_cvt_pk_bf16_f32 v{GV_ACC+r}, v{TT+2*r}, v{TT+2*r+1}")
    a("s_mul_i32 s8, s82, 112")
    a("s_lshl_b32 s9, s83, 2")
    a("s_add_u32 s8, s8, s9")
    a("s_and_b32 s9, s80, 2")
    a("s_add_u32 s8, s8, s9")
    a("s_lshl_b32 s8, s8, 11")
    a(f"s_add_u32 s8, s8, {WS_U}")
    a.vmem(f"buffer_store_dwordx4 {vr(GV_ACC,4)}, v{GV_DA}, {rs(R_WS)}, s8 offen sc1", "ust")
    a.vmem(f"buffer_store_dwordx4 {vr(GV_ACC+4,4)}, v{GV_DA}, {rs(R_WS)}, s8 offen offset:2048 sc1", "ust")
    a("s_lshl_b32 s8, s82, 10")
    a("s_lshl_b32 s9, s83, 5")
    a("s_add_u32 s8, s8, s9")
    a("s_lshl_b32 s9, s80, 3")
    a("s_add_u32 s8, s8, s9")
    a(f"s_add_u32 s8, s8, {WS_FU}")
    a.vm_drain()
    flag_set(a, "s8", GV_MISC, GV_MISC + 2)
    stamp(a, 8)
    a(f"{lskip2}:")
    lds_arrive(a, M_CNT + 20, GV_MISC, 1)
    a(f"v_lshlrev_b32 v{GV_DA}, 4, v0")
    a(f"v_add_u32 v{GV_DA+1}, 1024, v{GV_DA}")
    for r in range(64):
        a(f"v_mov_b32 v{GV_ACC+r}, 0")
    a(f"v_lshlrev_b32 v{GV_MISC}, 3, v0")
    a("s_lshl_b32 s9, s13, 10")
    a("s_mul_i32 s8, s80, 224")
    a("s_add_u32 s9, s9, s8")
    a(f"s_add_u32 s9, s9, {WS_FU}")
    flag_wait(a, "s9", GV_MISC, GV_MISC + 2, "0x0fffffff", "0")
    a("s_setprio 0")
    stamp(a, 9)
    kloop(28, R_W2, GV_DMA + 1, 4096, False, GV_TA + 2, 1024)
    a("s_setprio 3")
    stamp(a, 10)
    a(f"s_lshl_b32 s{T.cur}, s80, 17")
    a("s_lshl_b32 s8, s13, 7")
    a(f"s_add_u32 s{T.cur}, s{T.cur}, s8")
    a(f"s_mov_b32 s{T.end}, -1")
    T.stride = 16 * 1024
    for k in range(DEPTH):
        t_issue(k, R_WO, GV_DMA + 2, 1024)
    a("v_lshrrev_b32 v11, 3, v0")
    a("v_lshlrev_b32 v12, 1, v11")
    a("v_lshlrev_b32 v13, 2, v11")
    a("s_lshl_b32 s8, s12, 6")
    a("s_lshl_b32 s9, s80, 4")
    a("s_add_u32 s8, s8, s9")
    a("s_lshl_b32 s9, s8, 2")
    a(f"s_add_u32 s9, s9, {WS_G}")
    a("s_lshl_b32 s8, s8, 1")
    for m in range(2):
        a.vmem(f"buffer_load_ushort v{GV_MISC+4+m}, v12, {rs(R_B2)}, s8 offen offset:{16*m}", "b2")
        a.vmem(f"buffer_load_dword v{GV_MISC+6+m}, v13, {rs(R_WS)}, s9 offen offset:{32*m} sc1", "b2")
    a("v_and_b32 v14, 31, v0")
    a("v_mul_u32_u24 v14, 272, v14")
    a("v_lshrrev_b32 v12, 5, v0")
    a("v_lshl_add_u32 v14, v12, 4, v14")
    a("s_mul_i32 s8, s80, 17408")
    a(f"s_add_u32 s8, s8, {M_RED}")
    a("v_add_u32 v14, s8, v14", "partial write addr")
    a("v_mul_u32_u24 v15, 272, v11")
    a("v_and_b32 v13, 7, v0")
    a("v_lshl_add_u32 v15, v13, 5, v15")
    a(f"s_mul_i32 s8, s80, {16*272}")
    a(f"s_add_u32 s8, s8, {M_RED}")
    a("v_add_u32 v15, s8, v15", "final read addr")
    a("v_lshlrev_b32 v11, 10, v11")
    a("v_lshl_add_u32 v11, v13, 4, v11", "out voffset")

    def red_write():
        for aa in range(2):
            for b in range(2):
                for g in range(4):
                    a.lds(f"ds_write_b128 v14, {vr(GV_ACC+16*(2*aa+b)+4*g,4)} offset:{b*32*272 + aa*128 + g*32}", "fw")

    def red_read():
        for m in range(2):
            for p in range(4):
                for hh in range(2):
                    a.lds(f"ds_read_b128 {vr(GV_ACC+32*m+8*p+4*hh,4)}, v15 offset:{p*17408 + m*8*272 + hh*16}", f"fr{m}")

    def red_sum(m):
        a.lg_wait(f"fr{m}")
        B = GV_ACC + 32 * m
        for r in range(8):
            a(f"v_add_f32 v{B+r}, v{B+r}, v{B+8+r}")
            a(f"v_add_f32 v{B+16+r}, v{B+16+r}, v{B+24+r}")
        for r in range(8):
            a(f"v_add_f32 v{B+r}, v{B+r}, v{B+16+r}")
        return B

    lds_wait(a, M_CNT + 20, 4, GV_MISC)
    red_write()
    lds_arrive(a, M_CNT + 24, GV_MISC, 1)
    for k in range(8):
        a.vm_wait_if(f"T{k}")
        tread(k, GV_TA + 2, 1024, dst=GV_WO + 8 * k)
        if k + DEPTH < 8:
            a.lg_wait(f"tr{k}")
            t_issue(k + DEPTH, R_WO, GV_DMA + 2, 1024)
        elif k % 2 == 1:
            a.lg_drain()
    lds_wait(a, M_CNT + 24, 4, GV_MISC)
    red_read()
    a.vm_wait_if("b2")
    for m in range(2):
        a(f"v_lshlrev_b32 v{GV_MISC+4+m}, 16, v{GV_MISC+4+m}")
        a(f"v_sub_f32 v{GV_MISC+8+m}, 1.0, v{GV_MISC+6+m}")
    for m in range(2):
        B = red_sum(m)
        for r in range(8):
            a(f"v_add_f32 v{B+r}, v{B+r}, v{GV_MISC+4+m}")
        for r in range(8):
            a(f"v_mul_f32 v{GV_Y+8*m+r}, v{B+r}, v{GV_MISC+8+m}")
    lds_arrive(a, M_CNT + 28, GV_MISC, 1)
    stamp(a, 11)
    a(f"v_lshlrev_b32 v{GV_MISC}, 3, v0")
    a("s_lshl_b32 s9, s12, 8")
    a("s_lshl_b32 s8, s80, 6")
    a("s_add_u32 s9, s9, s8")
    a(f"s_add_u32 s9, s9, {WS_FO}")
    a("s_lshl_b32 s86, s12, 16")
    a("s_lshl_b32 s8, s80, 14")
    a("s_add_u32 s86, s86, s8")
    a(f"s_add_u32 s86, s86, {WS_O}")
    lds_wait(a, M_CNT + 28, 4, GV_MISC + 10)
    a("s_setprio 0")
    flag_wait(a, "s9", GV_MISC, GV_MISC + 2, "0xff", "0", sleep=1)
    a("s_setprio 3")
    stamp(a, 12)
    for k in range(8):
        if k % 2 == 0 and k:
            a("s_add_u32 s86, s86, 4096")
        for x in range(2):
            a.vmem(f"buffer_load_dwordx4 {vr(GV_D+8*k+4*x,4)}, v{GV_DA}, {rs(R_WS)}, s86 offen offset:{(k%2)*2048+x*1024} sc1", f"O{k}")
    for k in range(8):
        a.vm_wait(f"O{k}")
        for x in range(2):
            for y in range(2):
                d = GV_ACC + 16 * (2 * x + y)
                a(mfma(d, GV_WO + 8 * k + 4 * x, GV_D + 8 * k + 4 * y, "0" if k == 0 else d))
    a("s_lshl_b32 s12, s12, 16")
    a("s_lshl_b32 s9, s80, 14")
    a("s_add_u32 s12, s12, s9")
    a("s_lshl_b32 s9, s13, 7")
    a("s_add_u32 s12, s12, s9")
    a("s_add_u32 s13, s12, 8192")
    a("s_nop 2")
    stamp(a, 13)
    red_write()
    lds_arrive(a, M_CNT + 32, GV_MISC, 1)
    lds_wait(a, M_CNT + 32, 4, GV_MISC)
    red_read()
    for m in range(2):
        B = red_sum(m)
        for r in range(8):
            a(f"v_fma_f32 v{B+r}, v{B+r}, v{GV_MISC+6+m}, v{GV_Y+8*m+r}")
        for r in range(4):
            a(f"v_cvt_pk_bf16_f32 v{B+8+r}, v{B+2*r}, v{B+2*r+1}")
        a.vmem(f"buffer_store_dwordx4 {vr(B+8,4)}, v11, {rs(R_OUT)}, s{12+m} offen", "ost")
    stamp(a, 14)


def descriptor(name, vgpr=256):
    return f""".section .rodata,"a"
.p2align 6
.amdhsa_kernel {name}
  .amdhsa_next_free_vgpr {vgpr}
  .amdhsa_next_free_sgpr 102
  .amdhsa_accum_offset {vgpr}
  .amdhsa_group_segment_fixed_size 0
  .amdhsa_kernarg_size 96
  .amdhsa_user_sgpr_count 2
  .amdhsa_user_sgpr_kernarg_segment_ptr 1
  .amdhsa_system_sgpr_workgroup_id_x 1
.end_amdhsa_kernel
"""


def build():
    kn = NAME + "_kernel"
    head = f"""; generated by gen/gen2.py (fused single launch)
; @launch grid=(256,1,1) block=(512,1,1) lds={LDS_TOTAL}
.amdgcn_target "amdgcn-amd-amdhsa--gfx950"
"""
    a = Asm()
    a(".text")
    a(f".globl {kn}")
    a(".p2align 8")
    a(f".type {kn},@function")
    a(f"{kn}:")
    prologue(a, "L_exit")
    a(f"s_cmp_ge_u32 s{S_WAVE}, 4")
    a("s_cbranch_scc1 L_roleb")
    a.vm, a.lg = [], []
    proj(a, 0)
    attention(a)
    a("L_roleb:")
    a.vm, a.lg = [], []
    a("s_setprio 3")
    proj(a, 1)
    gemm_role(a)
    a("L_exit:")
    a("s_endpgm")
    return head + a.text() + descriptor(kn)


if __name__ == "__main__":
    out = sys.argv[1] if len(sys.argv) > 1 else f"cdna_kernels/{NAME}.s"
    for o in sys.argv[2:]:
        if o == "stamps":
            OPT["stamps"] = True
        elif "=" in o:
            k, v = o.split("=")
            OPT[k] = int(v)
    open(out, "w").write(build())
    print("wrote", out)
```

```python
import math
import sys
from asmlib import Asm, vr, sr, f32bits

NAME = "gated_mix__mha_block__mixer_token_mlp__prompt"
OPT = dict(stamps=False, hw=2, prio_att=2, prio_gemm=0, nt=0, early=1, cpf=1, hw0=1, hw0n=8, gate=1, pf=3)

WS_H = 0x000000
WS_KV = 0x200000
WS_U = 0x800000
WS_O = 0xA00000
WS_G = 0xC00000
WS_FH = 0xC10000
WS_FKV = 0xC11000
WS_FU = 0xC14000
WS_FO = 0xC18000
WS_STAMP = 0xD00000
WS_SIZE = 0x1000000

S_WAVE, S_XCD, S_IDX, S_HP, S_SL = 3, 4, 5, 6, 7
S_TAG = 14
R_X, R_P, R_WO, R_W1, R_W2, R_WS, R_OUT, R_B1, R_B2, R_GW = 40, 44, 48, 52, 56, 60, 64, 68, 72, 76
R_DBG = 92
R_KV = 48
LOG2E = math.log2(math.e)

P_XS, P_WS, P_LN = 0, 49152, 86016
M_RED = 0
TR = 6
M_RING = 49152
L_Q = 98304
KVR = 106496
KSLOT = 2080
KR = 6
RW = KR * KSLOT
M_CNT = KVR + 4 * RW
L_K0 = M_CNT + 256
LDS_TOTAL = 163840
assert M_RING + 4 * TR * 2048 <= L_Q and L_K0 + 2048 <= LDS_TOTAL
SPIN = 200000


def NT(bit):
    return "nt " if OPT["nt"] & bit else ""


def rs(r):
    return f"s[{r}:{r+3}]"


def stamp(a, idx, final=False):
    if not OPT["stamps"]:
        return
    a("s_memrealtime s[98:99]")
    a("s_memtime s[100:101]")
    if idx == 0:
        a("v_mov_b32 v254, 0")
        a("v_mov_b32 v255, 0")
    a("s_waitcnt lgkmcnt(0)")
    a.lg = []
    a(f"v_writelane_b32 v254, s98, {idx}")
    a(f"v_writelane_b32 v255, s100, {idx}")
    if final:
        a("s_lshl_b32 s97, s2, 3")
        a(f"s_add_u32 s97, s97, s{S_WAVE}")
        a("s_lshl_b32 s97, s97, 9")
        a(f"s_add_u32 s97, s97, {WS_STAMP}")
        a("v_lshlrev_b32 v253, 3, v0")
        a(f"buffer_store_dwordx2 v[254:255], v253, {rs(R_WS)}, s97 offen")
        if OPT.get("dbg"):
            lab = a.label("nodbg")
            a(f"s_and_b32 s97, s{S_WAVE}, 3")
            a(f"s_xor_b32 s96, s2, {OPT['dbg']}")
            a("s_or_b32 s97, s97, s96")
            a("s_cmp_lg_u32 s97, 0")
            a(f"s_cbranch_scc1 {lab}")
            sel = [32, 3, 7, 8, 9] if idx == 9 else [0, 5, 16, 18, 7, 8, 9, 10, 14]
            base = 2 if idx == 9 else 7
            for k, st in enumerate(sel):
                a(f"v_readlane_b32 s97, v254, {st}")
                a("s_nop 1")
                a(f"s_sub_u32 s97, s97, s{S_TAG}")
                a("v_mov_b32 v252, s97")
                a(f"v_mov_b32 v253, {4*(base+k)}")
                a(f"buffer_store_dword v252, v253, {rs(R_DBG)}, 0 offen")
            a(f"{lab}:")


def srd(a, r, ptr, nbytes):
    a(f"s_mov_b32 s{r}, s{ptr}")
    a(f"s_mov_b32 s{r+1}, s{ptr+1}")
    a(f"s_mov_b32 s{r+2}, {nbytes:#x}")
    a(f"s_mov_b32 s{r+3}, 0x00020000")


def mfma(d, A, B, C):
    return f"v_mfma_f32_32x32x16_bf16 {vr(d,16)}, {vr(A,4)}, {vr(B,4)}, {C if isinstance(C,str) else vr(C,16)}"


def spin_guard(a, lab):
    a("s_sub_u32 s17, s17, 1")
    a("s_cmp_lg_u32 s17, 0")
    a(f"s_cbranch_scc1 {lab}")
    a("s_endpgm")


PV_XF, PV_WF, PV_XA, PV_WA, PV_DMA = 112, 128, 160, 164, 166


def p_issue(a, c, par):
    slot = c % 3
    a("s_and_b32 s8, s85, 7")
    a("s_add_u32 s85, s85, 1")
    a("s_mul_i32 s8, s8, s86")
    if par is None:
        a(f"s_mul_i32 s9, s87, {slot}")
        a("s_add_u32 m0, s83, s9")
    else:
        a(f"s_add_u32 m0, s83, {slot*(16384 if par == 0 else 12288)}")
    a("s_add_u32 s8, s8, s82")
    for q in range(3):
        a.vmem(f"buffer_load_dwordx4 v{PV_DMA+q}, {rs(R_P)}, s8 offen offset:{q*1024} {NT(2)}lds", f"ch{c}")
    if par is None:
        lab = a.label("no4")
        a(f"s_cmp_ge_u32 s{S_WAVE}, 4")
        a(f"s_cbranch_scc1 {lab}")
        a.vmem(f"buffer_load_dwordx4 v{PV_DMA+3}, {rs(R_P)}, s8 offen offset:3072 {NT(2)}lds", f"ch{c}A")
        a(f"{lab}:")
    elif par == 0:
        a.vmem(f"buffer_load_dwordx4 v{PV_DMA+3}, {rs(R_P)}, s8 offen offset:3072 {NT(2)}lds", f"ch{c}")


def entry(a, lexit):
    a("s_cmp_ge_u32 s2, 256")
    a(f"s_cbranch_scc1 {lexit}")
    a("s_load_dwordx16 s[16:31], s[0:1], 0")
    a("s_load_dwordx8 s[32:39], s[0:1], 64")
    a("s_memrealtime s[12:13]")
    a("v_lshrrev_b32 v1, 6, v0")
    a("v_and_b32 v0, 63, v0")
    a(f"v_readfirstlane_b32 s{S_WAVE}, v1")
    a(f"s_and_b32 s{S_XCD}, s2, 7")
    a(f"s_lshr_b32 s{S_IDX}, s2, 3")
    a(f"s_and_b32 s8, s{S_XCD}, 3")
    a("s_lshl_b32 s8, s8, 2")
    a(f"s_and_b32 s9, s{S_IDX}, 3")
    a(f"s_add_u32 s{S_HP}, s8, s9")
    a(f"s_lshr_b32 s8, s{S_XCD}, 2")
    a(f"s_lshr_b32 s10, s{S_IDX}, 2")
    a("s_lshl_b32 s11, s10, 1")
    a(f"s_add_u32 s{S_SL}, s8, s11")
    a("s_lshl_b32 s9, s9, 1")
    a("s_add_u32 s85, s9, s10", "chunk cursor (rotation)")
    a(f"s_and_b32 s81, s{S_WAVE}, 3", "t")
    D = PV_DMA
    lb, lj = a.label("eb"), a.label("ej")
    a(f"s_cmp_ge_u32 s{S_WAVE}, 4")
    a(f"s_cbranch_scc1 {lb}")
    a("v_lshrrev_b32 v41, 3, v0")
    a("v_lshlrev_b32 v41, 10, v41")
    a("v_and_b32 v42, 7, v0")
    a("v_lshrrev_b32 v43, 4, v0")
    a("v_xor_b32 v42, v42, v43")
    a(f"v_lshl_add_u32 v{D}, v42, 4, v41")
    a("v_xor_b32 v42, 4, v42")
    a(f"v_lshl_add_u32 v{D+1}, v42, 4, v41")
    a(f"v_add_u32 v{D+2}, {2*7168}, v{D}")
    a(f"v_add_u32 v{D+3}, {3*7168}, v{D+1}")
    a(f"v_add_u32 v{D+1}, {7168}, v{D+1}")
    a(f"s_lshl_b32 s82, s{S_SL}, 17")
    a("s_lshl_b32 s8, s81, 15")
    a("s_add_u32 s82, s82, s8")
    a("s_lshl_b32 s83, s81, 12")
    a("s_mov_b32 s86, 128")
    a("s_mov_b32 s87, 16384")
    a("s_waitcnt lgkmcnt(0)")
    srd(a, R_P, 16, 2048 * 512 * 2)
    a(f"s_branch {lj}")
    a(f"{lb}:")
    a("v_lshrrev_b32 v41, 2, v0")
    a("v_mul_u32_u24 v41, 3072, v41")
    a("v_and_b32 v42, 3, v0")
    a(f"v_lshl_add_u32 v{D}, v42, 4, v41")
    a(f"v_mov_b32 v{D+1}, v{D}")
    a(f"v_mov_b32 v{D+2}, v{D}")
    a(f"v_mov_b32 v{D+3}, v{D}")
    a(f"s_mul_i32 s82, s81, {16*3072}")
    a(f"s_lshl_b32 s8, s{S_HP}, 6")
    a("s_add_u32 s82, s82, s8")
    a("s_mul_i32 s83, s81, 3072")
    a(f"s_add_u32 s83, s83, {P_WS}")
    a(f"s_mov_b32 s86, {64*3072}")
    a("s_mov_b32 s87, 12288")
    a("s_waitcnt lgkmcnt(0)")
    srd(a, R_P, 18, 512 * 1536 * 2)
    a(f"{lj}:")
    srd(a, R_X, 16, 2048 * 512 * 2)
    srd(a, R_GW, 32, 512 * 2)
    a(f"s_lshl_b32 s8, s{S_SL}, 7")
    a(f"s_lshl_b32 s9, s{S_HP}, 3")
    a("s_add_u32 s80, s8, s9", "s80 = row0")
    a(f"s_add_u32 s8, s80, s{S_WAVE}")
    a("s_lshl_b32 s8, s8, 10")
    a("v_lshlrev_b32 v1, 4, v0", "lane*16")
    a.vmem(f"buffer_load_dwordx4 v[176:179], v1, {rs(R_X)}, s8 offen", "ln")
    a.vmem(f"buffer_load_dwordx4 v[180:183], v1, {rs(R_GW)}, 0 offen", "ln")
    p_issue(a, 0, None)
    srd(a, R_DBG, 36, 256)
    srd(a, R_WS, 38, WS_SIZE)
    lab = a.label("notag")
    a(f"s_or_b32 s8, s2, s{S_WAVE}")
    a("s_cmp_lg_u32 s8, 0")
    a(f"s_cbranch_scc1 {lab}")
    a("s_or_b32 s8, s12, 1")
    a("v_mov_b32 v44, s8")
    a("v_mov_b32 v45, s13")
    a("v_mov_b32 v46, 0")
    a("s_mov_b64 exec, 1")
    a(f"buffer_store_dwordx2 v[44:45], v46, {rs(R_DBG)}, 0 offen sc1")
    a("s_mov_b64 exec, -1")
    a(f"{lab}:")
    if OPT["cpf"]:
        lab = a.label("nocpf")
        a(f"s_cmp_lt_u32 s{S_WAVE}, 6")
        a(f"s_cbranch_scc1 {lab}")
        a("s_getpc_b64 s[88:89]")
        a("L_pc0:")
        a("s_mov_b32 s90, L_code_end-L_pc0")
        a("s_mov_b32 s91, 0x00020000")
        a(f"s_and_b32 s8, s{S_WAVE}, 1")
        a("s_lshl_b32 s8, s8, 5")
        a(f"s_add_u32 s8, s8, s{S_IDX}")
        a("s_lshl_b32 s8, s8, 10")
        a("buffer_load_dwordx4 v[248:251], v1, s[88:91], s8 offen")
        a(f"{lab}:")
    p_issue(a, 1, None)
    stamp(a, 0)
    a("v_and_b32 v41, 31, v0", "i")
    a("v_lshrrev_b32 v42, 5, v0", "h'")
    a("v_bfe_u32 v43, v0, 1, 3")
    a("v_xor_b32 v44, v42, v43")
    a("v_lshlrev_b32 v45, 7, v41")
    a("s_lshl_b32 s8, s81, 12")
    a("v_add_u32 v45, s8, v45")
    a(f"v_lshl_add_u32 v{PV_XA}, v44, 4, v45")
    for ks in range(1, 4):
        a(f"v_xor_b32 v{PV_XA+ks}, {32*ks}, v{PV_XA}")
    a("v_lshlrev_b32 v44, 9, v42")
    a("v_bfe_u32 v45, v0, 2, 2")
    a("v_lshl_add_u32 v44, v45, 6, v44")
    a("v_bfe_u32 v45, v0, 4, 1")
    a("v_lshl_add_u32 v44, v45, 5, v44")
    a("v_and_b32 v45, 3, v0")
    a("v_lshl_add_u32 v44, v45, 3, v44")
    a(f"v_add_u32 v{PV_WA}, {P_WS}, v44")
    a("v_lshlrev_b32 v41, 2, v0")
    a(f"v_add_u32 v41, {M_CNT}, v41")
    a("v_mov_b32 v42, 0")
    a.lds("ds_write_b32 v41, v42", "cz")
    for r in range(80, 112):
        a(f"v_mov_b32 v{r}, 0")


def wave_reduce_add(a, regs):
    steps = ["row_shr:1 row_mask:0xf bank_mask:0xf bound_ctrl:0",
             "row_shr:2 row_mask:0xf bank_mask:0xf bound_ctrl:0",
             "row_shr:4 row_mask:0xf bank_mask:0xf bound_ctrl:0",
             "row_shr:8 row_mask:0xf bank_mask:0xf bound_ctrl:0",
             "row_bcast:15 row_mask:0xa bank_mask:0xf",
             "row_bcast:31 row_mask:0xc bank_mask:0xf"]
    for st in steps:
        a("s_nop 1" if len(regs) == 1 else "s_nop 0")
        for r in regs:
            a(f"v_add_f32_dpp v{r}, v{r}, v{r} {st}")
    a("s_nop 1")


def ln_compute(a):
    a.c("LN compute")
    a("s_waitcnt vmcnt(6)")
    for i in range(4):
        a(f"v_lshlrev_b32 v{184+2*i}, 16, v{176+i}")
        a(f"v_and_b32 v{185+2*i}, 0xffff0000, v{176+i}")
        a(f"v_lshlrev_b32 v{192+2*i}, 16, v{180+i}")
        a(f"v_and_b32 v{193+2*i}, 0xffff0000, v{180+i}")
    a("v_add_f32 v200, v184, v185")
    a("v_mul_f32 v201, v184, v192")
    for i in range(1, 8):
        if i >= 2:
            a(f"v_add_f32 v200, v200, v{184+i}")
        a(f"v_fmac_f32 v201, v{184+i}, v{192+i}")
    a("s_nop 0")
    wave_reduce_add(a, [200, 201])
    a("v_readlane_b32 s8, v200, 63")
    a("v_readlane_b32 s9, v201, 63")
    a(f"v_mov_b32 v202, {f32bits(1.0/512)}")
    a(f"v_mov_b32 v214, {f32bits(-LOG2E)}")
    a("v_mul_f32 v202, s8, v202", "mean")
    a("v_mul_f32 v214, s9, v214")
    for i in range(8):
        a(f"v_sub_f32 v{184+i}, v{184+i}, v202")
    a("v_exp_f32 v214, v214")
    a("v_mul_f32 v200, v184, v184")
    for i in range(1, 8):
        a(f"v_fmac_f32 v200, v{184+i}, v{184+i}")
    wave_reduce_add(a, [200])
    a("v_readlane_b32 s8, v200, 63")
    a("v_add_f32 v214, 1.0, v214")
    a(f"v_mov_b32 v202, {f32bits(1.0/512)}")
    a(f"v_mov_b32 v203, {f32bits(1e-5)}")
    a("v_fma_f32 v202, s8, v202, v203", "var + eps")
    a("v_rsq_f32 v202, v202")
    a("v_rcp_f32 v214, v214", "g")
    for i in range(8):
        a(f"v_mul_f32 v{184+i}, v{184+i}, v202")
    for i in range(4):
        a(f"v_cvt_pk_bf16_f32 v{192+i}, v{184+2*i}, v{185+2*i}")
    a("v_mul_u32_u24 v204, 144, v0")
    a(f"s_lshl_b32 s8, s{S_WAVE}, 1")
    a(f"s_add_u32 s8, s8, {P_LN}")
    a("v_add_u32 v204, s8, v204")
    for i in range(4):
        a.lds(f"ds_write_b16 v204, v{192+i} offset:{32*i}", "lnw")
        a.lds(f"ds_write_b16_d16_hi v204, v{192+i} offset:{32*i+16}", "lnw")
    a("v_bfe_u32 v205, v0, 2, 1", "b2")
    a("v_bfe_u32 v206, v0, 3, 1", "b3")
    a("v_lshrrev_b32 v207, 4, v0")
    a("v_lshl_add_u32 v207, v207, 1, v205", "d>>3 (local) = (l>>4)*2 + b2")
    a("v_mul_u32_u24 v204, 144, v207")
    a("v_and_b32 v207, 3, v0")
    a("v_lshl_add_u32 v207, v206, 2, v207", "d&7 = b3*4 + (l&3)")
    a("v_lshl_add_u32 v204, v207, 4, v204")
    a(f"s_mul_i32 s8, s{S_WAVE}, {8*144}")
    a(f"s_add_u32 s8, s8, {P_LN}")
    a("v_add_u32 v204, s8, v204")
    a("v_lshrrev_b32 v205, 5, v0")
    a("v_lshlrev_b32 v205, 10, v205")
    a("v_and_b32 v210, 31, v0")
    a("v_lshl_add_u32 v205, v210, 4, v205")
    a(f"s_lshl_b32 s10, s{S_WAVE}, 18")
    a("s_lshr_b32 s9, s80, 4")
    a("s_lshl_b32 s9, s9, 11")
    a("s_add_u32 s10, s10, s9")
    a("s_and_b32 s9, s80, 8")
    a("s_lshl_b32 s9, s9, 6")
    a("s_add_u32 s10, s10, s9", "h store soffset")
    a(f"s_add_u32 s11, s80, s{S_WAVE}")
    a("s_lshl_b32 s11, s11, 2")
    a(f"s_add_u32 s11, s11, {WS_G}", "g store soffset")
    a("v_mov_b32 v210, 0")


def ln_store(a):
    a.c("LN store")
    a.lds("ds_read_b128 v[206:209], v204", "lnr")
    a.lg_wait("lnr")
    a.vmem(f"buffer_store_dwordx4 v[206:209], v205, {rs(R_WS)}, s10 offen sc1", "hst")
    a("s_mov_b64 exec, 1")
    a.vmem(f"buffer_store_dword v214, v210, {rs(R_WS)}, s11 offen sc1", "hst")
    a("s_mov_b64 exec, -1")
    a.vmem(f"buffer_load_dwordx2 v[216:217], v210, {rs(R_DBG)}, 0 offen sc1", "tag")


def tag_get(a):
    l1, l2 = a.label("tagl"), a.label("tagok")
    a(f"s_mov_b32 s17, {SPIN}")
    a(f"{l1}:")
    a(f"v_readfirstlane_b32 s{S_TAG}, v216")
    a(f"v_readfirstlane_b32 s{S_TAG+1}, v217")
    a(f"s_cmp_lg_u32 s{S_TAG}, 0")
    a(f"s_cbranch_scc1 {l2}")
    a(f"buffer_load_dwordx2 v[216:217], v210, {rs(R_DBG)}, 0 offen sc1")
    a("s_waitcnt vmcnt(0)")
    spin_guard(a, l1)
    a(f"{l2}:")


def flag_set(a, soff, vz, vt):
    a(f"v_mov_b32 v{vt}, s{S_TAG}")
    a(f"v_mov_b32 v{vt+1}, s{S_TAG+1}")
    a(f"v_mov_b32 v{vz}, 0")
    a("s_mov_b64 exec, 1")
    a.vmem(f"buffer_store_dwordx2 v[{vt}:{vt+1}], v{vz}, {rs(R_WS)}, {soff} offen sc1", "flag")
    a("s_mov_b64 exec, -1")


def flag_check(a, vt, mask_lo, mask_hi):
    a(f"v_cmp_ne_u64 vcc, s[{S_TAG}:{S_TAG+1}], v[{vt}:{vt+1}]")
    a(f"s_and_b32 s10, vcc_lo, {mask_lo}")
    a(f"s_and_b32 s11, vcc_hi, {mask_hi}")
    a("s_or_b32 s10, s10, s11")
    a("s_cmp_eq_u32 s10, 0")


def flag_wait(a, soff, vaddr, vt, mask_lo, mask_hi, sleep=2):
    l1, l2 = a.label("poll"), a.label("pollok")
    a(f"s_mov_b32 s17, {SPIN}")
    a(f"{l1}:")
    a(f"buffer_load_dwordx2 v[{vt}:{vt+1}], v{vaddr}, {rs(R_WS)}, {soff} offen sc1")
    a("s_waitcnt vmcnt(0)")
    a.vm = []
    flag_check(a, vt, mask_lo, mask_hi)
    a(f"s_cbranch_scc1 {l2}")
    a(f"s_sleep {sleep}")
    spin_guard(a, l1)
    a(f"{l2}:")


def lds_arrive(a, cnt_off, vt, vone):
    a.lg_drain()
    a(f"v_mov_b32 v{vt}, {cnt_off}")
    a("s_mov_b64 exec, 1")
    a(f"ds_add_u32 v{vt}, v{vone}")
    a("s_mov_b64 exec, -1")


def lds_wait(a, cnt_off, target, vt, sleep=True):
    lab, lab2 = a.label("sy"), a.label("syd")
    a(f"v_mov_b32 v{vt}, {cnt_off}")
    a(f"s_mov_b32 s17, {SPIN*8}")
    a(f"{lab}:")
    a(f"ds_read_b32 v{vt+1}, v{vt}")
    a("s_waitcnt lgkmcnt(0)")
    a.lg = []
    a(f"v_readfirstlane_b32 s8, v{vt+1}")
    a(f"s_cmp_ge_u32 s8, {target}")
    a(f"s_cbranch_scc1 {lab2}")
    if sleep:
        a("s_sleep 1")
    spin_guard(a, lab)
    a(f"{lab2}:")


AV_Q, AV_O, AV_C, AV_S, AV_P, AV_K, AV_V = 16, 32, 96, 160, 192, 200, 208
AV_KA, AV_KR, AV_V0, AV_V1, AV_QA, AV_FA = 2, 3, 4, 5, 6, 7
GV_ACC, GV_D, GV_WO, GV_T, GV_Y, GV_MISC = 16, 80, 144, 208, 224, 240
GV_DMA, GV_TA1, GV_TA2, GV_TA3, GV_DB, GV_DA = 2, 5, 7, 9, 11, 13


def att_setup(a):
    a.c("attention setup")
    a(f"s_and_b32 s18, s{S_WAVE}, 1", "kh")
    a(f"s_lshr_b32 s19, s{S_WAVE}, 1", "e")
    a(f"s_lshl_b32 s20, s{S_HP}, 1")
    a("s_add_u32 s20, s20, s19", "head")
    a("s_lshl_b32 s8, s20, 17")
    a(f"s_add_u32 s8, s8, {WS_KV}")
    a(f"s_add_u32 s{R_KV}, s38, s8")
    a(f"s_addc_u32 s{R_KV+1}, s39, 0")
    a(f"s_mov_b32 s{R_KV+2}, 0x20000")
    a(f"s_mov_b32 s{R_KV+3}, 0x00020000")
    a(f"s_mul_i32 s21, s{S_WAVE}, {RW}")
    a(f"s_add_u32 s21, s21, {KVR}", "ring base")
    a(f"v_lshlrev_b32 v{AV_KA}, 4, v0")
    a(f"v_add_u32 v{AV_KR}, s21, v{AV_KA}")
    a("v_lshrrev_b32 v8, 5, v0")
    a("v_lshlrev_b32 v8, 8, v8")
    a("v_and_b32 v9, 15, v0")
    a("v_lshl_add_u32 v8, v9, 4, v8")
    a("v_add_u32 v8, 1024, v8")
    a("v_add_u32 v9, 512, v8")
    a("v_and_b32 v10, 27, v0")
    a("v_cmp_eq_u32 vcc, 16, v10")
    a("v_mov_b32 v11, 2064")
    a("v_mov_b32 v12, 2048")
    a("v_cndmask_b32 v11, v11, v12, vcc")
    a("v_and_b32 v10, 16, v0")
    a("v_cmp_eq_u32 vcc, 0, v10")
    a("s_lshl_b32 s8, s19, 12")
    a(f"s_add_u32 s8, s8, {L_Q}")
    a("v_cndmask_b32 v8, v11, v8, vcc")
    a("v_cndmask_b32 v9, v11, v9, vcc")
    a(f"v_add_u32 v{AV_V0}, s21, v8")
    a(f"v_add_u32 v{AV_V1}, s21, v9")
    a(f"v_add_u32 v{AV_QA}, s8, v{AV_KA}")
    a(f"v_lshlrev_b32 v{AV_FA}, 3, v0")
    a("s_lshl_b32 s8, s19, 10")
    a(f"s_add_u32 s8, s8, {L_K0}")
    a(f"v_add_u32 v1, s8, v{AV_KA}")
    a("v_lshrrev_b32 v8, 3, v0")
    a(f"v_mul_u32_u24 v8, {KSLOT}, v8")
    a("v_and_b32 v9, 7, v0")
    a("v_lshl_add_u32 v8, v9, 2, v8")
    a("v_add_u32 v8, s21, v8")
    a("v_cmp_gt_u32 vcc, 4, v9")
    a("v_mov_b32 v10, 0x3f803f80")
    a("s_mov_b32 exec_hi, 0xffff")
    a("v_cndmask_b32 v10, 0, v10, vcc")
    a.lds("ds_write_b32 v8, v10 offset:2048", "pad")
    a("s_mov_b32 exec_hi, -1")
    a(f"s_lshl_b32 s22, s{S_HP}, 9")
    a(f"s_add_u32 s22, s22, {WS_FKV}", "flag base")
    a("s_lshl_b32 s23, 0x55555555, s18", "flag mask")
    a("s_mov_b32 s24, 0", "0: fast pass, 1: exact-max pass")
    a("s_mov_b32 s25, 2", "pair sync target")


def gemm_setup(a):
    a.c("GEMM setup")
    srd(a, R_WO, 20, 512 * 512 * 2)
    srd(a, R_W1, 24, 2048 * 1792 * 2)
    srd(a, R_B1, 26, 1792 * 2)
    srd(a, R_W2, 28, 1792 * 2048 * 2)
    srd(a, R_B2, 30, 2048 * 2)
    srd(a, R_OUT, 34, 2048 * 512 * 2)
    a("v_lshrrev_b32 v16, 3, v0")
    a("v_and_b32 v17, 7, v0")
    a("v_bfe_u32 v18, v0, 4, 1")
    a("v_lshlrev_b32 v18, 2, v18")
    a("v_xor_b32 v17, v17, v18")
    a("v_lshlrev_b32 v17, 4, v17")
    a(f"v_mul_u32_u24 v{GV_DMA}, 3584, v16")
    a(f"v_add_u32 v{GV_DMA}, v{GV_DMA}, v17")
    a(f"v_lshl_add_u32 v{GV_DMA+1}, v16, 12, v17")
    a(f"v_lshl_add_u32 v{GV_DMA+2}, v16, 10, v17")
    a(f"s_mul_i32 s18, s81, {TR*2048}")
    a(f"s_add_u32 s18, s18, {M_RING}", "T ring base")
    a("v_bfe_u32 v16, v0, 2, 2")
    a("v_lshlrev_b32 v17, 7, v16")
    a("v_bfe_u32 v16, v0, 3, 1")
    a("v_lshl_add_u32 v17, v16, 6, v17")
    a("v_bfe_u32 v16, v0, 4, 1")
    a("v_lshl_add_u32 v17, v16, 5, v17")
    a("v_add_u32 v17, s18, v17", "rows r, half swap, colhalf")
    a("v_and_b32 v16, 3, v0")
    a("v_lshl_add_u32 v18, v16, 3, v17", "+8c")
    a("v_and_b32 v16, 1, v0")
    a("v_lshl_add_u32 v19, v16, 4, v17")
    a("v_bfe_u32 v16, v0, 1, 1")
    a("v_lshl_add_u32 v19, v16, 3, v19", "+16(c&1)+8(c>>1): column permutation swap23")
    a("v_lshrrev_b32 v16, 5, v0")
    a("s_lshr_b32 s8, s81, 1", "a_w")
    a("s_and_b32 s9, s81, 1", "b_w")
    a("s_lshl_b32 s19, s8, 6")
    a("s_lshl_b32 s20, s9, 6")
    a(f"v_lshl_add_u32 v{GV_TA1}, v16, 10, v18")
    a(f"v_xor_b32 v{GV_TA1}, s19, v{GV_TA1}")
    a(f"v_xor_b32 v{GV_TA1+1}, 64, v{GV_TA1}")
    a(f"v_lshl_add_u32 v{GV_TA2}, v16, 9, v18")
    a(f"v_xor_b32 v{GV_TA2}, s20, v{GV_TA2}")
    a(f"v_xor_b32 v{GV_TA2+1}, 64, v{GV_TA2}")
    a(f"v_lshl_add_u32 v{GV_TA3}, v16, 9, v19")
    a(f"v_xor_b32 v{GV_TA3}, s19, v{GV_TA3}")
    a(f"v_xor_b32 v{GV_TA3+1}, 64, v{GV_TA3}")
    a("s_lshl_b32 s19, s8, 10")
    a("s_lshl_b32 s20, s9, 10")
    a("v_lshlrev_b32 v16, 4, v0")
    a(f"v_add_u32 v{GV_DB}, s20, v16")
    a(f"v_xor_b32 v{GV_DB+1}, 1024, v{GV_DB}")
    a(f"v_add_u32 v{GV_DA}, s19, v16")
    a(f"v_xor_b32 v{GV_DA+1}, 1024, v{GV_DA}")
    for v in range(1, 4):
        a(f"s_xor_b32 s8, s81, {v}")
        a("s_mul_i32 s8, s8, 12288")
        a(f"s_add_u32 s8, s8, {M_RED + (v-1)*4096}")
        a(f"v_add_u32 v{GV_MISC+v}, s8, v16")
    a("s_mul_i32 s8, s81, 12288")
    a(f"s_add_u32 s8, s8, {M_RED}")
    a(f"v_add_u32 v{GV_MISC}, s8, v16")
    a(f"s_and_b32 s8, s{S_XCD}, 1")
    a("s_lshl_b32 s8, s8, 2")
    a(f"s_and_b32 s9, s{S_IDX}, 3")
    a("s_add_u32 s19, s8, s9", "dt (G1)")
    a(f"s_lshr_b32 s8, s{S_XCD}, 1")
    a("s_mul_i32 s8, s8, 7")
    a(f"s_lshr_b32 s22, s{S_IDX}, 2", "dt (G2)")
    a("s_add_u32 s20, s8, s22", "ft")
    a(f"s_lshl_b32 s8, s{S_XCD}, 2")
    a("s_add_u32 s21, s8, s9", "st")
    a("s_lshl_b32 s8, s9, 3")
    a("s_mul_i32 s23, s22, 5")
    a("s_add_u32 s23, s23, s8")
    a("s_and_b32 s23, s23, 31", "rot G1")
    a("s_mul_i32 s9, s9, 7")
    a("s_mul_i32 s8, s22, 7")
    a("s_lshr_b32 s8, s8, 1")
    a("s_add_u32 s24, s9, s8")
    a("s_sub_u32 s9, s24, 28")
    a("s_cmp_ge_u32 s24, 28")
    a("s_cselect_b32 s24, s9, s24", "rot G2")


def epi_addr(a, par):
    a(f"s_lshl_b32 s84, s{S_SL}, 2")
    a("s_add_u32 s84, s84, s81", "tile")
    a("v_lshlrev_b32 v170, 4, v0")
    if par == 0:
        a("s_lshl_b32 s8, s81, 10")
        a(f"s_add_u32 s8, s8, {L_Q}")
        a("v_add_u32 v171, s8, v170")
    else:
        a(f"s_lshl_b32 s88, s{S_HP}, 18")
        a("s_lshl_b32 s9, s84, 11")
        a("s_add_u32 s88, s88, s9")
        a(f"s_add_u32 s88, s88, {WS_KV}")
        a("s_add_u32 s89, s88, 0x20000")
        a("v_lshrrev_b32 v171, 5, v0")
        a("v_lshlrev_b32 v171, 8, v171")
        a("v_and_b32 v172, 15, v0")
        a("v_lshl_add_u32 v171, v172, 4, v171", "h'*256 + i*16")
        a("v_bfe_u32 v173, v0, 4, 1", "e")
        a("v_lshl_add_u32 v172, v173, 17, v171", "global V voffset")
        a("s_and_b32 s8, s81, 1")
        a(f"s_mul_i32 s8, s8, {RW}")
        a("s_lshr_b32 s9, s81, 1")
        a(f"s_mul_i32 s9, s9, {KSLOT}")
        a("s_add_u32 s8, s8, s9")
        a(f"s_add_u32 s8, s8, {KVR}")
        a(f"v_mul_u32_u24 v173, {2*RW}, v173")
        a("v_add3_u32 v173, v173, v171, s8", "LDS V addr")
        a("v_add_u32 v171, s8, v170", "LDS K addr")


def proj(a, par):
    a.c(f"projection role {par}")
    ACC = 96 if par == 0 else 80
    XF, WF, XA, WA = PV_XF, PV_WF, PV_XA, PV_WA
    vm = []
    for t in a.vm:
        if t.endswith("A"):
            if par == 0:
                vm.append(t[:-1])
        else:
            vm.append(t)
    a.vm = vm
    if par == 0:
        att_setup(a)
        for r in range(64):
            a(f"v_mov_b32 v{AV_O+r}, 0")
    else:
        gemm_setup(a)
        for r in range(16, 64):
            a(f"v_mov_b32 v{GV_ACC+r}, 0")
    epi_addr(a, par)
    ln_compute(a)
    stamp(a, 1)
    for c in range(8):
        slot = c % 3
        a.c(f"chunk {c}")
        a.vm_wait(f"ch{c}")
        if a.lg:
            a.lg_drain()
        a("s_barrier")
        stamp(a, 32 + c)
        segs = [0] if par == 0 else [1, 2]

        def reads(ks):
            a.lds(f"ds_read_b128 {vr(XF+4*ks,4)}, v{XA+ks} offset:{P_XS + slot*16384}", f"r{ks}")
            for si, seg in enumerate(segs):
                off = slot * 12288 + ks * 3072 + seg * 1024
                w = WF + 8 * ks + 4 * si
                a.lds(f"ds_read_b64_tr_b16 {vr(w,2)}, v{WA} offset:{off}", f"r{ks}")
                a.lds(f"ds_read_b64_tr_b16 {vr(w+2,2)}, v{WA} offset:{off+256}", f"r{ks}")

        def mm(ks):
            a.lg_wait(f"r{ks}")
            a(mfma(ACC, WF + 8 * ks, XF + 4 * ks, ACC))
            if par == 1:
                a(mfma(ACC + 16, XF + 4 * ks, WF + 8 * ks + 4, ACC + 16))
        for ks in range(3):
            reads(ks)
        if par == 0:
            reads(3)
        if c + 2 < 8:
            p_issue(a, c + 2, par)
        mm(0)
        if par == 1:
            reads(3)
        for ks in range(1, 4):
            mm(ks)
        if c == 0:
            ln_store(a)
        if c == 3:
            tag_get(a)
            if par == 1:
                lab = a.label("nofh")
                a("s_cmp_lg_u32 s81, 0")
                a(f"s_cbranch_scc1 {lab}")
                a(f"s_add_u32 s8, s80, {WS_FH}")
                n0 = len(a.vm)
                flag_set(a, "s8", 218, 220)
                a.vm = a.vm[:n0]
                a(f"{lab}:")
        if c == 4 and par == 0:
            for r in range(4, 8):
                a(f"v_mov_b32 v{AV_P+r}, 0")
            for r in range(8):
                a(f"v_mov_b32 v{AV_V+8+r}, 0")
    stamp(a, 3)
    a.c("projection epilogue")
    if par == 0:
        a(f"s_mov_b32 s9, {f32bits(0.25*LOG2E)}")
        a("s_nop 10")
        for r in range(16):
            a(f"v_mul_f32 v{ACC+r}, s9, v{ACC+r}")
        for r in range(8):
            a(f"v_cvt_pk_bf16_f32 v{XF+r}, v{ACC+2*r}, v{ACC+2*r+1}")
        a.lds(f"ds_write_b128 v171, {vr(XF,4)}", "qw")
        a.lds(f"ds_write_b128 v171, {vr(XF+4,4)} offset:4096", "qw")
    else:
        a("s_nop 10")
        for r in range(16):
            a(f"v_cvt_pk_bf16_f32 v{XF+r}, v{ACC+2*r}, v{ACC+2*r+1}")
        a.lds(f"ds_write_b128 v171, {vr(XF,4)}", "kw")
        a.lds(f"ds_write_b128 v171, {vr(XF+4,4)} offset:{2*RW}", "kw")
        lab = a.label("nok0")
        a("s_cmp_lg_u32 s81, 0")
        a(f"s_cbranch_scc1 {lab}")
        a(f"ds_write_b128 v171, {vr(XF,4)} offset:{L_K0-KVR}")
        a(f"ds_write_b128 v171, {vr(XF+4,4)} offset:{L_K0-KVR+1024}")
        a(f"{lab}:")
        a.lds(f"ds_write_b128 v173, {vr(XF+8,4)} offset:1024", "kw")
        a.lds(f"ds_write_b128 v173, {vr(XF+12,4)} offset:1536", "kw")
        a.vmem(f"buffer_store_dwordx4 {vr(XF,4)}, v170, {rs(R_WS)}, s88 offen sc1", "kvst")
        a.vmem(f"buffer_store_dwordx4 {vr(XF+4,4)}, v170, {rs(R_WS)}, s89 offen sc1", "kvst")
        a.vmem(f"buffer_store_dwordx4 {vr(XF+8,4)}, v172, {rs(R_WS)}, s88 offen offset:1024 sc1", "kvst")
        a.vmem(f"buffer_store_dwordx4 {vr(XF+12,4)}, v172, {rs(R_WS)}, s88 offen offset:1536 sc1", "kvst")
    a.lg_drain()
    a("s_barrier")


def attn_body(a, u_list, extra):
    kb = lambda n: n % 2
    for (n, i, pn, pi, nn, ni, par) in u_list:
        cur, nxt = AV_S + 16 * par, AV_S + 16 * (1 - par)
        E = lambda r: a(f"v_exp_f32 v{cur+r}, v{cur+r}")
        C = lambda r: a(f"v_cvt_pk_bf16_f32 v{AV_P+r}, v{cur+2*r}, v{cur+2*r+1}")
        E(0)
        E(1)
        a(mfma(AV_O + 16 * pi, AV_V + 8 * kb(pn) + 4, AV_P + 4, AV_O + 16 * pi))
        extra(n, i, 0)
        for r in range(2, 8):
            E(r)
        if nn is not None:
            a(mfma(nxt, AV_K + 4 * kb(nn), AV_Q + 4 * ni, AV_C + 16 * ni))
            extra(n, i, 1)
        else:
            a("s_nop 0")
        for r in range(4):
            C(r)
        for r in range(8, 12):
            E(r)
        a(mfma(AV_O + 16 * i, AV_V + 8 * kb(n), AV_P, AV_O + 16 * i))
        extra(n, i, 2)
        for r in range(12, 16):
            E(r)
        for r in range(4, 8):
            C(r)


def attention(a):
    a.c("attention role")
    KS = "s12"

    def rd(n):
        so, b = (n % KR) * KSLOT, n % 2
        return [f"ds_read_b128 {vr(AV_K+4*b,4)}, v{AV_KR} offset:{so}",
                f"ds_read_b128 {vr(AV_V+8*b,4)}, v{AV_V0} offset:{so}",
                f"ds_read_b128 {vr(AV_V+8*b+4,4)}, v{AV_V1} offset:{so}"]

    def dma(n):
        return [f"s_add_u32 m0, s21, {(n % KR) * KSLOT}",
                f"buffer_load_dwordx4 v{AV_KA}, {rs(R_KV)}, {KS} offen sc1 lds",
                f"buffer_load_dwordx4 v{AV_KA}, {rs(R_KV)}, {KS} offen offset:1024 sc1 lds",
                f"s_add_u32 {KS}, {KS}, 4096",
                f"s_and_b32 {KS}, {KS}, 0x1ffff"]

    def fill():
        a(f"s_lshl_b32 {KS}, s{S_SL}, 2")
        a(f"s_add_u32 {KS}, {KS}, s18")
        a(f"s_add_u32 {KS}, {KS}, 4")
        a(f"s_lshl_b32 {KS}, {KS}, 11")
        a(f"s_and_b32 {KS}, {KS}, 0x1ffff")
        for n in range(2, 2 + KR):
            d = dma(n)
            a(d[0])
            a("s_nop 0")
            for x in d[1:]:
                a(x)
        a(f"v_mov_b32 v10, {M_CNT+36}")
        a("v_mov_b32 v11, 1")
        a("s_mov_b64 exec, 1")
        a("ds_add_u32 v10, v11", "release the GEMM waves")
        a("s_mov_b64 exec, -1")

    a(f"s_setprio {OPT['prio_att']}")
    for i in range(4):
        a(f"ds_read_b128 {vr(AV_Q+4*i,4)}, v{AV_QA} offset:{i*1024}")
    a(f"ds_read_b128 {vr(AV_S,4)}, v1", "K tile 0 of my head")
    stamp(a, 4)
    a.c("max estimate from own key tile 0")
    a("s_waitcnt lgkmcnt(0)")
    for i in range(4):
        a(mfma(AV_C + 16 * i, AV_S, AV_Q + 4 * i, "0"))
    for x in rd(0):
        a(x)
    a("s_nop 5")
    for i in range(4):
        a(f"v_max3_f32 v{12+i}, v{AV_C+16*i}, v{AV_C+16*i+1}, v{AV_C+16*i+2}")
        for r in range(6):
            a(f"v_max3_f32 v{12+i}, v{AV_C+16*i+3+2*r}, v{AV_C+16*i+4+2*r}, v{12+i}")
        a(f"v_max_f32 v{12+i}, v{AV_C+16*i+15}, v{12+i}")
    lredo = a.label("redo")
    a(f"{lredo}:")
    for i in range(4):
        a(f"v_mov_b32 v{8+i}, v{12+i}")
    a("s_nop 1")
    for i in range(4):
        a(f"v_permlane32_swap_b32 v{12+i}, v{8+i}")
    a("s_nop 1")
    for i in range(4):
        a(f"v_max_f32 v{12+i}, v{12+i}, v{8+i}")
    for r in range(16):
        a(f"v_sub_f32 v{AV_C+r}, 0, v12")
    a("s_mov_b32 s13, 0", "early-fill done flag")
    a("s_waitcnt lgkmcnt(0)")
    a(mfma(AV_S, AV_K, AV_Q, AV_C))
    for i in range(1, 4):
        for r in range(16):
            a(f"v_sub_f32 v{AV_C+16*i+r}, 0, v{12+i}")
    stamp(a, 5)
    a.c("phase A: own tiles")
    ul = []
    for u in range(8):
        n, i = u // 4, u % 4
        pn, pi = (1, 3) if u == 0 else ((u - 1) // 4, (u - 1) % 4)
        nn, ni = ((u + 1) // 4, (u + 1) % 4) if u < 7 else (None, None)
        ul.append((n, i, pn, pi, nn, ni, u % 2))

    def extraA(n, i, slot):
        if n == 0 and (i, slot) in ((0, 1), (0, 2), (1, 0)):
            a(rd(1)[[(0, 1), (0, 2), (1, 0)].index((i, slot))])
        if n == 0 and (i, slot) == (3, 0):
            a("s_waitcnt lgkmcnt(0)")
        if OPT["early"]:
            if n == 0 and (i, slot) == (2, 0):
                a(f"buffer_load_dwordx2 v[8:9], v{AV_FA}, {rs(R_WS)}, s22 offen sc1")
            if n == 1 and (i, slot) == (1, 0):
                lab = a.label("noearly")
                a("s_waitcnt vmcnt(0)")
                flag_check(a, 8, "s23", "s23")
                a(f"s_cbranch_scc0 {lab}")
                fill()
                a("s_mov_b32 s13, 1")
                a(f"{lab}:")
    attn_body(a, ul, extraA)
    stamp(a, 6)
    lab = a.label("filled")
    a("s_cmp_lg_u32 s13, 0")
    a(f"s_cbranch_scc1 {lab}")
    flag_wait(a, "s22", AV_FA, 8, "s23", "s23", sleep=1)
    fill()
    a(f"{lab}:")
    a(f"s_waitcnt vmcnt({2*(KR-1)})")
    for x in rd(2):
        a(x)
    a("s_mov_b32 s16, 5")
    stamp(a, 7)
    a("s_waitcnt lgkmcnt(0)")
    a(mfma(AV_S, AV_K, AV_Q, AV_C))
    a("s_nop 10")
    lloop = a.label("attn")
    a(".p2align 6")
    a(f"{lloop}:")
    ul = []
    for u in range(24):
        n, i = 2 + u // 4, u % 4
        pn, pi = 2 + (u - 1) // 4, (u - 1) % 4
        nn, ni = 2 + (u + 1) // 4, (u + 1) % 4
        ul.append((n, i, pn, pi, nn, ni, u % 2))

    def extraL(n, i, slot):
        d, r = dma(n + KR), rd(n + 1)
        sched = {(0, 0): f"s_waitcnt vmcnt({2*(KR-2)})", (0, 1): r[0], (0, 2): r[1], (1, 0): r[2],
                 (1, 1): d[0], (1, 2): d[1], (2, 0): d[2], (2, 1): d[3], (2, 2): d[4],
                 (3, 0): "s_waitcnt lgkmcnt(0)"}
        if (i, slot) in sched:
            a(sched[(i, slot)])
        if OPT["stamps"] and n == 2 and (i, slot) == (2, 2):
            a("s_memrealtime s[98:99]")
            a("s_memtime s[100:101]")
        if OPT["stamps"] and n == 2 and (i, slot) == (3, 1):
            a("s_add_u32 m0, s16, 40")
            a("s_nop 0")
            a("v_writelane_b32 v254, s98, m0")
            a("v_writelane_b32 v255, s100, m0")
        if n == 6 and (i, slot) == (3, 1):
            a("s_sub_u32 s16, s16, 1")
        if n == 6 and (i, slot) == (3, 2):
            a("s_cmp_eq_u32 s16, 1")
        if n == 7 and (i, slot) == (0, 0):
            a("s_cselect_b32 s26, 0, 0x20000")
        if n == 7 and (i, slot) == (3, 1):
            a(f"s_mov_b32 s{R_KV+2}, s26", "last iteration: DMA out of range (no traffic)")
        if n == 7 and (i, slot) == (3, 2):
            a("s_cmp_lg_u32 s16, 0")
    attn_body(a, ul, extraL)
    a(f"s_cbranch_scc1 {lloop}")
    a("s_nop 0")
    a(mfma(AV_O + 48, AV_V + 8 + 4, AV_P + 4, AV_O + 48))
    stamp(a, 8)
    a.c("check + combine")
    a("v_lshlrev_b32 v9, 2, v0")
    a("v_add_u32 v9, s21, v9", "own area, lane*4")
    a(f"s_xor_b32 s8, s{S_WAVE}, 1")
    a(f"s_mul_i32 s8, s8, {RW}")
    a(f"s_add_u32 s8, s8, {KVR}")
    a(f"v_add_u32 v10, s8, v{AV_KA}", "partner area")
    a("v_lshlrev_b32 v11, 2, v0")
    a("v_add_u32 v11, s8, v11")
    a("s_waitcnt vmcnt(0)")
    a("s_nop 2")
    a(f"v_add_f32 v8, v{AV_O+8}, v{AV_O+24}")
    a(f"v_add_f32 v1, v{AV_O+40}, v{AV_O+56}")
    a("v_add_f32 v8, v8, v1")
    a(f"v_mov_b32 v1, {f32bits(2.0**60)}")
    a("v_cmp_nlt_f32 vcc, v8, v1")
    a("s_cmp_lg_u64 vcc, 0")
    a("s_cselect_b32 s8, 0x10001, 1")
    a("v_mov_b32 v1, s8")
    lk1, ljoin = a.label("kh1"), a.label("khj")
    a("s_cmp_eq_u32 s18, 1")
    a(f"s_cbranch_scc1 {lk1}")

    def send(o, j):
        a(f"ds_write_b128 v{AV_KR}, {vr(o,4)} offset:{2*j*KSLOT}")
        a(f"ds_write_b128 v{AV_KR}, {vr(o+4,4)} offset:{2*j*KSLOT+1024}")
        a(f"ds_write_b32 v9, v{o+8} offset:{(2*j+1)*KSLOT}")
    for j in range(2):
        send(AV_O + 16 * (2 + j), j)
    a(f"s_branch {ljoin}")
    a(f"{lk1}:")
    for j in range(2):
        send(AV_O + 16 * j, j)
    a("s_waitcnt lgkmcnt(0)")
    for j in range(2):
        for r in range(9):
            a(f"v_mov_b32 v{AV_O+16*j+r}, v{AV_O+16*(2+j)+r}")
    a(f"{ljoin}:")
    lab, lab2 = a.label("asy"), a.label("asyd")
    a("s_lshl_b32 s8, s19, 2")
    a(f"s_add_u32 s8, s8, {M_CNT}")
    a("v_mov_b32 v8, s8")
    a("s_mov_b64 exec, 1")
    a("ds_add_u32 v8, v1")
    a("s_mov_b64 exec, -1")
    a(f"s_mov_b32 s17, {SPIN*16}")
    a(f"{lab}:")
    a("ds_read_b32 v9, v8")
    a("s_waitcnt lgkmcnt(0)")
    a("v_readfirstlane_b32 s8, v9")
    a("s_and_b32 s9, s8, 0xffff")
    a("s_cmp_ge_u32 s9, s25")
    a(f"s_cbranch_scc1 {lab2}")
    spin_guard(a, lab)
    a(f"{lab2}:")
    lok, lslow = a.label("aok"), a.label("aslow")
    a("s_lshr_b32 s9, s8, 16")
    a("s_cmp_lg_u32 s9, 0")
    a(f"s_cbranch_scc1 {lslow}")
    a(f"{lok}:")
    for j in range(2):
        t = AV_S + 16 * j
        a(f"ds_read_b128 {vr(t,4)}, v10 offset:{2*j*KSLOT}")
        a(f"ds_read_b128 {vr(t+4,4)}, v10 offset:{2*j*KSLOT+1024}")
        a(f"ds_read_b32 v{t+8}, v11 offset:{(2*j+1)*KSLOT}")
    a(f"s_lshl_b32 s8, s{S_SL}, 1")
    a("s_add_u32 s8, s8, s18")
    a("s_lshl_b32 s8, s8, 5")
    a("s_add_u32 s8, s8, s20", "st*32 + head")
    a("s_lshl_b32 s9, s8, 3")
    a(f"s_add_u32 s9, s9, {WS_FO}")
    a("s_lshl_b32 s8, s8, 11")
    a(f"s_add_u32 s8, s8, {WS_O}")
    a("s_waitcnt lgkmcnt(0)")
    for j in range(2):
        a(f"v_add_f32 v{AV_O+16*j+8}, v{AV_O+16*j+8}, v{AV_S+16*j+8}")
    for j in range(2):
        a(f"v_rcp_f32 v{AV_O+16*j+8}, v{AV_O+16*j+8}")
    for j in range(2):
        for r in range(8):
            a(f"v_add_f32 v{AV_O+16*j+r}, v{AV_O+16*j+r}, v{AV_S+16*j+r}")
    for j in range(2):
        for r in range(8):
            a(f"v_mul_f32 v{AV_O+16*j+r}, v{AV_O+16*j+r}, v{AV_O+16*j+8}")
        for r in range(4):
            a(f"v_cvt_pk_bf16_f32 v{AV_P+4*j+r}, v{AV_O+16*j+2*r}, v{AV_O+16*j+2*r+1}")
        a(f"buffer_store_dwordx4 {vr(AV_P+4*j,4)}, v{AV_KA}, {rs(R_WS)}, s8 offen offset:{j*1024} sc1")
    a(f"v_mov_b32 v10, s{S_TAG}")
    a(f"v_mov_b32 v11, s{S_TAG+1}")
    a("v_mov_b32 v9, 0")
    a("s_mov_b64 exec, 1")
    a("s_waitcnt vmcnt(0)")
    a(f"buffer_store_dwordx2 v[10:11], v9, {rs(R_WS)}, s9 offen sc1")
    a("s_mov_b64 exec, -1")
    stamp(a, 9, True)
    a("s_endpgm")
    a(f"{lslow}:")
    a("s_cmp_lg_u32 s24, 0")
    a(f"s_cbranch_scc1 {lok}")
    a("s_mov_b32 s24, 1")
    a("s_mov_b32 s25, 4")
    a(f"s_mov_b32 s{R_KV+2}, 0x20000")
    flag_wait(a, "s22", AV_FA, 8, "-1", "-1")
    for i in range(4):
        a(f"v_mov_b32 v{12+i}, 0xff800000")
    a("s_mov_b32 s8, 0")
    lmax = a.label("maxloop")
    a(f"{lmax}:")
    a(f"buffer_load_dwordx4 {vr(AV_K,4)}, v{AV_KA}, {rs(R_KV)}, s8 offen sc1")
    a("s_waitcnt vmcnt(0)")
    for i in range(4):
        a(mfma(AV_C + 16 * i, AV_K, AV_Q + 4 * i, "0"))
    a("s_nop 9")
    for i in range(4):
        for r in range(8):
            a(f"v_max3_f32 v{12+i}, v{AV_C+16*i+2*r}, v{AV_C+16*i+2*r+1}, v{12+i}")
    a("s_add_u32 s8, s8, 2048")
    a("s_cmp_lt_u32 s8, 0x20000")
    a(f"s_cbranch_scc1 {lmax}")
    for r in range(64):
        a(f"v_mov_b32 v{AV_O+r}, 0")
    for r in range(4, 8):
        a(f"v_mov_b32 v{AV_P+r}, 0")
    a(f"s_lshl_b32 {KS}, s{S_SL}, 2")
    a(f"s_add_u32 {KS}, {KS}, s18")
    a(f"s_lshl_b32 {KS}, {KS}, 11")
    for n in range(2):
        d = dma(n)
        a(d[0])
        a("s_nop 0")
        for x in d[1:]:
            a(x)
    a("s_waitcnt vmcnt(0)")
    for x in rd(0):
        a(x)
    a(f"s_branch {lredo}")


class Rot:
    def __init__(self, a, cur, beg, end, stride):
        self.a, self.cur, self.beg, self.end, self.stride = a, cur, beg, end, stride

    def init(self, srot, n):
        a = self.a
        a(f"s_add_u32 s{self.end}, s{self.beg}, {n*self.stride}")
        a(f"s_mul_i32 s{self.cur}, s{srot}, {self.stride}")
        a(f"s_add_u32 s{self.cur}, s{self.cur}, s{self.beg}")

    def adv(self):
        a = self.a
        a(f"s_add_u32 s{self.cur}, s{self.cur}, {self.stride}")
        if self.beg is not None:
            a(f"s_cmp_eq_u32 s{self.cur}, s{self.end}")
            a(f"s_cselect_b32 s{self.cur}, s{self.beg}, s{self.cur}")


def gemm_role(a):
    HW = OPT["hw"]
    NB = 4
    assert HW < NB and HW + 1 <= TR
    a.c("GEMM role")
    stamp(a, 4)
    a("v_mov_b32 v1, 1")
    M = GV_MISC + 4
    T1 = Rot(a, 25, 26, 27, 16 * 3584)
    T2 = Rot(a, 25, 26, 27, 16 * 4096)
    TO = Rot(a, 31, None, None, 16 * 1024)
    D = Rot(a, 28, 29, 30, 2048)

    class Stream:
        def __init__(self, items):
            self.items = items
            self.issued = 0

        def upto(self, n):
            while self.issued < min(n, len(self.items)):
                j = self.issued
                rot, rsrc, vreg, rstr = self.items[j]
                a(f"s_add_u32 m0, s18, {(j % TR)*2048}")
                a(f"s_add_u32 s8, s{rot.cur}, {8*rstr - 1024}")
                a.vmem(f"buffer_load_dwordx4 v{vreg}, {rs(rsrc)}, s{rot.cur} offen {NT(1)}lds", f"T{j}")
                a.vmem(f"buffer_load_dwordx4 v{vreg}, {rs(rsrc)}, s8 offen offset:1024 {NT(1)}lds", f"T{j}")
                rot.adv()
                self.issued += 1

    def d_issue(k, da):
        buf = k % NB
        for x in range(2):
            a.vmem(f"buffer_load_dwordx4 {vr(GV_D+8*buf+4*x,4)}, v{da+x}, {rs(R_WS)}, s{D.cur} offen sc1", f"D{k}")
        D.adv()

    def tread(j, ta, rd2, dst):
        for x in range(2):
            a.lds(f"ds_read_b64_tr_b16 {vr(dst+4*x,2)}, v{ta+x} offset:{(j % TR)*2048}", f"tr{j}")
            a.lds(f"ds_read_b64_tr_b16 {vr(dst+4*x+2,2)}, v{ta+x} offset:{(j % TR)*2048+rd2}", f"tr{j}")

    def kloop(st, j0, nsteps, t_is_A, ta, rd2, da, hw0n=0):
        hwf = lambda k: OPT["hw0"] if k < hw0n else HW
        dn = [0]

        def d_upto(n):
            while dn[0] < min(n, nsteps):
                d_issue(dn[0], da)
                dn[0] += 1
        st.upto(j0 + 1)
        d_upto(1)
        st.upto(j0 + 1 + hwf(0))
        d_upto(hwf(0))
        a.vm_wait_if(f"T{j0}")
        tread(j0, ta, rd2, GV_T)
        for k in range(nsteps):
            tb, db = GV_T + 8 * (k % 2), GV_D + 8 * (k % NB)

            def mm(x, y):
                if t_is_A:
                    d = GV_ACC + 16 * (2 * x + y)
                    a(mfma(d, tb + 4 * x, db + 4 * y, d))
                else:
                    d = GV_ACC + 16 * (2 * y + x)
                    a(mfma(d, db + 4 * y, tb + 4 * x, d))
            a.vm_wait_if(f"D{k}")
            a.lg_wait(f"tr{j0+k}")
            if k % 4 == 0:
                stamp(a, (16 if t_is_A else 24) + k // 4)
            mm(0, 0)
            d_upto(k + 1 + hwf(k))
            mm(0, 1)
            if k + 1 < nsteps:
                a.vm_wait_if(f"T{j0+k+1}")
                tread(j0 + k + 1, ta, rd2, GV_T + 8 * ((k + 1) % 2))
            mm(1, 0)
            st.upto(j0 + k + 2 + hwf(k))
            mm(1, 1)

    def reduce(cnt):
        for v in range(1, 4):
            for q in range(4):
                a.lds(f"ds_write_b128 v{GV_MISC+v}, {vr(GV_ACC+16*v+4*q,4)} offset:{q*1024}", "rw")
        lds_arrive(a, cnt, M, 1)
        lds_wait(a, cnt, 4, M, sleep=False)
        for v in range(3):
            for q in range(4):
                a.lds(f"ds_read_b128 {vr(GV_ACC+16+16*v+4*q,4)}, v{GV_MISC} offset:{v*4096+q*1024}", f"rr{v}")
        for v in range(3):
            a.lg_wait(f"rr{v}")
            for r in range(16):
                a(f"v_add_f32 v{GV_ACC+r}, v{GV_ACC+r}, v{GV_ACC+16+16*v+r}")

    lskip1, lskip2 = a.label("skipg1"), a.label("skipg1e")
    a(f"v_lshrrev_b32 v{M}, 5, v0")
    a(f"v_lshlrev_b32 v{M}, 3, v{M}")
    a("s_lshl_b32 s8, s20, 7")
    a("s_lshr_b32 s9, s81, 1")
    a("s_lshl_b32 s9, s9, 6")
    a("s_add_u32 s8, s8, s9")
    for g in range(4):
        a.vmem(f"buffer_load_dwordx2 {vr(GV_Y+2*g,2)}, v{M}, {rs(R_B1)}, s8 offen offset:{16*g}", "b1")
    a(f"s_mul_i32 s{T1.beg}, s81, {512*3584}")
    a("s_lshl_b32 s8, s20, 7")
    a(f"s_add_u32 s{T1.beg}, s{T1.beg}, s8")
    T1.init(23, 32)
    st1 = Stream([(T1, R_W1, GV_DMA, 3584)] * 32)
    a(f"s_lshl_b32 s{D.beg}, s19, 18")
    a("s_lshl_b32 s8, s81, 16")
    a(f"s_add_u32 s{D.beg}, s{D.beg}, s8")
    D.init(23, 32)
    a(f"s_lshl_b32 s8, s{S_HP}, 6")
    a("s_add_u32 s8, s8, s84")
    a("s_lshl_b32 s8, s8, 3")
    a(f"s_add_u32 s8, s8, {WS_FKV}")
    a.vm_wait("kvst")
    flag_set(a, "s8", M, M + 2)
    stamp(a, 5)
    a(f"v_lshlrev_b32 v{M}, 3, v0")
    a("s_lshl_b32 s9, s81, 9")
    a(f"s_add_u32 s9, s9, {WS_FH}")
    flag_wait(a, "s9", M, M + 2, "-1", "-1")
    for g in range(4):
        for hh in range(2):
            a(f"v_lshlrev_b32 v{GV_ACC+4*g+2*hh}, 16, v{GV_Y+2*g+hh}")
            a(f"v_and_b32 v{GV_ACC+4*g+2*hh+1}, 0xffff0000, v{GV_Y+2*g+hh}")
    if OPT["gate"]:
        lds_wait(a, M_CNT + 36, 4, M)
    a(f"s_cmp_ge_u32 s{S_IDX}, 28")
    a(f"s_cbranch_scc1 {lskip2}")
    a(f"s_setprio {OPT['prio_gemm']}")
    stamp(a, 6)
    kloop(st1, 0, 32, True, GV_TA1, 512, GV_DB, OPT["hw0n"])
    a("s_setprio 3")
    stamp(a, 7)
    a("s_nop 8")
    a.c("G1 epilogue")
    reduce(M_CNT + 16)
    c0 = -2.0 * math.sqrt(2.0 / math.pi) * LOG2E
    c1 = c0 * 0.044715
    a(f"s_mov_b32 s8, {f32bits(c1)}")
    a(f"v_mov_b32 v{M}, {f32bits(c0)}")
    TT = GV_ACC + 16
    for r in range(16):
        a(f"v_mul_f32 v{TT+r}, v{GV_ACC+r}, v{GV_ACC+r}")
    for r in range(16):
        a(f"v_fma_f32 v{TT+r}, v{TT+r}, s8, v{M}")
    for r in range(16):
        a(f"v_mul_f32 v{TT+r}, v{TT+r}, v{GV_ACC+r}")
    for r in range(16):
        a(f"v_exp_f32 v{TT+r}, v{TT+r}")
    for r in range(16):
        a(f"v_add_f32 v{TT+r}, 1.0, v{TT+r}")
    for r in range(16):
        a(f"v_rcp_f32 v{TT+r}, v{TT+r}")
    for r in range(16):
        a(f"v_mul_f32 v{TT+r}, v{TT+r}, v{GV_ACC+r}")
    for r in range(8):
        a(f"v_cvt_pk_bf16_f32 v{GV_ACC+r}, v{TT+2*r}, v{TT+2*r+1}")
    a("s_mul_i32 s8, s19, 112")
    a("s_lshl_b32 s9, s20, 2")
    a("s_add_u32 s8, s8, s9")
    a("s_and_b32 s9, s81, 2")
    a("s_add_u32 s8, s8, s9")
    a("s_lshl_b32 s8, s8, 11")
    a(f"s_add_u32 s8, s8, {WS_U}")
    a.vmem(f"buffer_store_dwordx4 {vr(GV_ACC,4)}, v{GV_DB}, {rs(R_WS)}, s8 offen sc1", "ust")
    a.vmem(f"buffer_store_dwordx4 {vr(GV_ACC+4,4)}, v{GV_DB}, {rs(R_WS)}, s8 offen offset:2048 sc1", "ust")
    a("s_lshl_b32 s8, s19, 10")
    a("s_lshl_b32 s9, s20, 5")
    a("s_add_u32 s8, s8, s9")
    a("s_lshl_b32 s9, s81, 3")
    a("s_add_u32 s8, s8, s9")
    a(f"s_add_u32 s8, s8, {WS_FU}")
    a("s_mov_b32 s23, s8")
    a.vm_drain()
    flag_set(a, "s23", M, M + 2)
    stamp(a, 8)
    a(f"{lskip2}:")
    a.vm = []
    a(f"s_lshl_b32 s{TO.cur}, s81, 17")
    a("s_lshl_b32 s8, s22, 7")
    a(f"s_add_u32 s{TO.cur}, s{TO.cur}, s8")
    st2 = Stream([(TO, R_WO, GV_DMA + 2, 1024)] * 8 + [(T2, R_W2, GV_DMA + 1, 4096)] * 28)
    st2.upto(OPT["pf"])
    a(f"s_mul_i32 s{T2.beg}, s81, {448*4096}")
    a("s_lshl_b32 s8, s21, 7")
    a(f"s_add_u32 s{T2.beg}, s{T2.beg}, s8")
    T2.init(24, 28)
    a(f"s_mul_i32 s{D.beg}, s22, 112")
    a("s_mul_i32 s8, s81, 28")
    a(f"s_add_u32 s{D.beg}, s{D.beg}, s8")
    a(f"s_lshl_b32 s{D.beg}, s{D.beg}, 11")
    a(f"s_add_u32 s{D.beg}, s{D.beg}, {WS_U}")
    D.init(24, 28)
    lds_arrive(a, M_CNT + 20, M, 1)
    for j in range(8):
        a.vm_wait_if(f"T{j}")
        tread(j, GV_TA3, 1024, GV_WO + 8 * j)
        a.lg_wait(f"tr{j}")
        st2.upto(j + 1 + OPT["pf"])
    for j in range(8 + OPT["pf"], 8 + TR):
        a.vm_wait_if(f"T{j - OPT['pf']}")
        st2.upto(j + 1)
    for r in range(64):
        a(f"v_mov_b32 v{GV_ACC+r}, 0")
    a(f"v_lshlrev_b32 v{M}, 3, v0")
    a("s_lshl_b32 s9, s22, 10")
    a("s_mul_i32 s8, s81, 224")
    a("s_add_u32 s9, s9, s8")
    a(f"s_add_u32 s9, s9, {WS_FU}")
    flag_wait(a, "s9", M, M + 2, "0x0fffffff", "0")
    a(f"s_setprio {OPT['prio_gemm']}")
    stamp(a, 9)
    a(f"v_and_b32 v{M}, 31, v0")
    a(f"v_lshlrev_b32 v{M+1}, 2, v{M}")
    a(f"v_lshlrev_b32 v{M}, 1, v{M}")
    a("s_lshl_b32 s8, s21, 6")
    a("s_and_b32 s9, s81, 1")
    a("s_lshl_b32 s9, s9, 5")
    a("s_add_u32 s23, s8, s9", "first row of own sub-tile")
    a("s_lshl_b32 s9, s23, 2")
    a(f"s_add_u32 s9, s9, {WS_G}")
    a("s_lshl_b32 s8, s23, 1")
    a.vmem(f"buffer_load_ushort v15, v{M}, {rs(R_B2)}, s8 offen", "b2")
    a.vmem(f"buffer_load_dword v252, v{M+1}, {rs(R_WS)}, s9 offen sc1", "b2")
    kloop(st2, 8, 28, False, GV_TA2, 1024, GV_DA)
    a("s_setprio 3")
    stamp(a, 10)
    lds_wait(a, M_CNT + 20, 4, M)
    reduce(M_CNT + 24)
    lds_arrive(a, M_CNT + 28, M, 1)
    a("v_lshlrev_b32 v15, 16, v15")
    a(f"v_sub_f32 v{M}, 1.0, v252")
    for r in range(16):
        a(f"v_add_f32 v{GV_ACC+r}, v{GV_ACC+r}, v15")
    for r in range(16):
        a(f"v_mul_f32 v{GV_Y+r}, v{GV_ACC+r}, v{M}")
    stamp(a, 11)
    a("v_and_b32 v15, 31, v0")
    a("v_lshlrev_b32 v15, 10, v15")
    a(f"v_lshrrev_b32 v{M}, 5, v0")
    a(f"v_lshl_add_u32 v15, v{M}, 4, v15")
    a("s_lshl_b32 s23, s23, 10")
    a("s_lshl_b32 s8, s22, 7")
    a("s_add_u32 s23, s23, s8")
    a("s_lshr_b32 s8, s81, 1")
    a("s_lshl_b32 s8, s8, 6")
    a("s_add_u32 s23, s23, s8")
    a("s_lshl_b32 s25, s21, 16")
    a("s_lshl_b32 s8, s81, 14")
    a("s_add_u32 s25, s25, s8")
    a(f"s_add_u32 s25, s25, {WS_O}")
    lds_wait(a, M_CNT + 28, 4, M)
    a(f"v_lshlrev_b32 v{M}, 3, v0")
    a("s_lshl_b32 s9, s21, 8")
    a("s_lshl_b32 s8, s81, 6")
    a("s_add_u32 s9, s9, s8")
    a(f"s_add_u32 s9, s9, {WS_FO}")
    flag_wait(a, "s9", M, M + 2, "0xff", "0", sleep=1)
    stamp(a, 12)
    for k in range(8):
        if k % 2 == 0 and k:
            a("s_add_u32 s25, s25, 4096")
        for x in range(2):
            a.vmem(f"buffer_load_dwordx4 {vr(GV_D+8*k+4*x,4)}, v{GV_DB+x}, {rs(R_WS)}, s25 offen offset:{(k%2)*2048} sc1", f"O{k}")
    for k in range(8):
        a.vm_wait(f"O{k}")
        for v in (1, 2, 3, 0):
            x, y = v >> 1, v & 1
            d = GV_ACC + 16 * v
            a(mfma(d, GV_WO + 8 * k + 4 * x, GV_D + 8 * k + 4 * y, "0" if k == 0 else d))
    a("s_nop 8")
    stamp(a, 13)
    reduce(M_CNT + 32)
    for r in range(16):
        a(f"v_fma_f32 v{GV_ACC+r}, v{GV_ACC+r}, v252, v{GV_Y+r}")
    for r in range(8):
        a(f"v_cvt_pk_bf16_f32 v{GV_ACC+16+r}, v{GV_ACC+2*r}, v{GV_ACC+2*r+1}")
    a.vmem(f"buffer_store_dwordx4 {vr(GV_ACC+16,4)}, v15, {rs(R_OUT)}, s23 offen", "ost")
    a.vmem(f"buffer_store_dwordx4 {vr(GV_ACC+20,4)}, v15, {rs(R_OUT)}, s23 offen offset:32", "ost")
    stamp(a, 14, True)


def descriptor(name, vgpr=256):
    return f""".section .rodata,"a"
.p2align 6
.amdhsa_kernel {name}
  .amdhsa_next_free_vgpr {vgpr}
  .amdhsa_next_free_sgpr 102
  .amdhsa_accum_offset {vgpr}
  .amdhsa_group_segment_fixed_size 0
  .amdhsa_kernarg_size 96
  .amdhsa_user_sgpr_count 2
  .amdhsa_user_sgpr_kernarg_segment_ptr 1
  .amdhsa_system_sgpr_workgroup_id_x 1
.end_amdhsa_kernel
"""


def build():
    kn = NAME + "_kernel"
    head = f"""; generated by gen/gen4.py (fused single launch)
; @launch grid=(256,1,1) block=(512,1,1) lds={LDS_TOTAL}
.amdgcn_target "amdgcn-amd-amdhsa--gfx950"
"""
    a = Asm()
    a(".text")
    a(f".globl {kn}")
    a(".p2align 8")
    a(f".type {kn},@function")
    a(f"{kn}:")
    entry(a, "L_exit")
    vm0, lg0 = list(a.vm), list(a.lg)
    a(f"s_cmp_ge_u32 s{S_WAVE}, 4")
    a("s_cbranch_scc1 L_roleb")
    proj(a, 0)
    attention(a)
    a("L_roleb:")
    a.vm, a.lg = vm0, lg0
    a("s_setprio 3")
    proj(a, 1)
    gemm_role(a)
    a("L_exit:")
    a("s_endpgm")
    a("L_code_end:")
    return head + a.text() + descriptor(kn)


if __name__ == "__main__":
    out = sys.argv[1] if len(sys.argv) > 1 else f"cdna_kernels/{NAME}.s"
    for o in sys.argv[2:]:
        if o == "stamps":
            OPT["stamps"] = True
        elif "=" in o:
            k, v = o.split("=")
            OPT[k] = int(v)
    open(out, "w").write(build())
    print("wrote", out)
```

```python
import math
import sys
from asmlib import Asm, vr, sr, f32bits

NAME = "gated_mix__mha_block__mixer_token_mlp__prompt"
OPT = dict(stamps=False, hw=2, prio_att=2, prio_gemm=0, nt=0, early=1, cpf=1, hw0=1, hw0n=8, gate=1, pf=3)

WS_H = 0x000000
WS_KV = 0x200000
WS_U = 0x800000
WS_O = 0xA00000
WS_G = 0xC00000
WS_FH = 0xC10000
WS_FKV = 0xC11000
WS_FU = 0xC14000
WS_FO = 0xC18000
WS_STAMP = 0xD00000
WS_SIZE = 0x1000000

S_WAVE, S_XCD, S_IDX, S_HP, S_SL = 3, 4, 5, 6, 7
S_TAG = 14
R_X, R_P, R_WO, R_W1, R_W2, R_WS, R_OUT, R_B1, R_B2, R_GW = 40, 44, 48, 52, 56, 60, 64, 68, 72, 76
R_DBG = 92
R_KV = 48
LOG2E = math.log2(math.e)

P_XS, P_WS, P_LN = 0, 49152, 86016
M_RED = 0
TR = 6
M_RING = 49152
L_Q = 98304
KVR = 106496
KSLOT = 2080
KR = 6
RW = KR * KSLOT
M_CNT = KVR + 4 * RW
L_K0 = M_CNT + 256
LDS_TOTAL = 163840
assert M_RING + 4 * TR * 2048 <= L_Q and L_K0 + 2048 <= LDS_TOTAL
SPIN = 200000


def NT(bit):
    return "nt " if OPT["nt"] & bit else ""


def rs(r):
    return f"s[{r}:{r+3}]"


def stamp(a, idx, final=False):
    if not OPT["stamps"]:
        return
    a("s_memrealtime s[98:99]")
    a("s_memtime s[100:101]")
    if idx == 0:
        a("v_mov_b32 v254, 0")
        a("v_mov_b32 v255, 0")
    a("s_waitcnt lgkmcnt(0)")
    a.lg = []
    a(f"v_writelane_b32 v254, s98, {idx}")
    a(f"v_writelane_b32 v255, s100, {idx}")
    if final:
        a("s_lshl_b32 s97, s2, 3")
        a(f"s_add_u32 s97, s97, s{S_WAVE}")
        a("s_lshl_b32 s97, s97, 9")
        a(f"s_add_u32 s97, s97, {WS_STAMP}")
        a("v_lshlrev_b32 v253, 3, v0")
        a(f"buffer_store_dwordx2 v[254:255], v253, {rs(R_WS)}, s97 offen")


def srd(a, r, ptr, nbytes):
    a(f"s_mov_b32 s{r}, s{ptr}")
    a(f"s_mov_b32 s{r+1}, s{ptr+1}")
    a(f"s_mov_b32 s{r+2}, {nbytes:#x}")
    a(f"s_mov_b32 s{r+3}, 0x00020000")


def mfma(d, A, B, C):
    return f"v_mfma_f32_32x32x16_bf16 {vr(d,16)}, {vr(A,4)}, {vr(B,4)}, {C if isinstance(C,str) else vr(C,16)}"


def spin_guard(a, lab):
    a("s_sub_u32 s17, s17, 1")
    a("s_cmp_lg_u32 s17, 0")
    a(f"s_cbranch_scc1 {lab}")
    a("s_endpgm")


PV_XF, PV_WF, PV_XA, PV_WA, PV_DMA = 112, 128, 160, 164, 166


def p_issue(a, c, par):
    slot = c % 3
    a("s_and_b32 s8, s85, 7")
    a("s_add_u32 s85, s85, 1")
    a("s_mul_i32 s8, s8, s86")
    if par is None:
        a(f"s_mul_i32 s9, s87, {slot}")
        a("s_add_u32 m0, s83, s9")
    else:
        a(f"s_add_u32 m0, s83, {slot*(16384 if par == 0 else 12288)}")
    a("s_add_u32 s8, s8, s82")
    for q in range(3):
        a.vmem(f"buffer_load_dwordx4 v{PV_DMA+q}, {rs(R_P)}, s8 offen offset:{q*1024} {NT(2)}lds", f"ch{c}")
    if par is None:
        lab = a.label("no4")
        a(f"s_cmp_ge_u32 s{S_WAVE}, 4")
        a(f"s_cbranch_scc1 {lab}")
        a.vmem(f"buffer_load_dwordx4 v{PV_DMA+3}, {rs(R_P)}, s8 offen offset:3072 {NT(2)}lds", f"ch{c}A")
        a(f"{lab}:")
    elif par == 0:
        a.vmem(f"buffer_load_dwordx4 v{PV_DMA+3}, {rs(R_P)}, s8 offen offset:3072 {NT(2)}lds", f"ch{c}")


def entry(a, lexit):
    a("s_cmp_ge_u32 s2, 256")
    a(f"s_cbranch_scc1 {lexit}")
    a("s_load_dwordx16 s[16:31], s[0:1], 0")
    a("s_load_dwordx8 s[32:39], s[0:1], 64")
    a("s_memrealtime s[12:13]")
    a("v_lshrrev_b32 v1, 6, v0")
    a("v_and_b32 v0, 63, v0")
    a(f"v_readfirstlane_b32 s{S_WAVE}, v1")
    a(f"s_and_b32 s{S_XCD}, s2, 7")
    a(f"s_lshr_b32 s{S_IDX}, s2, 3")
    a(f"s_and_b32 s8, s{S_XCD}, 3")
    a("s_lshl_b32 s8, s8, 2")
    a(f"s_and_b32 s9, s{S_IDX}, 3")
    a(f"s_add_u32 s{S_HP}, s8, s9")
    a(f"s_lshr_b32 s8, s{S_XCD}, 2")
    a(f"s_lshr_b32 s10, s{S_IDX}, 2")
    a("s_lshl_b32 s11, s10, 1")
    a(f"s_add_u32 s{S_SL}, s8, s11")
    a("s_lshl_b32 s9, s9, 1")
    a("s_add_u32 s85, s9, s10", "chunk cursor (rotation)")
    a(f"s_and_b32 s81, s{S_WAVE}, 3", "t")
    D = PV_DMA
    lb, lj = a.label("eb"), a.label("ej")
    a(f"s_cmp_ge_u32 s{S_WAVE}, 4")
    a(f"s_cbranch_scc1 {lb}")
    a("v_lshrrev_b32 v41, 3, v0")
    a("v_lshlrev_b32 v41, 10, v41")
    a("v_and_b32 v42, 7, v0")
    a("v_lshrrev_b32 v43, 4, v0")
    a("v_xor_b32 v42, v42, v43")
    a(f"v_lshl_add_u32 v{D}, v42, 4, v41")
    a("v_xor_b32 v42, 4, v42")
    a(f"v_lshl_add_u32 v{D+1}, v42, 4, v41")
    a(f"v_add_u32 v{D+2}, {2*7168}, v{D}")
    a(f"v_add_u32 v{D+3}, {3*7168}, v{D+1}")
    a(f"v_add_u32 v{D+1}, {7168}, v{D+1}")
    a(f"s_lshl_b32 s82, s{S_SL}, 17")
    a("s_lshl_b32 s8, s81, 15")
    a("s_add_u32 s82, s82, s8")
    a("s_lshl_b32 s83, s81, 12")
    a("s_mov_b32 s86, 128")
    a("s_mov_b32 s87, 16384")
    a("s_waitcnt lgkmcnt(0)")
    srd(a, R_P, 16, 2048 * 512 * 2)
    a(f"s_branch {lj}")
    a(f"{lb}:")
    a("v_lshrrev_b32 v41, 2, v0")
    a("v_mul_u32_u24 v41, 3072, v41")
    a("v_and_b32 v42, 3, v0")
    a(f"v_lshl_add_u32 v{D}, v42, 4, v41")
    a(f"v_mov_b32 v{D+1}, v{D}")
    a(f"v_mov_b32 v{D+2}, v{D}")
    a(f"v_mov_b32 v{D+3}, v{D}")
    a(f"s_mul_i32 s82, s81, {16*3072}")
    a(f"s_lshl_b32 s8, s{S_HP}, 6")
    a("s_add_u32 s82, s82, s8")
    a("s_mul_i32 s83, s81, 3072")
    a(f"s_add_u32 s83, s83, {P_WS}")
    a(f"s_mov_b32 s86, {64*3072}")
    a("s_mov_b32 s87, 12288")
    a("s_waitcnt lgkmcnt(0)")
    srd(a, R_P, 18, 512 * 1536 * 2)
    a(f"{lj}:")
    srd(a, R_X, 16, 2048 * 512 * 2)
    srd(a, R_GW, 32, 512 * 2)
    a(f"s_lshl_b32 s8, s{S_SL}, 7")
    a(f"s_lshl_b32 s9, s{S_HP}, 3")
    a("s_add_u32 s80, s8, s9", "s80 = row0")
    a(f"s_add_u32 s8, s80, s{S_WAVE}")
    a("s_lshl_b32 s8, s8, 10")
    a("v_lshlrev_b32 v1, 4, v0", "lane*16")
    a.vmem(f"buffer_load_dwordx4 v[176:179], v1, {rs(R_X)}, s8 offen", "ln")
    a.vmem(f"buffer_load_dwordx4 v[180:183], v1, {rs(R_GW)}, 0 offen", "ln")
    p_issue(a, 0, None)
    srd(a, R_DBG, 36, 256)
    srd(a, R_WS, 38, WS_SIZE)
    lab = a.label("notag")
    a(f"s_or_b32 s8, s2, s{S_WAVE}")
    a("s_cmp_lg_u32 s8, 0")
    a(f"s_cbranch_scc1 {lab}")
    a("s_or_b32 s8, s12, 1")
    a("v_mov_b32 v44, s8")
    a("v_mov_b32 v45, s13")
    a("v_mov_b32 v46, 0")
    a("s_mov_b64 exec, 1")
    a(f"buffer_store_dwordx2 v[44:45], v46, {rs(R_DBG)}, 0 offen sc1")
    a("s_mov_b64 exec, -1")
    a(f"{lab}:")
    if OPT["cpf"]:
        lab = a.label("nocpf")
        a(f"s_cmp_lt_u32 s{S_WAVE}, 6")
        a(f"s_cbranch_scc1 {lab}")
        a("s_getpc_b64 s[88:89]")
        a("L_pc0:")
        a("s_mov_b32 s90, L_code_end-L_pc0")
        a("s_mov_b32 s91, 0x00020000")
        a(f"s_and_b32 s8, s{S_WAVE}, 1")
        a("s_lshl_b32 s8, s8, 5")
        a(f"s_add_u32 s8, s8, s{S_IDX}")
        a("s_lshl_b32 s8, s8, 10")
        a("buffer_load_dwordx4 v[248:251], v1, s[88:91], s8 offen")
        a(f"{lab}:")
    p_issue(a, 1, None)
    stamp(a, 0)
    a("v_and_b32 v41, 31, v0", "i")
    a("v_lshrrev_b32 v42, 5, v0", "h'")
    a("v_bfe_u32 v43, v0, 1, 3")
    a("v_xor_b32 v44, v42, v43")
    a("v_lshlrev_b32 v45, 7, v41")
    a("s_lshl_b32 s8, s81, 12")
    a("v_add_u32 v45, s8, v45")
    a(f"v_lshl_add_u32 v{PV_XA}, v44, 4, v45")
    for ks in range(1, 4):
        a(f"v_xor_b32 v{PV_XA+ks}, {32*ks}, v{PV_XA}")
    a("v_lshlrev_b32 v44, 9, v42")
    a("v_bfe_u32 v45, v0, 2, 2")
    a("v_lshl_add_u32 v44, v45, 6, v44")
    a("v_bfe_u32 v45, v0, 4, 1")
    a("v_lshl_add_u32 v44, v45, 5, v44")
    a("v_and_b32 v45, 3, v0")
    a("v_lshl_add_u32 v44, v45, 3, v44")
    a(f"v_add_u32 v{PV_WA}, {P_WS}, v44")
    a("v_lshlrev_b32 v41, 2, v0")
    a(f"v_add_u32 v41, {M_CNT}, v41")
    a("v_mov_b32 v42, 0")
    a.lds("ds_write_b32 v41, v42", "cz")
    for r in range(80, 112):
        a(f"v_mov_b32 v{r}, 0")


def wave_reduce_add(a, regs):
    steps = ["row_shr:1 row_mask:0xf bank_mask:0xf bound_ctrl:0",
             "row_shr:2 row_mask:0xf bank_mask:0xf bound_ctrl:0",
             "row_shr:4 row_mask:0xf bank_mask:0xf bound_ctrl:0",
             "row_shr:8 row_mask:0xf bank_mask:0xf bound_ctrl:0",
             "row_bcast:15 row_mask:0xa bank_mask:0xf",
             "row_bcast:31 row_mask:0xc bank_mask:0xf"]
    for st in steps:
        a("s_nop 1" if len(regs) == 1 else "s_nop 0")
        for r in regs:
            a(f"v_add_f32_dpp v{r}, v{r}, v{r} {st}")
    a("s_nop 1")


def ln_compute(a):
    a.c("LN compute")
    a("s_waitcnt vmcnt(6)")
    for i in range(4):
        a(f"v_lshlrev_b32 v{184+2*i}, 16, v{176+i}")
        a(f"v_and_b32 v{185+2*i}, 0xffff0000, v{176+i}")
        a(f"v_lshlrev_b32 v{192+2*i}, 16, v{180+i}")
        a(f"v_and_b32 v{193+2*i}, 0xffff0000, v{180+i}")
    a("v_add_f32 v200, v184, v185")
    a("v_mul_f32 v201, v184, v192")
    for i in range(1, 8):
        if i >= 2:
            a(f"v_add_f32 v200, v200, v{184+i}")
        a(f"v_fmac_f32 v201, v{184+i}, v{192+i}")
    a("s_nop 0")
    wave_reduce_add(a, [200, 201])
    a("v_readlane_b32 s8, v200, 63")
    a("v_readlane_b32 s9, v201, 63")
    a(f"v_mov_b32 v202, {f32bits(1.0/512)}")
    a(f"v_mov_b32 v214, {f32bits(-LOG2E)}")
    a("v_mul_f32 v202, s8, v202", "mean")
    a("v_mul_f32 v214, s9, v214")
    for i in range(8):
        a(f"v_sub_f32 v{184+i}, v{184+i}, v202")
    a("v_exp_f32 v214, v214")
    a("v_mul_f32 v200, v184, v184")
    for i in range(1, 8):
        a(f"v_fmac_f32 v200, v{184+i}, v{184+i}")
    wave_reduce_add(a, [200])
    a("v_readlane_b32 s8, v200, 63")
    a("v_add_f32 v214, 1.0, v214")
    a(f"v_mov_b32 v202, {f32bits(1.0/512)}")
    a(f"v_mov_b32 v203, {f32bits(1e-5)}")
    a("v_fma_f32 v202, s8, v202, v203", "var + eps")
    a("v_rsq_f32 v202, v202")
    a("v_rcp_f32 v214, v214", "g")
    for i in range(8):
        a(f"v_mul_f32 v{184+i}, v{184+i}, v202")
    for i in range(4):
        a(f"v_cvt_pk_bf16_f32 v{192+i}, v{184+2*i}, v{185+2*i}")
    a("v_mul_u32_u24 v204, 144, v0")
    a(f"s_lshl_b32 s8, s{S_WAVE}, 1")
    a(f"s_add_u32 s8, s8, {P_LN}")
    a("v_add_u32 v204, s8, v204")
    for i in range(4):
        a.lds(f"ds_write_b16 v204, v{192+i} offset:{32*i}", "lnw")
        a.lds(f"ds_write_b16_d16_hi v204, v{192+i} offset:{32*i+16}", "lnw")
    a("v_bfe_u32 v205, v0, 2, 1", "b2")
    a("v_bfe_u32 v206, v0, 3, 1", "b3")
    a("v_lshrrev_b32 v207, 4, v0")
    a("v_lshl_add_u32 v207, v207, 1, v205", "d>>3 (local) = (l>>4)*2 + b2")
    a("v_mul_u32_u24 v204, 144, v207")
    a("v_and_b32 v207, 3, v0")
    a("v_lshl_add_u32 v207, v206, 2, v207", "d&7 = b3*4 + (l&3)")
    a("v_lshl_add_u32 v204, v207, 4, v204")
    a(f"s_mul_i32 s8, s{S_WAVE}, {8*144}")
    a(f"s_add_u32 s8, s8, {P_LN}")
    a("v_add_u32 v204, s8, v204")
    a("v_lshrrev_b32 v205, 5, v0")
    a("v_lshlrev_b32 v205, 10, v205")
    a("v_and_b32 v210, 31, v0")
    a("v_lshl_add_u32 v205, v210, 4, v205")
    a(f"s_lshl_b32 s10, s{S_WAVE}, 18")
    a("s_lshr_b32 s9, s80, 4")
    a("s_lshl_b32 s9, s9, 11")
    a("s_add_u32 s10, s10, s9")
    a("s_and_b32 s9, s80, 8")
    a("s_lshl_b32 s9, s9, 6")
    a("s_add_u32 s10, s10, s9", "h store soffset")
    a(f"s_add_u32 s11, s80, s{S_WAVE}")
    a("s_lshl_b32 s11, s11, 2")
    a(f"s_add_u32 s11, s11, {WS_G}", "g store soffset")
    a("v_mov_b32 v210, 0")


def ln_store(a):
    a.c("LN store")
    a.lds("ds_read_b128 v[206:209], v204", "lnr")
    a.lg_wait("lnr")
    a.vmem(f"buffer_store_dwordx4 v[206:209], v205, {rs(R_WS)}, s10 offen sc1", "hst")
    a("s_mov_b64 exec, 1")
    a.vmem(f"buffer_store_dword v214, v210, {rs(R_WS)}, s11 offen sc1", "hst")
    a("s_mov_b64 exec, -1")
    a.vmem(f"buffer_load_dwordx2 v[216:217], v210, {rs(R_DBG)}, 0 offen sc1", "tag")


def tag_get(a):
    l1, l2 = a.label("tagl"), a.label("tagok")
    a(f"s_mov_b32 s17, {SPIN}")
    a(f"{l1}:")
    a(f"v_readfirstlane_b32 s{S_TAG}, v216")
    a(f"v_readfirstlane_b32 s{S_TAG+1}, v217")
    a(f"s_cmp_lg_u32 s{S_TAG}, 0")
    a(f"s_cbranch_scc1 {l2}")
    a(f"buffer_load_dwordx2 v[216:217], v210, {rs(R_DBG)}, 0 offen sc1")
    a("s_waitcnt vmcnt(0)")
    spin_guard(a, l1)
    a(f"{l2}:")


def flag_set(a, soff, vz, vt):
    a(f"v_mov_b32 v{vt}, s{S_TAG}")
    a(f"v_mov_b32 v{vt+1}, s{S_TAG+1}")
    a(f"v_mov_b32 v{vz}, 0")
    a("s_mov_b64 exec, 1")
    a.vmem(f"buffer_store_dwordx2 v[{vt}:{vt+1}], v{vz}, {rs(R_WS)}, {soff} offen sc1", "flag")
    a("s_mov_b64 exec, -1")


def flag_check(a, vt, mask_lo, mask_hi):
    a(f"v_cmp_ne_u64 vcc, s[{S_TAG}:{S_TAG+1}], v[{vt}:{vt+1}]")
    a(f"s_and_b32 s10, vcc_lo, {mask_lo}")
    a(f"s_and_b32 s11, vcc_hi, {mask_hi}")
    a("s_or_b32 s10, s10, s11")
    a("s_cmp_eq_u32 s10, 0")


def flag_wait(a, soff, vaddr, vt, mask_lo, mask_hi, sleep=2):
    l1, l2 = a.label("poll"), a.label("pollok")
    a(f"s_mov_b32 s17, {SPIN}")
    a(f"{l1}:")
    a(f"buffer_load_dwordx2 v[{vt}:{vt+1}], v{vaddr}, {rs(R_WS)}, {soff} offen sc1")
    a("s_waitcnt vmcnt(0)")
    a.vm = []
    flag_check(a, vt, mask_lo, mask_hi)
    a(f"s_cbranch_scc1 {l2}")
    a(f"s_sleep {sleep}")
    spin_guard(a, l1)
    a(f"{l2}:")


def lds_arrive(a, cnt_off, vt, vone):
    a.lg_drain()
    a(f"v_mov_b32 v{vt}, {cnt_off}")
    a("s_mov_b64 exec, 1")
    a(f"ds_add_u32 v{vt}, v{vone}")
    a("s_mov_b64 exec, -1")


def lds_wait(a, cnt_off, target, vt, sleep=True):
    lab, lab2 = a.label("sy"), a.label("syd")
    a(f"v_mov_b32 v{vt}, {cnt_off}")
    a(f"s_mov_b32 s17, {SPIN*8}")
    a(f"{lab}:")
    a(f"ds_read_b32 v{vt+1}, v{vt}")
    a("s_waitcnt lgkmcnt(0)")
    a.lg = []
    a(f"v_readfirstlane_b32 s8, v{vt+1}")
    a(f"s_cmp_ge_u32 s8, {target}")
    a(f"s_cbranch_scc1 {lab2}")
    if sleep:
        a("s_sleep 1")
    spin_guard(a, lab)
    a(f"{lab2}:")


AV_Q, AV_O, AV_C, AV_S, AV_P, AV_K, AV_V = 16, 32, 96, 160, 192, 200, 208
AV_KA, AV_KR, AV_V0, AV_V1, AV_QA, AV_FA = 2, 3, 4, 5, 6, 7
GV_ACC, GV_D, GV_WO, GV_T, GV_Y, GV_MISC = 16, 80, 144, 208, 224, 240
GV_DMA, GV_TA1, GV_TA2, GV_TA3, GV_DB, GV_DA = 2, 5, 7, 9, 11, 13


def att_setup(a):
    a.c("attention setup")
    a(f"s_and_b32 s18, s{S_WAVE}, 1", "kh")
    a(f"s_lshr_b32 s19, s{S_WAVE}, 1", "e")
    a(f"s_lshl_b32 s20, s{S_HP}, 1")
    a("s_add_u32 s20, s20, s19", "head")
    a("s_lshl_b32 s8, s20, 17")
    a(f"s_add_u32 s8, s8, {WS_KV}")
    a(f"s_add_u32 s{R_KV}, s38, s8")
    a(f"s_addc_u32 s{R_KV+1}, s39, 0")
    a(f"s_mov_b32 s{R_KV+2}, 0x20000")
    a(f"s_mov_b32 s{R_KV+3}, 0x00020000")
    a(f"s_mul_i32 s21, s{S_WAVE}, {RW}")
    a(f"s_add_u32 s21, s21, {KVR}", "ring base")
    a(f"v_lshlrev_b32 v{AV_KA}, 4, v0")
    a(f"v_add_u32 v{AV_KR}, s21, v{AV_KA}")
    a("v_lshrrev_b32 v8, 5, v0")
    a("v_lshlrev_b32 v8, 8, v8")
    a("v_and_b32 v9, 15, v0")
    a("v_lshl_add_u32 v8, v9, 4, v8")
    a("v_add_u32 v8, 1024, v8")
    a("v_add_u32 v9, 512, v8")
    a("v_and_b32 v10, 27, v0")
    a("v_cmp_eq_u32 vcc, 16, v10")
    a("v_mov_b32 v11, 2064")
    a("v_mov_b32 v12, 2048")
    a("v_cndmask_b32 v11, v11, v12, vcc")
    a("v_and_b32 v10, 16, v0")
    a("v_cmp_eq_u32 vcc, 0, v10")
    a("s_lshl_b32 s8, s19, 12")
    a(f"s_add_u32 s8, s8, {L_Q}")
    a("v_cndmask_b32 v8, v11, v8, vcc")
    a("v_cndmask_b32 v9, v11, v9, vcc")
    a(f"v_add_u32 v{AV_V0}, s21, v8")
    a(f"v_add_u32 v{AV_V1}, s21, v9")
    a(f"v_add_u32 v{AV_QA}, s8, v{AV_KA}")
    a(f"v_lshlrev_b32 v{AV_FA}, 3, v0")
    a("s_lshl_b32 s8, s19, 10")
    a(f"s_add_u32 s8, s8, {L_K0}")
    a(f"v_add_u32 v1, s8, v{AV_KA}")
    a("v_lshrrev_b32 v8, 3, v0")
    a(f"v_mul_u32_u24 v8, {KSLOT}, v8")
    a("v_and_b32 v9, 7, v0")
    a("v_lshl_add_u32 v8, v9, 2, v8")
    a("v_add_u32 v8, s21, v8")
    a("v_cmp_gt_u32 vcc, 4, v9")
    a("v_mov_b32 v10, 0x3f803f80")
    a("s_mov_b32 exec_hi, 0xffff")
    a("v_cndmask_b32 v10, 0, v10, vcc")
    a.lds("ds_write_b32 v8, v10 offset:2048", "pad")
    a("s_mov_b32 exec_hi, -1")
    a(f"s_lshl_b32 s22, s{S_HP}, 9")
    a(f"s_add_u32 s22, s22, {WS_FKV}", "flag base")
    a("s_lshl_b32 s23, 0x55555555, s18", "flag mask")
    a("s_mov_b32 s24, 0", "0: fast pass, 1: exact-max pass")
    a("s_mov_b32 s25, 2", "pair sync target")


def gemm_setup(a):
    a.c("GEMM setup")
    srd(a, R_WO, 20, 512 * 512 * 2)
    srd(a, R_W1, 24, 2048 * 1792 * 2)
    srd(a, R_B1, 26, 1792 * 2)
    srd(a, R_W2, 28, 1792 * 2048 * 2)
    srd(a, R_B2, 30, 2048 * 2)
    srd(a, R_OUT, 34, 2048 * 512 * 2)
    a("v_lshrrev_b32 v16, 3, v0")
    a("v_and_b32 v17, 7, v0")
    a("v_bfe_u32 v18, v0, 4, 1")
    a("v_lshlrev_b32 v18, 2, v18")
    a("v_xor_b32 v17, v17, v18")
    a("v_lshlrev_b32 v17, 4, v17")
    a(f"v_mul_u32_u24 v{GV_DMA}, 3584, v16")
    a(f"v_add_u32 v{GV_DMA}, v{GV_DMA}, v17")
    a(f"v_lshl_add_u32 v{GV_DMA+1}, v16, 12, v17")
    a(f"v_lshl_add_u32 v{GV_DMA+2}, v16, 10, v17")
    a(f"s_mul_i32 s18, s81, {TR*2048}")
    a(f"s_add_u32 s18, s18, {M_RING}", "T ring base")
    a("v_bfe_u32 v16, v0, 2, 2")
    a("v_lshlrev_b32 v17, 7, v16")
    a("v_bfe_u32 v16, v0, 3, 1")
    a("v_lshl_add_u32 v17, v16, 6, v17")
    a("v_bfe_u32 v16, v0, 4, 1")
    a("v_lshl_add_u32 v17, v16, 5, v17")
    a("v_add_u32 v17, s18, v17", "rows r, half swap, colhalf")
    a("v_and_b32 v16, 3, v0")
    a("v_lshl_add_u32 v18, v16, 3, v17", "+8c")
    a("v_and_b32 v16, 1, v0")
    a("v_lshl_add_u32 v19, v16, 4, v17")
    a("v_bfe_u32 v16, v0, 1, 1")
    a("v_lshl_add_u32 v19, v16, 3, v19", "+16(c&1)+8(c>>1): column permutation swap23")
    a("v_lshrrev_b32 v16, 5, v0")
    a("s_lshr_b32 s8, s81, 1", "a_w")
    a("s_and_b32 s9, s81, 1", "b_w")
    a("s_lshl_b32 s19, s8, 6")
    a("s_lshl_b32 s20, s9, 6")
    a(f"v_lshl_add_u32 v{GV_TA1}, v16, 10, v18")
    a(f"v_xor_b32 v{GV_TA1}, s19, v{GV_TA1}")
    a(f"v_xor_b32 v{GV_TA1+1}, 64, v{GV_TA1}")
    a(f"v_lshl_add_u32 v{GV_TA2}, v16, 9, v18")
    a(f"v_xor_b32 v{GV_TA2}, s20, v{GV_TA2}")
    a(f"v_xor_b32 v{GV_TA2+1}, 64, v{GV_TA2}")
    a(f"v_lshl_add_u32 v{GV_TA3}, v16, 9, v19")
    a(f"v_xor_b32 v{GV_TA3}, s19, v{GV_TA3}")
    a(f"v_xor_b32 v{GV_TA3+1}, 64, v{GV_TA3}")
    a("s_lshl_b32 s19, s8, 10")
    a("s_lshl_b32 s20, s9, 10")
    a("v_lshlrev_b32 v16, 4, v0")
    a(f"v_add_u32 v{GV_DB}, s20, v16")
    a(f"v_xor_b32 v{GV_DB+1}, 1024, v{GV_DB}")
    a(f"v_add_u32 v{GV_DA}, s19, v16")
    a(f"v_xor_b32 v{GV_DA+1}, 1024, v{GV_DA}")
    for v in range(1, 4):
        a(f"s_xor_b32 s8, s81, {v}")
        a("s_mul_i32 s8, s8, 12288")
        a(f"s_add_u32 s8, s8, {M_RED + (v-1)*4096}")
        a(f"v_add_u32 v{GV_MISC+v}, s8, v16")
    a("s_mul_i32 s8, s81, 12288")
    a(f"s_add_u32 s8, s8, {M_RED}")
    a(f"v_add_u32 v{GV_MISC}, s8, v16")
    a(f"s_and_b32 s8, s{S_XCD}, 1")
    a("s_lshl_b32 s8, s8, 2")
    a(f"s_and_b32 s9, s{S_IDX}, 3")
    a("s_add_u32 s19, s8, s9", "dt (G1)")
    a(f"s_lshr_b32 s8, s{S_XCD}, 1")
    a("s_mul_i32 s8, s8, 7")
    a(f"s_lshr_b32 s22, s{S_IDX}, 2", "dt (G2)")
    a("s_add_u32 s20, s8, s22", "ft")
    a(f"s_lshl_b32 s8, s{S_XCD}, 2")
    a("s_add_u32 s21, s8, s9", "st")
    a("s_lshl_b32 s8, s9, 3")
    a("s_mul_i32 s23, s22, 5")
    a("s_add_u32 s23, s23, s8")
    a("s_and_b32 s23, s23, 31", "rot G1")
    a("s_mul_i32 s9, s9, 7")
    a("s_mul_i32 s8, s22, 7")
    a("s_lshr_b32 s8, s8, 1")
    a("s_add_u32 s24, s9, s8")
    a("s_sub_u32 s9, s24, 28")
    a("s_cmp_ge_u32 s24, 28")
    a("s_cselect_b32 s24, s9, s24", "rot G2")


def epi_addr(a, par):
    a(f"s_lshl_b32 s84, s{S_SL}, 2")
    a("s_add_u32 s84, s84, s81", "tile")
    a("v_lshlrev_b32 v170, 4, v0")
    if par == 0:
        a("s_lshl_b32 s8, s81, 10")
        a(f"s_add_u32 s8, s8, {L_Q}")
        a("v_add_u32 v171, s8, v170")
    else:
        a(f"s_lshl_b32 s88, s{S_HP}, 18")
        a("s_lshl_b32 s9, s84, 11")
        a("s_add_u32 s88, s88, s9")
        a(f"s_add_u32 s88, s88, {WS_KV}")
        a("s_add_u32 s89, s88, 0x20000")
        a("v_lshrrev_b32 v171, 5, v0")
        a("v_lshlrev_b32 v171, 8, v171")
        a("v_and_b32 v172, 15, v0")
        a("v_lshl_add_u32 v171, v172, 4, v171", "h'*256 + i*16")
        a("v_bfe_u32 v173, v0, 4, 1", "e")
        a("v_lshl_add_u32 v172, v173, 17, v171", "global V voffset")
        a("s_and_b32 s8, s81, 1")
        a(f"s_mul_i32 s8, s8, {RW}")
        a("s_lshr_b32 s9, s81, 1")
        a(f"s_mul_i32 s9, s9, {KSLOT}")
        a("s_add_u32 s8, s8, s9")
        a(f"s_add_u32 s8, s8, {KVR}")
        a(f"v_mul_u32_u24 v173, {2*RW}, v173")
        a("v_add3_u32 v173, v173, v171, s8", "LDS V addr")
        a("v_add_u32 v171, s8, v170", "LDS K addr")


def proj(a, par):
    a.c(f"projection role {par}")
    ACC = 96 if par == 0 else 80
    XF, WF, XA, WA = PV_XF, PV_WF, PV_XA, PV_WA
    vm = []
    for t in a.vm:
        if t.endswith("A"):
            if par == 0:
                vm.append(t[:-1])
        else:
            vm.append(t)
    a.vm = vm
    if par == 0:
        att_setup(a)
        for r in range(64):
            a(f"v_mov_b32 v{AV_O+r}, 0")
    else:
        gemm_setup(a)
        for r in range(16, 64):
            a(f"v_mov_b32 v{GV_ACC+r}, 0")
    epi_addr(a, par)
    ln_compute(a)
    stamp(a, 1)
    for c in range(8):
        slot = c % 3
        a.c(f"chunk {c}")
        a.vm_wait(f"ch{c}")
        if a.lg:
            a.lg_drain()
        a("s_barrier")
        stamp(a, 32 + c)
        segs = [0] if par == 0 else [1, 2]

        def reads(ks):
            a.lds(f"ds_read_b128 {vr(XF+4*ks,4)}, v{XA+ks} offset:{P_XS + slot*16384}", f"r{ks}")
            for si, seg in enumerate(segs):
                off = slot * 12288 + ks * 3072 + seg * 1024
                w = WF + 8 * ks + 4 * si
                a.lds(f"ds_read_b64_tr_b16 {vr(w,2)}, v{WA} offset:{off}", f"r{ks}")
                a.lds(f"ds_read_b64_tr_b16 {vr(w+2,2)}, v{WA} offset:{off+256}", f"r{ks}")

        def mm(ks):
            a.lg_wait(f"r{ks}")
            a(mfma(ACC, WF + 8 * ks, XF + 4 * ks, ACC))
            if par == 1:
                a(mfma(ACC + 16, XF + 4 * ks, WF + 8 * ks + 4, ACC + 16))
        for ks in range(3):
            reads(ks)
        if par == 0:
            reads(3)
        if c + 2 < 8:
            p_issue(a, c + 2, par)
        mm(0)
        if par == 1:
            reads(3)
        for ks in range(1, 4):
            mm(ks)
        if c == 0:
            ln_store(a)
        if c == 3:
            tag_get(a)
            if par == 1:
                lab = a.label("nofh")
                a("s_cmp_lg_u32 s81, 0")
                a(f"s_cbranch_scc1 {lab}")
                a(f"s_add_u32 s8, s80, {WS_FH}")
                n0 = len(a.vm)
                flag_set(a, "s8", 218, 220)
                a.vm = a.vm[:n0]
                a(f"{lab}:")
        if c == 4 and par == 0:
            for r in range(4, 8):
                a(f"v_mov_b32 v{AV_P+r}, 0")
            for r in range(8):
                a(f"v_mov_b32 v{AV_V+8+r}, 0")
    stamp(a, 3)
    a.c("projection epilogue")
    if par == 0:
        a(f"s_mov_b32 s9, {f32bits(0.25*LOG2E)}")
        a("s_nop 10")
        for r in range(16):
            a(f"v_mul_f32 v{ACC+r}, s9, v{ACC+r}")
        for r in range(8):
            a(f"v_cvt_pk_bf16_f32 v{XF+r}, v{ACC+2*r}, v{ACC+2*r+1}")
        a.lds(f"ds_write_b128 v171, {vr(XF,4)}", "qw")
        a.lds(f"ds_write_b128 v171, {vr(XF+4,4)} offset:4096", "qw")
    else:
        a("s_nop 10")
        for r in range(16):
            a(f"v_cvt_pk_bf16_f32 v{XF+r}, v{ACC+2*r}, v{ACC+2*r+1}")
        a.lds(f"ds_write_b128 v171, {vr(XF,4)}", "kw")
        a.lds(f"ds_write_b128 v171, {vr(XF+4,4)} offset:{2*RW}", "kw")
        lab = a.label("nok0")
        a("s_cmp_lg_u32 s81, 0")
        a(f"s_cbranch_scc1 {lab}")
        a(f"ds_write_b128 v171, {vr(XF,4)} offset:{L_K0-KVR}")
        a(f"ds_write_b128 v171, {vr(XF+4,4)} offset:{L_K0-KVR+1024}")
        a(f"{lab}:")
        a.lds(f"ds_write_b128 v173, {vr(XF+8,4)} offset:1024", "kw")
        a.lds(f"ds_write_b128 v173, {vr(XF+12,4)} offset:1536", "kw")
        a.vmem(f"buffer_store_dwordx4 {vr(XF,4)}, v170, {rs(R_WS)}, s88 offen sc1", "kvst")
        a.vmem(f"buffer_store_dwordx4 {vr(XF+4,4)}, v170, {rs(R_WS)}, s89 offen sc1", "kvst")
        a.vmem(f"buffer_store_dwordx4 {vr(XF+8,4)}, v172, {rs(R_WS)}, s88 offen offset:1024 sc1", "kvst")
        a.vmem(f"buffer_store_dwordx4 {vr(XF+12,4)}, v172, {rs(R_WS)}, s88 offen offset:1536 sc1", "kvst")
    a.lg_drain()
    a("s_barrier")


def attn_body(a, u_list, extra):
    kb = lambda n: n % 2
    for (n, i, pn, pi, nn, ni, par) in u_list:
        cur, nxt = AV_S + 16 * par, AV_S + 16 * (1 - par)
        E = lambda r: a(f"v_exp_f32 v{cur+r}, v{cur+r}")
        C = lambda r: a(f"v_cvt_pk_bf16_f32 v{AV_P+r}, v{cur+2*r}, v{cur+2*r+1}")
        E(0)
        E(1)
        a(mfma(AV_O + 16 * pi, AV_V + 8 * kb(pn) + 4, AV_P + 4, AV_O + 16 * pi))
        extra(n, i, 0)
        for r in range(2, 8):
            E(r)
        if nn is not None:
            a(mfma(nxt, AV_K + 4 * kb(nn), AV_Q + 4 * ni, AV_C + 16 * ni))
            extra(n, i, 1)
        else:
            a("s_nop 0")
        for r in range(4):
            C(r)
        for r in range(8, 12):
            E(r)
        a(mfma(AV_O + 16 * i, AV_V + 8 * kb(n), AV_P, AV_O + 16 * i))
        extra(n, i, 2)
        for r in range(12, 16):
            E(r)
        for r in range(4, 8):
            C(r)


def attention(a):
    a.c("attention role")
    KS = "s12"

    def rd(n):
        so, b = (n % KR) * KSLOT, n % 2
        return [f"ds_read_b128 {vr(AV_K+4*b,4)}, v{AV_KR} offset:{so}",
                f"ds_read_b128 {vr(AV_V+8*b,4)}, v{AV_V0} offset:{so}",
                f"ds_read_b128 {vr(AV_V+8*b+4,4)}, v{AV_V1} offset:{so}"]

    def dma(n):
        return [f"s_add_u32 m0, s21, {(n % KR) * KSLOT}",
                f"buffer_load_dwordx4 v{AV_KA}, {rs(R_KV)}, {KS} offen sc1 lds",
                f"buffer_load_dwordx4 v{AV_KA}, {rs(R_KV)}, {KS} offen offset:1024 sc1 lds",
                f"s_add_u32 {KS}, {KS}, 4096",
                f"s_and_b32 {KS}, {KS}, 0x1ffff"]

    def fill():
        a(f"s_lshl_b32 {KS}, s{S_SL}, 2")
        a(f"s_add_u32 {KS}, {KS}, s18")
        a(f"s_add_u32 {KS}, {KS}, 4")
        a(f"s_lshl_b32 {KS}, {KS}, 11")
        a(f"s_and_b32 {KS}, {KS}, 0x1ffff")
        for n in range(2, 2 + KR):
            d = dma(n)
            a(d[0])
            a("s_nop 0")
            for x in d[1:]:
                a(x)
        a(f"v_mov_b32 v10, {M_CNT+36}")
        a("v_mov_b32 v11, 1")
        a("s_mov_b64 exec, 1")
        a("ds_add_u32 v10, v11", "release the GEMM waves")
        a("s_mov_b64 exec, -1")

    a(f"s_setprio {OPT['prio_att']}")
    for i in range(4):
        a(f"ds_read_b128 {vr(AV_Q+4*i,4)}, v{AV_QA} offset:{i*1024}")
    a(f"ds_read_b128 {vr(AV_S,4)}, v1", "K tile 0 of my head")
    stamp(a, 4)
    a.c("max estimate from own key tile 0")
    a("s_waitcnt lgkmcnt(0)")
    for i in range(4):
        a(mfma(AV_C + 16 * i, AV_S, AV_Q + 4 * i, "0"))
    for x in rd(0):
        a(x)
    a("s_nop 5")
    for i in range(4):
        a(f"v_max3_f32 v{12+i}, v{AV_C+16*i}, v{AV_C+16*i+1}, v{AV_C+16*i+2}")
        for r in range(6):
            a(f"v_max3_f32 v{12+i}, v{AV_C+16*i+3+2*r}, v{AV_C+16*i+4+2*r}, v{12+i}")
        a(f"v_max_f32 v{12+i}, v{AV_C+16*i+15}, v{12+i}")
    lredo = a.label("redo")
    a(f"{lredo}:")
    for i in range(4):
        a(f"v_mov_b32 v{8+i}, v{12+i}")
    a("s_nop 1")
    for i in range(4):
        a(f"v_permlane32_swap_b32 v{12+i}, v{8+i}")
    a("s_nop 1")
    for i in range(4):
        a(f"v_max_f32 v{12+i}, v{12+i}, v{8+i}")
    for r in range(16):
        a(f"v_sub_f32 v{AV_C+r}, 0, v12")
    a("s_mov_b32 s13, 0", "early-fill done flag")
    a("s_waitcnt lgkmcnt(0)")
    a(mfma(AV_S, AV_K, AV_Q, AV_C))
    for i in range(1, 4):
        for r in range(16):
            a(f"v_sub_f32 v{AV_C+16*i+r}, 0, v{12+i}")
    stamp(a, 5)
    a.c("phase A: own tiles")
    ul = []
    for u in range(8):
        n, i = u // 4, u % 4
        pn, pi = (1, 3) if u == 0 else ((u - 1) // 4, (u - 1) % 4)
        nn, ni = ((u + 1) // 4, (u + 1) % 4) if u < 7 else (None, None)
        ul.append((n, i, pn, pi, nn, ni, u % 2))

    def extraA(n, i, slot):
        if n == 0 and (i, slot) in ((0, 1), (0, 2), (1, 0)):
            a(rd(1)[[(0, 1), (0, 2), (1, 0)].index((i, slot))])
        if n == 0 and (i, slot) == (3, 0):
            a("s_waitcnt lgkmcnt(0)")
        if OPT["early"]:
            if n == 0 and (i, slot) == (2, 0):
                a(f"buffer_load_dwordx2 v[8:9], v{AV_FA}, {rs(R_WS)}, s22 offen sc1")
            if n == 1 and (i, slot) == (1, 0):
                lab = a.label("noearly")
                a("s_waitcnt vmcnt(0)")
                flag_check(a, 8, "s23", "s23")
                a(f"s_cbranch_scc0 {lab}")
                fill()
                a("s_mov_b32 s13, 1")
                a(f"{lab}:")
    attn_body(a, ul, extraA)
    stamp(a, 6)
    lab = a.label("filled")
    a("s_cmp_lg_u32 s13, 0")
    a(f"s_cbranch_scc1 {lab}")
    flag_wait(a, "s22", AV_FA, 8, "s23", "s23", sleep=1)
    fill()
    a(f"{lab}:")
    a(f"s_waitcnt vmcnt({2*(KR-1)})")
    for x in rd(2):
        a(x)
    a("s_mov_b32 s16, 5")
    stamp(a, 7)
    a("s_waitcnt lgkmcnt(0)")
    a(mfma(AV_S, AV_K, AV_Q, AV_C))
    a("s_nop 10")
    lloop = a.label("attn")
    a(".p2align 6")
    a(f"{lloop}:")
    ul = []
    for u in range(24):
        n, i = 2 + u // 4, u % 4
        pn, pi = 2 + (u - 1) // 4, (u - 1) % 4
        nn, ni = 2 + (u + 1) // 4, (u + 1) % 4
        ul.append((n, i, pn, pi, nn, ni, u % 2))

    def extraL(n, i, slot):
        d, r = dma(n + KR), rd(n + 1)
        sched = {(0, 0): f"s_waitcnt vmcnt({2*(KR-2)})", (0, 1): r[0], (0, 2): r[1], (1, 0): r[2],
                 (1, 1): d[0], (1, 2): d[1], (2, 0): d[2], (2, 1): d[3], (2, 2): d[4],
                 (3, 0): "s_waitcnt lgkmcnt(0)"}
        if (i, slot) in sched:
            a(sched[(i, slot)])
        if OPT["stamps"] and n == 2 and (i, slot) == (2, 2):
            a("s_memrealtime s[98:99]")
            a("s_memtime s[100:101]")
        if OPT["stamps"] and n == 2 and (i, slot) == (3, 1):
            a("s_add_u32 m0, s16, 40")
            a("s_nop 0")
            a("v_writelane_b32 v254, s98, m0")
            a("v_writelane_b32 v255, s100, m0")
        if n == 6 and (i, slot) == (3, 1):
            a("s_sub_u32 s16, s16, 1")
        if n == 6 and (i, slot) == (3, 2):
            a("s_cmp_eq_u32 s16, 1")
        if n == 7 and (i, slot) == (0, 0):
            a("s_cselect_b32 s26, 0, 0x20000")
        if n == 7 and (i, slot) == (3, 1):
            a(f"s_mov_b32 s{R_KV+2}, s26", "last iteration: DMA out of range (no traffic)")
        if n == 7 and (i, slot) == (3, 2):
            a("s_cmp_lg_u32 s16, 0")
    attn_body(a, ul, extraL)
    a(f"s_cbranch_scc1 {lloop}")
    a("s_nop 0")
    a(mfma(AV_O + 48, AV_V + 8 + 4, AV_P + 4, AV_O + 48))
    stamp(a, 8)
    a.c("check + combine")
    a("v_lshlrev_b32 v9, 2, v0")
    a("v_add_u32 v9, s21, v9", "own area, lane*4")
    a(f"s_xor_b32 s8, s{S_WAVE}, 1")
    a(f"s_mul_i32 s8, s8, {RW}")
    a(f"s_add_u32 s8, s8, {KVR}")
    a(f"v_add_u32 v10, s8, v{AV_KA}", "partner area")
    a("v_lshlrev_b32 v11, 2, v0")
    a("v_add_u32 v11, s8, v11")
    a("s_waitcnt vmcnt(0)")
    a("s_nop 2")
    a(f"v_add_f32 v8, v{AV_O+8}, v{AV_O+24}")
    a(f"v_add_f32 v1, v{AV_O+40}, v{AV_O+56}")
    a("v_add_f32 v8, v8, v1")
    a(f"v_mov_b32 v1, {f32bits(2.0**60)}")
    a("v_cmp_nlt_f32 vcc, v8, v1")
    a("s_cmp_lg_u64 vcc, 0")
    a("s_cselect_b32 s8, 0x10001, 1")
    a("v_mov_b32 v1, s8")
    lk1, ljoin = a.label("kh1"), a.label("khj")
    a("s_cmp_eq_u32 s18, 1")
    a(f"s_cbranch_scc1 {lk1}")

    def send(o, j):
        a(f"ds_write_b128 v{AV_KR}, {vr(o,4)} offset:{2*j*KSLOT}")
        a(f"ds_write_b128 v{AV_KR}, {vr(o+4,4)} offset:{2*j*KSLOT+1024}")
        a(f"ds_write_b32 v9, v{o+8} offset:{(2*j+1)*KSLOT}")
    for j in range(2):
        send(AV_O + 16 * (2 + j), j)
    a(f"s_branch {ljoin}")
    a(f"{lk1}:")
    for j in range(2):
        send(AV_O + 16 * j, j)
    a("s_waitcnt lgkmcnt(0)")
    for j in range(2):
        for r in range(9):
            a(f"v_mov_b32 v{AV_O+16*j+r}, v{AV_O+16*(2+j)+r}")
    a(f"{ljoin}:")
    lab, lab2 = a.label("asy"), a.label("asyd")
    a("s_lshl_b32 s8, s19, 2")
    a(f"s_add_u32 s8, s8, {M_CNT}")
    a("v_mov_b32 v8, s8")
    a("s_mov_b64 exec, 1")
    a("ds_add_u32 v8, v1")
    a("s_mov_b64 exec, -1")
    a(f"s_mov_b32 s17, {SPIN*16}")
    a(f"{lab}:")
    a("ds_read_b32 v9, v8")
    a("s_waitcnt lgkmcnt(0)")
    a("v_readfirstlane_b32 s8, v9")
    a("s_and_b32 s9, s8, 0xffff")
    a("s_cmp_ge_u32 s9, s25")
    a(f"s_cbranch_scc1 {lab2}")
    spin_guard(a, lab)
    a(f"{lab2}:")
    lok, lslow = a.label("aok"), a.label("aslow")
    a("s_lshr_b32 s9, s8, 16")
    a("s_cmp_lg_u32 s9, 0")
    a(f"s_cbranch_scc1 {lslow}")
    a(f"{lok}:")
    for j in range(2):
        t = AV_S + 16 * j
        a(f"ds_read_b128 {vr(t,4)}, v10 offset:{2*j*KSLOT}")
        a(f"ds_read_b128 {vr(t+4,4)}, v10 offset:{2*j*KSLOT+1024}")
        a(f"ds_read_b32 v{t+8}, v11 offset:{(2*j+1)*KSLOT}")
    a(f"s_lshl_b32 s8, s{S_SL}, 1")
    a("s_add_u32 s8, s8, s18")
    a("s_lshl_b32 s8, s8, 5")
    a("s_add_u32 s8, s8, s20", "st*32 + head")
    a("s_lshl_b32 s9, s8, 3")
    a(f"s_add_u32 s9, s9, {WS_FO}")
    a("s_lshl_b32 s8, s8, 11")
    a(f"s_add_u32 s8, s8, {WS_O}")
    a("s_waitcnt lgkmcnt(0)")
    for j in range(2):
        a(f"v_add_f32 v{AV_O+16*j+8}, v{AV_O+16*j+8}, v{AV_S+16*j+8}")
    for j in range(2):
        a(f"v_rcp_f32 v{AV_O+16*j+8}, v{AV_O+16*j+8}")
    for j in range(2):
        for r in range(8):
            a(f"v_add_f32 v{AV_O+16*j+r}, v{AV_O+16*j+r}, v{AV_S+16*j+r}")
    for j in range(2):
        for r in range(8):
            a(f"v_mul_f32 v{AV_O+16*j+r}, v{AV_O+16*j+r}, v{AV_O+16*j+8}")
        for r in range(4):
            a(f"v_cvt_pk_bf16_f32 v{AV_P+4*j+r}, v{AV_O+16*j+2*r}, v{AV_O+16*j+2*r+1}")
        a(f"buffer_store_dwordx4 {vr(AV_P+4*j,4)}, v{AV_KA}, {rs(R_WS)}, s8 offen offset:{j*1024} sc1")
    a(f"v_mov_b32 v10, s{S_TAG}")
    a(f"v_mov_b32 v11, s{S_TAG+1}")
    a("v_mov_b32 v9, 0")
    a("s_mov_b64 exec, 1")
    a("s_waitcnt vmcnt(0)")
    a(f"buffer_store_dwordx2 v[10:11], v9, {rs(R_WS)}, s9 offen sc1")
    a("s_mov_b64 exec, -1")
    stamp(a, 9, True)
    a("s_endpgm")
    a(f"{lslow}:")
    a("s_cmp_lg_u32 s24, 0")
    a(f"s_cbranch_scc1 {lok}")
    a("s_mov_b32 s24, 1")
    a("s_mov_b32 s25, 4")
    a(f"s_mov_b32 s{R_KV+2}, 0x20000")
    flag_wait(a, "s22", AV_FA, 8, "-1", "-1")
    for i in range(4):
        a(f"v_mov_b32 v{12+i}, 0xff800000")
    a("s_mov_b32 s8, 0")
    lmax = a.label("maxloop")
    a(f"{lmax}:")
    a(f"buffer_load_dwordx4 {vr(AV_K,4)}, v{AV_KA}, {rs(R_KV)}, s8 offen sc1")
    a("s_waitcnt vmcnt(0)")
    for i in range(4):
        a(mfma(AV_C + 16 * i, AV_K, AV_Q + 4 * i, "0"))
    a("s_nop 9")
    for i in range(4):
        for r in range(8):
            a(f"v_max3_f32 v{12+i}, v{AV_C+16*i+2*r}, v{AV_C+16*i+2*r+1}, v{12+i}")
    a("s_add_u32 s8, s8, 2048")
    a("s_cmp_lt_u32 s8, 0x20000")
    a(f"s_cbranch_scc1 {lmax}")
    for r in range(64):
        a(f"v_mov_b32 v{AV_O+r}, 0")
    for r in range(4, 8):
        a(f"v_mov_b32 v{AV_P+r}, 0")
    a(f"s_lshl_b32 {KS}, s{S_SL}, 2")
    a(f"s_add_u32 {KS}, {KS}, s18")
    a(f"s_lshl_b32 {KS}, {KS}, 11")
    for n in range(2):
        d = dma(n)
        a(d[0])
        a("s_nop 0")
        for x in d[1:]:
            a(x)
    a("s_waitcnt vmcnt(0)")
    for x in rd(0):
        a(x)
    a(f"s_branch {lredo}")


class Rot:
    def __init__(self, a, cur, beg, end, stride):
        self.a, self.cur, self.beg, self.end, self.stride = a, cur, beg, end, stride

    def init(self, srot, n):
        a = self.a
        a(f"s_add_u32 s{self.end}, s{self.beg}, {n*self.stride}")
        a(f"s_mul_i32 s{self.cur}, s{srot}, {self.stride}")
        a(f"s_add_u32 s{self.cur}, s{self.cur}, s{self.beg}")

    def adv(self):
        a = self.a
        a(f"s_add_u32 s{self.cur}, s{self.cur}, {self.stride}")
        if self.beg is not None:
            a(f"s_cmp_eq_u32 s{self.cur}, s{self.end}")
            a(f"s_cselect_b32 s{self.cur}, s{self.beg}, s{self.cur}")


def gemm_role(a):
    HW = OPT["hw"]
    NB = 4
    assert HW < NB and HW + 1 <= TR
    a.c("GEMM role")
    stamp(a, 4)
    a("v_mov_b32 v1, 1")
    M = GV_MISC + 4
    T1 = Rot(a, 25, 26, 27, 16 * 3584)
    T2 = Rot(a, 25, 26, 27, 16 * 4096)
    TO = Rot(a, 31, None, None, 16 * 1024)
    D = Rot(a, 28, 29, 30, 2048)

    class Stream:
        def __init__(self, items):
            self.items = items
            self.issued = 0

        def upto(self, n):
            while self.issued < min(n, len(self.items)):
                j = self.issued
                rot, rsrc, vreg, rstr = self.items[j]
                a(f"s_add_u32 m0, s18, {(j % TR)*2048}")
                a(f"s_add_u32 s8, s{rot.cur}, {8*rstr - 1024}")
                a.vmem(f"buffer_load_dwordx4 v{vreg}, {rs(rsrc)}, s{rot.cur} offen {NT(1)}lds", f"T{j}")
                a.vmem(f"buffer_load_dwordx4 v{vreg}, {rs(rsrc)}, s8 offen offset:1024 {NT(1)}lds", f"T{j}")
                rot.adv()
                self.issued += 1

    def d_issue(k, da):
        buf = k % NB
        for x in range(2):
            a.vmem(f"buffer_load_dwordx4 {vr(GV_D+8*buf+4*x,4)}, v{da+x}, {rs(R_WS)}, s{D.cur} offen sc1", f"D{k}")
        D.adv()

    def tread(j, ta, rd2, dst):
        for x in range(2):
            a.lds(f"ds_read_b64_tr_b16 {vr(dst+4*x,2)}, v{ta+x} offset:{(j % TR)*2048}", f"tr{j}")
            a.lds(f"ds_read_b64_tr_b16 {vr(dst+4*x+2,2)}, v{ta+x} offset:{(j % TR)*2048+rd2}", f"tr{j}")

    def kloop(st, j0, nsteps, t_is_A, ta, rd2, da, hw0n=0):
        hwf = lambda k: OPT["hw0"] if k < hw0n else HW
        dn = [0]

        def d_upto(n):
            while dn[0] < min(n, nsteps):
                d_issue(dn[0], da)
                dn[0] += 1
        st.upto(j0 + 1)
        d_upto(1)
        st.upto(j0 + 1 + hwf(0))
        d_upto(hwf(0))
        a.vm_wait_if(f"T{j0}")
        tread(j0, ta, rd2, GV_T)
        for k in range(nsteps):
            tb, db = GV_T + 8 * (k % 2), GV_D + 8 * (k % NB)

            def mm(x, y):
                if t_is_A:
                    d = GV_ACC + 16 * (2 * x + y)
                    a(mfma(d, tb + 4 * x, db + 4 * y, d))
                else:
                    d = GV_ACC + 16 * (2 * y + x)
                    a(mfma(d, db + 4 * y, tb + 4 * x, d))
            a.vm_wait_if(f"D{k}")
            a.lg_wait(f"tr{j0+k}")
            if k % 4 == 0:
                stamp(a, (16 if t_is_A else 24) + k // 4)
            mm(0, 0)
            d_upto(k + 1 + hwf(k))
            mm(0, 1)
            if k + 1 < nsteps:
                a.vm_wait_if(f"T{j0+k+1}")
                tread(j0 + k + 1, ta, rd2, GV_T + 8 * ((k + 1) % 2))
            mm(1, 0)
            st.upto(j0 + k + 2 + hwf(k))
            mm(1, 1)

    def reduce(cnt):
        for v in range(1, 4):
            for q in range(4):
                a.lds(f"ds_write_b128 v{GV_MISC+v}, {vr(GV_ACC+16*v+4*q,4)} offset:{q*1024}", "rw")
        lds_arrive(a, cnt, M, 1)
        lds_wait(a, cnt, 4, M, sleep=False)
        for v in range(3):
            for q in range(4):
                a.lds(f"ds_read_b128 {vr(GV_ACC+16+16*v+4*q,4)}, v{GV_MISC} offset:{v*4096+q*1024}", f"rr{v}")
        for v in range(3):
            a.lg_wait(f"rr{v}")
            for r in range(16):
                a(f"v_add_f32 v{GV_ACC+r}, v{GV_ACC+r}, v{GV_ACC+16+16*v+r}")

    lskip1, lskip2 = a.label("skipg1"), a.label("skipg1e")
    a(f"v_lshrrev_b32 v{M}, 5, v0")
    a(f"v_lshlrev_b32 v{M}, 3, v{M}")
    a("s_lshl_b32 s8, s20, 7")
    a("s_lshr_b32 s9, s81, 1")
    a("s_lshl_b32 s9, s9, 6")
    a("s_add_u32 s8, s8, s9")
    for g in range(4):
        a.vmem(f"buffer_load_dwordx2 {vr(GV_Y+2*g,2)}, v{M}, {rs(R_B1)}, s8 offen offset:{16*g}", "b1")
    a(f"s_mul_i32 s{T1.beg}, s81, {512*3584}")
    a("s_lshl_b32 s8, s20, 7")
    a(f"s_add_u32 s{T1.beg}, s{T1.beg}, s8")
    T1.init(23, 32)
    st1 = Stream([(T1, R_W1, GV_DMA, 3584)] * 32)
    a(f"s_lshl_b32 s{D.beg}, s19, 18")
    a("s_lshl_b32 s8, s81, 16")
    a(f"s_add_u32 s{D.beg}, s{D.beg}, s8")
    D.init(23, 32)
    a(f"s_lshl_b32 s8, s{S_HP}, 6")
    a("s_add_u32 s8, s8, s84")
    a("s_lshl_b32 s8, s8, 3")
    a(f"s_add_u32 s8, s8, {WS_FKV}")
    a.vm_wait("kvst")
    flag_set(a, "s8", M, M + 2)
    stamp(a, 5)
    a(f"v_lshlrev_b32 v{M}, 3, v0")
    a("s_lshl_b32 s9, s81, 9")
    a(f"s_add_u32 s9, s9, {WS_FH}")
    flag_wait(a, "s9", M, M + 2, "-1", "-1")
    for g in range(4):
        for hh in range(2):
            a(f"v_lshlrev_b32 v{GV_ACC+4*g+2*hh}, 16, v{GV_Y+2*g+hh}")
            a(f"v_and_b32 v{GV_ACC+4*g+2*hh+1}, 0xffff0000, v{GV_Y+2*g+hh}")
    if OPT["gate"]:
        lds_wait(a, M_CNT + 36, 4, M)
    a(f"s_cmp_ge_u32 s{S_IDX}, 28")
    a(f"s_cbranch_scc1 {lskip2}")
    a(f"s_setprio {OPT['prio_gemm']}")
    stamp(a, 6)
    kloop(st1, 0, 32, True, GV_TA1, 512, GV_DB, OPT["hw0n"])
    a("s_setprio 3")
    stamp(a, 7)
    a("s_nop 8")
    a.c("G1 epilogue")
    reduce(M_CNT + 16)
    c0 = -2.0 * math.sqrt(2.0 / math.pi) * LOG2E
    c1 = c0 * 0.044715
    a(f"s_mov_b32 s8, {f32bits(c1)}")
    a(f"v_mov_b32 v{M}, {f32bits(c0)}")
    TT = GV_ACC + 16
    for r in range(16):
        a(f"v_mul_f32 v{TT+r}, v{GV_ACC+r}, v{GV_ACC+r}")
    for r in range(16):
        a(f"v_fma_f32 v{TT+r}, v{TT+r}, s8, v{M}")
    for r in range(16):
        a(f"v_mul_f32 v{TT+r}, v{TT+r}, v{GV_ACC+r}")
    for r in range(16):
        a(f"v_exp_f32 v{TT+r}, v{TT+r}")
    for r in range(16):
        a(f"v_add_f32 v{TT+r}, 1.0, v{TT+r}")
    for r in range(16):
        a(f"v_rcp_f32 v{TT+r}, v{TT+r}")
    for r in range(16):
        a(f"v_mul_f32 v{TT+r}, v{TT+r}, v{GV_ACC+r}")
    for r in range(8):
        a(f"v_cvt_pk_bf16_f32 v{GV_ACC+r}, v{TT+2*r}, v{TT+2*r+1}")
    a("s_mul_i32 s8, s19, 112")
    a("s_lshl_b32 s9, s20, 2")
    a("s_add_u32 s8, s8, s9")
    a("s_and_b32 s9, s81, 2")
    a("s_add_u32 s8, s8, s9")
    a("s_lshl_b32 s8, s8, 11")
    a(f"s_add_u32 s8, s8, {WS_U}")
    a.vmem(f"buffer_store_dwordx4 {vr(GV_ACC,4)}, v{GV_DB}, {rs(R_WS)}, s8 offen sc1", "ust")
    a.vmem(f"buffer_store_dwordx4 {vr(GV_ACC+4,4)}, v{GV_DB}, {rs(R_WS)}, s8 offen offset:2048 sc1", "ust")
    a("s_lshl_b32 s8, s19, 10")
    a("s_lshl_b32 s9, s20, 5")
    a("s_add_u32 s8, s8, s9")
    a("s_lshl_b32 s9, s81, 3")
    a("s_add_u32 s8, s8, s9")
    a(f"s_add_u32 s8, s8, {WS_FU}")
    a("s_mov_b32 s23, s8")
    a.vm_drain()
    flag_set(a, "s23", M, M + 2)
    stamp(a, 8)
    a(f"{lskip2}:")
    a.vm = []
    a(f"s_lshl_b32 s{TO.cur}, s81, 17")
    a("s_lshl_b32 s8, s22, 7")
    a(f"s_add_u32 s{TO.cur}, s{TO.cur}, s8")
    st2 = Stream([(TO, R_WO, GV_DMA + 2, 1024)] * 8 + [(T2, R_W2, GV_DMA + 1, 4096)] * 28)
    st2.upto(OPT["pf"])
    a(f"s_mul_i32 s{T2.beg}, s81, {448*4096}")
    a("s_lshl_b32 s8, s21, 7")
    a(f"s_add_u32 s{T2.beg}, s{T2.beg}, s8")
    T2.init(24, 28)
    a(f"s_mul_i32 s{D.beg}, s22, 112")
    a("s_mul_i32 s8, s81, 28")
    a(f"s_add_u32 s{D.beg}, s{D.beg}, s8")
    a(f"s_lshl_b32 s{D.beg}, s{D.beg}, 11")
    a(f"s_add_u32 s{D.beg}, s{D.beg}, {WS_U}")
    D.init(24, 28)
    lds_arrive(a, M_CNT + 20, M, 1)
    for j in range(8):
        a.vm_wait_if(f"T{j}")
        tread(j, GV_TA3, 1024, GV_WO + 8 * j)
        a.lg_wait(f"tr{j}")
        st2.upto(j + 1 + OPT["pf"])
    for j in range(8 + OPT["pf"], 8 + TR):
        a.vm_wait_if(f"T{j - OPT['pf']}")
        st2.upto(j + 1)
    for r in range(64):
        a(f"v_mov_b32 v{GV_ACC+r}, 0")
    a(f"v_lshlrev_b32 v{M}, 3, v0")
    a("s_lshl_b32 s9, s22, 10")
    a("s_mul_i32 s8, s81, 224")
    a("s_add_u32 s9, s9, s8")
    a(f"s_add_u32 s9, s9, {WS_FU}")
    flag_wait(a, "s9", M, M + 2, "0x0fffffff", "0")
    a(f"s_setprio {OPT['prio_gemm']}")
    stamp(a, 9)
    a(f"v_and_b32 v{M}, 31, v0")
    a(f"v_lshlrev_b32 v{M+1}, 2, v{M}")
    a(f"v_lshlrev_b32 v{M}, 1, v{M}")
    a("s_lshl_b32 s8, s21, 6")
    a("s_and_b32 s9, s81, 1")
    a("s_lshl_b32 s9, s9, 5")
    a("s_add_u32 s23, s8, s9", "first row of own sub-tile")
    a("s_lshl_b32 s9, s23, 2")
    a(f"s_add_u32 s9, s9, {WS_G}")
    a("s_lshl_b32 s8, s23, 1")
    a.vmem(f"buffer_load_ushort v15, v{M}, {rs(R_B2)}, s8 offen", "b2")
    a.vmem(f"buffer_load_dword v252, v{M+1}, {rs(R_WS)}, s9 offen sc1", "b2")
    kloop(st2, 8, 28, False, GV_TA2, 1024, GV_DA)
    a("s_setprio 3")
    stamp(a, 10)
    lds_wait(a, M_CNT + 20, 4, M)
    reduce(M_CNT + 24)
    lds_arrive(a, M_CNT + 28, M, 1)
    a("v_lshlrev_b32 v15, 16, v15")
    a(f"v_sub_f32 v{M}, 1.0, v252")
    for r in range(16):
        a(f"v_add_f32 v{GV_ACC+r}, v{GV_ACC+r}, v15")
    for r in range(16):
        a(f"v_mul_f32 v{GV_Y+r}, v{GV_ACC+r}, v{M}")
    stamp(a, 11)
    a("v_and_b32 v15, 31, v0")
    a("v_lshlrev_b32 v15, 10, v15")
    a(f"v_lshrrev_b32 v{M}, 5, v0")
    a(f"v_lshl_add_u32 v15, v{M}, 4, v15")
    a("s_lshl_b32 s23, s23, 10")
    a("s_lshl_b32 s8, s22, 7")
    a("s_add_u32 s23, s23, s8")
    a("s_lshr_b32 s8, s81, 1")
    a("s_lshl_b32 s8, s8, 6")
    a("s_add_u32 s23, s23, s8")
    a("s_lshl_b32 s25, s21, 16")
    a("s_lshl_b32 s8, s81, 14")
    a("s_add_u32 s25, s25, s8")
    a(f"s_add_u32 s25, s25, {WS_O}")
    lds_wait(a, M_CNT + 28, 4, M)
    a(f"v_lshlrev_b32 v{M}, 3, v0")
    a("s_lshl_b32 s9, s21, 8")
    a("s_lshl_b32 s8, s81, 6")
    a("s_add_u32 s9, s9, s8")
    a(f"s_add_u32 s9, s9, {WS_FO}")
    flag_wait(a, "s9", M, M + 2, "0xff", "0", sleep=1)
    stamp(a, 12)
    for k in range(8):
        if k % 2 == 0 and k:
            a("s_add_u32 s25, s25, 4096")
        for x in range(2):
            a.vmem(f"buffer_load_dwordx4 {vr(GV_D+8*k+4*x,4)}, v{GV_DB+x}, {rs(R_WS)}, s25 offen offset:{(k%2)*2048} sc1", f"O{k}")
    for k in range(8):
        a.vm_wait(f"O{k}")
        for v in (1, 2, 3, 0):
            x, y = v >> 1, v & 1
            d = GV_ACC + 16 * v
            a(mfma(d, GV_WO + 8 * k + 4 * x, GV_D + 8 * k + 4 * y, "0" if k == 0 else d))
    a("s_nop 8")
    stamp(a, 13)
    reduce(M_CNT + 32)
    for r in range(16):
        a(f"v_fma_f32 v{GV_ACC+r}, v{GV_ACC+r}, v252, v{GV_Y+r}")
    for r in range(8):
        a(f"v_cvt_pk_bf16_f32 v{GV_ACC+16+r}, v{GV_ACC+2*r}, v{GV_ACC+2*r+1}")
    a.vmem(f"buffer_store_dwordx4 {vr(GV_ACC+16,4)}, v15, {rs(R_OUT)}, s23 offen", "ost")
    a.vmem(f"buffer_store_dwordx4 {vr(GV_ACC+20,4)}, v15, {rs(R_OUT)}, s23 offen offset:32", "ost")
    stamp(a, 14, True)


def descriptor(name, vgpr=256):
    return f""".section .rodata,"a"
.p2align 6
.amdhsa_kernel {name}
  .amdhsa_next_free_vgpr {vgpr}
  .amdhsa_next_free_sgpr 102
  .amdhsa_accum_offset {vgpr}
  .amdhsa_group_segment_fixed_size 0
  .amdhsa_kernarg_size 96
  .amdhsa_user_sgpr_count 2
  .amdhsa_user_sgpr_kernarg_segment_ptr 1
  .amdhsa_system_sgpr_workgroup_id_x 1
.end_amdhsa_kernel
"""


def build():
    kn = NAME + "_kernel"
    head = f"""; generated by gen/gen4.py (fused single launch)
; @launch grid=(256,1,1) block=(512,1,1) lds={LDS_TOTAL}
.amdgcn_target "amdgcn-amd-amdhsa--gfx950"
"""
    a = Asm()
    a(".text")
    a(f".globl {kn}")
    a(".p2align 8")
    a(f".type {kn},@function")
    a(f"{kn}:")
    entry(a, "L_exit")
    vm0, lg0 = list(a.vm), list(a.lg)
    a(f"s_cmp_ge_u32 s{S_WAVE}, 4")
    a("s_cbranch_scc1 L_roleb")
    proj(a, 0)
    attention(a)
    a("L_roleb:")
    a.vm, a.lg = vm0, lg0
    a("s_setprio 3")
    proj(a, 1)
    gemm_role(a)
    a("L_exit:")
    a("s_endpgm")
    a("L_code_end:")
    return head + a.text() + descriptor(kn)


if __name__ == "__main__":
    out = sys.argv[1] if len(sys.argv) > 1 else f"cdna_kernels/{NAME}.s"
    for o in sys.argv[2:]:
        if o == "stamps":
            OPT["stamps"] = True
        elif "=" in o:
            k, v = o.split("=")
            OPT[k] = int(v)
    open(out, "w").write(build())
    print("wrote", out)
```

```python
import math
import sys
from asmlib import Asm, vr, sr, f32bits

NAME = "gated_mix__mha_block__mixer_token_mlp__prompt"
OPT = dict(stamps=False, hw=2, prio_att=2, prio_gemm=0, nt=0, early=1, cpf=1, hwd0=3, hwd=3, gspin=24, g2b=18, w2k0=6, w2n=8, w2st=3, hw2=0, pt=1, ptnt=1, w1mode=0, gate=1, warm=-3, pf=4, help=7, hgate=1, g1b=3, r1m=0, r1s=4, r2m=1, r2s=14)

WS_H = 0x000000
WS_KV = 0x200000
WS_KVB = 0xE00000 - 0x200000
WS_U = 0x800000
WS_O = 0xA00000
WS_G = 0xC00000
WS_FH = 0xC10000
WS_FKV = 0xC20000
WS_FKVS = 0x8000
WS_FU = 0xC30000
WS_FO = 0xC40000
WS_STAMP = 0xD00000
WS_SIZE = 0x1200000

S_WAVE, S_XCD, S_IDX, S_HP, S_SL = 3, 4, 5, 6, 7
S_TAG = 14
S_LTAG = 76
R_X, R_P, R_WO, R_W1, R_W2, R_WS, R_OUT, R_B1, R_B2, R_GW = 40, 44, 48, 52, 56, 60, 64, 68, 72, 76
R_DBG = 92
R_KV = 48
LOG2E = math.log2(math.e)

P_XS, P_WS, P_LN = 0, 49152, 86016
M_RED = 0
TR = 6
M_RING = 49152
L_Q = 98304
KVR = 106496
KSLOT = 2080
KR = 6
RW = KR * KSLOT
M_CNT = KVR + 4 * RW
L_K0 = M_CNT + 256
LDS_TOTAL = 163840
assert M_RING + 4 * TR * 2048 <= L_Q and L_K0 + 2048 <= LDS_TOTAL
SPIN = 200000


def NT(bit):
    return "nt " if OPT["nt"] & bit else ""


def rs(r):
    return f"s[{r}:{r+3}]"


def stamp(a, idx, final=False):
    if not OPT["stamps"]:
        return
    a("s_memrealtime s[98:99]")
    a("s_memtime s[100:101]")
    if idx == 0:
        a("v_mov_b32 v254, 0")
        a("v_mov_b32 v255, 0")
    a("s_waitcnt lgkmcnt(0)")
    a.lg = []
    a(f"v_writelane_b32 v254, s98, {idx}")
    a(f"v_writelane_b32 v255, s100, {idx}")
    if final:
        a("s_lshl_b32 s97, s2, 3")
        a(f"s_add_u32 s97, s97, s{S_WAVE}")
        a("s_lshl_b32 s97, s97, 9")
        a(f"s_add_u32 s97, s97, {WS_STAMP}")
        a("v_lshlrev_b32 v253, 3, v0")
        a(f"buffer_store_dwordx2 v[254:255], v253, {rs(R_WS)}, s97 offen")


def srd(a, r, ptr, nbytes):
    a(f"s_mov_b32 s{r}, s{ptr}")
    a(f"s_mov_b32 s{r+1}, s{ptr+1}")
    a(f"s_mov_b32 s{r+2}, {nbytes:#x}")
    a(f"s_mov_b32 s{r+3}, 0x00020000")


def mfma(d, A, B, C):
    return f"v_mfma_f32_32x32x16_bf16 {vr(d,16)}, {vr(A,4)}, {vr(B,4)}, {C if isinstance(C,str) else vr(C,16)}"


def spin_guard(a, lab):
    a("s_sub_u32 s17, s17, 1")
    a("s_cmp_lg_u32 s17, 0")
    a(f"s_cbranch_scc1 {lab}")
    a("s_endpgm")


PV_XF, PV_WF, PV_XA, PV_WA, PV_DMA = 112, 128, 160, 164, 166


def p_issue(a, c, par):
    slot = c % 3
    a("s_and_b32 s8, s85, 7")
    a("s_add_u32 s85, s85, 1")
    a("s_mul_i32 s8, s8, s86")
    if par is None:
        a(f"s_mul_i32 s9, s87, {slot}")
        a("s_add_u32 m0, s83, s9")
    else:
        a(f"s_add_u32 m0, s83, {slot*(16384 if par == 0 else 12288)}")
    a("s_add_u32 s8, s8, s82")
    for q in range(3):
        a.vmem(f"buffer_load_dwordx4 v{PV_DMA+q}, {rs(R_P)}, s8 offen offset:{q*1024} {NT(2)}lds", f"ch{c}")
    if par is None:
        lab = a.label("no4")
        a(f"s_cmp_ge_u32 s{S_WAVE}, 4")
        a(f"s_cbranch_scc1 {lab}")
        a.vmem(f"buffer_load_dwordx4 v{PV_DMA+3}, {rs(R_P)}, s8 offen offset:3072 {NT(2)}lds", f"ch{c}A")
        a(f"{lab}:")
    elif par == 0:
        a.vmem(f"buffer_load_dwordx4 v{PV_DMA+3}, {rs(R_P)}, s8 offen offset:3072 {NT(2)}lds", f"ch{c}")


def entry(a, lexit):
    a("s_cmp_ge_u32 s2, 256")
    a(f"s_cbranch_scc1 {lexit}")
    a("s_load_dwordx16 s[16:31], s[0:1], 0")
    a("s_load_dwordx8 s[32:39], s[0:1], 64")
    a("s_memrealtime s[12:13]")
    a("v_lshrrev_b32 v1, 6, v0")
    a("v_and_b32 v0, 63, v0")
    a(f"v_readfirstlane_b32 s{S_WAVE}, v1")
    a(f"s_and_b32 s{S_XCD}, s2, 7")
    a(f"s_lshr_b32 s{S_IDX}, s2, 3")
    a(f"s_and_b32 s9, s{S_IDX}, 1")
    a(f"s_lshl_b32 s8, s{S_XCD}, 1")
    a(f"s_add_u32 s{S_HP}, s8, s9")
    a(f"s_lshr_b32 s{S_SL}, s{S_IDX}, 1")
    a("s_lshl_b32 s9, s9, 2")
    a(f"s_add_u32 s85, s9, s{S_SL}", "chunk cursor (rotation)")
    a(f"s_and_b32 s81, s{S_WAVE}, 3", "t")
    D = PV_DMA
    lb, lj = a.label("eb"), a.label("ej")
    a(f"s_cmp_ge_u32 s{S_WAVE}, 4")
    a(f"s_cbranch_scc1 {lb}")
    a("v_lshrrev_b32 v41, 3, v0")
    a("v_lshlrev_b32 v41, 10, v41")
    a("v_and_b32 v42, 7, v0")
    a("v_lshrrev_b32 v43, 4, v0")
    a("v_xor_b32 v42, v42, v43")
    a(f"v_lshl_add_u32 v{D}, v42, 4, v41")
    a("v_xor_b32 v42, 4, v42")
    a(f"v_lshl_add_u32 v{D+1}, v42, 4, v41")
    a(f"v_add_u32 v{D+2}, {2*7168}, v{D}")
    a(f"v_add_u32 v{D+3}, {3*7168}, v{D+1}")
    a(f"v_add_u32 v{D+1}, {7168}, v{D+1}")
    a(f"s_lshl_b32 s82, s{S_SL}, 17")
    a("s_lshl_b32 s8, s81, 15")
    a("s_add_u32 s82, s82, s8")
    a("s_lshl_b32 s83, s81, 12")
    a("s_mov_b32 s86, 128")
    a("s_mov_b32 s87, 16384")
    a("s_waitcnt lgkmcnt(0)")
    srd(a, R_P, 16, 2048 * 512 * 2)
    a(f"s_branch {lj}")
    a(f"{lb}:")
    a("v_lshrrev_b32 v41, 2, v0")
    a("v_mul_u32_u24 v41, 3072, v41")
    a("v_and_b32 v42, 3, v0")
    a(f"v_lshl_add_u32 v{D}, v42, 4, v41")
    a(f"v_mov_b32 v{D+1}, v{D}")
    a(f"v_mov_b32 v{D+2}, v{D}")
    a(f"v_mov_b32 v{D+3}, v{D}")
    a(f"s_mul_i32 s82, s81, {16*3072}")
    a(f"s_lshl_b32 s8, s{S_HP}, 6")
    a("s_add_u32 s82, s82, s8")
    a("s_mul_i32 s83, s81, 3072")
    a(f"s_add_u32 s83, s83, {P_WS}")
    a(f"s_mov_b32 s86, {64*3072}")
    a("s_mov_b32 s87, 12288")
    a("s_waitcnt lgkmcnt(0)")
    srd(a, R_P, 18, 512 * 1536 * 2)
    a(f"{lj}:")
    stamp(a, 0)
    srd(a, R_X, 16, 2048 * 512 * 2)
    srd(a, R_GW, 32, 512 * 2)
    a(f"s_lshl_b32 s8, s{S_SL}, 7")
    a(f"s_lshl_b32 s9, s{S_HP}, 3")
    a("s_add_u32 s80, s8, s9", "s80 = row0")
    a(f"s_add_u32 s8, s80, s{S_WAVE}")
    a("s_lshl_b32 s8, s8, 10")
    a("v_lshlrev_b32 v1, 4, v0", "lane*16")
    a.vmem(f"buffer_load_dwordx4 v[176:179], v1, {rs(R_X)}, s8 offen", "ln")
    a.vmem(f"buffer_load_dwordx4 v[180:183], v1, {rs(R_GW)}, 0 offen", "ln")
    p_issue(a, 0, None)
    srd(a, R_DBG, 36, 256)
    srd(a, R_WS, 38, WS_SIZE)
    lab = a.label("notag")
    a(f"s_or_b32 s8, s2, s{S_WAVE}")
    a("s_cmp_lg_u32 s8, 0")
    a(f"s_cbranch_scc1 {lab}")
    a("s_or_b32 s8, s12, 1")
    a("v_mov_b32 v44, s8")
    a("v_mov_b32 v45, s13")
    a("v_mov_b32 v46, 0")
    a("s_mov_b64 exec, 1")
    a(f"buffer_store_dwordx2 v[44:45], v46, {rs(R_DBG)}, 0 offen sc1")
    a("s_mov_b64 exec, -1")
    a(f"{lab}:")
    if OPT["cpf"]:
        lab = a.label("nocpf")
        a(f"s_cmp_lt_u32 s{S_WAVE}, 6")
        a(f"s_cbranch_scc1 {lab}")
        a("s_getpc_b64 s[88:89]")
        a("L_pc0:")
        a("s_mov_b32 s90, L_code_end-L_pc0")
        a("s_mov_b32 s91, 0x00020000")
        a(f"s_and_b32 s8, s{S_WAVE}, 1")
        a("s_lshl_b32 s8, s8, 5")
        a(f"s_add_u32 s8, s8, s{S_IDX}")
        a("s_lshl_b32 s8, s8, 10")
        a("buffer_load_dwordx4 v[248:251], v1, s[88:91], s8 offen")
        a(f"{lab}:")
    warm_setup(a)
    a("v_and_b32 v41, 31, v0", "i")
    a("v_lshrrev_b32 v42, 5, v0", "h'")
    a("v_bfe_u32 v43, v0, 1, 3")
    a("v_xor_b32 v44, v42, v43")
    a("v_lshlrev_b32 v45, 7, v41")
    a("s_lshl_b32 s8, s81, 12")
    a("v_add_u32 v45, s8, v45")
    a(f"v_lshl_add_u32 v{PV_XA}, v44, 4, v45")
    for ks in range(1, 4):
        a(f"v_xor_b32 v{PV_XA+ks}, {32*ks}, v{PV_XA}")
    a("v_lshlrev_b32 v44, 9, v42")
    a("v_bfe_u32 v45, v0, 2, 2")
    a("v_lshl_add_u32 v44, v45, 6, v44")
    a("v_bfe_u32 v45, v0, 4, 1")
    a("v_lshl_add_u32 v44, v45, 5, v44")
    a("v_and_b32 v45, 3, v0")
    a("v_lshl_add_u32 v44, v45, 3, v44")
    a(f"v_add_u32 v{PV_WA}, {P_WS}, v44")
    a("v_lshlrev_b32 v41, 2, v0")
    a(f"v_add_u32 v41, {M_CNT}, v41")
    a("v_mov_b32 v42, 0")
    a.lds("ds_write_b32 v41, v42", "cz")
    for r in range(80, 112):
        a(f"v_mov_b32 v{r}, 0")


def wave_reduce_add(a, regs):
    steps = ["row_shr:1 row_mask:0xf bank_mask:0xf bound_ctrl:0",
             "row_shr:2 row_mask:0xf bank_mask:0xf bound_ctrl:0",
             "row_shr:4 row_mask:0xf bank_mask:0xf bound_ctrl:0",
             "row_shr:8 row_mask:0xf bank_mask:0xf bound_ctrl:0",
             "row_bcast:15 row_mask:0xa bank_mask:0xf",
             "row_bcast:31 row_mask:0xc bank_mask:0xf"]
    for st in steps:
        a("s_nop 1" if len(regs) == 1 else "s_nop 0")
        for r in regs:
            a(f"v_add_f32_dpp v{r}, v{r}, v{r} {st}")
    a("s_nop 1")


def ln_compute(a):
    a.c("LN compute")
    a.vm_wait("ln")
    for i in range(4):
        a(f"v_lshlrev_b32 v{184+2*i}, 16, v{176+i}")
        a(f"v_and_b32 v{185+2*i}, 0xffff0000, v{176+i}")
        a(f"v_lshlrev_b32 v{192+2*i}, 16, v{180+i}")
        a(f"v_and_b32 v{193+2*i}, 0xffff0000, v{180+i}")
    a("v_add_f32 v200, v184, v185")
    a("v_mul_f32 v201, v184, v192")
    for i in range(1, 8):
        if i >= 2:
            a(f"v_add_f32 v200, v200, v{184+i}")
        a(f"v_fmac_f32 v201, v{184+i}, v{192+i}")
    a("s_nop 0")
    wave_reduce_add(a, [200, 201])
    a("v_readlane_b32 s8, v200, 63")
    a("v_readlane_b32 s9, v201, 63")
    a(f"v_mov_b32 v202, {f32bits(1.0/512)}")
    a(f"v_mov_b32 v214, {f32bits(-LOG2E)}")
    a("v_mul_f32 v202, s8, v202", "mean")
    a("v_mul_f32 v214, s9, v214")
    for i in range(8):
        a(f"v_sub_f32 v{184+i}, v{184+i}, v202")
    a("v_exp_f32 v214, v214")
    a("v_mul_f32 v200, v184, v184")
    for i in range(1, 8):
        a(f"v_fmac_f32 v200, v{184+i}, v{184+i}")
    wave_reduce_add(a, [200])
    a("v_readlane_b32 s8, v200, 63")
    a("v_add_f32 v214, 1.0, v214")
    a(f"v_mov_b32 v202, {f32bits(1.0/512)}")
    a(f"v_mov_b32 v203, {f32bits(1e-5)}")
    a("v_fma_f32 v202, s8, v202, v203", "var + eps")
    a("v_rsq_f32 v202, v202")
    a("v_rcp_f32 v214, v214", "g")
    for i in range(8):
        a(f"v_mul_f32 v{184+i}, v{184+i}, v202")
    for i in range(4):
        a(f"v_cvt_pk_bf16_f32 v{192+i}, v{184+2*i}, v{185+2*i}")
    a("v_mul_u32_u24 v204, 144, v0")
    a(f"s_lshl_b32 s8, s{S_WAVE}, 1")
    a(f"s_add_u32 s8, s8, {P_LN}")
    a("v_add_u32 v204, s8, v204")
    for i in range(4):
        a.lds(f"ds_write_b16 v204, v{192+i} offset:{32*i}", "lnw")
        a.lds(f"ds_write_b16_d16_hi v204, v{192+i} offset:{32*i+16}", "lnw")
    a("v_bfe_u32 v205, v0, 2, 1", "b2")
    a("v_bfe_u32 v206, v0, 3, 1", "b3")
    a("v_lshrrev_b32 v207, 4, v0")
    a("v_lshl_add_u32 v207, v207, 1, v205", "d>>3 (local) = (l>>4)*2 + b2")
    a("v_mul_u32_u24 v204, 144, v207")
    a("v_and_b32 v207, 3, v0")
    a("v_lshl_add_u32 v207, v206, 2, v207", "d&7 = b3*4 + (l&3)")
    a("v_lshl_add_u32 v204, v207, 4, v204")
    a(f"s_mul_i32 s8, s{S_WAVE}, {8*144}")
    a(f"s_add_u32 s8, s8, {P_LN}")
    a("v_add_u32 v204, s8, v204")
    a("v_lshrrev_b32 v205, 5, v0")
    a("v_lshlrev_b32 v205, 10, v205")
    a("v_and_b32 v210, 31, v0")
    a("v_lshl_add_u32 v205, v210, 4, v205")
    a(f"s_lshl_b32 s10, s{S_WAVE}, 18")
    a("s_lshr_b32 s9, s80, 4")
    a("s_lshl_b32 s9, s9, 11")
    a("s_add_u32 s10, s10, s9")
    a("s_and_b32 s9, s80, 8")
    a("s_lshl_b32 s9, s9, 6")
    a("s_add_u32 s10, s10, s9", "h store soffset")
    a(f"s_add_u32 s11, s80, s{S_WAVE}")
    a("s_lshl_b32 s11, s11, 2")
    a(f"s_add_u32 s11, s11, {WS_G}", "g store soffset")
    a("v_mov_b32 v210, 0")


def ln_store(a):
    a.c("LN store")
    a.lds("ds_read_b128 v[206:209], v204", "lnr")
    a.lg_wait("lnr")
    a.vmem(f"buffer_store_dwordx4 v[206:209], v205, {rs(R_WS)}, s10 offen sc1", "hst")
    a("s_mov_b64 exec, 1")
    a.vmem(f"buffer_store_dword v214, v210, {rs(R_WS)}, s11 offen sc1", "hst")
    a("s_mov_b64 exec, -1")
    a.vmem(f"buffer_load_dwordx2 v[216:217], v210, {rs(R_DBG)}, 0 offen sc1", "tag")


def tag_get(a):
    l1, l2 = a.label("tagl"), a.label("tagok")
    a(f"s_mov_b32 s17, {SPIN}")
    a(f"{l1}:")
    a(f"v_readfirstlane_b32 s{S_TAG}, v216")
    a(f"v_readfirstlane_b32 s{S_TAG+1}, v217")
    a(f"s_cmp_lg_u32 s{S_TAG}, 0")
    a(f"s_cbranch_scc1 {l2}")
    a(f"buffer_load_dwordx2 v[216:217], v210, {rs(R_DBG)}, 0 offen sc1")
    a("s_waitcnt vmcnt(0)")
    spin_guard(a, l1)
    a(f"{l2}:")
    a("s_getreg_b32 s8, hwreg(HW_REG_XCC_ID)")
    a("s_and_b32 s8, s8, 15")
    a("s_add_u32 s8, s8, 1")
    a("s_lshl_b32 s8, s8, 24")
    a(f"s_mov_b32 s{S_LTAG}, s{S_TAG}")
    a(f"s_xor_b32 s{S_LTAG+1}, s{S_TAG+1}, s8", "tag valid only between workgroups of this XCD")


def flag_set(a, soff, vz, vt, local=False):
    tg = S_LTAG if local else S_TAG
    a(f"v_mov_b32 v{vt}, s{tg}")
    a(f"v_mov_b32 v{vt+1}, s{tg+1}")
    a(f"v_mov_b32 v{vz}, 0")
    a("s_mov_b64 exec, 1")
    a.vmem(f"buffer_store_dwordx2 v[{vt}:{vt+1}], v{vz}, {rs(R_WS)}, {soff} offen {'' if local else 'sc1'}", "flag")
    a("s_mov_b64 exec, -1")


def flag_check(a, vt, mask_lo, mask_hi, tg=None):
    tg = S_TAG if tg is None else tg
    a(f"v_cmp_ne_u64 vcc, s[{tg}:{tg+1}], v[{vt}:{vt+1}]")
    a(f"s_and_b32 s10, vcc_lo, {mask_lo}")
    a(f"s_and_b32 s11, vcc_hi, {mask_hi}")
    a("s_or_b32 s10, s10, s11")
    a("s_cmp_eq_u32 s10, 0")


def flag_wait(a, soff, vaddr, vt, mask_lo, mask_hi, sleep=2):
    l1, l2 = a.label("poll"), a.label("pollok")
    a(f"s_mov_b32 s17, {SPIN}")
    a(f"{l1}:")
    a(f"buffer_load_dwordx2 v[{vt}:{vt+1}], v{vaddr}, {rs(R_WS)}, {soff} offen sc1")
    a("s_waitcnt vmcnt(0)")
    a.vm = []
    flag_check(a, vt, mask_lo, mask_hi)
    a(f"s_cbranch_scc1 {l2}")
    a(f"s_sleep {sleep}")
    spin_guard(a, l1)
    a(f"{l2}:")


def lds_arrive(a, cnt_off, vt, vone):
    a.lg_drain()
    a(f"v_mov_b32 v{vt}, {cnt_off}")
    a("s_mov_b64 exec, 1")
    a(f"ds_add_u32 v{vt}, v{vone}")
    a("s_mov_b64 exec, -1")


def lds_wait(a, cnt_off, target, vt, sleep=True, hint=0):
    lab, lab2 = a.label("sy"), a.label("syd")
    a(f"v_mov_b32 v{vt}, {cnt_off}")
    a(f"s_mov_b32 s17, {hint if hint else SPIN*8}")
    a(f"{lab}:")
    a(f"ds_read_b32 v{vt+1}, v{vt}")
    a("s_waitcnt lgkmcnt(0)")
    a.lg = []
    a(f"v_readfirstlane_b32 s8, v{vt+1}")
    a(f"s_cmp_ge_u32 s8, {target}")
    a(f"s_cbranch_scc1 {lab2}")
    if sleep:
        a("s_sleep 1")
    if hint:
        a("s_sub_u32 s17, s17, 1")
        a("s_cmp_lg_u32 s17, 0")
        a(f"s_cbranch_scc1 {lab}")
    else:
        spin_guard(a, lab)
    a(f"{lab2}:")


AV_Q, AV_O, AV_C, AV_S, AV_P, AV_K, AV_V = 16, 32, 96, 160, 192, 200, 208
AV_KA, AV_KR, AV_V0, AV_V1, AV_QA, AV_FA = 2, 3, 4, 5, 6, 7
GV_ACC, GV_D, GV_WO, GV_T, GV_Y, GV_MISC = 16, 80, 144, 208, 224, 240
GV_DMA, GV_TA1, GV_TA2, GV_TA3, GV_DB, GV_DA = 2, 5, 7, 9, 11, 13


def att_setup(a):
    a.c("attention setup")
    a(f"s_and_b32 s18, s{S_WAVE}, 1", "kh")
    a(f"s_lshr_b32 s19, s{S_WAVE}, 1", "e")
    a(f"s_lshl_b32 s20, s{S_HP}, 1")
    a("s_add_u32 s20, s20, s19", "head")
    a("s_lshl_b32 s8, s20, 17")
    a(f"s_add_u32 s8, s8, {WS_KV}")
    a(f"s_add_u32 s{R_KV}, s38, s8")
    a(f"s_addc_u32 s{R_KV+1}, s39, 0")
    a(f"s_mov_b32 s{R_KV+2}, 0x20000")
    a(f"s_mov_b32 s{R_KV+3}, 0x00020000")
    a(f"s_add_u32 s30, s{R_KV}, {WS_KVB}")
    a(f"s_addc_u32 s31, s{R_KV+1}, 0")
    a(f"s_mul_i32 s21, s{S_WAVE}, {RW}")
    a(f"s_add_u32 s21, s21, {KVR}", "ring base")
    a(f"v_lshlrev_b32 v{AV_KA}, 4, v0")
    a(f"v_add_u32 v{AV_KR}, s21, v{AV_KA}")
    a("v_lshrrev_b32 v8, 5, v0")
    a("v_lshlrev_b32 v8, 8, v8")
    a("v_and_b32 v9, 15, v0")
    a("v_lshl_add_u32 v8, v9, 4, v8")
    a("v_add_u32 v8, 1024, v8")
    a("v_add_u32 v9, 512, v8")
    a("v_and_b32 v10, 27, v0")
    a("v_cmp_eq_u32 vcc, 16, v10")
    a("v_mov_b32 v11, 2064")
    a("v_mov_b32 v12, 2048")
    a("v_cndmask_b32 v11, v11, v12, vcc")
    a("v_and_b32 v10, 16, v0")
    a("v_cmp_eq_u32 vcc, 0, v10")
    a("s_lshl_b32 s8, s19, 12")
    a(f"s_add_u32 s8, s8, {L_Q}")
    a("v_cndmask_b32 v8, v11, v8, vcc")
    a("v_cndmask_b32 v9, v11, v9, vcc")
    a(f"v_add_u32 v{AV_V0}, s21, v8")
    a(f"v_add_u32 v{AV_V1}, s21, v9")
    a(f"v_add_u32 v{AV_QA}, s8, v{AV_KA}")
    a(f"s_lshl_b32 s8, s{S_SL}, 2")
    a("s_add_u32 s8, s8, 4")
    a(f"v_add_u32 v{AV_FA}, s8, v0")
    a(f"v_and_b32 v{AV_FA}, 63, v{AV_FA}")
    a(f"v_lshrrev_b32 v8, 2, v{AV_FA}")
    a(f"v_and_b32 v{AV_FA}, 3, v{AV_FA}")
    a(f"v_lshlrev_b32 v{AV_FA}, 3, v{AV_FA}")
    a(f"v_lshl_add_u32 v{AV_FA}, v8, 7, v{AV_FA}", "lane l polls tile (l + 4sl + 4) & 63")
    a("s_lshl_b32 s27, 0x555, s18", "flags of the first 6 remote tiles")
    a("s_lshl_b32 s8, s19, 10")
    a(f"s_add_u32 s8, s8, {L_K0}")
    a(f"v_add_u32 v1, s8, v{AV_KA}")
    a("v_lshrrev_b32 v8, 3, v0")
    a(f"v_mul_u32_u24 v8, {KSLOT}, v8")
    a("v_and_b32 v9, 7, v0")
    a("v_lshl_add_u32 v8, v9, 2, v8")
    a("v_add_u32 v8, s21, v8")
    a("v_cmp_gt_u32 vcc, 4, v9")
    a("v_mov_b32 v10, 0x3f803f80")
    a("s_mov_b32 exec_hi, 0xffff")
    a("v_cndmask_b32 v10, 0, v10, vcc")
    a.lds("ds_write_b32 v8, v10 offset:2048", "pad")
    a("s_mov_b32 exec_hi, -1")
    a(f"s_lshl_b32 s22, s{S_HP}, 11")
    a(f"s_add_u32 s22, s22, {WS_FKV}", "flag base")
    a(f"s_add_u32 s28, s22, {WS_FKVS}")
    a("s_lshl_b32 s23, 0x55555555, s18", "flag mask")
    a("s_mov_b32 s24, 0", "0: fast pass, 1: exact-max pass")
    a("s_mov_b32 s25, 2", "pair sync target")


def gemm_setup(a):
    a.c("GEMM setup")
    srd(a, R_WO, 20, 512 * 512 * 2)
    srd(a, R_B1, 26, 1792 * 2)
    srd(a, R_W2, 28, 1792 * 2048 * 2)
    srd(a, R_B2, 30, 2048 * 2)
    srd(a, R_OUT, 34, 2048 * 512 * 2)
    a("v_lshrrev_b32 v16, 3, v0")
    a("v_and_b32 v17, 7, v0")
    a("v_bfe_u32 v18, v0, 4, 1")
    a("v_lshlrev_b32 v18, 2, v18")
    a("v_xor_b32 v17, v17, v18")
    a("v_lshlrev_b32 v17, 4, v17")
    a(f"v_mul_u32_u24 v{GV_DMA}, 3584, v16")
    a(f"v_add_u32 v{GV_DMA}, v{GV_DMA}, v17")
    a(f"v_lshl_add_u32 v{GV_DMA+1}, v16, 12, v17")
    a(f"v_lshl_add_u32 v{GV_DMA+2}, v16, 10, v17")
    a(f"s_mul_i32 s18, s81, {TR*2048}")
    a(f"s_add_u32 s18, s18, {M_RED}", "T slot base (own reduction area; ring at +49152)")
    a("v_bfe_u32 v16, v0, 2, 2")
    a("v_lshlrev_b32 v17, 7, v16")
    a("v_bfe_u32 v16, v0, 3, 1")
    a("v_lshl_add_u32 v17, v16, 6, v17")
    a("v_bfe_u32 v16, v0, 4, 1")
    a("v_lshl_add_u32 v17, v16, 5, v17")
    a("v_add_u32 v17, s18, v17", "rows r, half swap, colhalf")
    a("v_and_b32 v16, 3, v0")
    a("v_lshl_add_u32 v18, v16, 3, v17", "+8c")
    a("v_and_b32 v16, 1, v0")
    a("v_lshl_add_u32 v19, v16, 4, v17")
    a("v_bfe_u32 v16, v0, 1, 1")
    a("v_lshl_add_u32 v19, v16, 3, v19", "+16(c&1)+8(c>>1): column permutation swap23")
    a("v_lshrrev_b32 v16, 5, v0")
    a("s_lshr_b32 s8, s81, 1", "a_w")
    a("s_and_b32 s9, s81, 1", "b_w")
    a("s_lshl_b32 s19, s8, 6")
    a("s_lshl_b32 s20, s9, 6")
    a(f"v_lshl_add_u32 v{GV_TA1}, v16, 10, v18")
    a(f"v_xor_b32 v{GV_TA1}, s19, v{GV_TA1}")
    a(f"v_xor_b32 v{GV_TA1+1}, 64, v{GV_TA1}")
    a(f"v_lshl_add_u32 v{GV_TA2}, v16, 9, v18")
    a(f"v_xor_b32 v{GV_TA2}, s20, v{GV_TA2}")
    a(f"v_xor_b32 v{GV_TA2+1}, 64, v{GV_TA2}")
    a(f"v_lshl_add_u32 v{GV_TA3}, v16, 9, v19")
    a(f"v_xor_b32 v{GV_TA3}, s19, v{GV_TA3}")
    a(f"v_xor_b32 v{GV_TA3+1}, 64, v{GV_TA3}")
    a("s_lshl_b32 s19, s8, 10")
    a("s_lshl_b32 s20, s9, 10")
    a("v_lshlrev_b32 v16, 4, v0")
    a(f"v_add_u32 v{GV_DB}, s20, v16")
    a(f"v_xor_b32 v{GV_DB+1}, 1024, v{GV_DB}")
    a(f"v_add_u32 v{GV_DA}, s19, v16")
    a(f"v_xor_b32 v{GV_DA+1}, 1024, v{GV_DA}")
    for v in range(1, 4):
        a(f"s_xor_b32 s8, s81, {v}")
        a("s_mul_i32 s8, s8, 12288")
        a(f"s_add_u32 s8, s8, {M_RED + (v-1)*4096}")
        a(f"v_add_u32 v{GV_MISC+v}, s8, v16")
    a("s_mul_i32 s8, s81, 12288")
    a(f"s_add_u32 s8, s8, {M_RED}")
    a(f"v_add_u32 v{GV_MISC}, s8, v16")
    a(f"s_lshr_b32 s8, s{S_XCD}, 1")
    a("s_mul_i32 s8, s8, 7", "7p")
    a(f"s_and_b32 s9, s{S_XCD}, 1")
    a("s_lshl_b32 s9, s9, 2", "4*odd")
    a(f"s_lshr_b32 s23, s{S_IDX}, 3", "j")
    a("s_add_u32 s20, s8, s9")
    a("s_add_u32 s20, s20, s23", "ft (j<3)")
    a("s_add_u32 s8, s8, 3")
    a(f"s_and_b32 s19, s{S_IDX}, 7")
    a(f"s_and_b32 s21, s{S_IDX}, 3")
    a("s_add_u32 s9, s9, s21")
    a("s_cmp_eq_u32 s23, 3")
    a("s_cselect_b32 s20, s8, s20", "ft")
    a("s_cselect_b32 s19, s9, s19", "dt (G1)")
    a(f"s_and_b32 s23, s23, {OPT['r1m']}")
    a(f"s_lshl_b32 s23, s23, {OPT['r1s']}", "rot G1 (h sharers)")
    a(f"s_lshr_b32 s22, s{S_IDX}, 2", "dt (G2)")
    a(f"s_and_b32 s9, s21, {OPT['r2m']}")
    a(f"s_mul_i32 s9, s9, {OPT['r2s']}")
    a(f"s_lshl_b32 s8, s{S_XCD}, 2")
    a("s_add_u32 s21, s8, s21", "st")
    a("s_mul_i32 s8, s22, 7")
    a("s_lshr_b32 s8, s8, 1")
    a("s_add_u32 s24, s9, s8")
    a("s_sub_u32 s9, s24, 28")
    a("s_cmp_ge_u32 s24, 28")
    a("s_cselect_b32 s24, s9, s24", "rot G2")


def bias_loads(a):
    a("v_lshrrev_b32 v16, 5, v0")
    a("v_lshlrev_b32 v16, 3, v16")
    a("s_lshl_b32 s8, s20, 7")
    a("s_lshr_b32 s9, s81, 1")
    a("s_lshl_b32 s9, s9, 6")
    a("s_add_u32 s8, s8, s9")
    for g in range(4):
        a.vmem(f"buffer_load_dwordx2 {vr(GV_Y+2*g,2)}, v16, {rs(R_B1)}, s8 offen offset:{16*g}", "b1")
    a("v_and_b32 v17, 31, v0")
    a("v_lshlrev_b32 v17, 1, v17")
    a("s_lshl_b32 s8, s21, 6")
    a("s_and_b32 s9, s81, 1")
    a("s_lshl_b32 s9, s9, 5")
    a("s_add_u32 s91, s8, s9", "first row of own output sub-tile")
    a("s_lshl_b32 s8, s91, 1")
    a.vmem(f"buffer_load_ushort v15, v17, {rs(R_B2)}, s8 offen", "b2")
    a(f"v_lshlrev_b32 v{GV_MISC+4}, 3, v0")
    a("s_lshl_b32 s96, s81, 9")
    a(f"s_add_u32 s96, s96, {WS_FH}")


def warm_setup(a):
    srd(a, R_W1, 24, 2048 * 1792 * 2)
    a("v_lshrrev_b32 v174, 5, v0")
    a("v_mul_u32_u24 v174, 3584, v174")
    a("v_and_b32 v175, 31, v0")
    a("v_lshl_add_u32 v174, v175, 4, v174")
    a(f"s_lshr_b32 s8, s{S_XCD}, 1")
    a("s_mul_i32 s8, s8, 7")
    a(f"s_and_b32 s9, s{S_XCD}, 1")
    a("s_mul_i32 s9, s9, 3")
    a("s_add_u32 s8, s8, s9")
    a("s_lshl_b32 s90, s8, 7")
    a(f"s_lshl_b32 s8, s{S_IDX}, 3")
    a(f"s_add_u32 s8, s8, s{S_WAVE}")
    a("s_lshr_b32 s9, s8, 6")
    a("s_lshl_b32 s9, s9, 9")
    a("s_and_b32 s8, s8, 63")
    a("s_lshl_b32 s8, s8, 1")
    a("s_add_u32 s8, s8, s9")
    a("s_mul_i32 s8, s8, 3584")
    a("s_add_u32 s8, s8, s90")
    a("s_mov_b32 s87, s8")


def epi_addr(a, par):
    a(f"s_lshl_b32 s84, s{S_SL}, 2")
    a("s_add_u32 s84, s84, s81", "tile")
    a("v_lshlrev_b32 v170, 4, v0")
    if par == 0:
        a("s_lshl_b32 s8, s81, 10")
        a(f"s_add_u32 s8, s8, {L_Q}")
        a("v_add_u32 v171, s8, v170")
    else:
        a(f"s_lshl_b32 s88, s{S_HP}, 18")
        a("s_lshl_b32 s9, s84, 11")
        a("s_add_u32 s88, s88, s9")
        a(f"s_add_u32 s88, s88, {WS_KV}")
        a("s_add_u32 s89, s88, 0x20000")
        a("v_lshrrev_b32 v171, 5, v0")
        a("v_lshlrev_b32 v171, 8, v171")
        a("v_and_b32 v172, 15, v0")
        a("v_lshl_add_u32 v171, v172, 4, v171", "h'*256 + i*16")
        a("v_bfe_u32 v173, v0, 4, 1", "e")
        a("v_lshl_add_u32 v172, v173, 17, v171", "global V voffset")
        a("s_and_b32 s8, s81, 1")
        a(f"s_mul_i32 s8, s8, {RW}")
        a("s_lshr_b32 s9, s81, 1")
        a(f"s_mul_i32 s9, s9, {KSLOT}")
        a("s_add_u32 s8, s8, s9")
        a(f"s_add_u32 s8, s8, {KVR}")
        a(f"v_mul_u32_u24 v173, {2*RW}, v173")
        a("v_add3_u32 v173, v173, v171, s8", "LDS V addr")
        a("v_add_u32 v171, s8, v170", "LDS K addr")


def proj(a, par):
    a.c(f"projection role {par}")
    ACC = 96 if par == 0 else 80
    XF, WF, XA, WA = PV_XF, PV_WF, PV_XA, PV_WA
    vm = []
    for t in a.vm:
        if t.endswith("A"):
            if par == 0:
                vm.append(t[:-1])
        else:
            vm.append(t)
    a.vm = vm
    if par == 0:
        att_setup(a)
        for r in range(64):
            a(f"v_mov_b32 v{AV_O+r}, 0")
    else:
        gemm_setup(a)
        for r in range(16, 64):
            a(f"v_mov_b32 v{GV_ACC+r}, 0")
    epi_addr(a, par)

    def pretouch():
        nt = "nt" if OPT["ptnt"] else ""
        if par == 1:
            a.vmem(f"buffer_load_dwordx4 v[248:251], v170, {rs(R_WS)}, s88 offen {nt}", "pt")
            a.vmem(f"buffer_load_dwordx4 v[248:251], v170, {rs(R_WS)}, s89 offen {nt}", "pt")
        else:
            a(f"s_lshl_b32 s8, s{S_HP}, 18")
            a("s_lshl_b32 s9, s84, 11")
            a("s_add_u32 s8, s8, s9")
            a(f"s_add_u32 s8, s8, {WS_KV}")
            a("s_add_u32 s9, s8, 0x20000")
            a.vmem(f"buffer_load_dwordx4 v[248:251], v170, {rs(R_WS)}, s8 offen offset:1024 {nt}", "pt")
            a.vmem(f"buffer_load_dwordx4 v[248:251], v170, {rs(R_WS)}, s9 offen offset:1024 {nt}", "pt")
            a.vmem(f"buffer_load_dwordx2 v[248:249], v{AV_FA}, {rs(R_WS)}, s22 offen {nt}", "pt")
        if OPT["w1mode"] == 0:
            a.vmem(f"buffer_load_dwordx4 v[248:251], v174, {rs(R_W1)}, s87 offen", "warm")
    if OPT["pt"] == 1:
        pretouch()
    p_issue(a, 1, par)
    stamp(a, 2)
    ln_compute(a)
    if OPT["pt"] == 2:
        pretouch()
    stamp(a, 1)
    for c in range(8):
        slot = c % 3
        a.c(f"chunk {c}")
        a.vm_wait(f"ch{c}")
        if a.lg:
            a.lg_drain()
        a("s_barrier")
        stamp(a, 32 + c)
        segs = [0] if par == 0 else [1, 2]

        def reads(ks):
            a.lds(f"ds_read_b128 {vr(XF+4*ks,4)}, v{XA+ks} offset:{P_XS + slot*16384}", f"r{ks}")
            for si, seg in enumerate(segs):
                off = slot * 12288 + ks * 3072 + seg * 1024
                w = WF + 8 * ks + 4 * si
                a.lds(f"ds_read_b64_tr_b16 {vr(w,2)}, v{WA} offset:{off}", f"r{ks}")
                a.lds(f"ds_read_b64_tr_b16 {vr(w+2,2)}, v{WA} offset:{off+256}", f"r{ks}")

        def mm(ks):
            a.lg_wait(f"r{ks}")
            a(mfma(ACC, WF + 8 * ks, XF + 4 * ks, ACC))
            if par == 1:
                a(mfma(ACC + 16, XF + 4 * ks, WF + 8 * ks + 4, ACC + 16))
        for ks in range(3):
            reads(ks)
        if par == 0:
            reads(3)
        if c + 2 < 8:
            p_issue(a, c + 2, par)
        mm(0)
        if par == 1:
            reads(3)
        for ks in range(1, 4):
            mm(ks)
        if c == 0:
            ln_store(a)
        if c == 3:
            tag_get(a)
            if par == 1:
                lab = a.label("nofh")
                a("s_cmp_lg_u32 s81, 0")
                a(f"s_cbranch_scc1 {lab}")
                a(f"s_add_u32 s8, s80, {WS_FH}")
                n0 = len(a.vm)
                flag_set(a, "s8", 218, 220)
                a.vm = a.vm[:n0]
                a(f"{lab}:")
        if c == 1 and par == 1:
            bias_loads(a)
        if c == 5 and par == 1:
            for g in range(4):
                for hh in range(2):
                    a(f"v_lshlrev_b32 v{GV_ACC+4*g+2*hh}, 16, v{GV_Y+2*g+hh}")
                    a(f"v_and_b32 v{GV_ACC+4*g+2*hh+1}, 0xffff0000, v{GV_Y+2*g+hh}")
        if c == 4 and par == 0:
            for r in range(4, 8):
                a(f"v_mov_b32 v{AV_P+r}, 0")
            for r in range(8):
                a(f"v_mov_b32 v{AV_V+8+r}, 0")
    stamp(a, 3)
    a.c("projection epilogue")
    if par == 0:
        a(f"s_mov_b32 s9, {f32bits(0.25*LOG2E)}")
        a("s_nop 10")
        for r in range(16):
            a(f"v_mul_f32 v{ACC+r}, s9, v{ACC+r}")
        for r in range(8):
            a(f"v_cvt_pk_bf16_f32 v{XF+r}, v{ACC+2*r}, v{ACC+2*r+1}")
        a.lds(f"ds_write_b128 v171, {vr(XF,4)}", "qw")
        a.lds(f"ds_write_b128 v171, {vr(XF+4,4)} offset:4096", "qw")
    else:
        a("s_nop 10")
        for r in range(16):
            a(f"v_cvt_pk_bf16_f32 v{XF+r}, v{ACC+2*r}, v{ACC+2*r+1}")
        a.lds(f"ds_write_b128 v171, {vr(XF,4)}", "kw")
        a.lds(f"ds_write_b128 v171, {vr(XF+4,4)} offset:{2*RW}", "kw")
        lab = a.label("nok0")
        a("s_cmp_lg_u32 s81, 0")
        a(f"s_cbranch_scc1 {lab}")
        a(f"ds_write_b128 v171, {vr(XF,4)} offset:{L_K0-KVR}")
        a(f"ds_write_b128 v171, {vr(XF+4,4)} offset:{L_K0-KVR+1024}")
        a(f"{lab}:")
        a.lds(f"ds_write_b128 v173, {vr(XF+8,4)} offset:1024", "kw")
        a.lds(f"ds_write_b128 v173, {vr(XF+12,4)} offset:1536", "kw")
        a.vmem(f"buffer_store_dwordx4 {vr(XF,4)}, v170, {rs(R_WS)}, s88 offen", "kvst")
        a.vmem(f"buffer_store_dwordx4 {vr(XF+4,4)}, v170, {rs(R_WS)}, s89 offen", "kvst")
        a.vmem(f"buffer_store_dwordx4 {vr(XF+8,4)}, v172, {rs(R_WS)}, s88 offen offset:1024", "kvst")
        a.vmem(f"buffer_store_dwordx4 {vr(XF+12,4)}, v172, {rs(R_WS)}, s88 offen offset:1536", "kvst")
    a.lg_drain()
    a("s_barrier")


def attn_body(a, u_list, extra):
    kb = lambda n: n % 2
    for (n, i, pn, pi, nn, ni, par) in u_list:
        cur, nxt = AV_S + 16 * par, AV_S + 16 * (1 - par)
        E = lambda r: a(f"v_exp_f32 v{cur+r}, v{cur+r}")
        C = lambda r: a(f"v_cvt_pk_bf16_f32 v{AV_P+r}, v{cur+2*r}, v{cur+2*r+1}")
        E(0)
        E(1)
        a(mfma(AV_O + 16 * pi, AV_V + 8 * kb(pn) + 4, AV_P + 4, AV_O + 16 * pi))
        extra(n, i, 0)
        for r in range(2, 8):
            E(r)
        if nn is not None:
            a(mfma(nxt, AV_K + 4 * kb(nn), AV_Q + 4 * ni, AV_C + 16 * ni))
            extra(n, i, 1)
        else:
            a("s_nop 0")
        for r in range(4):
            C(r)
        for r in range(8, 12):
            E(r)
        a(mfma(AV_O + 16 * i, AV_V + 8 * kb(n), AV_P, AV_O + 16 * i))
        extra(n, i, 2)
        for r in range(12, 16):
            E(r)
        for r in range(4, 8):
            C(r)


def attention(a):
    a.c("attention role")
    KS = "s12"

    def rd(n):
        so, b = (n % KR) * KSLOT, n % 2
        return [f"ds_read_b128 {vr(AV_K+4*b,4)}, v{AV_KR} offset:{so}",
                f"ds_read_b128 {vr(AV_V+8*b,4)}, v{AV_V0} offset:{so}",
                f"ds_read_b128 {vr(AV_V+8*b+4,4)}, v{AV_V1} offset:{so}"]

    def dma(n):
        return [f"s_add_u32 m0, s21, {(n % KR) * KSLOT}",
                f"buffer_load_dwordx4 v{AV_KA}, {rs(R_KV)}, {KS} offen sc1 lds",
                f"buffer_load_dwordx4 v{AV_KA}, {rs(R_KV)}, {KS} offen offset:1024 sc1 lds",
                f"s_add_u32 {KS}, {KS}, 4096",
                f"s_and_b32 {KS}, {KS}, 0x1ffff"]

    def kv_wait(mlo, mhi):
        l1, l2, l3 = a.label("kvp"), a.label("kvok"), a.label("kvs")
        a(f"s_mov_b32 s17, {SPIN}")
        a(f"{l1}:")
        a(f"buffer_load_dwordx2 v[8:9], v{AV_FA}, {rs(R_WS)}, s22 offen sc1")
        a(f"buffer_load_dwordx2 v[10:11], v{AV_FA}, {rs(R_WS)}, s28 offen sc1")
        a("s_waitcnt vmcnt(0)")
        flag_check(a, 8, mlo, mhi, S_LTAG)
        a(f"s_cbranch_scc1 {l2}")
        flag_check(a, 10, mlo, mhi)
        a(f"s_cbranch_scc1 {l3}")
        a("s_sleep 1")
        spin_guard(a, l1)
        a(f"{l3}:")
        a(f"s_mov_b32 s{R_KV}, s30")
        a(f"s_mov_b32 s{R_KV+1}, s31")
        a("s_mov_b32 s22, s28", "from now on only the written-through flags count")
        a(f"s_mov_b32 s{S_LTAG+1}, s{S_TAG+1}")
        a(f"{l2}:")

    a(f"s_setprio {OPT['prio_att']}")
    for i in range(4):
        a(f"ds_read_b128 {vr(AV_Q+4*i,4)}, v{AV_QA} offset:{i*1024}")
    a(f"ds_read_b128 {vr(AV_S,4)}, v1", "K tile 0 of my head")
    stamp(a, 4)
    a.c("max estimate from own key tile 0")
    a("s_waitcnt lgkmcnt(0)")
    for i in range(4):
        a(mfma(AV_C + 16 * i, AV_S, AV_Q + 4 * i, "0"))
    for x in rd(0):
        a(x)
    a("s_nop 5")
    for i in range(4):
        a(f"v_max3_f32 v{12+i}, v{AV_C+16*i}, v{AV_C+16*i+1}, v{AV_C+16*i+2}")
        for r in range(6):
            a(f"v_max3_f32 v{12+i}, v{AV_C+16*i+3+2*r}, v{AV_C+16*i+4+2*r}, v{12+i}")
        a(f"v_max_f32 v{12+i}, v{AV_C+16*i+15}, v{12+i}")
    lredo = a.label("redo")
    a(f"{lredo}:")
    for i in range(4):
        a(f"v_mov_b32 v{8+i}, v{12+i}")
    a("s_nop 1")
    for i in range(4):
        a(f"v_permlane32_swap_b32 v{12+i}, v{8+i}")
    a("s_nop 1")
    for i in range(4):
        a(f"v_max_f32 v{12+i}, v{12+i}, v{8+i}")
    for r in range(16):
        a(f"v_sub_f32 v{AV_C+r}, 0, v12")
    a("s_waitcnt lgkmcnt(0)")
    a(mfma(AV_S, AV_K, AV_Q, AV_C))
    for i in range(1, 4):
        for r in range(16):
            a(f"v_sub_f32 v{AV_C+16*i+r}, 0, v{12+i}")
    stamp(a, 5)
    a.c("phase A: own tiles")
    ul = []
    for u in range(8):
        n, i = u // 4, u % 4
        pn, pi = (1, 3) if u == 0 else ((u - 1) // 4, (u - 1) % 4)
        nn, ni = ((u + 1) // 4, (u + 1) % 4) if u < 7 else (None, None)
        ul.append((n, i, pn, pi, nn, ni, u % 2))

    fl = []
    for n_ in range(2, 2 + KR):
        d = dma(n_)
        fl.append([d[0], d[1]] if n_ == 2 else [d[3], d[4], d[0], d[1]])
        fl.append([d[2]])
    lw1, lw1b = a.label("kvw"), a.label("kvwb")

    def extraA(n, i, slot):
        if n == 0 and (i, slot) in ((0, 1), (0, 2), (1, 0)):
            a(rd(1)[[(0, 1), (0, 2), (1, 0)].index((i, slot))])
        if n == 0 and (i, slot) == (1, 1):
            a(f"buffer_load_dwordx2 v[8:9], v{AV_FA}, {rs(R_WS)}, s22 offen sc1")
        if n == 0 and (i, slot) == (3, 0):
            a("s_waitcnt lgkmcnt(0)")
        if n == 0 and (i, slot) == (3, 1):
            a("s_waitcnt vmcnt(0)")
            flag_check(a, 8, "s23", "s23", S_LTAG)
            a("s_cselect_b32 s13, 0, 5", "s13 == s16 -> remaining flags still to be checked")
            a("s_and_b32 s10, vcc_lo, s27")
            a(f"s_cbranch_scc1 {lw1}")
            a(f"{lw1b}:")
        k = None
        if n == 0 and (i, slot) == (3, 2):
            k = 0
        elif n == 1:
            k = 1 + 3 * i + slot - (1 if (i, slot) == (3, 2) else 0)
        if k is not None:
            grp = fl[k]
            if len(grp) > 1:
                for x in grp[:-1]:
                    a(x)
                a("s_nop 0")
            a(grp[-1])
    a(f"s_lshl_b32 {KS}, s{S_SL}, 2")
    a(f"s_add_u32 {KS}, {KS}, s18")
    a(f"s_add_u32 {KS}, {KS}, 4")
    a(f"s_lshl_b32 {KS}, {KS}, 11")
    a(f"s_and_b32 {KS}, {KS}, 0x1ffff")
    a(f"v_mov_b32 v224, {M_CNT+36}")
    a("v_mov_b32 v225, 1")
    attn_body(a, ul, extraA)
    stamp(a, 6)
    a(dma(2)[3])
    a(dma(2)[4])
    a(f"buffer_load_dwordx2 v[8:9], v{AV_FA}, {rs(R_WS)}, s22 offen sc1")
    a("s_mov_b64 exec, 1")
    a("ds_add_u32 v224, v225", "release the GEMM waves")
    a("s_mov_b64 exec, -1")
    a(f"s_waitcnt vmcnt({2*(KR-1)+1})")
    for x in rd(2):
        a(x)
    a("s_mov_b32 s16, 5")
    stamp(a, 7)
    a("s_waitcnt lgkmcnt(0)")
    a(mfma(AV_S, AV_K, AV_Q, AV_C))
    a("s_nop 10")
    lloop = a.label("attn")
    a(".p2align 6")
    a(f"{lloop}:")
    ul = []
    for u in range(24):
        n, i = 2 + u // 4, u % 4
        pn, pi = 2 + (u - 1) // 4, (u - 1) % 4
        nn, ni = 2 + (u + 1) // 4, (u + 1) % 4
        ul.append((n, i, pn, pi, nn, ni, u % 2))

    lchk, lback = a.label("chk"), a.label("chkb")

    def extraL(n, i, slot):
        d, r = dma(n + KR), rd(n + 1)
        sched = {(0, 0): f"s_waitcnt vmcnt({2*(KR-2)})", (0, 1): r[0], (0, 2): r[1], (1, 0): r[2],
                 (1, 1): d[0], (1, 2): d[1], (2, 0): d[2], (2, 1): d[3], (2, 2): d[4],
                 (3, 0): "s_waitcnt lgkmcnt(0)"}
        if n == 2 and (i, slot) == (1, 0):
            a("s_cmp_eq_u32 s16, s13")
        if n == 2 and (i, slot) == (1, 1):
            a(f"s_cbranch_scc1 {lchk}")
            a(f"{lback}:")
        if (i, slot) in sched:
            a(sched[(i, slot)])
        if OPT["stamps"] and n == 2 and (i, slot) == (2, 2):
            a("s_memrealtime s[98:99]")
            a("s_memtime s[100:101]")
        if OPT["stamps"] and n == 2 and (i, slot) == (3, 1):
            a("s_add_u32 m0, s16, 40")
            a("s_nop 0")
            a("v_writelane_b32 v254, s98, m0")
            a("v_writelane_b32 v255, s100, m0")
        if n == 6 and (i, slot) == (3, 1):
            a("s_sub_u32 s16, s16, 1")
        if n == 6 and (i, slot) == (3, 2):
            a("s_cmp_eq_u32 s16, 1")
        if n == 7 and (i, slot) == (0, 0):
            a("s_cselect_b32 s26, 0, 0x20000")
        if n == 7 and (i, slot) == (3, 1):
            a(f"s_mov_b32 s{R_KV+2}, s26", "last iteration: DMA out of range (no traffic)")
        if n == 7 and (i, slot) == (3, 2):
            a("s_cmp_lg_u32 s16, 0")
    attn_body(a, ul, extraL)
    a(f"s_cbranch_scc1 {lloop}")
    a("s_nop 0")
    a(mfma(AV_O + 48, AV_V + 8 + 4, AV_P + 4, AV_O + 48))
    stamp(a, 8)
    a.c("check + combine")
    a("v_lshlrev_b32 v9, 2, v0")
    a("v_add_u32 v9, s21, v9", "own area, lane*4")
    a(f"s_xor_b32 s8, s{S_WAVE}, 1")
    a(f"s_mul_i32 s8, s8, {RW}")
    a(f"s_add_u32 s8, s8, {KVR}")
    a(f"v_add_u32 v10, s8, v{AV_KA}", "partner area")
    a("v_lshlrev_b32 v11, 2, v0")
    a("v_add_u32 v11, s8, v11")
    a("s_waitcnt vmcnt(0)")
    a("s_nop 2")
    a(f"v_add_f32 v8, v{AV_O+8}, v{AV_O+24}")
    a(f"v_add_f32 v1, v{AV_O+40}, v{AV_O+56}")
    a("v_add_f32 v8, v8, v1")
    a(f"v_mov_b32 v1, {f32bits(2.0**60)}")
    a("v_cmp_nlt_f32 vcc, v8, v1")
    a("s_cmp_lg_u64 vcc, 0")
    a("s_cselect_b32 s8, 0x10001, 1")
    a("v_mov_b32 v1, s8")
    lk1, ljoin = a.label("kh1"), a.label("khj")
    a("s_cmp_eq_u32 s18, 1")
    a(f"s_cbranch_scc1 {lk1}")

    def send(o, j):
        a(f"ds_write_b128 v{AV_KR}, {vr(o,4)} offset:{2*j*KSLOT}")
        a(f"ds_write_b128 v{AV_KR}, {vr(o+4,4)} offset:{2*j*KSLOT+1024}")
        a(f"ds_write_b32 v9, v{o+8} offset:{(2*j+1)*KSLOT}")
    for j in range(2):
        send(AV_O + 16 * (2 + j), j)
    a(f"s_branch {ljoin}")
    a(f"{lk1}:")
    for j in range(2):
        send(AV_O + 16 * j, j)
    a("s_waitcnt lgkmcnt(0)")
    for j in range(2):
        for r in range(9):
            a(f"v_mov_b32 v{AV_O+16*j+r}, v{AV_O+16*(2+j)+r}")
    a(f"{ljoin}:")
    lab, lab2 = a.label("asy"), a.label("asyd")
    a("s_lshl_b32 s8, s19, 2")
    a(f"s_add_u32 s8, s8, {M_CNT}")
    a("v_mov_b32 v8, s8")
    a("s_mov_b64 exec, 1")
    a("ds_add_u32 v8, v1")
    a("s_mov_b64 exec, -1")
    a(f"s_mov_b32 s17, {SPIN*16}")
    a(f"{lab}:")
    a("ds_read_b32 v9, v8")
    a("s_waitcnt lgkmcnt(0)")
    a("v_readfirstlane_b32 s8, v9")
    a("s_and_b32 s9, s8, 0xffff")
    a("s_cmp_ge_u32 s9, s25")
    a(f"s_cbranch_scc1 {lab2}")
    spin_guard(a, lab)
    a(f"{lab2}:")
    lok, lslow = a.label("aok"), a.label("aslow")
    a("s_lshr_b32 s9, s8, 16")
    a("s_cmp_lg_u32 s9, 0")
    a(f"s_cbranch_scc1 {lslow}")
    a(f"{lok}:")
    for j in range(2):
        t = AV_S + 16 * j
        a(f"ds_read_b128 {vr(t,4)}, v10 offset:{2*j*KSLOT}")
        a(f"ds_read_b128 {vr(t+4,4)}, v10 offset:{2*j*KSLOT+1024}")
        a(f"ds_read_b32 v{t+8}, v11 offset:{(2*j+1)*KSLOT}")
    a(f"s_lshl_b32 s8, s{S_SL}, 1")
    a("s_add_u32 s8, s8, s18")
    a("s_lshl_b32 s8, s8, 5")
    a("s_add_u32 s8, s8, s20", "st*32 + head")
    a(f"s_lshl_b32 s9, s{S_SL}, 4")
    a(f"s_add_u32 s9, s9, s{S_HP}")
    a("s_lshl_b32 s9, s9, 3")
    a("s_add_u32 s9, s9, s18")
    a("s_lshl_b32 s9, s9, 1")
    a("s_add_u32 s9, s9, s19")
    a("s_lshl_b32 s9, s9, 3")
    a(f"s_add_u32 s9, s9, {WS_FO}")
    a("s_lshl_b32 s8, s8, 11")
    a(f"s_add_u32 s8, s8, {WS_O}")
    a("s_waitcnt lgkmcnt(0)")
    for j in range(2):
        a(f"v_add_f32 v{AV_O+16*j+8}, v{AV_O+16*j+8}, v{AV_S+16*j+8}")
    for j in range(2):
        a(f"v_rcp_f32 v{AV_O+16*j+8}, v{AV_O+16*j+8}")
    for j in range(2):
        for r in range(8):
            a(f"v_add_f32 v{AV_O+16*j+r}, v{AV_O+16*j+r}, v{AV_S+16*j+r}")
    for j in range(2):
        for r in range(8):
            a(f"v_mul_f32 v{AV_O+16*j+r}, v{AV_O+16*j+r}, v{AV_O+16*j+8}")
        for r in range(4):
            a(f"v_cvt_pk_bf16_f32 v{AV_P+4*j+r}, v{AV_O+16*j+2*r}, v{AV_O+16*j+2*r+1}")
        a(f"buffer_store_dwordx4 {vr(AV_P+4*j,4)}, v{AV_KA}, {rs(R_WS)}, s8 offen offset:{j*1024} sc1")
    a(f"v_mov_b32 v10, s{S_TAG}")
    a(f"v_mov_b32 v11, s{S_TAG+1}")
    a("v_mov_b32 v9, 0")
    a("s_mov_b64 exec, 1")
    a("s_waitcnt vmcnt(0)")
    a(f"buffer_store_dwordx2 v[10:11], v9, {rs(R_WS)}, s9 offen sc1")
    a("s_mov_b64 exec, -1")
    stamp(a, 9, True)
    a("s_endpgm")
    a(f"{lw1}:")
    kv_wait("s27", "0")
    a(f"s_branch {lw1b}")
    a(f"{lchk}:")
    a("s_waitcnt vmcnt(0)")
    flag_check(a, 8, "s23", "s23", S_LTAG)
    a(f"s_cbranch_scc1 {lback}")
    kv_wait("s23", "s23")
    a(f"s_branch {lback}")
    a(f"{lslow}:")
    a("s_cmp_lg_u32 s24, 0")
    a(f"s_cbranch_scc1 {lok}")
    a("s_mov_b32 s24, 1")
    a("s_mov_b32 s25, 4")
    a(f"s_mov_b32 s{R_KV+2}, 0x20000")
    kv_wait("-1", "-1")
    for i in range(4):
        a(f"v_mov_b32 v{12+i}, 0xff800000")
    a("s_mov_b32 s8, 0")
    lmax = a.label("maxloop")
    a(f"{lmax}:")
    a(f"buffer_load_dwordx4 {vr(AV_K,4)}, v{AV_KA}, {rs(R_KV)}, s8 offen sc1")
    a("s_waitcnt vmcnt(0)")
    for i in range(4):
        a(mfma(AV_C + 16 * i, AV_K, AV_Q + 4 * i, "0"))
    a("s_nop 9")
    for i in range(4):
        for r in range(8):
            a(f"v_max3_f32 v{12+i}, v{AV_C+16*i+2*r}, v{AV_C+16*i+2*r+1}, v{12+i}")
    a("s_add_u32 s8, s8, 2048")
    a("s_cmp_lt_u32 s8, 0x20000")
    a(f"s_cbranch_scc1 {lmax}")
    for r in range(64):
        a(f"v_mov_b32 v{AV_O+r}, 0")
    for r in range(4, 8):
        a(f"v_mov_b32 v{AV_P+r}, 0")
    a(f"s_lshl_b32 {KS}, s{S_SL}, 2")
    a(f"s_add_u32 {KS}, {KS}, s18")
    a(f"s_lshl_b32 {KS}, {KS}, 11")
    for n in range(2):
        d = dma(n)
        a(d[0])
        a("s_nop 0")
        for x in d[1:]:
            a(x)
    a("s_waitcnt vmcnt(0)")
    for x in rd(0):
        a(x)
    a(f"s_branch {lredo}")


class Rot:
    def __init__(self, a, cur, beg, end, stride):
        self.a, self.cur, self.beg, self.end, self.stride = a, cur, beg, end, stride

    def init(self, srot, n):
        a = self.a
        a(f"s_add_u32 s{self.end}, s{self.beg}, {n*self.stride}")
        a(f"s_mul_i32 s{self.cur}, s{srot}, {self.stride}")
        a(f"s_add_u32 s{self.cur}, s{self.cur}, s{self.beg}")

    def adv(self):
        a = self.a
        a(f"s_add_u32 s{self.cur}, s{self.cur}, {self.stride}")
        if self.beg is not None:
            a(f"s_cmp_eq_u32 s{self.cur}, s{self.end}")
            a(f"s_cselect_b32 s{self.cur}, s{self.beg}, s{self.cur}")


def gemm_role(a):
    HW = OPT["hw"]
    NB = 4
    assert HW < NB and HW + 1 <= TR
    a.c("GEMM role")
    stamp(a, 4)
    a.vmem(f"buffer_load_dwordx2 v[{GV_Y+8}:{GV_Y+9}], v{GV_MISC+4}, {rs(R_WS)}, s96 offen sc1", "hpoll")
    a("v_mov_b32 v1, 1")
    M = GV_MISC + 4
    T1 = Rot(a, 25, 26, 27, 16 * 3584)
    T2 = Rot(a, 25, 26, 27, 16 * 4096)
    TO = Rot(a, 31, None, None, 16 * 1024)
    D = Rot(a, 28, 29, 30, 2048)

    assert M_RING - M_RED == 49152 and TR == 6

    class Stream:
        def __init__(self, items, r0):
            self.items = items
            self.issued = 0
            self.r0 = r0

        def off(self, j):
            if self.r0 <= j < self.r0 + 6:
                return (j - self.r0) * 2048
            return 49152 + (j % TR) * 2048

        def upto(self, n):
            while self.issued < min(n, len(self.items)):
                j = self.issued
                rot, rsrc, vreg, rstr = self.items[j]
                a(f"s_add_u32 m0, s18, {self.off(j)}")
                a(f"s_add_u32 s8, s{rot.cur}, {8*rstr - 1024}")
                a.vmem(f"buffer_load_dwordx4 v{vreg}, {rs(rsrc)}, s{rot.cur} offen {NT(1)}lds", f"T{j}")
                a.vmem(f"buffer_load_dwordx4 v{vreg}, {rs(rsrc)}, s8 offen offset:1024 {NT(1)}lds", f"T{j}")
                rot.adv()
                self.issued += 1

    def d_issue(k, da):
        buf = k % NB
        for x in range(2):
            a.vmem(f"buffer_load_dwordx4 {vr(GV_D+8*buf+4*x,4)}, v{da+x}, {rs(R_WS)}, s{D.cur} offen sc1", f"D{k}")
        D.adv()

    def tread(st, j, ta, rd2, dst):
        for x in range(2):
            a.lds(f"ds_read_b64_tr_b16 {vr(dst+4*x,2)}, v{ta+x} offset:{st.off(j)}", f"tr{j}")
            a.lds(f"ds_read_b64_tr_b16 {vr(dst+4*x+2,2)}, v{ta+x} offset:{st.off(j)+rd2}", f"tr{j}")

    def burst(st, n, win):
        while st.issued < n:
            if st.issued - win >= 0:
                a.vm_wait_if(f"T{st.issued - win}")
            st.upto(st.issued + 1)

    def kloop(st, j0, nsteps, t_is_A, ta, rd2, da, cnt):
        pre = st.issued - j0
        hwd = lambda k: OPT["hwd0"] if k + 2 + HW <= pre else OPT["hwd"]
        dn = [0]

        def d_upto(n):
            while dn[0] < min(n, nsteps):
                d_issue(dn[0], da)
                dn[0] += 1
        d_upto(hwd(0))
        a.vm_wait_if(f"T{j0}")
        tread(st, j0, ta, rd2, GV_T)
        if t_is_A:
            assert "kvs" not in a.vm
            flag_set(a, "s84", GV_Y + 10, GV_Y + 12)
        for k in range(nsteps):
            tb, db = GV_T + 8 * (k % 2), GV_D + 8 * (k % NB)

            def mm(x, y):
                if t_is_A:
                    d = GV_ACC + 16 * (2 * x + y)
                    a(mfma(d, tb + 4 * x, db + 4 * y, d))
                else:
                    d = GV_ACC + 16 * (2 * y + x)
                    a(mfma(d, db + 4 * y, tb + 4 * x, d))
            a.vm_wait_if(f"D{k}")
            a.lg_wait(f"tr{j0+k}")
            if k % 4 == 0:
                stamp(a, (16 if t_is_A else 24) + k // 4)
            mm(0, 0)
            if k == 5:
                a("s_mov_b64 exec, 1")
                a.lds(f"ds_add_u32 v{M+3}, v1 offset:{cnt - M_CNT}", "arr")
                a("s_mov_b64 exec, -1")
            d_upto(k + 1 + hwd(k))
            mm(0, 1)
            if k + 1 < nsteps:
                a.vm_wait_if(f"T{j0+k+1}")
                tread(st, j0 + k + 1, ta, rd2, GV_T + 8 * ((k + 1) % 2))
            mm(1, 0)
            st.upto(j0 + k + 2 + HW)
            mm(1, 1)
            if t_is_A and OPT["w2n"] and k >= OPT["w2k0"] and (k - OPT["w2k0"]) % OPT["w2st"] == 0 and (k - OPT["w2k0"]) // OPT["w2st"] < OPT["w2n"]:
                lab = a.label("now2")
                a(f"s_cmp_lg_u32 s33, {(k - OPT['w2k0']) // OPT['w2st']}")
                a(f"s_cbranch_scc1 {lab}")
                for q in range(8):
                    a(f"buffer_load_dwordx4 v[248:251], v175, {rs(R_W2)}, s32 offen")
                    a(f"s_add_u32 s32, s32, {2*4096}")
                a(f"{lab}:")

    def reduce(cnt):
        for v in range(1, 4):
            for q in range(4):
                a.lds(f"ds_write_b128 v{GV_MISC+v}, {vr(GV_ACC+16*v+4*q,4)} offset:{q*1024}", "rw")
        lds_arrive(a, cnt, M, 1)
        lds_wait(a, cnt, 4, M, sleep=False)
        for v in range(3):
            for q in range(4):
                a.lds(f"ds_read_b128 {vr(GV_ACC+16+16*v+4*q,4)}, v{GV_MISC} offset:{v*4096+q*1024}", f"rr{v}")
        for v in range(3):
            a.lg_wait(f"rr{v}")
            for r in range(16):
                a(f"v_add_f32 v{GV_ACC+r}, v{GV_ACC+r}, v{GV_ACC+16+16*v+r}")

    lskip1, lskip2 = a.label("skipg1"), a.label("skipg1e")
    a(f"s_mul_i32 s{T1.beg}, s81, {512*3584}")
    a("s_lshl_b32 s8, s20, 7")
    a(f"s_add_u32 s{T1.beg}, s{T1.beg}, s8")
    T1.init(23, 32)
    st1 = Stream([(T1, R_W1, GV_DMA, 3584)] * 32, 0)
    a(f"s_lshl_b32 s{D.beg}, s19, 18")
    a("s_lshl_b32 s8, s81, 16")
    a(f"s_add_u32 s{D.beg}, s{D.beg}, s8")
    D.init(23, 32)
    a(f"s_lshl_b32 s8, s{S_HP}, 4")
    a(f"s_add_u32 s8, s8, s{S_SL}")
    a("s_lshl_b32 s8, s8, 4")
    a("s_add_u32 s8, s8, s81")
    a("s_lshl_b32 s8, s8, 3")
    a(f"s_add_u32 s8, s8, {WS_FKV}")
    a(f"s_add_u32 s84, s8, {WS_FKVS}")
    a.vm_wait("kvst")
    flag_set(a, "s8", M, M + 2, local=True)
    stamp(a, 5)
    if OPT["w1mode"] == 1:
        a(f"s_lshl_b32 s8, s{S_IDX}, 2")
        a("s_add_u32 s8, s8, s81")
        a(f"s_mul_i32 s8, s8, {16*3584}")
        a("s_add_u32 s8, s8, s90")
        for q in range(8):
            a.vmem(f"buffer_load_dwordx4 v[248:251], v174, {rs(R_W1)}, s8 offen", "warm")
            a(f"s_add_u32 s8, s8, {2*3584}")
    if OPT["gate"]:
        lds_wait(a, M_CNT + 36, 4, M, hint=OPT["gspin"])
    a(f"s_add_u32 s88, s88, {WS_KVB}")
    a(f"s_add_u32 s89, s89, {WS_KVB}")
    XF = PV_XF
    a.vmem(f"buffer_store_dwordx4 {vr(XF,4)}, v170, {rs(R_WS)}, s88 offen sc1", "kvs")
    a.vmem(f"buffer_store_dwordx4 {vr(XF+4,4)}, v170, {rs(R_WS)}, s89 offen sc1", "kvs")
    a.vmem(f"buffer_store_dwordx4 {vr(XF+8,4)}, v172, {rs(R_WS)}, s88 offen offset:1024 sc1", "kvs")
    a.vmem(f"buffer_store_dwordx4 {vr(XF+12,4)}, v172, {rs(R_WS)}, s88 offen offset:1536 sc1", "kvs")
    a(f"s_cmp_ge_u32 s{S_IDX}, 28")
    a(f"s_cbranch_scc1 {lskip1}")
    a("v_lshrrev_b32 v175, 5, v0")
    a(f"v_and_b32 v{M}, 31, v0")
    a(f"v_lshlrev_b32 v{M}, 4, v{M}")
    a(f"v_lshl_add_u32 v175, v175, 12, v{M}")
    a(f"s_lshl_b32 s32, s{S_IDX}, 2")
    a("s_add_u32 s32, s32, s81")
    a("s_lshl_b32 s32, s32, 16")
    a(f"s_lshl_b32 s8, s{S_XCD}, 9")
    a("s_add_u32 s32, s32, s8")
    a(f"s_and_b32 s33, s{S_IDX}, {max(OPT['w2n'],1)-1}")
    lh = a.label("hok")
    a.vm_wait_if("hpoll")
    flag_check(a, GV_Y + 8, "-1", "-1")
    a(f"s_cbranch_scc1 {lh}")
    a(f"v_lshlrev_b32 v{M}, 3, v0")
    vm_keep = list(a.vm)
    flag_wait(a, "s96", M, M + 2, "-1", "-1")
    a.vm = vm_keep
    a(f"{lh}:")
    burst(st1, OPT["g1b"], OPT["pf"])
    a(f"v_mov_b32 v{M+3}, {M_CNT}")
    a(f"s_setprio {OPT['prio_gemm']}")
    stamp(a, 6)
    kloop(st1, 0, 32, True, GV_TA1, 512, GV_DB, M_CNT + 40)
    a("s_setprio 3")
    stamp(a, 7)
    lds_wait(a, M_CNT + 40, 4, M)
    a.c("G1 epilogue")
    reduce(M_CNT + 16)
    c0 = -2.0 * math.sqrt(2.0 / math.pi) * LOG2E
    c1 = c0 * 0.044715
    a(f"s_mov_b32 s8, {f32bits(c1)}")
    a(f"v_mov_b32 v{M}, {f32bits(c0)}")
    TT = GV_ACC + 16
    for r in range(16):
        a(f"v_mul_f32 v{TT+r}, v{GV_ACC+r}, v{GV_ACC+r}")
    for r in range(16):
        a(f"v_fma_f32 v{TT+r}, v{TT+r}, s8, v{M}")
    for r in range(16):
        a(f"v_mul_f32 v{TT+r}, v{TT+r}, v{GV_ACC+r}")
    for r in range(16):
        a(f"v_exp_f32 v{TT+r}, v{TT+r}")
    for r in range(16):
        a(f"v_add_f32 v{TT+r}, 1.0, v{TT+r}")
    for r in range(16):
        a(f"v_rcp_f32 v{TT+r}, v{TT+r}")
    for r in range(16):
        a(f"v_mul_f32 v{TT+r}, v{TT+r}, v{GV_ACC+r}")
    for r in range(8):
        a(f"v_cvt_pk_bf16_f32 v{GV_ACC+r}, v{TT+2*r}, v{TT+2*r+1}")
    a("s_mul_i32 s8, s19, 112")
    a("s_lshl_b32 s9, s20, 2")
    a("s_add_u32 s8, s8, s9")
    a("s_and_b32 s9, s81, 2")
    a("s_add_u32 s8, s8, s9")
    a("s_lshl_b32 s8, s8, 11")
    a(f"s_add_u32 s8, s8, {WS_U}")
    a.vmem(f"buffer_store_dwordx4 {vr(GV_ACC,4)}, v{GV_DB}, {rs(R_WS)}, s8 offen sc1", "ust")
    a.vmem(f"buffer_store_dwordx4 {vr(GV_ACC+4,4)}, v{GV_DB}, {rs(R_WS)}, s8 offen offset:2048 sc1", "ust")
    a("s_lshl_b32 s8, s19, 12")
    a("s_lshl_b32 s9, s20, 7")
    a("s_add_u32 s8, s8, s9")
    a("s_lshl_b32 s9, s81, 3")
    a("s_add_u32 s8, s8, s9")
    a(f"s_add_u32 s8, s8, {WS_FU}")
    a("s_mov_b32 s23, s8")
    a.vm_drain()
    flag_set(a, "s23", M, M + 2)
    stamp(a, 8)
    a(f"s_branch {lskip2}")
    a(f"{lskip1}:")
    if OPT["help"]:
        a("s_waitcnt vmcnt(0)")
        flag_set(a, "s84", GV_Y + 10, GV_Y + 12)
        if OPT["w1mode"] == 0:
            a(f"s_and_b32 s8, s{S_IDX}, 3")
            a("s_lshl_b32 s8, s8, 1")
            a("s_lshl_b32 s9, s81, 9")
            a("s_add_u32 s8, s8, s9")
            a("s_add_u32 s8, s8, 128")
            a("s_mul_i32 s9, s8, 3584")
            a("s_add_u32 s9, s9, s90")
            a("s_mov_b32 s10, 48")
            lh = a.label("help")
            a(f"{lh}:")
            a(f"buffer_load_dwordx4 v[248:251], v174, {rs(R_W1)}, s9 offen")
            a(f"s_add_u32 s9, s9, {8*3584}")
            a(f"s_waitcnt vmcnt({OPT['help']-1})")
            a("s_sub_u32 s10, s10, 1")
            a("s_cmp_lg_u32 s10, 0")
            a(f"s_cbranch_scc1 {lh}")
        stamp(a, 31)
        if OPT["hw2"]:
            a(f"v_lshrrev_b32 v{M}, 5, v0")
            a(f"v_and_b32 v{M+1}, 31, v0")
            a(f"v_lshlrev_b32 v{M+1}, 4, v{M+1}")
            a(f"v_lshl_add_u32 v{M}, v{M}, 12, v{M+1}")
            a(f"s_and_b32 s8, s{S_IDX}, 3")
            a("s_lshl_b32 s8, s8, 2")
            a("s_add_u32 s8, s8, s81", "helper wave 0..15")
            a("s_lshl_b32 s9, s8, 13")
            a(f"s_lshl_b32 s10, s{S_XCD}, 9")
            a("s_add_u32 s9, s9, s10")
            a("s_mov_b32 s10, 56")
            lh = a.label("help")
            a(f"{lh}:")
            a(f"buffer_load_dwordx4 v[248:251], v{M}, {rs(R_W2)}, s9 offen")
            a(f"s_add_u32 s9, s9, {32*4096}")
            a(f"s_waitcnt vmcnt({OPT['help']-1})")
            a("s_sub_u32 s10, s10, 1")
            a("s_cmp_lg_u32 s10, 0")
            a(f"s_cbranch_scc1 {lh}")
        stamp(a, 15)
    a(f"{lskip2}:")
    a.vm = []
    a(f"s_lshl_b32 s{TO.cur}, s81, 17")
    a("s_lshl_b32 s8, s22, 7")
    a(f"s_add_u32 s{TO.cur}, s{TO.cur}, s8")
    st2 = Stream([(TO, R_WO, GV_DMA + 2, 1024)] * 8 + [(T2, R_W2, GV_DMA + 1, 4096)] * 28, 8)
    st2.upto(OPT["pf"])
    a(f"s_mul_i32 s{T2.beg}, s81, {448*4096}")
    a("s_lshl_b32 s8, s21, 7")
    a(f"s_add_u32 s{T2.beg}, s{T2.beg}, s8")
    T2.init(24, 28)
    a(f"s_mul_i32 s{D.beg}, s22, 112")
    a("s_mul_i32 s8, s81, 28")
    a(f"s_add_u32 s{D.beg}, s{D.beg}, s8")
    a(f"s_lshl_b32 s{D.beg}, s{D.beg}, 11")
    a(f"s_add_u32 s{D.beg}, s{D.beg}, {WS_U}")
    D.init(24, 28)
    for j in range(8):
        a.vm_wait_if(f"T{j}")
        tread(st2, j, GV_TA3, 1024, GV_WO + 8 * j)
        a.lg_wait(f"tr{j}")
        st2.upto(j + 1 + OPT["pf"])
    burst(st2, OPT["g2b"], OPT["pf"])
    for r in range(64):
        a(f"v_mov_b32 v{GV_ACC+r}, 0")
    a(f"v_min_u32 v{M}, 27, v0")
    a(f"v_lshrrev_b32 v{M+1}, 2, v{M}")
    a(f"v_and_b32 v{M}, 3, v{M}")
    a(f"v_lshlrev_b32 v{M}, 3, v{M}")
    a(f"v_lshl_add_u32 v{M}, v{M+1}, 7, v{M}")
    a("s_lshl_b32 s9, s22, 12")
    a("s_mul_i32 s8, s81, 896")
    a("s_add_u32 s9, s9, s8")
    a(f"s_add_u32 s9, s9, {WS_FU}")
    flag_wait(a, "s9", M, M + 2, "0x0fffffff", "0")
    stamp(a, 9)
    a(f"v_and_b32 v{M}, 31, v0")
    a(f"v_lshlrev_b32 v{M+1}, 2, v{M}")
    a("s_mov_b32 s23, s91")
    a("s_lshl_b32 s9, s23, 2")
    a(f"s_add_u32 s9, s9, {WS_G}")
    a.vmem(f"buffer_load_dword v252, v{M+1}, {rs(R_WS)}, s9 offen sc1", "g")
    a(f"v_mov_b32 v{M+3}, {M_CNT}")
    a(f"s_setprio {OPT['prio_gemm']}")
    kloop(st2, 8, 28, False, GV_TA2, 1024, GV_DA, M_CNT + 20)
    a("s_setprio 3")
    stamp(a, 10)
    lds_wait(a, M_CNT + 20, 4, M)
    reduce(M_CNT + 24)
    lds_arrive(a, M_CNT + 28, M, 1)
    a("v_lshlrev_b32 v15, 16, v15")
    a(f"v_sub_f32 v{M}, 1.0, v252")
    for r in range(16):
        a(f"v_add_f32 v{GV_ACC+r}, v{GV_ACC+r}, v15")
    for r in range(16):
        a(f"v_mul_f32 v{GV_Y+r}, v{GV_ACC+r}, v{M}")
    stamp(a, 11)
    a("v_and_b32 v15, 31, v0")
    a("v_lshlrev_b32 v15, 10, v15")
    a(f"v_lshrrev_b32 v{M}, 5, v0")
    a(f"v_lshl_add_u32 v15, v{M}, 4, v15")
    a("s_lshl_b32 s23, s23, 10")
    a("s_lshl_b32 s8, s22, 7")
    a("s_add_u32 s23, s23, s8")
    a("s_lshr_b32 s8, s81, 1")
    a("s_lshl_b32 s8, s8, 6")
    a("s_add_u32 s23, s23, s8")
    a("s_lshl_b32 s25, s21, 16")
    a("s_lshl_b32 s8, s81, 14")
    a("s_add_u32 s25, s25, s8")
    a(f"s_add_u32 s25, s25, {WS_O}")
    lds_wait(a, M_CNT + 28, 4, M)
    a(f"v_min_u32 v{M}, 7, v0")
    a(f"v_lshrrev_b32 v{M+1}, 1, v{M}")
    a(f"v_and_b32 v{M}, 1, v{M}")
    a(f"v_lshlrev_b32 v{M}, 3, v{M}")
    a(f"v_lshl_add_u32 v{M}, v{M+1}, 7, v{M}")
    a("s_lshr_b32 s9, s21, 1")
    a("s_lshl_b32 s9, s9, 11")
    a("s_lshl_b32 s8, s81, 9")
    a("s_add_u32 s9, s9, s8")
    a("s_and_b32 s8, s21, 1")
    a("s_lshl_b32 s8, s8, 4")
    a("s_add_u32 s9, s9, s8")
    a(f"s_add_u32 s9, s9, {WS_FO}")
    a("s_mov_b32 s26, 0xff", "heads not yet seen")

    def omm(k):
        a.vm_wait_if(f"O{k}")
        for v in (1, 2, 3, 0):
            x, y = v >> 1, v & 1
            d = GV_ACC + 16 * v
            a(mfma(d, GV_WO + 8 * k + 4 * x, GV_D + 8 * k + 4 * y, "0" if k == 0 else d))
    for k in range(8):
        l1, l2 = a.label("op"), a.label("opok")
        a(f"s_bitcmp0_b32 s26, {k}")
        a(f"s_cbranch_scc1 {l2}")
        a(f"s_mov_b32 s17, {SPIN}")
        a(f"{l1}:")
        a(f"buffer_load_dwordx2 v[{M+2}:{M+3}], v{M}, {rs(R_WS)}, s9 offen sc1")
        a("s_waitcnt vmcnt(0)")
        a(f"v_cmp_ne_u64 vcc, s[{S_TAG}:{S_TAG+1}], v[{M+2}:{M+3}]")
        a("s_mov_b32 s26, vcc_lo")
        a(f"s_bitcmp0_b32 s26, {k}")
        a(f"s_cbranch_scc1 {l2}")
        spin_guard(a, l1)
        a(f"{l2}:")
        if k % 2 == 0 and k:
            a("s_add_u32 s25, s25, 4096")
        for x in range(2):
            a.vmem(f"buffer_load_dwordx4 {vr(GV_D+8*k+4*x,4)}, v{GV_DB+x}, {rs(R_WS)}, s25 offen offset:{(k%2)*2048} sc1", f"O{k}")
        if k >= 3:
            omm(k - 3)
    stamp(a, 12)
    for k in range(5, 8):
        omm(k)
    a("s_nop 8")
    stamp(a, 13)
    reduce(M_CNT + 32)
    for r in range(16):
        a(f"v_fma_f32 v{GV_ACC+r}, v{GV_ACC+r}, v252, v{GV_Y+r}")
    for r in range(8):
        a(f"v_cvt_pk_bf16_f32 v{GV_ACC+16+r}, v{GV_ACC+2*r}, v{GV_ACC+2*r+1}")
    a.vmem(f"buffer_store_dwordx4 {vr(GV_ACC+16,4)}, v15, {rs(R_OUT)}, s23 offen", "ost")
    a.vmem(f"buffer_store_dwordx4 {vr(GV_ACC+20,4)}, v15, {rs(R_OUT)}, s23 offen offset:32", "ost")
    stamp(a, 14, True)


def descriptor(name, vgpr=256):
    return f""".section .rodata,"a"
.p2align 6
.amdhsa_kernel {name}
  .amdhsa_next_free_vgpr {vgpr}
  .amdhsa_next_free_sgpr 102
  .amdhsa_accum_offset {vgpr}
  .amdhsa_group_segment_fixed_size 0
  .amdhsa_kernarg_size 96
  .amdhsa_user_sgpr_count 2
  .amdhsa_user_sgpr_kernarg_segment_ptr 1
  .amdhsa_system_sgpr_workgroup_id_x 1
.end_amdhsa_kernel
"""


def build():
    kn = NAME + "_kernel"
    head = f"""; generated by gen/gen10.py (fused single launch)
; @launch grid=(256,1,1) block=(512,1,1) lds={LDS_TOTAL}
.amdgcn_target "amdgcn-amd-amdhsa--gfx950"
"""
    a = Asm()
    a(".text")
    a(f".globl {kn}")
    a(".p2align 8")
    a(f".type {kn},@function")
    a(f"{kn}:")
    entry(a, "L_exit")
    vm0, lg0 = list(a.vm), list(a.lg)
    a(f"s_cmp_ge_u32 s{S_WAVE}, 4")
    a("s_cbranch_scc1 L_roleb")
    proj(a, 0)
    attention(a)
    a("L_roleb:")
    a.vm, a.lg = vm0, lg0
    a("s_setprio 3")
    proj(a, 1)
    gemm_role(a)
    a("L_exit:")
    a("s_endpgm")
    a("L_code_end:")
    return head + a.text() + descriptor(kn)


if __name__ == "__main__":
    out = sys.argv[1] if len(sys.argv) > 1 else f"cdna_kernels/{NAME}.s"
    for o in sys.argv[2:]:
        if o == "stamps":
            OPT["stamps"] = True
        elif "=" in o:
            k, v = o.split("=")
            OPT[k] = int(v)
    open(out, "w").write(build())
    print("wrote", out)
```

```python
import math
import sys
from asmlib import Asm, vr, sr, f32bits

NAME = "gated_mix__mha_block__mixer_token_mlp__prompt"
OPT = dict(stamps=False, hw=2, prio_att=2, prio_gemm=0, nt=0, early=1, cpf=1, hwd0=3, hwd=3, gspin=24, g2b=18, w2k0=6, w2n=0, w2st=3, hw2=0, pt=1, ptnt=1, w1mode=0, gate=1, warm=-3, pf=4, lnpos=0, xrot=0, la=4, local=1, pf1=3, wo0=4, olag=5, help=7, hgate=1, g1b=8, r1m=0, r1s=4, r2m=1, r2s=14)

WS_H = 0x000000
WS_KV = 0x200000
WS_KVB = 0xE00000 - 0x200000
WS_U = 0x800000
WS_O = 0xA00000
WS_G = 0xC00000
WS_FH = 0xC10000
WS_FKV = 0xC20000
WS_FKVS = 0x8000
WS_FU = 0xC30000
WS_FO = 0xC40000
WS_STAMP = 0xD00000
WS_SIZE = 0x1200000

S_WAVE, S_XCD, S_IDX, S_HP, S_SL = 3, 4, 5, 6, 7
S_TAG = 14
S_LTAG = 76
R_X, R_P, R_WO, R_W1, R_W2, R_WS, R_OUT, R_B1, R_B2, R_GW = 40, 44, 48, 52, 56, 60, 64, 68, 72, 76
R_DBG = 92
R_KV = 48
LOG2E = math.log2(math.e)

NPS = 4
P_XS, P_WS, P_LN = 0, 65536, 114688
M_RED = 0
TR = 6
M_RING = 49152
KVR = 98304
KSLOT = 2080
KR = 6
KPOS = {2: 0, 3: 1, 4: 2, 5: 3, 0: 4, 1: 5}
L_Q = KVR + 6 * 4 * KSLOT
M_CNT = L_Q + 8192
L_K0 = M_CNT + 256
LDS_TOTAL = 163840
assert M_RING + 4 * TR * 2048 <= KVR and L_K0 + 2048 <= LDS_TOTAL and P_LN + 9216 <= KVR + 4 * 4 * KSLOT


def KSO(n):
    return KPOS[n % KR] * 4 * KSLOT


SPIN = 200000


def KVSC():
    return '' if OPT['local'] else 'sc1'


def NT(bit):
    return "nt " if OPT["nt"] & bit else ""


def rs(r):
    return f"s[{r}:{r+3}]"


def stamp(a, idx, final=False):
    if not OPT["stamps"]:
        return
    a("s_memrealtime s[98:99]")
    a("s_memtime s[100:101]")
    if idx == 0:
        a("v_mov_b32 v254, 0")
        a("v_mov_b32 v255, 0")
    a("s_waitcnt lgkmcnt(0)")
    a.lg = []
    a(f"v_writelane_b32 v254, s98, {idx}")
    a(f"v_writelane_b32 v255, s100, {idx}")
    if final:
        a("s_lshl_b32 s97, s2, 3")
        a(f"s_add_u32 s97, s97, s{S_WAVE}")
        a("s_lshl_b32 s97, s97, 9")
        a(f"s_add_u32 s97, s97, {WS_STAMP}")
        a("v_lshlrev_b32 v253, 3, v0")
        a(f"buffer_store_dwordx2 v[254:255], v253, {rs(R_WS)}, s97 offen")


def srd(a, r, ptr, nbytes):
    a(f"s_mov_b32 s{r}, s{ptr}")
    a(f"s_mov_b32 s{r+1}, s{ptr+1}")
    a(f"s_mov_b32 s{r+2}, {nbytes:#x}")
    a(f"s_mov_b32 s{r+3}, 0x00020000")


def mfma(d, A, B, C):
    return f"v_mfma_f32_32x32x16_bf16 {vr(d,16)}, {vr(A,4)}, {vr(B,4)}, {C if isinstance(C,str) else vr(C,16)}"


def spin_guard(a, lab):
    a("s_sub_u32 s17, s17, 1")
    a("s_cmp_lg_u32 s17, 0")
    a(f"s_cbranch_scc1 {lab}")
    a("s_endpgm")


PV_XF, PV_WF, PV_XA, PV_WA, PV_DMA = 112, 128, 160, 164, 166


def p_issue(a, c, par):
    slot = c % NPS
    a("s_and_b32 s8, s85, 7")
    a("s_add_u32 s85, s85, 1")
    a("s_mul_i32 s8, s8, s86")
    if par is None:
        a(f"s_mul_i32 s9, s87, {slot}")
        a("s_add_u32 m0, s83, s9")
    else:
        a(f"s_add_u32 m0, s83, {slot*(16384 if par == 0 else 12288)}")
    a("s_add_u32 s8, s8, s82")
    for q in range(3):
        a.vmem(f"buffer_load_dwordx4 v{PV_DMA+q}, {rs(R_P)}, s8 offen offset:{q*1024} {NT(2)}lds", f"ch{c}")
    if par is None:
        lab = a.label("no4")
        a(f"s_cmp_ge_u32 s{S_WAVE}, 4")
        a(f"s_cbranch_scc1 {lab}")
        a.vmem(f"buffer_load_dwordx4 v{PV_DMA+3}, {rs(R_P)}, s8 offen offset:3072 {NT(2)}lds", f"ch{c}A")
        a(f"{lab}:")
    elif par == 0:
        a.vmem(f"buffer_load_dwordx4 v{PV_DMA+3}, {rs(R_P)}, s8 offen offset:3072 {NT(2)}lds", f"ch{c}")


def entry(a, lexit):
    a("s_cmp_ge_u32 s2, 256")
    a(f"s_cbranch_scc1 {lexit}")
    a("s_load_dwordx16 s[16:31], s[0:1], 0")
    a("s_load_dwordx8 s[32:39], s[0:1], 64")
    a("s_memrealtime s[12:13]")
    a("v_lshrrev_b32 v1, 6, v0")
    a("v_and_b32 v0, 63, v0")
    a(f"v_readfirstlane_b32 s{S_WAVE}, v1")
    a(f"s_and_b32 s{S_XCD}, s2, 7")
    a(f"s_lshr_b32 s{S_IDX}, s2, 3")
    if OPT["local"]:
        a(f"s_and_b32 s9, s{S_IDX}, 1")
        a(f"s_lshl_b32 s8, s{S_XCD}, 1")
        a(f"s_add_u32 s{S_HP}, s8, s9")
        a(f"s_lshr_b32 s{S_SL}, s{S_IDX}, 1")
        a(f"s_mul_i32 s9, s9, {OPT['xrot']}")
        a(f"s_add_u32 s85, s9, s{S_SL}", "chunk cursor (rotation)")
    else:
        a(f"s_and_b32 s8, s{S_XCD}, 3")
        a("s_lshl_b32 s8, s8, 2")
        a(f"s_and_b32 s9, s{S_IDX}, 3")
        a(f"s_add_u32 s{S_HP}, s8, s9")
        a(f"s_lshr_b32 s8, s{S_XCD}, 2")
        a(f"s_lshr_b32 s10, s{S_IDX}, 2")
        a("s_lshl_b32 s11, s10, 1")
        a(f"s_add_u32 s{S_SL}, s8, s11")
        a(f"s_mul_i32 s9, s9, {OPT['xrot']}")
        a("s_add_u32 s85, s9, s10", "chunk cursor (rotation)")
    a(f"s_and_b32 s81, s{S_WAVE}, 3", "t")
    D = PV_DMA
    lb, lj = a.label("eb"), a.label("ej")
    a(f"s_cmp_ge_u32 s{S_WAVE}, 4")
    a(f"s_cbranch_scc1 {lb}")
    a("v_lshrrev_b32 v41, 3, v0")
    a("v_lshlrev_b32 v41, 10, v41")
    a("v_and_b32 v42, 7, v0")
    a("v_lshrrev_b32 v43, 4, v0")
    a("v_xor_b32 v42, v42, v43")
    a(f"v_lshl_add_u32 v{D}, v42, 4, v41")
    a("v_xor_b32 v42, 4, v42")
    a(f"v_lshl_add_u32 v{D+1}, v42, 4, v41")
    a(f"v_add_u32 v{D+2}, {2*7168}, v{D}")
    a(f"v_add_u32 v{D+3}, {3*7168}, v{D+1}")
    a(f"v_add_u32 v{D+1}, {7168}, v{D+1}")
    a(f"s_lshl_b32 s82, s{S_SL}, 17")
    a("s_lshl_b32 s8, s81, 15")
    a("s_add_u32 s82, s82, s8")
    a("s_lshl_b32 s83, s81, 12")
    a("s_mov_b32 s86, 128")
    a("s_mov_b32 s87, 16384")
    a("s_waitcnt lgkmcnt(0)")
    srd(a, R_P, 16, 2048 * 512 * 2)
    a(f"s_branch {lj}")
    a(f"{lb}:")
    a("v_lshrrev_b32 v41, 2, v0")
    a("v_mul_u32_u24 v41, 3072, v41")
    a("v_and_b32 v42, 3, v0")
    a(f"v_lshl_add_u32 v{D}, v42, 4, v41")
    a(f"v_mov_b32 v{D+1}, v{D}")
    a(f"v_mov_b32 v{D+2}, v{D}")
    a(f"v_mov_b32 v{D+3}, v{D}")
    a(f"s_mul_i32 s82, s81, {16*3072}")
    a(f"s_lshl_b32 s8, s{S_HP}, 6")
    a("s_add_u32 s82, s82, s8")
    a("s_mul_i32 s83, s81, 3072")
    a(f"s_add_u32 s83, s83, {P_WS}")
    a(f"s_mov_b32 s86, {64*3072}")
    a("s_mov_b32 s87, 12288")
    a("s_waitcnt lgkmcnt(0)")
    srd(a, R_P, 18, 512 * 1536 * 2)
    a(f"{lj}:")
    stamp(a, 0)
    srd(a, R_X, 16, 2048 * 512 * 2)
    srd(a, R_GW, 32, 512 * 2)
    a(f"s_lshl_b32 s8, s{S_SL}, 7")
    a(f"s_lshl_b32 s9, s{S_HP}, 3")
    a("s_add_u32 s80, s8, s9", "s80 = row0")
    a(f"s_add_u32 s8, s80, s{S_WAVE}")
    a("s_lshl_b32 s8, s8, 10")
    a("v_lshlrev_b32 v1, 4, v0", "lane*16")
    a.vmem(f"buffer_load_dwordx4 v[176:179], v1, {rs(R_X)}, s8 offen", "ln")
    a.vmem(f"buffer_load_dwordx4 v[180:183], v1, {rs(R_GW)}, 0 offen", "ln")
    p_issue(a, 0, None)
    srd(a, R_DBG, 36, 256)
    srd(a, R_WS, 38, WS_SIZE)
    lab = a.label("notag")
    a(f"s_or_b32 s8, s2, s{S_WAVE}")
    a("s_cmp_lg_u32 s8, 0")
    a(f"s_cbranch_scc1 {lab}")
    a("s_or_b32 s8, s12, 1")
    a("v_mov_b32 v44, s8")
    a("v_mov_b32 v45, s13")
    a("v_mov_b32 v46, 0")
    a("s_mov_b64 exec, 1")
    a(f"buffer_store_dwordx2 v[44:45], v46, {rs(R_DBG)}, 0 offen sc1")
    a("s_mov_b64 exec, -1")
    a(f"{lab}:")
    if OPT["cpf"]:
        lab = a.label("nocpf")
        a(f"s_cmp_lt_u32 s{S_WAVE}, 6")
        a(f"s_cbranch_scc1 {lab}")
        a("s_getpc_b64 s[88:89]")
        a("L_pc0:")
        a("s_mov_b32 s90, L_code_end-L_pc0")
        a("s_mov_b32 s91, 0x00020000")
        a(f"s_and_b32 s8, s{S_WAVE}, 1")
        a("s_lshl_b32 s8, s8, 5")
        a(f"s_add_u32 s8, s8, s{S_IDX}")
        a("s_lshl_b32 s8, s8, 10")
        a("buffer_load_dwordx4 v[248:251], v1, s[88:91], s8 offen")
        a(f"{lab}:")
    warm_setup(a)
    a("v_and_b32 v41, 31, v0", "i")
    a("v_lshrrev_b32 v42, 5, v0", "h'")
    a("v_bfe_u32 v43, v0, 1, 3")
    a("v_xor_b32 v44, v42, v43")
    a("v_lshlrev_b32 v45, 7, v41")
    a("s_lshl_b32 s8, s81, 12")
    a("v_add_u32 v45, s8, v45")
    a(f"v_lshl_add_u32 v{PV_XA}, v44, 4, v45")
    for ks in range(1, 4):
        a(f"v_xor_b32 v{PV_XA+ks}, {32*ks}, v{PV_XA}")
    a("v_lshlrev_b32 v44, 9, v42")
    a("v_bfe_u32 v45, v0, 2, 2")
    a("v_lshl_add_u32 v44, v45, 6, v44")
    a("v_bfe_u32 v45, v0, 4, 1")
    a("v_lshl_add_u32 v44, v45, 5, v44")
    a("v_and_b32 v45, 3, v0")
    a("v_lshl_add_u32 v44, v45, 3, v44")
    a(f"v_add_u32 v{PV_WA}, {P_WS}, v44")
    a("v_lshlrev_b32 v41, 2, v0")
    a(f"v_add_u32 v41, {M_CNT}, v41")
    a("v_mov_b32 v42, 0")
    a.lds("ds_write_b32 v41, v42", "cz")
    for r in range(80, 112):
        a(f"v_mov_b32 v{r}, 0")


def wave_reduce_add(a, regs):
    steps = ["row_shr:1 row_mask:0xf bank_mask:0xf bound_ctrl:0",
             "row_shr:2 row_mask:0xf bank_mask:0xf bound_ctrl:0",
             "row_shr:4 row_mask:0xf bank_mask:0xf bound_ctrl:0",
             "row_shr:8 row_mask:0xf bank_mask:0xf bound_ctrl:0",
             "row_bcast:15 row_mask:0xa bank_mask:0xf",
             "row_bcast:31 row_mask:0xc bank_mask:0xf"]
    for st in steps:
        a("s_nop 1" if len(regs) == 1 else "s_nop 0")
        for r in regs:
            a(f"v_add_f32_dpp v{r}, v{r}, v{r} {st}")
    a("s_nop 1")


def ln_compute(a):
    a.c("LN compute")
    a.vm_wait_if("ln")
    for i in range(4):
        a(f"v_lshlrev_b32 v{184+2*i}, 16, v{176+i}")
        a(f"v_and_b32 v{185+2*i}, 0xffff0000, v{176+i}")
        a(f"v_lshlrev_b32 v{192+2*i}, 16, v{180+i}")
        a(f"v_and_b32 v{193+2*i}, 0xffff0000, v{180+i}")
    a("v_add_f32 v200, v184, v185")
    a("v_mul_f32 v201, v184, v192")
    for i in range(1, 8):
        if i >= 2:
            a(f"v_add_f32 v200, v200, v{184+i}")
        a(f"v_fmac_f32 v201, v{184+i}, v{192+i}")
    a("s_nop 0")
    wave_reduce_add(a, [200, 201])
    a("v_readlane_b32 s8, v200, 63")
    a("v_readlane_b32 s9, v201, 63")
    a(f"v_mov_b32 v202, {f32bits(1.0/512)}")
    a(f"v_mov_b32 v214, {f32bits(-LOG2E)}")
    a("v_mul_f32 v202, s8, v202", "mean")
    a("v_mul_f32 v214, s9, v214")
    for i in range(8):
        a(f"v_sub_f32 v{184+i}, v{184+i}, v202")
    a("v_exp_f32 v214, v214")
    a("v_mul_f32 v200, v184, v184")
    for i in range(1, 8):
        a(f"v_fmac_f32 v200, v{184+i}, v{184+i}")
    wave_reduce_add(a, [200])
    a("v_readlane_b32 s8, v200, 63")
    a("v_add_f32 v214, 1.0, v214")
    a(f"v_mov_b32 v202, {f32bits(1.0/512)}")
    a(f"v_mov_b32 v203, {f32bits(1e-5)}")
    a("v_fma_f32 v202, s8, v202, v203", "var + eps")
    a("v_rsq_f32 v202, v202")
    a("v_rcp_f32 v214, v214", "g")
    for i in range(8):
        a(f"v_mul_f32 v{184+i}, v{184+i}, v202")
    for i in range(4):
        a(f"v_cvt_pk_bf16_f32 v{192+i}, v{184+2*i}, v{185+2*i}")
    a("v_mul_u32_u24 v204, 144, v0")
    a(f"s_lshl_b32 s8, s{S_WAVE}, 1")
    a(f"s_add_u32 s8, s8, {P_LN}")
    a("v_add_u32 v204, s8, v204")
    for i in range(4):
        a.lds(f"ds_write_b16 v204, v{192+i} offset:{32*i}", "lnw")
        a.lds(f"ds_write_b16_d16_hi v204, v{192+i} offset:{32*i+16}", "lnw")
    a("v_bfe_u32 v205, v0, 2, 1", "b2")
    a("v_bfe_u32 v206, v0, 3, 1", "b3")
    a("v_lshrrev_b32 v207, 4, v0")
    a("v_lshl_add_u32 v207, v207, 1, v205", "d>>3 (local) = (l>>4)*2 + b2")
    a("v_mul_u32_u24 v204, 144, v207")
    a("v_and_b32 v207, 3, v0")
    a("v_lshl_add_u32 v207, v206, 2, v207", "d&7 = b3*4 + (l&3)")
    a("v_lshl_add_u32 v204, v207, 4, v204")
    a(f"s_mul_i32 s8, s{S_WAVE}, {8*144}")
    a(f"s_add_u32 s8, s8, {P_LN}")
    a("v_add_u32 v204, s8, v204")
    a("v_lshrrev_b32 v205, 5, v0")
    a("v_lshlrev_b32 v205, 10, v205")
    a("v_and_b32 v210, 31, v0")
    a("v_lshl_add_u32 v205, v210, 4, v205")
    a(f"s_lshl_b32 s10, s{S_WAVE}, 18")
    a("s_lshr_b32 s9, s80, 4")
    a("s_lshl_b32 s9, s9, 11")
    a("s_add_u32 s10, s10, s9")
    a("s_and_b32 s9, s80, 8")
    a("s_lshl_b32 s9, s9, 6")
    a("s_add_u32 s10, s10, s9", "h store soffset")
    a(f"s_add_u32 s11, s80, s{S_WAVE}")
    a("s_lshl_b32 s11, s11, 2")
    a(f"s_add_u32 s11, s11, {WS_G}", "g store soffset")
    a("v_mov_b32 v210, 0")


def ln_store(a):
    a.c("LN store")
    a.lds("ds_read_b128 v[206:209], v204", "lnr")
    a.lg_wait("lnr")
    a.vmem(f"buffer_store_dwordx4 v[206:209], v205, {rs(R_WS)}, s10 offen sc1", "hst")
    a("s_mov_b64 exec, 1")
    a.vmem(f"buffer_store_dword v214, v210, {rs(R_WS)}, s11 offen sc1", "hst")
    a("s_mov_b64 exec, -1")
    a.vmem(f"buffer_load_dwordx2 v[216:217], v210, {rs(R_DBG)}, 0 offen sc1", "tag")


def tag_get(a):
    l1, l2 = a.label("tagl"), a.label("tagok")
    a(f"s_mov_b32 s17, {SPIN}")
    a(f"{l1}:")
    a(f"v_readfirstlane_b32 s{S_TAG}, v216")
    a(f"v_readfirstlane_b32 s{S_TAG+1}, v217")
    a(f"s_cmp_lg_u32 s{S_TAG}, 0")
    a(f"s_cbranch_scc1 {l2}")
    a(f"buffer_load_dwordx2 v[216:217], v210, {rs(R_DBG)}, 0 offen sc1")
    a("s_waitcnt vmcnt(0)")
    spin_guard(a, l1)
    a(f"{l2}:")
    a("s_getreg_b32 s8, hwreg(HW_REG_XCC_ID)")
    a("s_and_b32 s8, s8, 15")
    a("s_add_u32 s8, s8, 1")
    a("s_lshl_b32 s8, s8, 24") if OPT["local"] else a("s_mov_b32 s8, 0")
    a(f"s_mov_b32 s{S_LTAG}, s{S_TAG}")
    a(f"s_xor_b32 s{S_LTAG+1}, s{S_TAG+1}, s8", "tag valid only between workgroups of this XCD")


def flag_set(a, soff, vz, vt, local=False):
    tg = S_LTAG if local else S_TAG
    a(f"v_mov_b32 v{vt}, s{tg}")
    a(f"v_mov_b32 v{vt+1}, s{tg+1}")
    a(f"v_mov_b32 v{vz}, 0")
    a("s_mov_b64 exec, 1")
    a.vmem(f"buffer_store_dwordx2 v[{vt}:{vt+1}], v{vz}, {rs(R_WS)}, {soff} offen {'' if (local and OPT['local']) else 'sc1'}", "flag")
    a("s_mov_b64 exec, -1")


def flag_check(a, vt, mask_lo, mask_hi, tg=None):
    tg = S_TAG if tg is None else tg
    a(f"v_cmp_ne_u64 vcc, s[{tg}:{tg+1}], v[{vt}:{vt+1}]")
    a(f"s_and_b32 s10, vcc_lo, {mask_lo}")
    a(f"s_and_b32 s11, vcc_hi, {mask_hi}")
    a("s_or_b32 s10, s10, s11")
    a("s_cmp_eq_u32 s10, 0")


def flag_wait(a, soff, vaddr, vt, mask_lo, mask_hi, sleep=2):
    l1, l2 = a.label("poll"), a.label("pollok")
    a(f"s_mov_b32 s17, {SPIN}")
    a(f"{l1}:")
    a(f"buffer_load_dwordx2 v[{vt}:{vt+1}], v{vaddr}, {rs(R_WS)}, {soff} offen sc1")
    a("s_waitcnt vmcnt(0)")
    a.vm = []
    flag_check(a, vt, mask_lo, mask_hi)
    a(f"s_cbranch_scc1 {l2}")
    a(f"s_sleep {sleep}")
    spin_guard(a, l1)
    a(f"{l2}:")


def lds_arrive(a, cnt_off, vt, vone):
    a.lg_drain()
    a(f"v_mov_b32 v{vt}, {cnt_off}")
    a("s_mov_b64 exec, 1")
    a(f"ds_add_u32 v{vt}, v{vone}")
    a("s_mov_b64 exec, -1")


def lds_wait(a, cnt_off, target, vt, sleep=True, hint=0):
    lab, lab2 = a.label("sy"), a.label("syd")
    a(f"v_mov_b32 v{vt}, {cnt_off}")
    a(f"s_mov_b32 s17, {hint if hint else SPIN*8}")
    a(f"{lab}:")
    a(f"ds_read_b32 v{vt+1}, v{vt}")
    a("s_waitcnt lgkmcnt(0)")
    a.lg = []
    a(f"v_readfirstlane_b32 s8, v{vt+1}")
    a(f"s_cmp_ge_u32 s8, {target}")
    a(f"s_cbranch_scc1 {lab2}")
    if sleep:
        a("s_sleep 1")
    if hint:
        a("s_sub_u32 s17, s17, 1")
        a("s_cmp_lg_u32 s17, 0")
        a(f"s_cbranch_scc1 {lab}")
    else:
        spin_guard(a, lab)
    a(f"{lab2}:")


AV_Q, AV_O, AV_C, AV_S, AV_P, AV_K, AV_V = 16, 32, 96, 160, 192, 200, 208
AV_KA, AV_KR, AV_V0, AV_V1, AV_QA, AV_FA = 2, 3, 4, 5, 6, 7
GV_ACC, GV_D, GV_WO, GV_T, GV_Y, GV_MISC = 16, 80, 144, 208, 224, 240
GV_DMA, GV_TA1, GV_TA2, GV_TA3, GV_DB, GV_DA = 2, 5, 7, 9, 11, 13


def att_setup(a):
    a.c("attention setup")
    a(f"s_and_b32 s18, s{S_WAVE}, 1", "kh")
    a(f"s_lshr_b32 s19, s{S_WAVE}, 1", "e")
    a(f"s_lshl_b32 s20, s{S_HP}, 1")
    a("s_add_u32 s20, s20, s19", "head")
    a("s_lshl_b32 s8, s20, 17")
    a(f"s_add_u32 s8, s8, {WS_KV}")
    a(f"s_add_u32 s{R_KV}, s38, s8")
    a(f"s_addc_u32 s{R_KV+1}, s39, 0")
    a(f"s_mov_b32 s{R_KV+2}, 0x20000")
    a(f"s_mov_b32 s{R_KV+3}, 0x00020000")
    a(f"s_add_u32 s30, s{R_KV}, {WS_KVB}")
    a(f"s_addc_u32 s31, s{R_KV+1}, 0")
    a(f"s_mul_i32 s21, s{S_WAVE}, {KSLOT}")
    a(f"s_add_u32 s21, s21, {KVR}", "ring base")
    a(f"v_lshlrev_b32 v{AV_KA}, 4, v0")
    a(f"v_add_u32 v{AV_KR}, s21, v{AV_KA}")
    a("v_lshrrev_b32 v8, 5, v0")
    a("v_lshlrev_b32 v8, 8, v8")
    a("v_and_b32 v9, 15, v0")
    a("v_lshl_add_u32 v8, v9, 4, v8")
    a("v_add_u32 v8, 1024, v8")
    a("v_add_u32 v9, 512, v8")
    a("v_and_b32 v10, 27, v0")
    a("v_cmp_eq_u32 vcc, 16, v10")
    a("v_mov_b32 v11, 2064")
    a("v_mov_b32 v12, 2048")
    a("v_cndmask_b32 v11, v11, v12, vcc")
    a("v_and_b32 v10, 16, v0")
    a("v_cmp_eq_u32 vcc, 0, v10")
    a("s_lshl_b32 s8, s19, 12")
    a(f"s_add_u32 s8, s8, {L_Q}")
    a("v_cndmask_b32 v8, v11, v8, vcc")
    a("v_cndmask_b32 v9, v11, v9, vcc")
    a(f"v_add_u32 v{AV_V0}, s21, v8")
    a(f"v_add_u32 v{AV_V1}, s21, v9")
    a(f"v_add_u32 v{AV_QA}, s8, v{AV_KA}")
    a(f"s_lshl_b32 s8, s{S_SL}, 2")
    a("s_add_u32 s8, s8, 4")
    a(f"v_add_u32 v{AV_FA}, s8, v0")
    a(f"v_and_b32 v{AV_FA}, 63, v{AV_FA}")
    a(f"v_lshrrev_b32 v8, 2, v{AV_FA}")
    a(f"v_and_b32 v{AV_FA}, 3, v{AV_FA}")
    a(f"v_lshlrev_b32 v{AV_FA}, 3, v{AV_FA}")
    a(f"v_lshl_add_u32 v{AV_FA}, v8, 7, v{AV_FA}", "lane l polls tile (l + 4sl + 4) & 63")
    a("s_lshl_b32 s27, 0x555, s18", "flags of the first 6 remote tiles")
    a("s_lshl_b32 s8, s19, 10")
    a(f"s_add_u32 s8, s8, {L_K0}")
    a(f"v_add_u32 v1, s8, v{AV_KA}")
    a("v_lshrrev_b32 v8, 3, v0")
    a("v_min_u32 v8, 5, v8")
    a(f"v_mul_u32_u24 v8, {4*KSLOT}, v8")
    a("v_and_b32 v9, 7, v0")
    a("v_lshl_add_u32 v8, v9, 2, v8")
    a("v_cmp_gt_u32 vcc, 4, v9")
    a("v_add_u32 v230, s21, v8")
    a("v_mov_b32 v10, 0x3f803f80")
    a("v_cndmask_b32 v231, 0, v10, vcc")
    a(f"s_lshl_b32 s8, s{S_SL}, 1")
    a("s_add_u32 s8, s8, s18")
    a("s_lshl_b32 s9, s8, 8")
    a(f"s_add_u32 s32, s9, {WS_G}")
    a("s_lshl_b32 s9, s8, 6")
    a(f"s_add_u32 s33, s9, {WS_FH}")
    a("v_and_b32 v232, 31, v0")
    a("v_lshlrev_b32 v232, 2, v232")
    a("v_and_b32 v233, 7, v0")
    a("v_lshlrev_b32 v233, 3, v233")
    a(f"s_lshl_b32 s22, s{S_HP}, 11")
    a(f"s_add_u32 s22, s22, {WS_FKV}", "flag base")
    a(f"s_add_u32 s28, s22, {WS_FKVS}")
    a("s_lshl_b32 s23, 0x55555555, s18", "flag mask")
    a("s_mov_b32 s24, 0", "0: fast pass, 1: exact-max pass")
    a("s_mov_b32 s25, 2", "pair sync target")


def gemm_setup(a):
    a.c("GEMM setup")
    srd(a, R_WO, 20, 512 * 512 * 2)
    srd(a, R_B1, 26, 1792 * 2)
    srd(a, R_W2, 28, 1792 * 2048 * 2)
    srd(a, R_B2, 30, 2048 * 2)
    srd(a, R_OUT, 34, 2048 * 512 * 2)
    a("v_lshrrev_b32 v16, 3, v0")
    a("v_and_b32 v17, 7, v0")
    a("v_bfe_u32 v18, v0, 4, 1")
    a("v_lshlrev_b32 v18, 2, v18")
    a("v_xor_b32 v17, v17, v18")
    a("v_lshlrev_b32 v17, 4, v17")
    a(f"v_mul_u32_u24 v{GV_DMA}, 3584, v16")
    a(f"v_add_u32 v{GV_DMA}, v{GV_DMA}, v17")
    a(f"v_lshl_add_u32 v{GV_DMA+1}, v16, 12, v17")
    a(f"v_lshl_add_u32 v{GV_DMA+2}, v16, 10, v17")
    a(f"s_mul_i32 s18, s81, {TR*2048}")
    a(f"s_add_u32 s18, s18, {M_RED}", "T slot base (own reduction area; ring at +49152)")
    a("v_bfe_u32 v16, v0, 2, 2")
    a("v_lshlrev_b32 v17, 7, v16")
    a("v_bfe_u32 v16, v0, 3, 1")
    a("v_lshl_add_u32 v17, v16, 6, v17")
    a("v_bfe_u32 v16, v0, 4, 1")
    a("v_lshl_add_u32 v17, v16, 5, v17")
    a("v_add_u32 v17, s18, v17", "rows r, half swap, colhalf")
    a("v_and_b32 v16, 3, v0")
    a("v_lshl_add_u32 v18, v16, 3, v17", "+8c")
    a("v_and_b32 v16, 1, v0")
    a("v_lshl_add_u32 v19, v16, 4, v17")
    a("v_bfe_u32 v16, v0, 1, 1")
    a("v_lshl_add_u32 v19, v16, 3, v19", "+16(c&1)+8(c>>1): column permutation swap23")
    a("v_lshrrev_b32 v16, 5, v0")
    a("s_lshr_b32 s8, s81, 1", "a_w")
    a("s_and_b32 s9, s81, 1", "b_w")
    a("s_lshl_b32 s19, s8, 6")
    a("s_lshl_b32 s20, s9, 6")
    a(f"v_lshl_add_u32 v{GV_TA1}, v16, 10, v18")
    a(f"v_xor_b32 v{GV_TA1}, s19, v{GV_TA1}")
    a(f"v_xor_b32 v{GV_TA1+1}, 64, v{GV_TA1}")
    a(f"v_lshl_add_u32 v{GV_TA2}, v16, 9, v18")
    a(f"v_xor_b32 v{GV_TA2}, s20, v{GV_TA2}")
    a(f"v_xor_b32 v{GV_TA2+1}, 64, v{GV_TA2}")
    a(f"v_lshl_add_u32 v{GV_TA3}, v16, 9, v19")
    a(f"v_xor_b32 v{GV_TA3}, s19, v{GV_TA3}")
    a(f"v_xor_b32 v{GV_TA3+1}, 64, v{GV_TA3}")
    a("s_lshl_b32 s19, s8, 10")
    a("s_lshl_b32 s20, s9, 10")
    a("v_lshlrev_b32 v16, 4, v0")
    a(f"v_add_u32 v{GV_DB}, s20, v16")
    a(f"v_xor_b32 v{GV_DB+1}, 1024, v{GV_DB}")
    a(f"v_add_u32 v{GV_DA}, s19, v16")
    a(f"v_xor_b32 v{GV_DA+1}, 1024, v{GV_DA}")
    for v in range(1, 4):
        a(f"s_xor_b32 s8, s81, {v}")
        a("s_mul_i32 s8, s8, 12288")
        a(f"s_add_u32 s8, s8, {M_RED + (v-1)*4096}")
        a(f"v_add_u32 v{GV_MISC+v}, s8, v16")
    a("s_mul_i32 s8, s81, 12288")
    a(f"s_add_u32 s8, s8, {M_RED}")
    a(f"v_add_u32 v{GV_MISC}, s8, v16")
    a(f"s_lshr_b32 s8, s{S_XCD}, 1")
    a("s_mul_i32 s8, s8, 7", "7p")
    a(f"s_and_b32 s9, s{S_XCD}, 1")
    a("s_lshl_b32 s9, s9, 2", "4*odd")
    a(f"s_lshr_b32 s23, s{S_IDX}, 3", "j")
    a("s_add_u32 s20, s8, s9")
    a("s_add_u32 s20, s20, s23", "ft (j<3)")
    a("s_add_u32 s8, s8, 3")
    a(f"s_and_b32 s19, s{S_IDX}, 7")
    a(f"s_and_b32 s21, s{S_IDX}, 3")
    a("s_add_u32 s9, s9, s21")
    a("s_cmp_eq_u32 s23, 3")
    a("s_cselect_b32 s20, s8, s20", "ft")
    a("s_cselect_b32 s19, s9, s19", "dt (G1)")
    a(f"s_and_b32 s23, s23, {OPT['r1m']}")
    a(f"s_lshl_b32 s23, s23, {OPT['r1s']}", "rot G1 (h sharers)")
    a(f"s_lshr_b32 s22, s{S_IDX}, 2", "dt (G2)")
    a(f"s_and_b32 s9, s21, {OPT['r2m']}")
    a(f"s_mul_i32 s9, s9, {OPT['r2s']}")
    a(f"s_lshl_b32 s8, s{S_XCD}, 2")
    a("s_add_u32 s21, s8, s21", "st")
    a("s_mul_i32 s8, s22, 7")
    a("s_lshr_b32 s8, s8, 1")
    a("s_add_u32 s24, s9, s8")
    a("s_sub_u32 s9, s24, 28")
    a("s_cmp_ge_u32 s24, 28")
    a("s_cselect_b32 s24, s9, s24", "rot G2")


def bias_loads(a):
    a("v_lshrrev_b32 v64, 5, v0")
    a("v_lshlrev_b32 v64, 3, v64")
    a("s_lshl_b32 s8, s20, 7")
    a("s_lshr_b32 s9, s81, 1")
    a("s_lshl_b32 s9, s9, 6")
    a("s_add_u32 s8, s8, s9")
    for g in range(4):
        a.vmem(f"buffer_load_dwordx2 {vr(GV_Y+2*g,2)}, v64, {rs(R_B1)}, s8 offen offset:{16*g}", "b1")
    a("v_and_b32 v65, 31, v0")
    a("v_lshlrev_b32 v65, 1, v65")
    a("s_lshl_b32 s8, s21, 6")
    a("s_and_b32 s9, s81, 1")
    a("s_lshl_b32 s9, s9, 5")
    a("s_add_u32 s91, s8, s9", "first row of own output sub-tile")
    a("s_lshl_b32 s8, s91, 1")
    a.vmem(f"buffer_load_ushort v15, v65, {rs(R_B2)}, s8 offen", "b2")
    a(f"v_lshlrev_b32 v{GV_MISC+4}, 3, v0")
    a("s_lshl_b32 s96, s81, 9")
    a(f"s_add_u32 s96, s96, {WS_FH}")


def warm_setup(a):
    srd(a, R_W1, 24, 2048 * 1792 * 2)
    a("v_lshrrev_b32 v174, 5, v0")
    a("v_mul_u32_u24 v174, 3584, v174")
    a("v_and_b32 v175, 31, v0")
    a("v_lshl_add_u32 v174, v175, 4, v174")
    a(f"s_lshr_b32 s8, s{S_XCD}, 1")
    a("s_mul_i32 s8, s8, 7")
    a(f"s_and_b32 s9, s{S_XCD}, 1")
    a("s_mul_i32 s9, s9, 3")
    a("s_add_u32 s8, s8, s9")
    a("s_lshl_b32 s90, s8, 7")
    a(f"s_lshl_b32 s8, s{S_IDX}, 3")
    a(f"s_add_u32 s8, s8, s{S_WAVE}")
    a("s_lshr_b32 s9, s8, 6")
    a("s_lshl_b32 s9, s9, 9")
    a("s_and_b32 s8, s8, 63")
    a("s_lshl_b32 s8, s8, 1")
    a("s_add_u32 s8, s8, s9")
    a("s_mul_i32 s8, s8, 3584")
    a("s_add_u32 s8, s8, s90")
    a("s_mov_b32 s87, s8")


def epi_addr(a, par):
    a(f"s_lshl_b32 s84, s{S_SL}, 2")
    a("s_add_u32 s84, s84, s81", "tile")
    a("v_lshlrev_b32 v170, 4, v0")
    if par == 0:
        a("s_lshl_b32 s8, s81, 10")
        a(f"s_add_u32 s8, s8, {L_Q}")
        a("v_add_u32 v171, s8, v170")
    else:
        a(f"s_lshl_b32 s88, s{S_HP}, 18")
        a("s_lshl_b32 s9, s84, 11")
        a("s_add_u32 s88, s88, s9")
        a(f"s_add_u32 s88, s88, {WS_KV}")
        a("s_add_u32 s89, s88, 0x20000")
        a("v_lshrrev_b32 v171, 5, v0")
        a("v_lshlrev_b32 v171, 8, v171")
        a("v_and_b32 v172, 15, v0")
        a("v_lshl_add_u32 v171, v172, 4, v171", "h'*256 + i*16")
        a("v_bfe_u32 v173, v0, 4, 1", "e")
        a("v_lshl_add_u32 v172, v173, 17, v171", "global V voffset")
        a("s_and_b32 s8, s81, 1")
        a(f"s_mul_i32 s8, s8, {KSLOT}")
        a("s_lshr_b32 s9, s81, 1")
        a(f"s_mul_i32 s9, s9, {4*KSLOT}")
        a("s_add_u32 s8, s8, s9")
        a(f"s_add_u32 s8, s8, {KVR + KSO(0)}")
        a(f"v_mul_u32_u24 v173, {2*KSLOT}, v173")
        a("v_add3_u32 v173, v173, v171, s8", "LDS V addr")
        a("v_add_u32 v171, s8, v170", "LDS K addr")


def proj(a, par):
    a.c(f"projection role {par}")
    ACC = 96 if par == 0 else 80
    XF, WF, XA, WA = PV_XF, PV_WF, PV_XA, PV_WA
    vm = []
    for t in a.vm:
        if t.endswith("A"):
            if par == 0:
                vm.append(t[:-1])
        else:
            vm.append(t)
    a.vm = vm
    att_setup(a) if par == 0 else gemm_setup(a)
    epi_addr(a, par)

    def pretouch():
        nt = "nt" if OPT["ptnt"] else ""
        if not OPT["local"]:
            pass
        elif par == 1:
            a.vmem(f"buffer_load_dwordx4 v[248:251], v170, {rs(R_WS)}, s88 offen {nt}", "pt")
            a.vmem(f"buffer_load_dwordx4 v[248:251], v170, {rs(R_WS)}, s89 offen {nt}", "pt")
        else:
            a(f"s_lshl_b32 s8, s{S_HP}, 18")
            a("s_lshl_b32 s9, s84, 11")
            a("s_add_u32 s8, s8, s9")
            a(f"s_add_u32 s8, s8, {WS_KV}")
            a("s_add_u32 s9, s8, 0x20000")
            a.vmem(f"buffer_load_dwordx4 v[248:251], v170, {rs(R_WS)}, s8 offen offset:1024 {nt}", "pt")
            a.vmem(f"buffer_load_dwordx4 v[248:251], v170, {rs(R_WS)}, s9 offen offset:1024 {nt}", "pt")
            a.vmem(f"buffer_load_dwordx2 v[248:249], v{AV_FA}, {rs(R_WS)}, s22 offen {nt}", "pt")
        if OPT["w1mode"] == 0:
            a.vmem(f"buffer_load_dwordx4 v[248:251], v174, {rs(R_W1)}, s87 offen", "warm")
    segs = [0] if par == 0 else [1, 2]
    SETS = [(XF, WF), (16, 32)]

    def reads(c):
        slot = c % NPS
        xf, wf = SETS[c % 2]
        L = []
        for ks in range(4):
            L.append(f"ds_read_b128 {vr(xf+4*ks,4)}, v{XA+ks} offset:{P_XS + slot*16384}")
            for si, seg in enumerate(segs):
                off = slot * 12288 + ks * 3072 + seg * 1024
                w = wf + 8 * ks + 4 * si
                L.append(f"ds_read_b64_tr_b16 {vr(w,2)}, v{WA} offset:{off}")
                L.append(f"ds_read_b64_tr_b16 {vr(w+2,2)}, v{WA} offset:{off+256}")
        return L

    def mms(c):
        xf, wf = SETS[c % 2]
        L = []
        for ks in range(4):
            L.append(mfma(ACC, wf + 8 * ks, xf + 4 * ks, ACC))
            if par == 1:
                L.append(mfma(ACC + 16, xf + 4 * ks, wf + 8 * ks + 4, ACC + 16))
        return L

    p_issue(a, 1, par)
    pretouch()
    if OPT["lnpos"] == 0:
        ln_compute(a)
    LA = OPT["la"]
    for c in range(2, LA - 1):
        p_issue(a, c, par)
    stamp(a, 2)
    a.vm_wait("ch0")
    a("s_barrier")
    stamp(a, 32)
    for x in reads(0):
        a.lds(x, "r")
    p_issue(a, LA - 1, par)
    if OPT["lnpos"] == 1:
        ln_compute(a)
    LNS = 0
    for c in range(8):
        a.c(f"chunk {c}")
        a.lg_drain()
        R, Mm = [], mms(c)
        a(Mm.pop(0))
        if c + 1 < 8:
            a.vm_wait(f"ch{c+1}")
            a("s_barrier")
            stamp(a, 33 + c)
            R = reads(c + 1)
        per = 4
        while Mm or R:
            for x in R[:per]:
                a.lds(x, "r")
            R = R[per:]
            if Mm:
                a(Mm.pop(0))
        if c == LNS:
            ln_store(a)
        if c + LA < 8:
            p_issue(a, c + LA, par)
        if c == LNS + LA - 1:
            tag_get(a)
            if par == 1:
                lab = a.label("nofh")
                a("s_cmp_lg_u32 s81, 0")
                a(f"s_cbranch_scc1 {lab}")
                a(f"s_add_u32 s8, s80, {WS_FH}")
                n0 = len(a.vm)
                flag_set(a, "s8", 218, 220)
                a.vm = a.vm[:n0]
                a(f"{lab}:")
        if c == 1 and par == 1:
            bias_loads(a)
    stamp(a, 3)
    a.c("projection epilogue")
    if par == 0:
        a(f"s_mov_b32 s9, {f32bits(0.25*LOG2E)}")
        a("s_nop 10")
        for r in range(16):
            a(f"v_mul_f32 v{ACC+r}, s9, v{ACC+r}")
        for r in range(8):
            a(f"v_cvt_pk_bf16_f32 v{XF+r}, v{ACC+2*r}, v{ACC+2*r+1}")
        a.lds(f"ds_write_b128 v171, {vr(XF,4)}", "qw")
        a.lds(f"ds_write_b128 v171, {vr(XF+4,4)} offset:4096", "qw")
    else:
        a("s_nop 10")
        for r in range(16):
            a(f"v_cvt_pk_bf16_f32 v{XF+r}, v{ACC+2*r}, v{ACC+2*r+1}")
        a.lds(f"ds_write_b128 v171, {vr(XF,4)}", "kw")
        a.lds(f"ds_write_b128 v171, {vr(XF+4,4)} offset:{2*KSLOT}", "kw")
        lab = a.label("nok0")
        a("s_cmp_lg_u32 s81, 0")
        a(f"s_cbranch_scc1 {lab}")
        a(f"ds_write_b128 v171, {vr(XF,4)} offset:{L_K0-KVR-KSO(0)}")
        a(f"ds_write_b128 v171, {vr(XF+4,4)} offset:{L_K0-KVR-KSO(0)+1024}")
        a(f"{lab}:")
        a.lds(f"ds_write_b128 v173, {vr(XF+8,4)} offset:1024", "kw")
        a.lds(f"ds_write_b128 v173, {vr(XF+12,4)} offset:1536", "kw")
        a.vmem(f"buffer_store_dwordx4 {vr(XF,4)}, v170, {rs(R_WS)}, s88 offen {KVSC()}", "kvst")
        a.vmem(f"buffer_store_dwordx4 {vr(XF+4,4)}, v170, {rs(R_WS)}, s89 offen {KVSC()}", "kvst")
        a.vmem(f"buffer_store_dwordx4 {vr(XF+8,4)}, v172, {rs(R_WS)}, s88 offen offset:1024 {KVSC()}", "kvst")
        a.vmem(f"buffer_store_dwordx4 {vr(XF+12,4)}, v172, {rs(R_WS)}, s88 offen offset:1536 {KVSC()}", "kvst")
    a.lg_drain()
    a("s_barrier")


def attn_body(a, u_list, extra):
    kb = lambda n: n % 2
    for (n, i, pn, pi, nn, ni, par) in u_list:
        cur, nxt = AV_S + 16 * par, AV_S + 16 * (1 - par)
        E = lambda r: a(f"v_exp_f32 v{cur+r}, v{cur+r}")
        C = lambda r: a(f"v_cvt_pk_bf16_f32 v{AV_P+r}, v{cur+2*r}, v{cur+2*r+1}")
        E(0)
        E(1)
        if pn is not None:
            a(mfma(AV_O + 16 * pi, AV_V + 8 * kb(pn) + 4, AV_P + 4, AV_O + 16 * pi))
        extra(n, i, 0)
        for r in range(2, 8):
            E(r)
        if nn is not None:
            a(mfma(nxt, AV_K + 4 * kb(nn), AV_Q + 4 * ni, AV_C + 16 * ni))
            extra(n, i, 1)
        else:
            a("s_nop 0")
        for r in range(4):
            C(r)
        for r in range(8, 12):
            E(r)
        a(mfma(AV_O + 16 * i, AV_V + 8 * kb(n), AV_P, "0" if n == 0 else AV_O + 16 * i))
        extra(n, i, 2)
        for r in range(12, 16):
            E(r)
        for r in range(4, 8):
            C(r)


def attention(a):
    a.c("attention role")
    KS = "s12"

    def rd(n):
        so, b = KSO(n), n % 2
        return [f"ds_read_b128 {vr(AV_K+4*b,4)}, v{AV_KR} offset:{so}",
                f"ds_read_b128 {vr(AV_V+8*b,4)}, v{AV_V0} offset:{so}",
                f"ds_read_b128 {vr(AV_V+8*b+4,4)}, v{AV_V1} offset:{so}"]

    def dma(n):
        return [f"s_add_u32 m0, s21, {KSO(n)}",
                f"buffer_load_dwordx4 v{AV_KA}, {rs(R_KV)}, {KS} offen sc1 lds",
                f"buffer_load_dwordx4 v{AV_KA}, {rs(R_KV)}, {KS} offen offset:1024 sc1 lds",
                f"s_add_u32 {KS}, {KS}, 4096",
                f"s_and_b32 {KS}, {KS}, 0x1ffff"]

    def kv_wait(mlo, mhi):
        l1, l2, l3 = a.label("kvp"), a.label("kvok"), a.label("kvs")
        a(f"s_mov_b32 s17, {SPIN}")
        a(f"{l1}:")
        a(f"buffer_load_dwordx2 v[8:9], v{AV_FA}, {rs(R_WS)}, s22 offen sc1")
        a(f"buffer_load_dwordx2 v[10:11], v{AV_FA}, {rs(R_WS)}, s28 offen sc1")
        a("s_waitcnt vmcnt(0)")
        flag_check(a, 8, mlo, mhi, S_LTAG)
        a(f"s_cbranch_scc1 {l2}")
        flag_check(a, 10, mlo, mhi)
        a(f"s_cbranch_scc1 {l3}")
        a("s_sleep 1")
        spin_guard(a, l1)
        a(f"{l3}:")
        a(f"s_mov_b32 s{R_KV}, s30")
        a(f"s_mov_b32 s{R_KV+1}, s31")
        a("s_mov_b32 s22, s28", "from now on only the written-through flags count")
        a(f"s_mov_b32 s{S_LTAG+1}, s{S_TAG+1}")
        a(f"{l2}:")

    a(f"s_setprio {OPT['prio_att']}")
    a("ds_write_b32 v230, v231 offset:2048")
    for i in range(4):
        a(f"ds_read_b128 {vr(AV_Q+4*i,4)}, v{AV_QA} offset:{i*1024}")
    a(f"ds_read_b128 {vr(AV_S,4)}, v1", "K tile 0 of my head")
    stamp(a, 4)
    a.c("max estimate from own key tile 0")
    a("s_waitcnt lgkmcnt(0)")
    for i in range(4):
        a(mfma(AV_C + 16 * i, AV_S, AV_Q + 4 * i, "0"))
    for x in rd(0):
        a(x)
    a("s_nop 5")
    for i in range(4):
        a(f"v_max3_f32 v{12+i}, v{AV_C+16*i}, v{AV_C+16*i+1}, v{AV_C+16*i+2}")
        for r in range(6):
            a(f"v_max3_f32 v{12+i}, v{AV_C+16*i+3+2*r}, v{AV_C+16*i+4+2*r}, v{12+i}")
        a(f"v_max_f32 v{12+i}, v{AV_C+16*i+15}, v{12+i}")
    lredo = a.label("redo")
    a(f"{lredo}:")
    for i in range(4):
        a(f"v_mov_b32 v{8+i}, v{12+i}")
    a("s_nop 1")
    for i in range(4):
        a(f"v_permlane32_swap_b32 v{12+i}, v{8+i}")
    a("s_nop 1")
    for i in range(4):
        a(f"v_max_f32 v{12+i}, v{12+i}, v{8+i}")
    for r in range(16):
        a(f"v_sub_f32 v{AV_C+r}, 0, v12")
    a("s_waitcnt lgkmcnt(0)")
    a(mfma(AV_S, AV_K, AV_Q, AV_C))
    for i in range(1, 4):
        for r in range(16):
            a(f"v_sub_f32 v{AV_C+16*i+r}, 0, v{12+i}")
    stamp(a, 5)
    a.c("phase A: own tiles")
    ul = []
    for u in range(8):
        n, i = u // 4, u % 4
        pn, pi = (None, None) if u == 0 else ((u - 1) // 4, (u - 1) % 4)
        nn, ni = ((u + 1) // 4, (u + 1) % 4) if u < 7 else (None, None)
        ul.append((n, i, pn, pi, nn, ni, u % 2))

    fl = []
    for n_ in range(2, 2 + KR):
        d = dma(n_)
        fl.append([d[0], d[1]] if n_ == 2 else [d[3], d[4], d[0], d[1]])
        fl.append([d[2]])
    lw1, lw1b = a.label("kvw"), a.label("kvwb")

    def extraA(n, i, slot):
        if n == 0 and (i, slot) in ((0, 1), (0, 2), (1, 0)):
            a(rd(1)[[(0, 1), (0, 2), (1, 0)].index((i, slot))])
        if n == 0 and (i, slot) == (1, 1):
            a(f"buffer_load_dwordx2 v[8:9], v{AV_FA}, {rs(R_WS)}, s22 offen sc1")
        if n == 0 and (i, slot) == (1, 2):
            a(f"buffer_load_dwordx2 v[228:229], v233, {rs(R_WS)}, s33 offen sc1")
        if n == 0 and (i, slot) == (3, 0):
            a("s_waitcnt lgkmcnt(0)")
        if n == 0 and (i, slot) == (3, 1):
            a("s_waitcnt vmcnt(0)")
            flag_check(a, 8, "s23", "s23", S_LTAG)
            a("s_cselect_b32 s13, 0, 5", "s13 == s16 -> remaining flags still to be checked")
            a("s_and_b32 s10, vcc_lo, s27")
            a(f"s_cbranch_scc1 {lw1}")
            a(f"{lw1b}:")
        k = None
        if n == 0 and (i, slot) == (3, 2):
            k = 0
        elif n == 1:
            k = 1 + 3 * i + slot - (1 if (i, slot) == (3, 2) else 0)
        if k is not None:
            grp = fl[k]
            if len(grp) > 1:
                for x in grp[:-1]:
                    a(x)
                a("s_nop 0")
            a(grp[-1])
    a(f"s_lshl_b32 {KS}, s{S_SL}, 2")
    a(f"s_add_u32 {KS}, {KS}, s18")
    a(f"s_add_u32 {KS}, {KS}, 4")
    a(f"s_lshl_b32 {KS}, {KS}, 11")
    a(f"s_and_b32 {KS}, {KS}, 0x1ffff")
    a(f"v_mov_b32 v224, {M_CNT+36}")
    a("v_mov_b32 v225, 1")
    attn_body(a, ul, extraA)
    stamp(a, 6)
    a(dma(2)[3])
    a(dma(2)[4])
    lg1 = a.label("gok")
    flag_check(a, 228, "-1", "-1")
    a(f"s_cbranch_scc1 {lg1}")
    flag_wait(a, "s33", 233, 228, "-1", "-1")
    a(f"{lg1}:")
    a(f"buffer_load_dwordx2 v[8:9], v{AV_FA}, {rs(R_WS)}, s22 offen sc1")
    a(f"buffer_load_dword v226, v232, {rs(R_WS)}, s32 offen sc1")
    a(f"buffer_load_dword v227, v232, {rs(R_WS)}, s32 offen offset:128 sc1")
    a("s_mov_b64 exec, 1")
    a("ds_add_u32 v224, v225", "release the GEMM waves")
    a("s_mov_b64 exec, -1")
    a(f"s_waitcnt vmcnt({2*(KR-1)+3})")
    for x in rd(2):
        a(x)
    a("s_mov_b32 s16, 5")
    stamp(a, 7)
    a("s_waitcnt lgkmcnt(0)")
    a(mfma(AV_S, AV_K, AV_Q, AV_C))
    a("s_nop 10")
    lloop = a.label("attn")
    a(".p2align 6")
    a(f"{lloop}:")
    ul = []
    for u in range(24):
        n, i = 2 + u // 4, u % 4
        pn, pi = 2 + (u - 1) // 4, (u - 1) % 4
        nn, ni = 2 + (u + 1) // 4, (u + 1) % 4
        ul.append((n, i, pn, pi, nn, ni, u % 2))

    lchk, lback = a.label("chk"), a.label("chkb")

    def extraL(n, i, slot):
        d, r = dma(n + KR), rd(n + 1)
        sched = {(0, 0): f"s_waitcnt vmcnt({2*(KR-2)})", (0, 1): r[0], (0, 2): r[1], (1, 0): r[2],
                 (1, 1): d[0], (1, 2): d[1], (2, 0): d[2], (2, 1): d[3], (2, 2): d[4],
                 (3, 0): "s_waitcnt lgkmcnt(0)"}
        if n == 2 and (i, slot) == (1, 0):
            a("s_cmp_eq_u32 s16, s13")
        if n == 2 and (i, slot) == (1, 1):
            a(f"s_cbranch_scc1 {lchk}")
            a(f"{lback}:")
        if (i, slot) in sched:
            a(sched[(i, slot)])
        if OPT["stamps"] and n == 2 and (i, slot) == (2, 2):
            a("s_memrealtime s[98:99]")
            a("s_memtime s[100:101]")
        if OPT["stamps"] and n == 2 and (i, slot) == (3, 1):
            a("s_add_u32 m0, s16, 40")
            a("s_nop 0")
            a("v_writelane_b32 v254, s98, m0")
            a("v_writelane_b32 v255, s100, m0")
        if n == 6 and (i, slot) == (3, 1):
            a("s_sub_u32 s16, s16, 1")
        if n == 6 and (i, slot) == (3, 2):
            a("s_cmp_eq_u32 s16, 1")
        if n == 7 and (i, slot) == (0, 0):
            a("s_cselect_b32 s26, 0, 0x20000")
        if n == 7 and (i, slot) == (3, 1):
            a(f"s_mov_b32 s{R_KV+2}, s26", "last iteration: DMA out of range (no traffic)")
        if n == 7 and (i, slot) == (3, 2):
            a("s_cmp_lg_u32 s16, 0")
    attn_body(a, ul, extraL)
    a(f"s_cbranch_scc1 {lloop}")
    a("s_nop 0")
    a(mfma(AV_O + 48, AV_V + 8 + 4, AV_P + 4, AV_O + 48))
    stamp(a, 8)
    a.c("check + combine")
    a("v_lshlrev_b32 v9, 2, v0")
    a("v_add_u32 v9, s21, v9", "own area, lane*4")
    a(f"s_xor_b32 s8, s{S_WAVE}, 1")
    a(f"s_mul_i32 s8, s8, {KSLOT}")
    a(f"s_add_u32 s8, s8, {KVR}")
    a(f"v_add_u32 v10, s8, v{AV_KA}", "partner area")
    a("v_lshlrev_b32 v11, 2, v0")
    a("v_add_u32 v11, s8, v11")
    a("s_waitcnt vmcnt(0)")
    a("s_nop 2")
    a(f"v_add_f32 v8, v{AV_O+8}, v{AV_O+24}")
    a(f"v_add_f32 v1, v{AV_O+40}, v{AV_O+56}")
    a("v_add_f32 v8, v8, v1")
    a(f"v_mov_b32 v1, {f32bits(2.0**60)}")
    a("v_cmp_nlt_f32 vcc, v8, v1")
    a("s_cmp_lg_u64 vcc, 0")
    a("s_cselect_b32 s8, 0x10001, 1")
    a("v_mov_b32 v1, s8")
    lk1, ljoin = a.label("kh1"), a.label("khj")
    a("s_cmp_eq_u32 s18, 1")
    a(f"s_cbranch_scc1 {lk1}")

    def send(o, j):
        a(f"ds_write_b128 v{AV_KR}, {vr(o,4)} offset:{KSO(2*j)}")
        a(f"ds_write_b128 v{AV_KR}, {vr(o+4,4)} offset:{KSO(2*j)+1024}")
        a(f"ds_write_b32 v9, v{o+8} offset:{KSO(2*j+1)}")
    for j in range(2):
        send(AV_O + 16 * (2 + j), j)
    a(f"s_branch {ljoin}")
    a(f"{lk1}:")
    for j in range(2):
        send(AV_O + 16 * j, j)
    a("s_waitcnt lgkmcnt(0)")
    for j in range(2):
        for r in range(9):
            a(f"v_mov_b32 v{AV_O+16*j+r}, v{AV_O+16*(2+j)+r}")
    a(f"{ljoin}:")
    lab, lab2 = a.label("asy"), a.label("asyd")
    a("s_lshl_b32 s8, s19, 2")
    a(f"s_add_u32 s8, s8, {M_CNT}")
    a("v_mov_b32 v8, s8")
    a("s_mov_b64 exec, 1")
    a("ds_add_u32 v8, v1")
    a("s_mov_b64 exec, -1")
    a(f"s_mov_b32 s17, {SPIN*16}")
    a(f"{lab}:")
    a("ds_read_b32 v9, v8")
    a("s_waitcnt lgkmcnt(0)")
    a("v_readfirstlane_b32 s8, v9")
    a("s_and_b32 s9, s8, 0xffff")
    a("s_cmp_ge_u32 s9, s25")
    a(f"s_cbranch_scc1 {lab2}")
    spin_guard(a, lab)
    a(f"{lab2}:")
    lok, lslow = a.label("aok"), a.label("aslow")
    a("s_lshr_b32 s9, s8, 16")
    a("s_cmp_lg_u32 s9, 0")
    a(f"s_cbranch_scc1 {lslow}")
    a(f"{lok}:")
    for j in range(2):
        t = AV_S + 16 * j
        a(f"ds_read_b128 {vr(t,4)}, v10 offset:{KSO(2*j)}")
        a(f"ds_read_b128 {vr(t+4,4)}, v10 offset:{KSO(2*j)+1024}")
        a(f"ds_read_b32 v{t+8}, v11 offset:{KSO(2*j+1)}")
    a(f"s_lshl_b32 s8, s{S_SL}, 1")
    a("s_add_u32 s8, s8, s18")
    a("s_lshl_b32 s8, s8, 5")
    a("s_add_u32 s8, s8, s20", "st*32 + head")
    a(f"s_lshl_b32 s9, s{S_SL}, 4")
    a(f"s_add_u32 s9, s9, s{S_HP}")
    a("s_lshl_b32 s9, s9, 3")
    a("s_add_u32 s9, s9, s18")
    a("s_lshl_b32 s9, s9, 1")
    a("s_add_u32 s9, s9, s19")
    a("s_lshl_b32 s9, s9, 3")
    a(f"s_add_u32 s9, s9, {WS_FO}")
    a("s_lshl_b32 s8, s8, 11")
    a(f"s_add_u32 s8, s8, {WS_O}")
    a("s_waitcnt lgkmcnt(0)")
    for j in range(2):
        a(f"v_add_f32 v{AV_O+16*j+8}, v{AV_O+16*j+8}, v{AV_S+16*j+8}")
    for j in range(2):
        a(f"v_rcp_f32 v{AV_O+16*j+8}, v{AV_O+16*j+8}")
    for j in range(2):
        for r in range(8):
            a(f"v_add_f32 v{AV_O+16*j+r}, v{AV_O+16*j+r}, v{AV_S+16*j+r}")
    for j in range(2):
        a(f"v_mul_f32 v{AV_O+16*j+8}, v{AV_O+16*j+8}, v{226+j}", "g / l")
    for j in range(2):
        for r in range(8):
            a(f"v_mul_f32 v{AV_O+16*j+r}, v{AV_O+16*j+r}, v{AV_O+16*j+8}")
        for r in range(4):
            a(f"v_cvt_pk_bf16_f32 v{AV_P+4*j+r}, v{AV_O+16*j+2*r}, v{AV_O+16*j+2*r+1}")
        a(f"buffer_store_dwordx4 {vr(AV_P+4*j,4)}, v{AV_KA}, {rs(R_WS)}, s8 offen offset:{j*1024} sc1")
    a(f"v_mov_b32 v10, s{S_TAG}")
    a(f"v_mov_b32 v11, s{S_TAG+1}")
    a("v_mov_b32 v9, 0")
    a("s_mov_b64 exec, 1")
    a("s_waitcnt vmcnt(0)")
    a(f"buffer_store_dwordx2 v[10:11], v9, {rs(R_WS)}, s9 offen sc1")
    a("s_mov_b64 exec, -1")
    stamp(a, 9, True)
    a("s_endpgm")
    a(f"{lw1}:")
    kv_wait("s27", "0")
    a(f"s_branch {lw1b}")
    a(f"{lchk}:")
    a("s_waitcnt vmcnt(0)")
    flag_check(a, 8, "s23", "s23", S_LTAG)
    a(f"s_cbranch_scc1 {lback}")
    kv_wait("s23", "s23")
    a(f"s_branch {lback}")
    a(f"{lslow}:")
    a("s_cmp_lg_u32 s24, 0")
    a(f"s_cbranch_scc1 {lok}")
    a("s_mov_b32 s24, 1")
    a("s_mov_b32 s25, 4")
    a(f"s_mov_b32 s{R_KV+2}, 0x20000")
    kv_wait("-1", "-1")
    for i in range(4):
        a(f"v_mov_b32 v{12+i}, 0xff800000")
    a("s_mov_b32 s8, 0")
    lmax = a.label("maxloop")
    a(f"{lmax}:")
    a(f"buffer_load_dwordx4 {vr(AV_K,4)}, v{AV_KA}, {rs(R_KV)}, s8 offen sc1")
    a("s_waitcnt vmcnt(0)")
    for i in range(4):
        a(mfma(AV_C + 16 * i, AV_K, AV_Q + 4 * i, "0"))
    a("s_nop 9")
    for i in range(4):
        for r in range(8):
            a(f"v_max3_f32 v{12+i}, v{AV_C+16*i+2*r}, v{AV_C+16*i+2*r+1}, v{12+i}")
    a("s_add_u32 s8, s8, 2048")
    a("s_cmp_lt_u32 s8, 0x20000")
    a(f"s_cbranch_scc1 {lmax}")
    a(f"s_lshl_b32 {KS}, s{S_SL}, 2")
    a(f"s_add_u32 {KS}, {KS}, s18")
    a(f"s_lshl_b32 {KS}, {KS}, 11")
    for n in range(2):
        d = dma(n)
        a(d[0])
        a("s_nop 0")
        for x in d[1:]:
            a(x)
    a("s_waitcnt vmcnt(0)")
    for x in rd(0):
        a(x)
    a(f"s_branch {lredo}")


class Rot:
    def __init__(self, a, cur, beg, end, stride):
        self.a, self.cur, self.beg, self.end, self.stride = a, cur, beg, end, stride

    def init(self, srot, n):
        a = self.a
        a(f"s_add_u32 s{self.end}, s{self.beg}, {n*self.stride}")
        a(f"s_mul_i32 s{self.cur}, s{srot}, {self.stride}")
        a(f"s_add_u32 s{self.cur}, s{self.cur}, s{self.beg}")

    def adv(self):
        a = self.a
        a(f"s_add_u32 s{self.cur}, s{self.cur}, {self.stride}")
        if self.beg is not None:
            a(f"s_cmp_eq_u32 s{self.cur}, s{self.end}")
            a(f"s_cselect_b32 s{self.cur}, s{self.beg}, s{self.cur}")


def gemm_role(a):
    HW = OPT["hw"]
    NB = 4
    assert HW < NB and HW + 1 <= TR
    a.c("GEMM role")
    stamp(a, 4)
    a.vmem(f"buffer_load_dwordx2 v[{GV_Y+8}:{GV_Y+9}], v{GV_MISC+4}, {rs(R_WS)}, s96 offen sc1", "hpoll")
    a("v_mov_b32 v1, 1")
    for g in range(4):
        for hh in range(2):
            a(f"v_lshlrev_b32 v{GV_ACC+4*g+2*hh}, 16, v{GV_Y+2*g+hh}")
            a(f"v_and_b32 v{GV_ACC+4*g+2*hh+1}, 0xffff0000, v{GV_Y+2*g+hh}")
    M = GV_MISC + 4
    T1 = Rot(a, 25, 26, 27, 16 * 3584)
    T2 = Rot(a, 25, 26, 27, 16 * 4096)
    TO = Rot(a, 31, None, None, 16 * 1024)
    D = Rot(a, 28, 29, 30, 2048)

    assert M_RING - M_RED == 49152 and TR == 6

    class Stream:
        def __init__(self, items, r0):
            self.items = items
            self.issued = 0
            self.r0 = r0

        def off(self, j):
            if self.r0 <= j < self.r0 + 6:
                return (j - self.r0) * 2048
            return 49152 + (j % TR) * 2048

        def upto(self, n):
            while self.issued < min(n, len(self.items)):
                j = self.issued
                rot, rsrc, vreg, rstr = self.items[j]
                a(f"s_add_u32 m0, s18, {self.off(j)}")
                a(f"s_add_u32 s8, s{rot.cur}, {8*rstr - 1024}")
                a.vmem(f"buffer_load_dwordx4 v{vreg}, {rs(rsrc)}, s{rot.cur} offen {NT(1)}lds", f"T{j}")
                a.vmem(f"buffer_load_dwordx4 v{vreg}, {rs(rsrc)}, s8 offen offset:1024 {NT(1)}lds", f"T{j}")
                rot.adv()
                self.issued += 1

    def d_issue(k, da):
        buf = k % NB
        for x in range(2):
            a.vmem(f"buffer_load_dwordx4 {vr(GV_D+8*buf+4*x,4)}, v{da+x}, {rs(R_WS)}, s{D.cur} offen sc1", f"D{k}")
        D.adv()

    def tread(st, j, ta, rd2, dst):
        for x in range(2):
            a.lds(f"ds_read_b64_tr_b16 {vr(dst+4*x,2)}, v{ta+x} offset:{st.off(j)}", f"tr{j}")
            a.lds(f"ds_read_b64_tr_b16 {vr(dst+4*x+2,2)}, v{ta+x} offset:{st.off(j)+rd2}", f"tr{j}")

    def burst(st, n, win):
        while st.issued < n:
            if st.issued - win >= 0:
                a.vm_wait_if(f"T{st.issued - win}")
            st.upto(st.issued + 1)

    def kloop(st, j0, nsteps, t_is_A, ta, rd2, da, cnt):
        pre = st.issued - j0
        hwd = lambda k: OPT["hwd0"] if k + 2 + HW <= pre else OPT["hwd"]
        dn = [0]

        def d_upto(n):
            while dn[0] < min(n, nsteps):
                d_issue(dn[0], da)
                dn[0] += 1
        d_upto(hwd(0))
        a.vm_wait_if(f"T{j0}")
        tread(st, j0, ta, rd2, GV_T)
        for k in range(nsteps):
            tb, db = GV_T + 8 * (k % 2), GV_D + 8 * (k % NB)

            def mm(x, y):
                if t_is_A:
                    d = GV_ACC + 16 * (2 * x + y)
                    a(mfma(d, tb + 4 * x, db + 4 * y, "0" if (k == 0 and d != GV_ACC) else d))
                else:
                    d = GV_ACC + 16 * (2 * y + x)
                    a(mfma(d, db + 4 * y, tb + 4 * x, "0" if (k == 0 and d != GV_ACC) else d))
            a.vm_wait_if(f"D{k}")
            a.lg_wait(f"tr{j0+k}")
            if k % 4 == 0:
                stamp(a, (16 if t_is_A else 24) + k // 4)
            mm(0, 0)
            if k == 5:
                a("s_mov_b64 exec, 1")
                a.lds(f"ds_add_u32 v{M+3}, v1 offset:{cnt - M_CNT}", "arr")
                a("s_mov_b64 exec, -1")
            d_upto(k + 1 + hwd(k))
            mm(0, 1)
            if k + 1 < nsteps:
                a.vm_wait_if(f"T{j0+k+1}")
                tread(st, j0 + k + 1, ta, rd2, GV_T + 8 * ((k + 1) % 2))
            mm(1, 0)
            st.upto(j0 + k + 2 + HW)
            mm(1, 1)
            if t_is_A and OPT["w2n"] and k >= OPT["w2k0"] and (k - OPT["w2k0"]) % OPT["w2st"] == 0 and (k - OPT["w2k0"]) // OPT["w2st"] < OPT["w2n"]:
                lab = a.label("now2")
                a(f"s_cmp_lg_u32 s33, {(k - OPT['w2k0']) // OPT['w2st']}")
                a(f"s_cbranch_scc1 {lab}")
                for q in range(8):
                    a(f"buffer_load_dwordx4 v[248:251], v175, {rs(R_W2)}, s32 offen")
                    a(f"s_add_u32 s32, s32, {2*4096}")
                a(f"{lab}:")

    def reduce(cnt):
        for v in range(1, 4):
            for q in range(4):
                a.lds(f"ds_write_b128 v{GV_MISC+v}, {vr(GV_ACC+16*v+4*q,4)} offset:{q*1024}", "rw")
        lds_arrive(a, cnt, M, 1)
        lds_wait(a, cnt, 4, M, sleep=False)
        for v in range(3):
            for q in range(4):
                a.lds(f"ds_read_b128 {vr(GV_ACC+16+16*v+4*q,4)}, v{GV_MISC} offset:{v*4096+q*1024}", f"rr{v}")
        for v in range(3):
            a.lg_wait(f"rr{v}")
            for r in range(16):
                a(f"v_add_f32 v{GV_ACC+r}, v{GV_ACC+r}, v{GV_ACC+16+16*v+r}")

    lskip1, lskip2 = a.label("skipg1"), a.label("skipg1e")
    a(f"s_mul_i32 s{T1.beg}, s81, {512*3584}")
    a("s_lshl_b32 s8, s20, 7")
    a(f"s_add_u32 s{T1.beg}, s{T1.beg}, s8")
    T1.init(23, 32)
    st1 = Stream([(T1, R_W1, GV_DMA, 3584)] * 32, 0)
    a(f"s_lshl_b32 s{D.beg}, s19, 18")
    a("s_lshl_b32 s8, s81, 16")
    a(f"s_add_u32 s{D.beg}, s{D.beg}, s8")
    D.init(23, 32)
    a(f"s_lshl_b32 s8, s{S_HP}, 4")
    a(f"s_add_u32 s8, s8, s{S_SL}")
    a("s_lshl_b32 s8, s8, 4")
    a("s_add_u32 s8, s8, s81")
    a("s_lshl_b32 s8, s8, 3")
    a(f"s_add_u32 s8, s8, {WS_FKV}")
    a(f"s_add_u32 s84, s8, {WS_FKVS}")
    a.vm_wait("kvst")
    flag_set(a, "s8", M, M + 2, local=True)
    stamp(a, 5)
    st2 = Stream([(TO, R_WO, GV_DMA + 2, 1024)] * 8 + [(T2, R_W2, GV_DMA + 1, 4096)] * 28, 8)

    def slow_copy():
        if not OPT["local"]:
            return
        a(f"s_add_u32 s88, s88, {WS_KVB}")
        a(f"s_add_u32 s89, s89, {WS_KVB}")
        XF = PV_XF
        a.vmem(f"buffer_store_dwordx4 {vr(XF,4)}, v170, {rs(R_WS)}, s88 offen sc1", "kvs")
        a.vmem(f"buffer_store_dwordx4 {vr(XF+4,4)}, v170, {rs(R_WS)}, s89 offen sc1", "kvs")
        a.vmem(f"buffer_store_dwordx4 {vr(XF+8,4)}, v172, {rs(R_WS)}, s88 offen offset:1024 sc1", "kvs")
        a.vmem(f"buffer_store_dwordx4 {vr(XF+12,4)}, v172, {rs(R_WS)}, s88 offen offset:1536 sc1", "kvs")
    a(f"s_lshl_b32 s{TO.cur}, s81, 17")
    a("s_lshl_b32 s8, s22, 7")
    a(f"s_add_u32 s{TO.cur}, s{TO.cur}, s8")
    a(f"s_cmp_ge_u32 s{S_IDX}, 28")
    a(f"s_cbranch_scc1 {lskip1}")
    burst(st1, OPT["g1b"], OPT["pf1"])
    if OPT["gate"]:
        lds_wait(a, M_CNT + 36, 4, M, hint=OPT["gspin"])
    lh = a.label("hok")
    a.vm_wait_if("hpoll")
    flag_check(a, GV_Y + 8, "-1", "-1")
    a(f"s_cbranch_scc1 {lh}")
    a(f"v_lshlrev_b32 v{M}, 3, v0")
    vm_keep = list(a.vm)
    flag_wait(a, "s96", M, M + 2, "-1", "-1")
    a.vm = vm_keep
    a(f"{lh}:")
    a(f"v_mov_b32 v{M+3}, {M_CNT}")
    a(f"s_setprio {OPT['prio_gemm']}")
    stamp(a, 6)
    kloop(st1, 0, 32, True, GV_TA1, 512, GV_DB, M_CNT + 40)
    a("s_setprio 3")
    stamp(a, 7)
    slow_copy()
    st2.upto(OPT["wo0"])
    lds_wait(a, M_CNT + 40, 4, M)
    a.c("G1 epilogue")
    reduce(M_CNT + 16)
    c0 = -2.0 * math.sqrt(2.0 / math.pi) * LOG2E
    c1 = c0 * 0.044715
    a(f"s_mov_b32 s8, {f32bits(c1)}")
    a(f"v_mov_b32 v{M}, {f32bits(c0)}")
    TT = GV_ACC + 16
    for r in range(16):
        a(f"v_mul_f32 v{TT+r}, v{GV_ACC+r}, v{GV_ACC+r}")
    for r in range(16):
        a(f"v_fma_f32 v{TT+r}, v{TT+r}, s8, v{M}")
    for r in range(16):
        a(f"v_mul_f32 v{TT+r}, v{TT+r}, v{GV_ACC+r}")
    for r in range(16):
        a(f"v_exp_f32 v{TT+r}, v{TT+r}")
    for r in range(16):
        a(f"v_add_f32 v{TT+r}, 1.0, v{TT+r}")
    for r in range(16):
        a(f"v_rcp_f32 v{TT+r}, v{TT+r}")
    for r in range(16):
        a(f"v_mul_f32 v{TT+r}, v{TT+r}, v{GV_ACC+r}")
    for r in range(8):
        a(f"v_cvt_pk_bf16_f32 v{GV_ACC+r}, v{TT+2*r}, v{TT+2*r+1}")
    a("s_mul_i32 s8, s19, 112")
    a("s_lshl_b32 s9, s20, 2")
    a("s_add_u32 s8, s8, s9")
    a("s_and_b32 s9, s81, 2")
    a("s_add_u32 s8, s8, s9")
    a("s_lshl_b32 s8, s8, 11")
    a(f"s_add_u32 s8, s8, {WS_U}")
    a.vmem(f"buffer_store_dwordx4 {vr(GV_ACC,4)}, v{GV_DB}, {rs(R_WS)}, s8 offen sc1", "ust")
    a.vmem(f"buffer_store_dwordx4 {vr(GV_ACC+4,4)}, v{GV_DB}, {rs(R_WS)}, s8 offen offset:2048 sc1", "ust")
    a("s_lshl_b32 s8, s19, 12")
    a("s_lshl_b32 s9, s20, 7")
    a("s_add_u32 s8, s8, s9")
    a("s_lshl_b32 s9, s81, 3")
    a("s_add_u32 s8, s8, s9")
    a(f"s_add_u32 s8, s8, {WS_FU}")
    a("s_mov_b32 s23, s8")
    a.vm_drain()
    flag_set(a, "s23", M, M + 2)
    flag_set(a, "s84", M, M + 2) if OPT["local"] else None
    stamp(a, 8)
    a(f"s_branch {lskip2}")
    a(f"{lskip1}:")
    if OPT["help"]:
        lds_wait(a, M_CNT + 36, 4, M, hint=OPT["gspin"])
        if OPT["w1mode"] == 0:
            a(f"s_and_b32 s8, s{S_IDX}, 3")
            a("s_lshl_b32 s8, s8, 1")
            a("s_lshl_b32 s9, s81, 9")
            a("s_add_u32 s8, s8, s9")
            a("s_add_u32 s8, s8, 128")
            a("s_mul_i32 s9, s8, 3584")
            a("s_add_u32 s9, s9, s90")
            a("s_mov_b32 s10, 48")
            lh = a.label("help")
            a(f"{lh}:")
            a(f"buffer_load_dwordx4 v[248:251], v174, {rs(R_W1)}, s9 offen")
            a(f"s_add_u32 s9, s9, {8*3584}")
            a(f"s_waitcnt vmcnt({OPT['help']-1})")
            a("s_sub_u32 s10, s10, 1")
            a("s_cmp_lg_u32 s10, 0")
            a(f"s_cbranch_scc1 {lh}")
        stamp(a, 31)
        if OPT["hw2"]:
            a(f"v_lshrrev_b32 v{M}, 5, v0")
            a(f"v_and_b32 v{M+1}, 31, v0")
            a(f"v_lshlrev_b32 v{M+1}, 4, v{M+1}")
            a(f"v_lshl_add_u32 v{M}, v{M}, 12, v{M+1}")
            a(f"s_and_b32 s8, s{S_IDX}, 3")
            a("s_lshl_b32 s8, s8, 2")
            a("s_add_u32 s8, s8, s81", "helper wave 0..15")
            a("s_lshl_b32 s9, s8, 13")
            a(f"s_lshl_b32 s10, s{S_XCD}, 9")
            a("s_add_u32 s9, s9, s10")
            a("s_mov_b32 s10, 56")
            lh = a.label("help")
            a(f"{lh}:")
            a(f"buffer_load_dwordx4 v[248:251], v{M}, {rs(R_W2)}, s9 offen")
            a(f"s_add_u32 s9, s9, {32*4096}")
            a(f"s_waitcnt vmcnt({OPT['help']-1})")
            a("s_sub_u32 s10, s10, 1")
            a("s_cmp_lg_u32 s10, 0")
            a(f"s_cbranch_scc1 {lh}")
        stamp(a, 15)
    slow_copy()
    st2.issued = 0
    st2.upto(OPT["wo0"])
    a("s_waitcnt vmcnt(0)")
    flag_set(a, "s84", M, M + 2) if OPT["local"] else None
    a(f"{lskip2}:")
    a.vm = []
    a(f"s_mul_i32 s{T2.beg}, s81, {448*4096}")
    a("s_lshl_b32 s8, s21, 7")
    a(f"s_add_u32 s{T2.beg}, s{T2.beg}, s8")
    T2.init(24, 28)
    a(f"s_mul_i32 s{D.beg}, s22, 112")
    a("s_mul_i32 s8, s81, 28")
    a(f"s_add_u32 s{D.beg}, s{D.beg}, s8")
    a(f"s_lshl_b32 s{D.beg}, s{D.beg}, 11")
    a(f"s_add_u32 s{D.beg}, s{D.beg}, {WS_U}")
    D.init(24, 28)
    for j in range(8):
        a.vm_wait_if(f"T{j}")
        tread(st2, j, GV_TA3, 1024, GV_WO + 8 * j)
        a.lg_wait(f"tr{j}")
        st2.upto(j + 1 + OPT["pf"])
    burst(st2, OPT["g2b"], OPT["pf"])
    for r in range(16):
        a(f"v_lshlrev_b32 v{GV_ACC+r}, 16, v15", "b2")
    a(f"v_min_u32 v{M}, 27, v0")
    a(f"v_lshrrev_b32 v{M+1}, 2, v{M}")
    a(f"v_and_b32 v{M}, 3, v{M}")
    a(f"v_lshlrev_b32 v{M}, 3, v{M}")
    a(f"v_lshl_add_u32 v{M}, v{M+1}, 7, v{M}")
    a("s_lshl_b32 s9, s22, 12")
    a("s_mul_i32 s8, s81, 896")
    a("s_add_u32 s9, s9, s8")
    a(f"s_add_u32 s9, s9, {WS_FU}")
    flag_wait(a, "s9", M, M + 2, "0x0fffffff", "0")
    stamp(a, 9)
    a(f"v_and_b32 v{M}, 31, v0")
    a(f"v_lshlrev_b32 v{M+1}, 2, v{M}")
    a("s_mov_b32 s23, s91")
    a("s_lshl_b32 s9, s23, 2")
    a(f"s_add_u32 s9, s9, {WS_G}")
    a.vmem(f"buffer_load_dword v{GV_Y}, v{M+1}, {rs(R_WS)}, s9 offen sc1", "g")
    a("s_xor_b32 s9, s9, 128")
    a.vmem(f"buffer_load_dword v{GV_Y+2}, v{M+1}, {rs(R_WS)}, s9 offen sc1", "g")
    a("v_and_b32 v15, 31, v0")
    a("v_lshlrev_b32 v15, 10, v15")
    a(f"v_lshrrev_b32 v{M}, 5, v0")
    a(f"v_lshl_add_u32 v15, v{M}, 4, v15")
    a("s_lshl_b32 s23, s23, 10")
    a("s_lshl_b32 s8, s22, 7")
    a("s_add_u32 s23, s23, s8")
    a("s_lshr_b32 s8, s81, 1")
    a("s_lshl_b32 s8, s8, 6")
    a("s_add_u32 s23, s23, s8")
    a("s_lshl_b32 s32, s21, 16")
    a("s_lshl_b32 s8, s81, 14")
    a("s_add_u32 s32, s32, s8")
    a(f"s_add_u32 s32, s32, {WS_O}")
    a(f"v_min_u32 v{GV_Y+4}, 7, v0")
    a(f"v_lshrrev_b32 v{M}, 1, v{GV_Y+4}")
    a(f"v_and_b32 v{GV_Y+4}, 1, v{GV_Y+4}")
    a(f"v_lshlrev_b32 v{GV_Y+4}, 3, v{GV_Y+4}")
    a(f"v_lshl_add_u32 v{GV_Y+4}, v{M}, 7, v{GV_Y+4}")
    a("s_lshr_b32 s33, s21, 1")
    a("s_lshl_b32 s33, s33, 11")
    a("s_lshl_b32 s8, s81, 9")
    a("s_add_u32 s33, s33, s8")
    a("s_and_b32 s8, s21, 1")
    a("s_lshl_b32 s8, s8, 4")
    a("s_add_u32 s33, s33, s8")
    a(f"s_add_u32 s33, s33, {WS_FO}")
    a(f"v_mov_b32 v{M+3}, {M_CNT}")
    a(f"s_setprio {OPT['prio_gemm']}")
    kloop(st2, 8, 28, False, GV_TA2, 1024, GV_DA, M_CNT + 20)
    a("s_setprio 3")
    stamp(a, 10)
    a(f"buffer_load_dwordx2 v[{GV_Y+6}:{GV_Y+7}], v{GV_Y+4}, {rs(R_WS)}, s33 offen sc1")
    for b in range(2):
        a(f"v_sub_f32 v{GV_Y+2*b}, 1.0, v{GV_Y+2*b}")
        a(f"v_mov_b32 v{GV_Y+2*b+1}, v{GV_Y+2*b}")
    a("s_nop 4")
    for v in (0, 2, 1, 3):
        for r in range(0, 16, 2):
            d = GV_ACC + 16 * v + r
            a(f"v_pk_mul_f32 v[{d}:{d+1}], v[{d}:{d+1}], v[{GV_Y+2*(v&1)}:{GV_Y+2*(v&1)+1}]")
    a("s_waitcnt vmcnt(0)")
    a(f"v_cmp_ne_u64 vcc, s[{S_TAG}:{S_TAG+1}], v[{GV_Y+6}:{GV_Y+7}]")
    a("s_mov_b32 s26, vcc_lo", "heads not yet seen")
    stamp(a, 11)

    def omm(k):
        a.vm_wait_if(f"O{k}")
        for v in (1, 2, 3, 0):
            x, y = v >> 1, v & 1
            d = GV_ACC + 16 * v
            a(mfma(d, GV_WO + 8 * k + 4 * x, GV_D + 8 * k + 4 * y, d))
    for k in range(8):
        l1, l2 = a.label("op"), a.label("opok")
        a(f"s_bitcmp0_b32 s26, {k}")
        a(f"s_cbranch_scc1 {l2}")
        a(f"s_mov_b32 s17, {SPIN}")
        a(f"{l1}:")
        a(f"buffer_load_dwordx2 v[{GV_Y+6}:{GV_Y+7}], v{GV_Y+4}, {rs(R_WS)}, s33 offen sc1")
        a("s_waitcnt vmcnt(0)")
        a(f"v_cmp_ne_u64 vcc, s[{S_TAG}:{S_TAG+1}], v[{GV_Y+6}:{GV_Y+7}]")
        a("s_mov_b32 s26, vcc_lo")
        a(f"s_bitcmp0_b32 s26, {k}")
        a(f"s_cbranch_scc1 {l2}")
        spin_guard(a, l1)
        a(f"{l2}:")
        if k % 2 == 0 and k:
            a("s_add_u32 s32, s32, 4096")
        for x in range(2):
            a.vmem(f"buffer_load_dwordx4 {vr(GV_D+8*k+4*x,4)}, v{GV_DB+x}, {rs(R_WS)}, s32 offen offset:{(k%2)*2048} sc1", f"O{k}")
        if k >= OPT["olag"]:
            omm(k - OPT["olag"])
    stamp(a, 12)
    for k in range(8 - OPT["olag"], 8):
        omm(k)
    lds_wait(a, M_CNT + 20, 4, M)
    a("s_nop 2")
    stamp(a, 13)
    reduce(M_CNT + 32)
    for r in range(8):
        a(f"v_cvt_pk_bf16_f32 v{GV_ACC+16+r}, v{GV_ACC+2*r}, v{GV_ACC+2*r+1}")
    a.vmem(f"buffer_store_dwordx4 {vr(GV_ACC+16,4)}, v15, {rs(R_OUT)}, s23 offen", "ost")
    a.vmem(f"buffer_store_dwordx4 {vr(GV_ACC+20,4)}, v15, {rs(R_OUT)}, s23 offen offset:32", "ost")
    stamp(a, 14, True)


def descriptor(name, vgpr=256):
    return f""".section .rodata,"a"
.p2align 6
.amdhsa_kernel {name}
  .amdhsa_next_free_vgpr {vgpr}
  .amdhsa_next_free_sgpr 102
  .amdhsa_accum_offset {vgpr}
  .amdhsa_group_segment_fixed_size 0
  .amdhsa_kernarg_size 96
  .amdhsa_user_sgpr_count 2
  .amdhsa_user_sgpr_kernarg_segment_ptr 1
  .amdhsa_system_sgpr_workgroup_id_x 1
.end_amdhsa_kernel
"""


def build():
    kn = NAME + "_kernel"
    head = f"""; generated by gen/gen12.py (fused single launch)
; @launch grid=(256,1,1) block=(512,1,1) lds={LDS_TOTAL}
.amdgcn_target "amdgcn-amd-amdhsa--gfx950"
"""
    a = Asm()
    a(".text")
    a(f".globl {kn}")
    a(".p2align 8")
    a(f".type {kn},@function")
    a(f"{kn}:")
    entry(a, "L_exit")
    vm0, lg0 = list(a.vm), list(a.lg)
    a(f"s_cmp_ge_u32 s{S_WAVE}, 4")
    a("s_cbranch_scc1 L_roleb")
    proj(a, 0)
    attention(a)
    a("L_roleb:")
    a.vm, a.lg = vm0, lg0
    a("s_setprio 3")
    proj(a, 1)
    gemm_role(a)
    a("L_exit:")
    a("s_endpgm")
    a("L_code_end:")
    return head + a.text() + descriptor(kn)


if __name__ == "__main__":
    out = sys.argv[1] if len(sys.argv) > 1 else f"cdna_kernels/{NAME}.s"
    for o in sys.argv[2:]:
        if o == "stamps":
            OPT["stamps"] = True
        elif "=" in o:
            k, v = o.split("=")
            OPT[k] = int(v)
    open(out, "w").write(build())
    print("wrote", out)
```

```python
import math
import sys
from asmlib import Asm, vr, sr, f32bits

NAME = "gated_mix__mha_block__mixer_token_mlp__prompt"
OPT = dict(stamps=False, hw=2, prio_att=2, prio_gemm=0, nt=0, early=1, cpf=1, hwd0=3, hwd=3, gspin=24, g2b=18, w2k0=6, w2n=0, w2st=3, hw2=0, pt=1, ptnt=1, w1mode=0, gate=1, warm=-3, pf=3, lnpos=0, lnc=0, suc=2, xrot=0, la=3, local=1, xx=1, mb=0, hw2p=1, tlb=0, ww=0, ptc=5, mwn=1, pf1=3, wo0=3, olag=5, help=7, hgate=1, g1b=8, r1m=0, r1s=4, r2m=0, r2s=14)

WS_H = 0x000000
WS_KV = 0x200000
WS_KVB = 0xE00000 - 0x200000
WS_U = 0x800000
WS_O = 0xA00000
WS_G = 0xC00000
WS_FH = 0xC10000
WS_FKV = 0xC20000
WS_FKVS = 0x8000
WS_FU = 0xC30000
WS_FO = 0xC40000
WS_STAMP = 0xD00000
WS_SIZE = 0x1200000

S_WAVE, S_XCD, S_IDX, S_HP, S_SL = 3, 4, 5, 6, 7
S_TAG = 14
S_LTAG = 76
R_X, R_P, R_WO, R_W1, R_W2, R_WS, R_OUT, R_B1, R_B2, R_GW = 40, 44, 48, 52, 56, 60, 64, 68, 72, 76
R_DBG = 92
R_KV = 48
LOG2E = math.log2(math.e)

NPS = 4
P_XS, P_WS, P_LN = 0, 65536, 114688
M_RED = 0
TR = 6
M_RING = 49152
KVR = 98304
KSLOT = 2080
KR = 6
KPOS = {2: 0, 3: 1, 4: 2, 5: 3, 0: 4, 1: 5}
L_Q = KVR + 6 * 4 * KSLOT
M_CNT = L_Q + 8192
L_K0 = M_CNT + 256
LDS_TOTAL = 163840
assert M_RING + 4 * TR * 2048 <= KVR and L_K0 + 2048 <= LDS_TOTAL and P_LN + 9216 <= KVR + 4 * 4 * KSLOT


def KSO(n):
    return KPOS[n % KR] * 4 * KSLOT


SPIN = 200000


def KVSC():
    return '' if OPT['local'] else 'sc1'


def NT(bit):
    return "nt " if OPT["nt"] & bit else ""


def rs(r):
    return f"s[{r}:{r+3}]"


def stamp(a, idx, final=False):
    if not OPT["stamps"]:
        return
    a("s_memrealtime s[98:99]")
    a("s_memtime s[100:101]")
    if idx == 0:
        a("v_mov_b32 v254, 0")
        a("v_mov_b32 v255, 0")
    a("s_waitcnt lgkmcnt(0)")
    a.lg = []
    a(f"v_writelane_b32 v254, s98, {idx}")
    a(f"v_writelane_b32 v255, s100, {idx}")
    if final:
        a("s_lshl_b32 s97, s2, 3")
        a(f"s_add_u32 s97, s97, s{S_WAVE}")
        a("s_lshl_b32 s97, s97, 9")
        a(f"s_add_u32 s97, s97, {WS_STAMP}")
        a("v_lshlrev_b32 v253, 3, v0")
        a(f"buffer_store_dwordx2 v[254:255], v253, {rs(R_WS)}, s97 offen")


def srd(a, r, ptr, nbytes):
    a(f"s_mov_b32 s{r}, s{ptr}")
    a(f"s_mov_b32 s{r+1}, s{ptr+1}")
    a(f"s_mov_b32 s{r+2}, {nbytes:#x}")
    a(f"s_mov_b32 s{r+3}, 0x00020000")


def mfma(d, A, B, C):
    return f"v_mfma_f32_32x32x16_bf16 {vr(d,16)}, {vr(A,4)}, {vr(B,4)}, {C if isinstance(C,str) else vr(C,16)}"


def spin_guard(a, lab):
    a("s_sub_u32 s17, s17, 1")
    a("s_cmp_lg_u32 s17, 0")
    a(f"s_cbranch_scc1 {lab}")
    a("s_endpgm")


PV_XF, PV_WF, PV_XA, PV_WA, PV_DMA = 112, 128, 160, 164, 166


def p_issue(a, c, par):
    slot = c % NPS
    a("s_and_b32 s8, s85, 7")
    a("s_add_u32 s85, s85, 1")
    a("s_mul_i32 s8, s8, s86")
    if par is None:
        a(f"s_mul_i32 s9, s87, {slot}")
        a("s_add_u32 m0, s83, s9")
    else:
        a(f"s_add_u32 m0, s83, {slot*(16384 if par == 0 else 12288)}")
    a("s_add_u32 s8, s8, s82")
    for q in range(3):
        a.vmem(f"buffer_load_dwordx4 v{PV_DMA+q}, {rs(R_P)}, s8 offen offset:{q*1024} {NT(2)}lds", f"ch{c}")
    if par is None:
        lab = a.label("no4")
        a(f"s_cmp_ge_u32 s{S_WAVE}, 4")
        a(f"s_cbranch_scc1 {lab}")
        a.vmem(f"buffer_load_dwordx4 v{PV_DMA+3}, {rs(R_P)}, s8 offen offset:3072 {NT(2)}lds", f"ch{c}A")
        a(f"{lab}:")
    elif par == 0:
        a.vmem(f"buffer_load_dwordx4 v{PV_DMA+3}, {rs(R_P)}, s8 offen offset:3072 {NT(2)}lds", f"ch{c}")


def entry(a, lexit):
    a("s_cmp_ge_u32 s2, 256")
    a(f"s_cbranch_scc1 {lexit}")
    a("s_load_dwordx16 s[16:31], s[0:1], 0")
    a("s_load_dwordx8 s[32:39], s[0:1], 64")
    a("s_memrealtime s[12:13]")
    a("v_lshrrev_b32 v1, 6, v0")
    a("v_and_b32 v0, 63, v0")
    a(f"v_readfirstlane_b32 s{S_WAVE}, v1")
    a(f"s_and_b32 s{S_XCD}, s2, 7")
    a(f"s_lshr_b32 s{S_IDX}, s2, 3")
    if OPT["local"]:
        a(f"s_and_b32 s9, s{S_IDX}, 1")
        a(f"s_lshl_b32 s8, s{S_XCD}, 1")
        a(f"s_add_u32 s{S_HP}, s8, s9")
        a(f"s_lshr_b32 s{S_SL}, s{S_IDX}, 1")
        a(f"s_mul_i32 s9, s9, {OPT['xrot']}")
        a(f"s_add_u32 s85, s9, s{S_SL}", "chunk cursor (rotation)")
        if OPT["xx"]:
            a(f"s_add_u32 s85, s85, s{S_XCD}")
    else:
        a(f"s_and_b32 s8, s{S_XCD}, 3")
        a("s_lshl_b32 s8, s8, 2")
        a(f"s_and_b32 s9, s{S_IDX}, 3")
        a(f"s_add_u32 s{S_HP}, s8, s9")
        a(f"s_lshr_b32 s8, s{S_XCD}, 2")
        a(f"s_lshr_b32 s10, s{S_IDX}, 2")
        a("s_lshl_b32 s11, s10, 1")
        a(f"s_add_u32 s{S_SL}, s8, s11")
        a(f"s_mul_i32 s9, s9, {OPT['xrot']}")
        a("s_add_u32 s85, s9, s10", "chunk cursor (rotation)")
    a(f"s_and_b32 s81, s{S_WAVE}, 3", "t")
    a("v_lshlrev_b32 v1, 4, v0", "lane*16")
    if OPT["cpf"]:
        lab = a.label("nocpf")
        a(f"s_cmp_lt_u32 s{S_WAVE}, 6")
        a(f"s_cbranch_scc1 {lab}")
        a("s_getpc_b64 s[88:89]")
        a("L_pc0:")
        a("s_mov_b32 s90, L_code_end-L_pc0")
        a("s_mov_b32 s91, 0x00020000")
        a(f"s_and_b32 s8, s{S_WAVE}, 1")
        a("s_lshl_b32 s8, s8, 5")
        a(f"s_add_u32 s8, s8, s{S_IDX}")
        a("s_lshl_b32 s8, s8, 10")
        a("buffer_load_dwordx4 v[248:251], v1, s[88:91], s8 offen")
        a(f"{lab}:")
    D = PV_DMA
    lb, lj = a.label("eb"), a.label("ej")
    a(f"s_cmp_ge_u32 s{S_WAVE}, 4")
    a(f"s_cbranch_scc1 {lb}")
    a("v_lshrrev_b32 v41, 3, v0")
    a("v_lshlrev_b32 v41, 10, v41")
    a("v_and_b32 v42, 7, v0")
    a("v_lshrrev_b32 v43, 4, v0")
    a("v_xor_b32 v42, v42, v43")
    a(f"v_lshl_add_u32 v{D}, v42, 4, v41")
    a("v_xor_b32 v42, 4, v42")
    a(f"v_lshl_add_u32 v{D+1}, v42, 4, v41")
    a(f"v_add_u32 v{D+2}, {2*7168}, v{D}")
    a(f"v_add_u32 v{D+3}, {3*7168}, v{D+1}")
    a(f"v_add_u32 v{D+1}, {7168}, v{D+1}")
    a(f"s_lshl_b32 s82, s{S_SL}, 17")
    a("s_lshl_b32 s8, s81, 15")
    a("s_add_u32 s82, s82, s8")
    a("s_lshl_b32 s83, s81, 12")
    a("s_mov_b32 s86, 128")
    a("s_mov_b32 s87, 16384")
    a("s_waitcnt lgkmcnt(0)")
    srd(a, R_P, 16, 2048 * 512 * 2)
    a(f"s_branch {lj}")
    a(f"{lb}:")
    a("v_lshrrev_b32 v41, 2, v0")
    a("v_mul_u32_u24 v41, 3072, v41")
    a("v_and_b32 v42, 3, v0")
    a(f"v_lshl_add_u32 v{D}, v42, 4, v41")
    a(f"v_mov_b32 v{D+1}, v{D}")
    a(f"v_mov_b32 v{D+2}, v{D}")
    a(f"v_mov_b32 v{D+3}, v{D}")
    a(f"s_mul_i32 s82, s81, {16*3072}")
    a(f"s_lshl_b32 s8, s{S_HP}, 6")
    a("s_add_u32 s82, s82, s8")
    a("s_mul_i32 s83, s81, 3072")
    a(f"s_add_u32 s83, s83, {P_WS}")
    a(f"s_mov_b32 s86, {64*3072}")
    a("s_mov_b32 s87, 12288")
    a("s_waitcnt lgkmcnt(0)")
    srd(a, R_P, 18, 512 * 1536 * 2)
    a(f"{lj}:")
    stamp(a, 0)
    p_issue(a, 0, None)
    p_issue(a, 1, None)
    srd(a, R_X, 16, 2048 * 512 * 2)
    srd(a, R_GW, 32, 512 * 2)
    a(f"s_lshl_b32 s8, s{S_SL}, 7")
    a(f"s_lshl_b32 s9, s{S_HP}, 3")
    a("s_add_u32 s80, s8, s9", "s80 = row0")
    srd(a, R_DBG, 36, 256)
    srd(a, R_WS, 38, WS_SIZE)
    lab = a.label("notag")
    a(f"s_or_b32 s8, s2, s{S_WAVE}")
    a("s_cmp_lg_u32 s8, 0")
    a(f"s_cbranch_scc1 {lab}")
    a("s_or_b32 s8, s12, 1")
    a("v_mov_b32 v44, s8")
    a("v_mov_b32 v45, s13")
    a("v_mov_b32 v46, 0")
    a("s_mov_b64 exec, 1")
    a(f"buffer_store_dwordx2 v[44:45], v46, {rs(R_DBG)}, 0 offen sc1")
    a("s_mov_b64 exec, -1")
    a(f"{lab}:")
    a("v_and_b32 v41, 31, v0", "i")
    a("v_lshrrev_b32 v42, 5, v0", "h'")
    a("v_bfe_u32 v43, v0, 1, 3")
    a("v_xor_b32 v44, v42, v43")
    a("v_lshlrev_b32 v45, 7, v41")
    a("s_lshl_b32 s8, s81, 12")
    a("v_add_u32 v45, s8, v45")
    a(f"v_lshl_add_u32 v{PV_XA}, v44, 4, v45")
    for ks in range(1, 4):
        a(f"v_xor_b32 v{PV_XA+ks}, {32*ks}, v{PV_XA}")
    a("v_lshlrev_b32 v44, 9, v42")
    a("v_bfe_u32 v45, v0, 2, 2")
    a("v_lshl_add_u32 v44, v45, 6, v44")
    a("v_bfe_u32 v45, v0, 4, 1")
    a("v_lshl_add_u32 v44, v45, 5, v44")
    a("v_and_b32 v45, 3, v0")
    a("v_lshl_add_u32 v44, v45, 3, v44")
    a(f"v_add_u32 v{PV_WA}, {P_WS}, v44")
    a("v_lshlrev_b32 v41, 2, v0")
    a(f"v_add_u32 v41, {M_CNT}, v41")
    a("v_mov_b32 v42, 0")
    a.lds("ds_write_b32 v41, v42", "cz")
    a(f"s_add_u32 s8, s80, s{S_WAVE}")
    a("s_lshl_b32 s8, s8, 10")
    a.vmem(f"buffer_load_dwordx4 v[176:179], v1, {rs(R_X)}, s8 offen", "ln")
    a.vmem(f"buffer_load_dwordx4 v[180:183], v1, {rs(R_GW)}, 0 offen", "ln")


def wave_reduce_add(a, regs):
    steps = ["row_shr:1 row_mask:0xf bank_mask:0xf bound_ctrl:0",
             "row_shr:2 row_mask:0xf bank_mask:0xf bound_ctrl:0",
             "row_shr:4 row_mask:0xf bank_mask:0xf bound_ctrl:0",
             "row_shr:8 row_mask:0xf bank_mask:0xf bound_ctrl:0",
             "row_bcast:15 row_mask:0xa bank_mask:0xf",
             "row_bcast:31 row_mask:0xc bank_mask:0xf"]
    for st in steps:
        a("s_nop 1" if len(regs) == 1 else "s_nop 0")
        for r in regs:
            a(f"v_add_f32_dpp v{r}, v{r}, v{r} {st}")
    a("s_nop 1")


def ln_compute(a):
    a.c("LN compute")
    a.vm_wait_if("ln")
    for i in range(4):
        a(f"v_lshlrev_b32 v{184+2*i}, 16, v{176+i}")
        a(f"v_and_b32 v{185+2*i}, 0xffff0000, v{176+i}")
        a(f"v_lshlrev_b32 v{192+2*i}, 16, v{180+i}")
        a(f"v_and_b32 v{193+2*i}, 0xffff0000, v{180+i}")
    a("v_add_f32 v200, v184, v185")
    a("v_mul_f32 v201, v184, v192")
    for i in range(1, 8):
        if i >= 2:
            a(f"v_add_f32 v200, v200, v{184+i}")
        a(f"v_fmac_f32 v201, v{184+i}, v{192+i}")
    a("s_nop 0")
    wave_reduce_add(a, [200, 201])
    a("v_readlane_b32 s8, v200, 63")
    a("v_readlane_b32 s9, v201, 63")
    a(f"v_mov_b32 v202, {f32bits(1.0/512)}")
    a(f"v_mov_b32 v214, {f32bits(-LOG2E)}")
    a("v_mul_f32 v202, s8, v202", "mean")
    a("v_mul_f32 v214, s9, v214")
    for i in range(8):
        a(f"v_sub_f32 v{184+i}, v{184+i}, v202")
    a("v_exp_f32 v214, v214")
    a("v_mul_f32 v200, v184, v184")
    for i in range(1, 8):
        a(f"v_fmac_f32 v200, v{184+i}, v{184+i}")
    wave_reduce_add(a, [200])
    a("v_readlane_b32 s8, v200, 63")
    a("v_add_f32 v214, 1.0, v214")
    a(f"v_mov_b32 v202, {f32bits(1.0/512)}")
    a(f"v_mov_b32 v203, {f32bits(1e-5)}")
    a("v_fma_f32 v202, s8, v202, v203", "var + eps")
    a("v_rsq_f32 v202, v202")
    a("v_rcp_f32 v214, v214", "g")
    for i in range(8):
        a(f"v_mul_f32 v{184+i}, v{184+i}, v202")
    for i in range(4):
        a(f"v_cvt_pk_bf16_f32 v{192+i}, v{184+2*i}, v{185+2*i}")
    a("v_mul_u32_u24 v204, 144, v0")
    a(f"s_lshl_b32 s8, s{S_WAVE}, 1")
    a(f"s_add_u32 s8, s8, {P_LN}")
    a("v_add_u32 v204, s8, v204")
    for i in range(4):
        a.lds(f"ds_write_b16 v204, v{192+i} offset:{32*i}", "lnw")
        a.lds(f"ds_write_b16_d16_hi v204, v{192+i} offset:{32*i+16}", "lnw")
    a("v_bfe_u32 v205, v0, 2, 1", "b2")
    a("v_bfe_u32 v206, v0, 3, 1", "b3")
    a("v_lshrrev_b32 v207, 4, v0")
    a("v_lshl_add_u32 v207, v207, 1, v205", "d>>3 (local) = (l>>4)*2 + b2")
    a("v_mul_u32_u24 v204, 144, v207")
    a("v_and_b32 v207, 3, v0")
    a("v_lshl_add_u32 v207, v206, 2, v207", "d&7 = b3*4 + (l&3)")
    a("v_lshl_add_u32 v204, v207, 4, v204")
    a(f"s_mul_i32 s8, s{S_WAVE}, {8*144}")
    a(f"s_add_u32 s8, s8, {P_LN}")
    a("v_add_u32 v204, s8, v204")
    a("v_lshrrev_b32 v205, 5, v0")
    a("v_lshlrev_b32 v205, 10, v205")
    a("v_and_b32 v210, 31, v0")
    a("v_lshl_add_u32 v205, v210, 4, v205")
    a(f"s_lshl_b32 s10, s{S_WAVE}, 18")
    a("s_lshr_b32 s9, s80, 4")
    a("s_lshl_b32 s9, s9, 11")
    a("s_add_u32 s10, s10, s9")
    a("s_and_b32 s9, s80, 8")
    a("s_lshl_b32 s9, s9, 6")
    a("s_add_u32 s10, s10, s9", "h store soffset")
    a(f"s_add_u32 s11, s80, s{S_WAVE}")
    a("s_lshl_b32 s11, s11, 2")
    a(f"s_add_u32 s11, s11, {WS_G}", "g store soffset")
    a("v_mov_b32 v210, 0")


def ln_store(a):
    a.c("LN store")
    a.lds("ds_read_b128 v[206:209], v204", "lnr")
    a.lg_wait("lnr")
    a.vmem(f"buffer_store_dwordx4 v[206:209], v205, {rs(R_WS)}, s10 offen sc1", "hst")
    a("s_mov_b64 exec, 1")
    a.vmem(f"buffer_store_dword v214, v210, {rs(R_WS)}, s11 offen sc1", "hst")
    a("s_mov_b64 exec, -1")
    a.vmem(f"buffer_load_dwordx2 v[216:217], v210, {rs(R_DBG)}, 0 offen sc1", "tag")


def tag_get(a):
    l1, l2 = a.label("tagl"), a.label("tagok")
    a(f"s_mov_b32 s17, {SPIN}")
    a(f"{l1}:")
    a(f"v_readfirstlane_b32 s{S_TAG}, v216")
    a(f"v_readfirstlane_b32 s{S_TAG+1}, v217")
    a(f"s_cmp_lg_u32 s{S_TAG}, 0")
    a(f"s_cbranch_scc1 {l2}")
    a(f"buffer_load_dwordx2 v[216:217], v210, {rs(R_DBG)}, 0 offen sc1")
    a("s_waitcnt vmcnt(0)")
    spin_guard(a, l1)
    a(f"{l2}:")
    a("s_getreg_b32 s8, hwreg(HW_REG_XCC_ID)")
    a("s_and_b32 s8, s8, 15")
    a("s_add_u32 s8, s8, 1")
    a("s_lshl_b32 s8, s8, 24") if OPT["local"] else a("s_mov_b32 s8, 0")
    a(f"s_mov_b32 s{S_LTAG}, s{S_TAG}")
    a(f"s_xor_b32 s{S_LTAG+1}, s{S_TAG+1}, s8", "tag valid only between workgroups of this XCD")


def flag_set(a, soff, vz, vt, local=False):
    tg = S_LTAG if local else S_TAG
    a(f"v_mov_b32 v{vt}, s{tg}")
    a(f"v_mov_b32 v{vt+1}, s{tg+1}")
    a(f"v_mov_b32 v{vz}, 0")
    a("s_mov_b64 exec, 1")
    a.vmem(f"buffer_store_dwordx2 v[{vt}:{vt+1}], v{vz}, {rs(R_WS)}, {soff} offen {'' if (local and OPT['local']) else 'sc1'}", "flag")
    a("s_mov_b64 exec, -1")


def flag_check(a, vt, mask_lo, mask_hi, tg=None):
    tg = S_TAG if tg is None else tg
    a(f"v_cmp_ne_u64 vcc, s[{tg}:{tg+1}], v[{vt}:{vt+1}]")
    a(f"s_and_b32 s10, vcc_lo, {mask_lo}")
    a(f"s_and_b32 s11, vcc_hi, {mask_hi}")
    a("s_or_b32 s10, s10, s11")
    a("s_cmp_eq_u32 s10, 0")


def flag_wait(a, soff, vaddr, vt, mask_lo, mask_hi, sleep=2):
    l1, l2 = a.label("poll"), a.label("pollok")
    a(f"s_mov_b32 s17, {SPIN}")
    a(f"{l1}:")
    a(f"buffer_load_dwordx2 v[{vt}:{vt+1}], v{vaddr}, {rs(R_WS)}, {soff} offen sc1")
    a("s_waitcnt vmcnt(0)")
    a.vm = []
    flag_check(a, vt, mask_lo, mask_hi)
    a(f"s_cbranch_scc1 {l2}")
    a(f"s_sleep {sleep}")
    spin_guard(a, l1)
    a(f"{l2}:")


def lds_arrive(a, cnt_off, vt, vone):
    a.lg_drain()
    a(f"v_mov_b32 v{vt}, {cnt_off}")
    a("s_mov_b64 exec, 1")
    a(f"ds_add_u32 v{vt}, v{vone}")
    a("s_mov_b64 exec, -1")


def lds_wait(a, cnt_off, target, vt, sleep=True, hint=0):
    lab, lab2 = a.label("sy"), a.label("syd")
    a(f"v_mov_b32 v{vt}, {cnt_off}")
    a(f"s_mov_b32 s17, {hint if hint else SPIN*8}")
    a(f"{lab}:")
    a(f"ds_read_b32 v{vt+1}, v{vt}")
    a("s_waitcnt lgkmcnt(0)")
    a.lg = []
    a(f"v_readfirstlane_b32 s8, v{vt+1}")
    a(f"s_cmp_ge_u32 s8, {target}")
    a(f"s_cbranch_scc1 {lab2}")
    if sleep:
        a("s_sleep 1")
    if hint:
        a("s_sub_u32 s17, s17, 1")
        a("s_cmp_lg_u32 s17, 0")
        a(f"s_cbranch_scc1 {lab}")
    else:
        spin_guard(a, lab)
    a(f"{lab2}:")


AV_Q, AV_O, AV_C, AV_S, AV_P, AV_K, AV_V = 16, 32, 96, 160, 192, 200, 208
AV_KA, AV_KR, AV_V0, AV_V1, AV_QA, AV_FA = 2, 3, 4, 5, 6, 7
GV_ACC, GV_D, GV_WO, GV_T, GV_Y, GV_MISC = 16, 80, 144, 208, 224, 240
GV_DMA, GV_TA1, GV_TA2, GV_TA3, GV_DB, GV_DA = 2, 5, 7, 9, 11, 13


def att_setup(a):
    a.c("attention setup")
    a(f"s_and_b32 s18, s{S_WAVE}, 1", "kh")
    a(f"s_lshr_b32 s19, s{S_WAVE}, 1", "e")
    a(f"s_lshl_b32 s20, s{S_HP}, 1")
    a("s_add_u32 s20, s20, s19", "head")
    a("s_lshl_b32 s8, s20, 17")
    a(f"s_add_u32 s8, s8, {WS_KV}")
    a(f"s_add_u32 s{R_KV}, s38, s8")
    a(f"s_addc_u32 s{R_KV+1}, s39, 0")
    a(f"s_mov_b32 s{R_KV+2}, 0x20000")
    a(f"s_mov_b32 s{R_KV+3}, 0x00020000")
    a(f"s_add_u32 s30, s{R_KV}, {WS_KVB}")
    a(f"s_addc_u32 s31, s{R_KV+1}, 0")
    a(f"s_mul_i32 s21, s{S_WAVE}, {KSLOT}")
    a(f"s_add_u32 s21, s21, {KVR}", "ring base")
    a(f"v_lshlrev_b32 v{AV_KA}, 4, v0")
    a(f"v_add_u32 v{AV_KR}, s21, v{AV_KA}")
    a("v_lshrrev_b32 v8, 5, v0")
    a("v_lshlrev_b32 v8, 8, v8")
    a("v_and_b32 v9, 15, v0")
    a("v_lshl_add_u32 v8, v9, 4, v8")
    a("v_add_u32 v8, 1024, v8")
    a("v_add_u32 v9, 512, v8")
    a("v_and_b32 v10, 27, v0")
    a("v_cmp_eq_u32 vcc, 16, v10")
    a("v_mov_b32 v11, 2064")
    a("v_mov_b32 v12, 2048")
    a("v_cndmask_b32 v11, v11, v12, vcc")
    a("v_and_b32 v10, 16, v0")
    a("v_cmp_eq_u32 vcc, 0, v10")
    a("s_lshl_b32 s8, s19, 12")
    a(f"s_add_u32 s8, s8, {L_Q}")
    a("v_cndmask_b32 v8, v11, v8, vcc")
    a("v_cndmask_b32 v9, v11, v9, vcc")
    a(f"v_add_u32 v{AV_V0}, s21, v8")
    a(f"v_add_u32 v{AV_V1}, s21, v9")
    a(f"v_add_u32 v{AV_QA}, s8, v{AV_KA}")
    a(f"s_lshl_b32 s8, s{S_SL}, 2")
    a("s_add_u32 s8, s8, 4")
    a(f"v_add_u32 v{AV_FA}, s8, v0")
    a(f"v_and_b32 v{AV_FA}, 63, v{AV_FA}")
    a(f"v_lshrrev_b32 v8, 2, v{AV_FA}")
    a(f"v_and_b32 v{AV_FA}, 3, v{AV_FA}")
    a(f"v_lshlrev_b32 v{AV_FA}, 3, v{AV_FA}")
    a(f"v_lshl_add_u32 v{AV_FA}, v8, 7, v{AV_FA}", "lane l polls tile (l + 4sl + 4) & 63")
    a("s_lshl_b32 s27, 0x555, s18", "flags of the first 6 remote tiles")
    a("s_lshl_b32 s8, s19, 10")
    a(f"s_add_u32 s8, s8, {L_K0}")
    a(f"v_add_u32 v1, s8, v{AV_KA}")
    a("v_lshrrev_b32 v8, 3, v0")
    a("v_min_u32 v8, 5, v8")
    a(f"v_mul_u32_u24 v8, {4*KSLOT}, v8")
    a("v_and_b32 v9, 7, v0")
    a("v_lshl_add_u32 v8, v9, 2, v8")
    a("v_cmp_gt_u32 vcc, 4, v9")
    a("v_add_u32 v230, s21, v8")
    a("v_mov_b32 v10, 0x3f803f80")
    a("v_cndmask_b32 v231, 0, v10, vcc")
    a(f"s_lshl_b32 s8, s{S_SL}, 1")
    a("s_add_u32 s8, s8, s18")
    a("s_lshl_b32 s9, s8, 8")
    a(f"s_add_u32 s32, s9, {WS_G}")
    a("s_lshl_b32 s9, s8, 6")
    a(f"s_add_u32 s33, s9, {WS_FH}")
    a("v_and_b32 v232, 31, v0")
    a("v_lshlrev_b32 v232, 2, v232")
    a("v_and_b32 v233, 7, v0")
    a("v_lshlrev_b32 v233, 3, v233")
    a(f"s_lshl_b32 s22, s{S_HP}, 11")
    a(f"s_add_u32 s22, s22, {WS_FKV}", "flag base")
    a(f"s_add_u32 s28, s22, {WS_FKVS}")
    a("s_lshl_b32 s23, 0x55555555, s18", "flag mask")
    a("s_mov_b32 s24, 0", "0: fast pass, 1: exact-max pass")
    a("s_mov_b32 s25, 2", "pair sync target")


def gemm_setup(a):
    a.c("GEMM setup")
    srd(a, R_WO, 20, 512 * 512 * 2)
    srd(a, R_B1, 26, 1792 * 2)
    srd(a, R_W2, 28, 1792 * 2048 * 2)
    srd(a, R_B2, 30, 2048 * 2)
    srd(a, R_OUT, 34, 2048 * 512 * 2)
    a("v_lshrrev_b32 v64, 3, v0")
    a("v_and_b32 v65, 7, v0")
    a("v_bfe_u32 v66, v0, 4, 1")
    a("v_lshlrev_b32 v66, 2, v66")
    a("v_xor_b32 v65, v65, v66")
    a("v_lshlrev_b32 v65, 4, v65")
    a(f"v_mul_u32_u24 v{GV_DMA}, 3584, v64")
    a(f"v_add_u32 v{GV_DMA}, v{GV_DMA}, v65")
    a(f"v_lshl_add_u32 v{GV_DMA+1}, v64, 12, v65")
    a(f"v_lshl_add_u32 v{GV_DMA+2}, v64, 10, v65")
    a(f"s_mul_i32 s18, s81, {TR*2048}")
    a(f"s_add_u32 s18, s18, {M_RED}", "T slot base (own reduction area; ring at +49152)")
    a("v_bfe_u32 v64, v0, 2, 2")
    a("v_lshlrev_b32 v65, 7, v64")
    a("v_bfe_u32 v64, v0, 3, 1")
    a("v_lshl_add_u32 v65, v64, 6, v65")
    a("v_bfe_u32 v64, v0, 4, 1")
    a("v_lshl_add_u32 v65, v64, 5, v65")
    a("v_add_u32 v65, s18, v65", "rows r, half swap, colhalf")
    a("v_and_b32 v64, 3, v0")
    a("v_lshl_add_u32 v66, v64, 3, v65", "+8c")
    a("v_and_b32 v64, 1, v0")
    a("v_lshl_add_u32 v67, v64, 4, v65")
    a("v_bfe_u32 v64, v0, 1, 1")
    a("v_lshl_add_u32 v67, v64, 3, v67", "+16(c&1)+8(c>>1): column permutation swap23")
    a("v_lshrrev_b32 v64, 5, v0")
    a("s_lshr_b32 s8, s81, 1", "a_w")
    a("s_and_b32 s9, s81, 1", "b_w")
    a("s_lshl_b32 s19, s8, 6")
    a("s_lshl_b32 s20, s9, 6")
    a(f"v_lshl_add_u32 v{GV_TA1}, v64, 10, v66")
    a(f"v_xor_b32 v{GV_TA1}, s19, v{GV_TA1}")
    a(f"v_xor_b32 v{GV_TA1+1}, 64, v{GV_TA1}")
    a(f"v_lshl_add_u32 v{GV_TA2}, v64, 9, v66")
    a(f"v_xor_b32 v{GV_TA2}, s20, v{GV_TA2}")
    a(f"v_xor_b32 v{GV_TA2+1}, 64, v{GV_TA2}")
    a(f"v_lshl_add_u32 v{GV_TA3}, v64, 9, v67")
    a(f"v_xor_b32 v{GV_TA3}, s19, v{GV_TA3}")
    a(f"v_xor_b32 v{GV_TA3+1}, 64, v{GV_TA3}")
    a("s_lshl_b32 s19, s8, 10")
    a("s_lshl_b32 s20, s9, 10")
    a("v_lshlrev_b32 v64, 4, v0")
    a(f"v_add_u32 v{GV_DB}, s20, v64")
    a(f"v_xor_b32 v{GV_DB+1}, 1024, v{GV_DB}")
    a(f"v_add_u32 v{GV_DA}, s19, v64")
    a(f"v_xor_b32 v{GV_DA+1}, 1024, v{GV_DA}")
    for v in range(1, 4):
        a(f"s_xor_b32 s8, s81, {v}")
        a("s_mul_i32 s8, s8, 12288")
        a(f"s_add_u32 s8, s8, {M_RED + (v-1)*4096}")
        a(f"v_add_u32 v{GV_MISC+v}, s8, v64")
    a("s_mul_i32 s8, s81, 12288")
    a(f"s_add_u32 s8, s8, {M_RED}")
    a(f"v_add_u32 v{GV_MISC}, s8, v64")
    a(f"s_lshr_b32 s8, s{S_XCD}, 1")
    a("s_mul_i32 s8, s8, 7", "7p")
    a(f"s_and_b32 s9, s{S_XCD}, 1")
    a("s_lshl_b32 s9, s9, 2", "4*odd")
    a(f"s_lshr_b32 s23, s{S_IDX}, 3", "j")
    a("s_add_u32 s20, s8, s9")
    a("s_add_u32 s20, s20, s23", "ft (j<3)")
    a("s_add_u32 s8, s8, 3")
    a(f"s_and_b32 s19, s{S_IDX}, 7")
    a(f"s_and_b32 s21, s{S_IDX}, 3")
    a("s_add_u32 s9, s9, s21")
    a("s_cmp_eq_u32 s23, 3")
    a("s_cselect_b32 s20, s8, s20", "ft")
    a("s_cselect_b32 s19, s9, s19", "dt (G1)")
    a(f"s_and_b32 s23, s23, {OPT['r1m']}")
    a(f"s_lshl_b32 s23, s23, {OPT['r1s']}", "rot G1 (h sharers)")
    a(f"s_lshr_b32 s22, s{S_IDX}, 2", "dt (G2)")
    a(f"s_and_b32 s9, s21, {OPT['r2m']}")
    a(f"s_mul_i32 s9, s9, {OPT['r2s']}")
    a(f"s_lshl_b32 s8, s{S_XCD}, 2")
    a("s_add_u32 s21, s8, s21", "st")
    a("s_mul_i32 s8, s22, 7")
    a("s_lshr_b32 s8, s8, 1")
    a("s_add_u32 s24, s9, s8")
    a("s_sub_u32 s9, s24, 28")
    a("s_cmp_ge_u32 s24, 28")
    a("s_cselect_b32 s24, s9, s24", "rot G2")


def bias_loads(a):
    a("v_lshrrev_b32 v64, 5, v0")
    a("v_lshlrev_b32 v64, 3, v64")
    a("s_lshl_b32 s8, s20, 7")
    a("s_lshr_b32 s9, s81, 1")
    a("s_lshl_b32 s9, s9, 6")
    a("s_add_u32 s8, s8, s9")
    for g in range(4):
        a.vmem(f"buffer_load_dwordx2 {vr(GV_Y+2*g,2)}, v64, {rs(R_B1)}, s8 offen offset:{16*g}", "b1")
    a("v_and_b32 v65, 31, v0")
    a("v_lshlrev_b32 v65, 1, v65")
    a("s_lshl_b32 s8, s21, 6")
    a("s_and_b32 s9, s81, 1")
    a("s_lshl_b32 s9, s9, 5")
    a("s_add_u32 s91, s8, s9", "first row of own output sub-tile")
    a("s_lshl_b32 s8, s91, 1")
    a.vmem(f"buffer_load_ushort v15, v65, {rs(R_B2)}, s8 offen", "b2")
    a(f"v_lshlrev_b32 v{GV_MISC+4}, 3, v0")
    a("s_lshl_b32 s96, s81, 9")
    a(f"s_add_u32 s96, s96, {WS_FH}")


def warm_setup(a):
    srd(a, R_W1, 24, 2048 * 1792 * 2)
    a("v_lshrrev_b32 v174, 5, v0")
    a("v_mul_u32_u24 v174, 3584, v174")
    a("v_and_b32 v175, 31, v0")
    a("v_lshl_add_u32 v174, v175, 4, v174")
    a(f"s_lshr_b32 s8, s{S_XCD}, 1")
    a("s_mul_i32 s8, s8, 7")
    a(f"s_and_b32 s9, s{S_XCD}, 1")
    a("s_mul_i32 s9, s9, 3")
    a("s_add_u32 s8, s8, s9")
    a("s_lshl_b32 s90, s8, 7")
    a(f"s_lshl_b32 s8, s{S_IDX}, 3")
    a(f"s_add_u32 s8, s8, s{S_WAVE}")
    a("s_lshr_b32 s9, s8, 6")
    a("s_lshl_b32 s9, s9, 9")
    a("s_and_b32 s8, s8, 63")
    a("s_lshl_b32 s8, s8, 1")
    a("s_add_u32 s8, s8, s9")
    a("s_mul_i32 s8, s8, 3584")
    a("s_add_u32 s8, s8, s90")
    a("s_mov_b32 s87, s8")


def epi_addr(a, par):
    a(f"s_lshl_b32 s84, s{S_SL}, 2")
    a("s_add_u32 s84, s84, s81", "tile")
    a("v_lshlrev_b32 v170, 4, v0")
    if par == 0:
        a("s_lshl_b32 s8, s81, 10")
        a(f"s_add_u32 s8, s8, {L_Q}")
        a("v_add_u32 v171, s8, v170")
    else:
        a(f"s_lshl_b32 s88, s{S_HP}, 18")
        a("s_lshl_b32 s9, s84, 11")
        a("s_add_u32 s88, s88, s9")
        a(f"s_add_u32 s88, s88, {WS_KV}")
        a("s_add_u32 s89, s88, 0x20000")
        a("v_lshrrev_b32 v171, 5, v0")
        a("v_lshlrev_b32 v171, 8, v171")
        a("v_and_b32 v172, 15, v0")
        a("v_lshl_add_u32 v171, v172, 4, v171", "h'*256 + i*16")
        a("v_bfe_u32 v173, v0, 4, 1", "e")
        a("v_lshl_add_u32 v172, v173, 17, v171", "global V voffset")
        a("s_and_b32 s8, s81, 1")
        a(f"s_mul_i32 s8, s8, {KSLOT}")
        a("s_lshr_b32 s9, s81, 1")
        a(f"s_mul_i32 s9, s9, {4*KSLOT}")
        a("s_add_u32 s8, s8, s9")
        a(f"s_add_u32 s8, s8, {KVR + KSO(0)}")
        a(f"v_mul_u32_u24 v173, {2*KSLOT}, v173")
        a("v_add3_u32 v173, v173, v171, s8", "LDS V addr")
        a("v_add_u32 v171, s8, v170", "LDS K addr")


def proj(a, par):
    a.c(f"projection role {par}")
    ACC = 96 if par == 0 else 80
    XF, WF, XA, WA = PV_XF, PV_WF, PV_XA, PV_WA
    vm = []
    for t in a.vm:
        if t.endswith("A"):
            if par == 0:
                vm.append(t[:-1])
        else:
            vm.append(t)
    a.vm = vm

    def pretouch():
        nt = "nt" if OPT["ptnt"] else ""
        if not OPT["local"] or OPT["pt"] == 0:
            pass
        elif par == 1:
            a.vmem(f"buffer_load_dwordx4 v[248:251], v170, {rs(R_WS)}, s88 offen {nt}", "pt")
            a.vmem(f"buffer_load_dwordx4 v[248:251], v170, {rs(R_WS)}, s89 offen {nt}", "pt")
        else:
            a(f"s_lshl_b32 s8, s{S_HP}, 18")
            a("s_lshl_b32 s9, s84, 11")
            a("s_add_u32 s8, s8, s9")
            a(f"s_add_u32 s8, s8, {WS_KV}")
            a("s_add_u32 s9, s8, 0x20000")
            a.vmem(f"buffer_load_dwordx4 v[248:251], v170, {rs(R_WS)}, s8 offen offset:1024 {nt}", "pt")
            a.vmem(f"buffer_load_dwordx4 v[248:251], v170, {rs(R_WS)}, s9 offen offset:1024 {nt}", "pt")
            a.vmem(f"buffer_load_dwordx2 v[248:249], v{AV_FA}, {rs(R_WS)}, s22 offen {nt}", "pt")
        if OPT["w1mode"] == 0:
            for q in range(OPT["mwn"]):
                a(f"s_add_u32 s8, s87, {q*128*3584}")
                a.vmem(f"buffer_load_dwordx4 v[248:251], v174, {rs(R_W1)}, s8 offen", "warm")
    segs = [0] if par == 0 else [1, 2]
    SETS = [(XF, WF), (16, 32)]

    def reads(c):
        slot = c % NPS
        xf, wf = SETS[c % 2]
        L = []
        for ks in range(4):
            L.append(f"ds_read_b128 {vr(xf+4*ks,4)}, v{XA+ks} offset:{P_XS + slot*16384}")
            for si, seg in enumerate(segs):
                off = slot * 12288 + ks * 3072 + seg * 1024
                w = wf + 8 * ks + 4 * si
                L.append(f"ds_read_b64_tr_b16 {vr(w,2)}, v{WA} offset:{off}")
                L.append(f"ds_read_b64_tr_b16 {vr(w+2,2)}, v{WA} offset:{off+256}")
        return L

    def mms(c):
        xf, wf = SETS[c % 2]
        L = []
        for ks in range(4):
            z = (c == 0 and ks == 0)
            L.append(mfma(ACC, wf + 8 * ks, xf + 4 * ks, "0" if z else ACC))
            if par == 1:
                L.append(mfma(ACC + 16, xf + 4 * ks, wf + 8 * ks + 4, "0" if z else ACC + 16))
        return L

    LA = OPT["la"]
    for c in range(2, LA - 1):
        p_issue(a, c, par)
    stamp(a, 2)
    a.vm_wait("ch0")
    a("s_barrier")
    stamp(a, 32)
    for x in reads(0):
        a.lds(x, "r")
    p_issue(a, LA - 1, par)
    LNS = OPT["lnc"] + 1
    for c in range(8):
        a.c(f"chunk {c}")
        a.lg_drain()
        R, Mm = [], mms(c)
        a(Mm.pop(0))
        if c + 1 < 8:
            a.vm_wait(f"ch{c+1}")
            a("s_barrier")
            stamp(a, 33 + c)
            R = reads(c + 1)
        per = 4
        while Mm or R:
            for x in R[:per]:
                a.lds(x, "r")
            R = R[per:]
            if Mm:
                a(Mm.pop(0))
        if c == LNS:
            ln_store(a)
        if c + LA < 8:
            p_issue(a, c + LA, par)
        if c == LNS + LA - 1:
            tag_get(a)
            if par == 1:
                lab = a.label("nofh")
                a("s_cmp_lg_u32 s81, 0")
                a(f"s_cbranch_scc1 {lab}")
                a(f"s_add_u32 s8, s80, {WS_FH}")
                n0 = len(a.vm)
                flag_set(a, "s8", 218, 220)
                a.vm = a.vm[:n0]
                a(f"{lab}:")
        if c == OPT["lnc"]:
            ln_compute(a)
        if c == OPT["suc"] - 1:
            warm_setup(a)
            epi_addr(a, par)
        if c == OPT["suc"]:
            att_setup(a) if par == 0 else gemm_setup(a)
        if c == OPT["ptc"]:
            pretouch()
        if c == OPT["suc"] + 1 and par == 1:
            bias_loads(a)
    stamp(a, 3)
    a.c("projection epilogue")
    if par == 0:
        a(f"s_mov_b32 s8, {f32bits(0.25*LOG2E)}")
        a(f"s_mov_b32 s9, {f32bits(0.25*LOG2E)}")
        a("s_nop 9")
        for r in range(0, 16, 2):
            a(f"v_pk_mul_f32 {vr(ACC+r,2)}, {vr(ACC+r,2)}, s[8:9]")
        for r in range(8):
            a(f"v_cvt_pk_bf16_f32 v{XF+r}, v{ACC+2*r}, v{ACC+2*r+1}")
        a.lds(f"ds_write_b128 v171, {vr(XF,4)}", "qw")
        a.lds(f"ds_write_b128 v171, {vr(XF+4,4)} offset:4096", "qw")
    else:
        a("s_nop 10")
        for r in range(16):
            a(f"v_cvt_pk_bf16_f32 v{XF+r}, v{ACC+2*r}, v{ACC+2*r+1}")
        a.lds(f"ds_write_b128 v171, {vr(XF,4)}", "kw")
        a.lds(f"ds_write_b128 v171, {vr(XF+4,4)} offset:{2*KSLOT}", "kw")
        lab = a.label("nok0")
        a("s_cmp_lg_u32 s81, 0")
        a(f"s_cbranch_scc1 {lab}")
        a(f"ds_write_b128 v171, {vr(XF,4)} offset:{L_K0-KVR-KSO(0)}")
        a(f"ds_write_b128 v171, {vr(XF+4,4)} offset:{L_K0-KVR-KSO(0)+1024}")
        a(f"{lab}:")
        a.lds(f"ds_write_b128 v173, {vr(XF+8,4)} offset:1024", "kw")
        a.lds(f"ds_write_b128 v173, {vr(XF+12,4)} offset:1536", "kw")
    a.lg_drain()
    a("s_barrier")
    if par == 1:
        a.vmem(f"buffer_store_dwordx4 {vr(XF,4)}, v170, {rs(R_WS)}, s88 offen {KVSC()}", "kvst")
        a.vmem(f"buffer_store_dwordx4 {vr(XF+4,4)}, v170, {rs(R_WS)}, s89 offen {KVSC()}", "kvst")
        a.vmem(f"buffer_store_dwordx4 {vr(XF+8,4)}, v172, {rs(R_WS)}, s88 offen offset:1024 {KVSC()}", "kvst")
        a.vmem(f"buffer_store_dwordx4 {vr(XF+12,4)}, v172, {rs(R_WS)}, s88 offen offset:1536 {KVSC()}", "kvst")


def attn_body(a, u_list, extra):
    kb = lambda n: n % 2
    for (n, i, pn, pi, nn, ni, par) in u_list:
        cur, nxt = AV_S + 16 * par, AV_S + 16 * (1 - par)
        E = lambda r: a(f"v_exp_f32 v{cur+r}, v{cur+r}")
        C = lambda r: a(f"v_cvt_pk_bf16_f32 v{AV_P+r}, v{cur+2*r}, v{cur+2*r+1}")
        E(0)
        E(1)
        if pn is not None:
            a(mfma(AV_O + 16 * pi, AV_V + 8 * kb(pn) + 4, AV_P + 4, AV_O + 16 * pi))
        extra(n, i, 0)
        for r in range(2, 8):
            E(r)
        if nn is not None:
            a(mfma(nxt, AV_K + 4 * kb(nn), AV_Q + 4 * ni, AV_C + 16 * ni))
            extra(n, i, 1)
        else:
            a("s_nop 0")
        for r in range(4):
            C(r)
        for r in range(8, 12):
            E(r)
        a(mfma(AV_O + 16 * i, AV_V + 8 * kb(n), AV_P, "0" if n == 0 else AV_O + 16 * i))
        extra(n, i, 2)
        for r in range(12, 16):
            E(r)
        for r in range(4, 8):
            C(r)


def attention(a):
    a.c("attention role")
    KS = "s12"

    def rd(n):
        so, b = KSO(n), n % 2
        return [f"ds_read_b128 {vr(AV_K+4*b,4)}, v{AV_KR} offset:{so}",
                f"ds_read_b128 {vr(AV_V+8*b,4)}, v{AV_V0} offset:{so}",
                f"ds_read_b128 {vr(AV_V+8*b+4,4)}, v{AV_V1} offset:{so}"]

    def dma(n):
        return [f"s_add_u32 m0, s21, {KSO(n)}",
                f"buffer_load_dwordx4 v{AV_KA}, {rs(R_KV)}, {KS} offen sc1 lds",
                f"buffer_load_dwordx4 v{AV_KA}, {rs(R_KV)}, {KS} offen offset:1024 sc1 lds",
                f"s_add_u32 {KS}, {KS}, 4096",
                f"s_and_b32 {KS}, {KS}, 0x1ffff"]

    def kv_wait(mlo, mhi):
        l1, l2, l3 = a.label("kvp"), a.label("kvok"), a.label("kvs")
        a(f"s_mov_b32 s17, {SPIN}")
        a(f"{l1}:")
        a(f"buffer_load_dwordx2 v[8:9], v{AV_FA}, {rs(R_WS)}, s22 offen sc1")
        a(f"buffer_load_dwordx2 v[10:11], v{AV_FA}, {rs(R_WS)}, s28 offen sc1")
        a("s_waitcnt vmcnt(0)")
        flag_check(a, 8, mlo, mhi, S_LTAG)
        a(f"s_cbranch_scc1 {l2}")
        flag_check(a, 10, mlo, mhi)
        a(f"s_cbranch_scc1 {l3}")
        a("s_sleep 1")
        spin_guard(a, l1)
        a(f"{l3}:")
        a(f"s_mov_b32 s{R_KV}, s30")
        a(f"s_mov_b32 s{R_KV+1}, s31")
        a("s_mov_b32 s22, s28", "from now on only the written-through flags count")
        a(f"s_mov_b32 s{S_LTAG+1}, s{S_TAG+1}")
        a(f"{l2}:")

    a(f"s_setprio {OPT['prio_att']}")
    a("ds_write_b32 v230, v231 offset:2048")
    for i in range(4):
        a(f"ds_read_b128 {vr(AV_Q+4*i,4)}, v{AV_QA} offset:{i*1024}")
    a(f"ds_read_b128 {vr(AV_S,4)}, v1", "K tile 0 of my head")
    stamp(a, 4)
    a.c("max estimate from own key tile 0")
    a("s_waitcnt lgkmcnt(0)")
    for i in range(4):
        a(mfma(AV_C + 16 * i, AV_S, AV_Q + 4 * i, "0"))
    for x in rd(0):
        a(x)
    a("s_nop 5")
    for i in range(4):
        a(f"v_max3_f32 v{12+i}, v{AV_C+16*i}, v{AV_C+16*i+1}, v{AV_C+16*i+2}")
        for r in range(6):
            a(f"v_max3_f32 v{12+i}, v{AV_C+16*i+3+2*r}, v{AV_C+16*i+4+2*r}, v{12+i}")
        a(f"v_max_f32 v{12+i}, v{AV_C+16*i+15}, v{12+i}")
    lredo = a.label("redo")
    a(f"{lredo}:")
    for i in range(4):
        a(f"v_mov_b32 v{8+i}, v{12+i}")
    a("s_nop 1")
    for i in range(4):
        a(f"v_permlane32_swap_b32 v{12+i}, v{8+i}")
    a("s_nop 1")
    for i in range(4):
        a(f"v_max_f32 v{12+i}, v{12+i}, v{8+i}")
    for i in range(4):
        a(f"v_sub_f32 v{AV_C+16*i}, 0, v{12+i}")
        a(f"v_sub_f32 v{AV_C+16*i+1}, 0, v{12+i}")
    for r in range(2, 16, 2):
        a(f"v_mov_b64 {vr(AV_C+r,2)}, {vr(AV_C,2)}")
    a("s_nop 0")
    a("s_waitcnt lgkmcnt(0)")
    a(mfma(AV_S, AV_K, AV_Q, AV_C))
    for i in range(1, 4):
        for r in range(2, 16, 2):
            a(f"v_mov_b64 {vr(AV_C+16*i+r,2)}, {vr(AV_C+16*i,2)}")
    stamp(a, 5)
    a.c("phase A: own tiles")
    ul = []
    for u in range(8):
        n, i = u // 4, u % 4
        pn, pi = (None, None) if u == 0 else ((u - 1) // 4, (u - 1) % 4)
        nn, ni = ((u + 1) // 4, (u + 1) % 4) if u < 7 else (None, None)
        ul.append((n, i, pn, pi, nn, ni, u % 2))

    fl = []
    for n_ in range(2, 2 + KR):
        d = dma(n_)
        fl.append([d[0], d[1]] if n_ == 2 else [d[3], d[4], d[0], d[1]])
        fl.append([d[2]])
    lw1, lw1b = a.label("kvw"), a.label("kvwb")

    def extraA(n, i, slot):
        if n == 0 and (i, slot) in ((0, 1), (0, 2), (1, 0)):
            a(rd(1)[[(0, 1), (0, 2), (1, 0)].index((i, slot))])
        if n == 0 and (i, slot) == (1, 1):
            a(f"buffer_load_dwordx2 v[8:9], v{AV_FA}, {rs(R_WS)}, s22 offen sc1")
        if n == 0 and (i, slot) == (1, 2):
            a(f"buffer_load_dwordx2 v[228:229], v233, {rs(R_WS)}, s33 offen sc1")
        if n == 0 and (i, slot) == (3, 0):
            a("s_waitcnt lgkmcnt(0)")
        if n == 0 and (i, slot) == (3, 1):
            a("s_waitcnt vmcnt(0)")
            flag_check(a, 8, "s23", "s23", S_LTAG)
            a("s_cselect_b32 s13, 0, 5", "s13 == s16 -> remaining flags still to be checked")
            a("s_and_b32 s10, vcc_lo, s27")
            a(f"s_cbranch_scc1 {lw1}")
            a(f"{lw1b}:")
        k = None
        if n == 0 and (i, slot) == (3, 2):
            k = 0
        elif n == 1:
            k = 1 + 3 * i + slot - (1 if (i, slot) == (3, 2) else 0)
        if k is not None:
            grp = fl[k]
            if len(grp) > 1:
                for x in grp[:-1]:
                    a(x)
                a("s_nop 0")
            a(grp[-1])
    a(f"s_lshl_b32 {KS}, s{S_SL}, 2")
    a(f"s_add_u32 {KS}, {KS}, s18")
    a(f"s_add_u32 {KS}, {KS}, 4")
    a(f"s_lshl_b32 {KS}, {KS}, 11")
    a(f"s_and_b32 {KS}, {KS}, 0x1ffff")
    a(f"v_mov_b32 v224, {M_CNT+36}")
    a("v_mov_b32 v225, 1")
    attn_body(a, ul, extraA)
    stamp(a, 6)
    a(dma(2)[3])
    a(dma(2)[4])
    lg1 = a.label("gok")
    flag_check(a, 228, "-1", "-1")
    a(f"s_cbranch_scc1 {lg1}")
    flag_wait(a, "s33", 233, 228, "-1", "-1")
    a(f"{lg1}:")
    a(f"buffer_load_dwordx2 v[8:9], v{AV_FA}, {rs(R_WS)}, s22 offen sc1")
    a(f"buffer_load_dword v226, v232, {rs(R_WS)}, s32 offen sc1")
    a(f"buffer_load_dword v227, v232, {rs(R_WS)}, s32 offen offset:128 sc1")
    a("s_mov_b64 exec, 1")
    a("ds_add_u32 v224, v225", "release the GEMM waves")
    a("s_mov_b64 exec, -1")
    a(f"s_waitcnt vmcnt({2*(KR-1)+3})")
    for x in rd(2):
        a(x)
    a("s_mov_b32 s16, 5")
    stamp(a, 7)
    a("s_waitcnt lgkmcnt(0)")
    a(mfma(AV_S, AV_K, AV_Q, AV_C))
    a("s_nop 10")
    lloop = a.label("attn")
    a(".p2align 6")
    a(f"{lloop}:")
    ul = []
    for u in range(24):
        n, i = 2 + u // 4, u % 4
        pn, pi = 2 + (u - 1) // 4, (u - 1) % 4
        nn, ni = 2 + (u + 1) // 4, (u + 1) % 4
        ul.append((n, i, pn, pi, nn, ni, u % 2))

    lchk, lback = a.label("chk"), a.label("chkb")

    def extraL(n, i, slot):
        d, r = dma(n + KR), rd(n + 1)
        sched = {(0, 0): f"s_waitcnt vmcnt({2*(KR-2)})", (0, 1): r[0], (0, 2): r[1], (1, 0): r[2],
                 (1, 1): d[0], (1, 2): d[1], (2, 0): d[2], (2, 1): d[3], (2, 2): d[4],
                 (3, 0): "s_waitcnt lgkmcnt(0)"}
        if n == 2 and (i, slot) == (1, 0):
            a("s_cmp_eq_u32 s16, s13")
        if n == 2 and (i, slot) == (1, 1):
            a(f"s_cbranch_scc1 {lchk}")
            a(f"{lback}:")
        if (i, slot) in sched:
            a(sched[(i, slot)])
        if OPT["stamps"] and n == 2 and (i, slot) == (2, 2):
            a("s_memrealtime s[98:99]")
            a("s_memtime s[100:101]")
        if OPT["stamps"] and n == 2 and (i, slot) == (3, 1):
            a("s_add_u32 m0, s16, 40")
            a("s_nop 0")
            a("v_writelane_b32 v254, s98, m0")
            a("v_writelane_b32 v255, s100, m0")
        if n == 6 and (i, slot) == (3, 1):
            a("s_sub_u32 s16, s16, 1")
        if n == 6 and (i, slot) == (3, 2):
            a("s_cmp_eq_u32 s16, 1")
        if n == 7 and (i, slot) == (0, 0):
            a("s_cselect_b32 s26, 0, 0x20000")
        if n == 7 and (i, slot) == (3, 1):
            a(f"s_mov_b32 s{R_KV+2}, s26", "last iteration: DMA out of range (no traffic)")
        if n == 7 and (i, slot) == (3, 2):
            a("s_cmp_lg_u32 s16, 0")
    attn_body(a, ul, extraL)
    a(f"s_cbranch_scc1 {lloop}")
    a("s_nop 0")
    a(mfma(AV_O + 48, AV_V + 8 + 4, AV_P + 4, AV_O + 48))
    stamp(a, 8)
    a.c("check + combine")
    a("v_lshlrev_b32 v9, 2, v0")
    a("v_add_u32 v9, s21, v9", "own area, lane*4")
    a(f"s_xor_b32 s8, s{S_WAVE}, 1")
    a(f"s_mul_i32 s8, s8, {KSLOT}")
    a(f"s_add_u32 s8, s8, {KVR}")
    a(f"v_add_u32 v10, s8, v{AV_KA}", "partner area")
    a("v_lshlrev_b32 v11, 2, v0")
    a("v_add_u32 v11, s8, v11")
    a("s_waitcnt vmcnt(0)")
    a("s_nop 2")
    a(f"v_add_f32 v8, v{AV_O+8}, v{AV_O+24}")
    a(f"v_add_f32 v1, v{AV_O+40}, v{AV_O+56}")
    a("v_add_f32 v8, v8, v1")
    a(f"v_mov_b32 v1, {f32bits(2.0**60)}")
    a("v_cmp_nlt_f32 vcc, v8, v1")
    a("s_cmp_lg_u64 vcc, 0")
    a("s_cselect_b32 s8, 0x10001, 1")
    a("v_mov_b32 v1, s8")
    lk1, ljoin = a.label("kh1"), a.label("khj")
    a("s_cmp_eq_u32 s18, 1")
    a(f"s_cbranch_scc1 {lk1}")

    def send(o, j):
        a(f"ds_write_b128 v{AV_KR}, {vr(o,4)} offset:{KSO(2*j)}")
        a(f"ds_write_b128 v{AV_KR}, {vr(o+4,4)} offset:{KSO(2*j)+1024}")
        a(f"ds_write_b32 v9, v{o+8} offset:{KSO(2*j+1)}")
    for j in range(2):
        send(AV_O + 16 * (2 + j), j)
    a(f"s_branch {ljoin}")
    a(f"{lk1}:")
    for j in range(2):
        send(AV_O + 16 * j, j)
    a("s_waitcnt lgkmcnt(0)")
    for j in range(2):
        for r in range(9):
            a(f"v_mov_b32 v{AV_O+16*j+r}, v{AV_O+16*(2+j)+r}")
    a(f"{ljoin}:")
    lab, lab2 = a.label("asy"), a.label("asyd")
    a("s_lshl_b32 s8, s19, 2")
    a(f"s_add_u32 s8, s8, {M_CNT}")
    a("v_mov_b32 v8, s8")
    a("s_mov_b64 exec, 1")
    a("ds_add_u32 v8, v1")
    a("s_mov_b64 exec, -1")
    a(f"s_mov_b32 s17, {SPIN*16}")
    a(f"{lab}:")
    a("ds_read_b32 v9, v8")
    a("s_waitcnt lgkmcnt(0)")
    a("v_readfirstlane_b32 s8, v9")
    a("s_and_b32 s9, s8, 0xffff")
    a("s_cmp_ge_u32 s9, s25")
    a(f"s_cbranch_scc1 {lab2}")
    spin_guard(a, lab)
    a(f"{lab2}:")
    stamp(a, 48)
    lok, lslow = a.label("aok"), a.label("aslow")
    a("s_lshr_b32 s9, s8, 16")
    a("s_cmp_lg_u32 s9, 0")
    a(f"s_cbranch_scc1 {lslow}")
    a(f"{lok}:")
    for j in range(2):
        t = AV_S + 16 * j
        a(f"ds_read_b128 {vr(t,4)}, v10 offset:{KSO(2*j)}")
        a(f"ds_read_b128 {vr(t+4,4)}, v10 offset:{KSO(2*j)+1024}")
        a(f"ds_read_b32 v{t+8}, v11 offset:{KSO(2*j+1)}")
    a(f"s_lshl_b32 s8, s{S_SL}, 1")
    a("s_add_u32 s8, s8, s18")
    a("s_lshl_b32 s8, s8, 5")
    a("s_add_u32 s8, s8, s20", "st*32 + head")
    a(f"s_lshl_b32 s9, s{S_SL}, 4")
    a(f"s_add_u32 s9, s9, s{S_HP}")
    a("s_lshl_b32 s9, s9, 3")
    a("s_add_u32 s9, s9, s18")
    a("s_lshl_b32 s9, s9, 1")
    a("s_add_u32 s9, s9, s19")
    a("s_lshl_b32 s9, s9, 3")
    a(f"s_add_u32 s9, s9, {WS_FO}")
    a("s_lshl_b32 s8, s8, 11")
    a(f"s_add_u32 s8, s8, {WS_O}")
    a("s_waitcnt lgkmcnt(0)")
    for j in range(2):
        a(f"v_add_f32 v{AV_O+16*j+8}, v{AV_O+16*j+8}, v{AV_S+16*j+8}")
    for j in range(2):
        a(f"v_rcp_f32 v{AV_O+16*j+8}, v{AV_O+16*j+8}")
    for j in range(2):
        for r in range(8):
            a(f"v_add_f32 v{AV_O+16*j+r}, v{AV_O+16*j+r}, v{AV_S+16*j+r}")
    for j in range(2):
        a(f"v_mul_f32 v{AV_O+16*j+8}, v{AV_O+16*j+8}, v{226+j}", "g / l")
    for j in range(2):
        for r in range(8):
            a(f"v_mul_f32 v{AV_O+16*j+r}, v{AV_O+16*j+r}, v{AV_O+16*j+8}")
        for r in range(4):
            a(f"v_cvt_pk_bf16_f32 v{AV_P+4*j+r}, v{AV_O+16*j+2*r}, v{AV_O+16*j+2*r+1}")
        a(f"buffer_store_dwordx4 {vr(AV_P+4*j,4)}, v{AV_KA}, {rs(R_WS)}, s8 offen offset:{j*1024} sc1")
    stamp(a, 49)
    a(f"v_mov_b32 v10, s{S_TAG}")
    a(f"v_mov_b32 v11, s{S_TAG+1}")
    a("v_mov_b32 v9, 0")
    a("s_mov_b64 exec, 1")
    a("s_waitcnt vmcnt(0)")
    a(f"buffer_store_dwordx2 v[10:11], v9, {rs(R_WS)}, s9 offen sc1")
    a("s_mov_b64 exec, -1")
    stamp(a, 9, True)
    a("s_endpgm")
    a(f"{lw1}:")
    kv_wait("s27", "0")
    a(f"s_branch {lw1b}")
    a(f"{lchk}:")
    a("s_waitcnt vmcnt(0)")
    flag_check(a, 8, "s23", "s23", S_LTAG)
    a(f"s_cbranch_scc1 {lback}")
    kv_wait("s23", "s23")
    a(f"s_branch {lback}")
    a(f"{lslow}:")
    a("s_cmp_lg_u32 s24, 0")
    a(f"s_cbranch_scc1 {lok}")
    a("s_mov_b32 s24, 1")
    a("s_mov_b32 s25, 4")
    a(f"s_mov_b32 s{R_KV+2}, 0x20000")
    kv_wait("-1", "-1")
    for i in range(4):
        a(f"v_mov_b32 v{12+i}, 0xff800000")
    a("s_mov_b32 s8, 0")
    lmax = a.label("maxloop")
    a(f"{lmax}:")
    a(f"buffer_load_dwordx4 {vr(AV_K,4)}, v{AV_KA}, {rs(R_KV)}, s8 offen sc1")
    a("s_waitcnt vmcnt(0)")
    for i in range(4):
        a(mfma(AV_C + 16 * i, AV_K, AV_Q + 4 * i, "0"))
    a("s_nop 9")
    for i in range(4):
        for r in range(8):
            a(f"v_max3_f32 v{12+i}, v{AV_C+16*i+2*r}, v{AV_C+16*i+2*r+1}, v{12+i}")
    a("s_add_u32 s8, s8, 2048")
    a("s_cmp_lt_u32 s8, 0x20000")
    a(f"s_cbranch_scc1 {lmax}")
    a(f"s_lshl_b32 {KS}, s{S_SL}, 2")
    a(f"s_add_u32 {KS}, {KS}, s18")
    a(f"s_lshl_b32 {KS}, {KS}, 11")
    for n in range(2):
        d = dma(n)
        a(d[0])
        a("s_nop 0")
        for x in d[1:]:
            a(x)
    a("s_waitcnt vmcnt(0)")
    for x in rd(0):
        a(x)
    a(f"s_branch {lredo}")


class Rot:
    def __init__(self, a, cur, beg, end, stride):
        self.a, self.cur, self.beg, self.end, self.stride = a, cur, beg, end, stride

    def init(self, srot, n):
        a = self.a
        a(f"s_add_u32 s{self.end}, s{self.beg}, {n*self.stride}")
        a(f"s_mul_i32 s{self.cur}, s{srot}, {self.stride}")
        a(f"s_add_u32 s{self.cur}, s{self.cur}, s{self.beg}")

    def adv(self):
        a = self.a
        a(f"s_add_u32 s{self.cur}, s{self.cur}, {self.stride}")
        if self.beg is not None:
            a(f"s_cmp_eq_u32 s{self.cur}, s{self.end}")
            a(f"s_cselect_b32 s{self.cur}, s{self.beg}, s{self.cur}")


def gemm_role(a):
    HW = OPT["hw"]
    NB = 4
    assert HW < NB and HW + 1 <= TR
    a.c("GEMM role")
    stamp(a, 4)
    a.vmem(f"buffer_load_dwordx2 v[{GV_Y+8}:{GV_Y+9}], v{GV_MISC+4}, {rs(R_WS)}, s96 offen sc1", "hpoll")
    a("v_mov_b32 v1, 1")
    for g in range(4):
        for hh in range(2):
            a(f"v_lshlrev_b32 v{GV_ACC+4*g+2*hh}, 16, v{GV_Y+2*g+hh}")
            a(f"v_and_b32 v{GV_ACC+4*g+2*hh+1}, 0xffff0000, v{GV_Y+2*g+hh}")
    M = GV_MISC + 4
    T1 = Rot(a, 25, 26, 27, 16 * 3584)
    T2 = Rot(a, 25, 26, 27, 16 * 4096)
    TO = Rot(a, 31, None, None, 16 * 1024)
    D = Rot(a, 28, 29, 30, 2048)

    assert M_RING - M_RED == 49152 and TR == 6

    class Stream:
        def __init__(self, items, r0):
            self.items = items
            self.issued = 0
            self.r0 = r0

        def off(self, j):
            if self.r0 <= j < self.r0 + 6:
                return (j - self.r0) * 2048
            return 49152 + (j % TR) * 2048

        def upto(self, n):
            while self.issued < min(n, len(self.items)):
                j = self.issued
                rot, rsrc, vreg, rstr = self.items[j]
                a(f"s_add_u32 m0, s18, {self.off(j)}")
                a(f"s_add_u32 s8, s{rot.cur}, {8*rstr - 1024}")
                a.vmem(f"buffer_load_dwordx4 v{vreg}, {rs(rsrc)}, s{rot.cur} offen {NT(1)}lds", f"T{j}")
                a.vmem(f"buffer_load_dwordx4 v{vreg}, {rs(rsrc)}, s8 offen offset:1024 {NT(1)}lds", f"T{j}")
                rot.adv()
                self.issued += 1

    def d_issue(k, da):
        buf = k % NB
        for x in range(2):
            a.vmem(f"buffer_load_dwordx4 {vr(GV_D+8*buf+4*x,4)}, v{da+x}, {rs(R_WS)}, s{D.cur} offen sc1", f"D{k}")
        D.adv()

    def tread(st, j, ta, rd2, dst):
        for x in range(2):
            a.lds(f"ds_read_b64_tr_b16 {vr(dst+4*x,2)}, v{ta+x} offset:{st.off(j)}", f"tr{j}")
            a.lds(f"ds_read_b64_tr_b16 {vr(dst+4*x+2,2)}, v{ta+x} offset:{st.off(j)+rd2}", f"tr{j}")

    def burst(st, n, win):
        while st.issued < n:
            if st.issued - win >= 0:
                a.vm_wait_if(f"T{st.issued - win}")
            st.upto(st.issued + 1)

    def kloop(st, j0, nsteps, t_is_A, ta, rd2, da, cnt):
        pre = st.issued - j0
        hwd = lambda k: OPT["hwd0"] if k + 2 + HW <= pre else OPT["hwd"]
        dn = [0]

        def d_upto(n):
            while dn[0] < min(n, nsteps):
                d_issue(dn[0], da)
                dn[0] += 1
        d_upto(hwd(0))
        a.vm_wait_if(f"T{j0}")
        tread(st, j0, ta, rd2, GV_T)
        for k in range(nsteps):
            tb, db = GV_T + 8 * (k % 2), GV_D + 8 * (k % NB)

            def mm(x, y):
                if t_is_A:
                    d = GV_ACC + 16 * (2 * x + y)
                    a(mfma(d, tb + 4 * x, db + 4 * y, "0" if (k == 0 and d != GV_ACC) else d))
                else:
                    d = GV_ACC + 16 * (2 * y + x)
                    a(mfma(d, db + 4 * y, tb + 4 * x, "0" if (k == 0 and d != GV_ACC) else d))
            a.vm_wait_if(f"D{k}")
            a.lg_wait(f"tr{j0+k}")
            if k % 4 == 0:
                stamp(a, (16 if t_is_A else 24) + k // 4)
            mm(0, 0)
            if k == 5:
                a("s_mov_b64 exec, 1")
                a.lds(f"ds_add_u32 v{M+3}, v1 offset:{cnt - M_CNT}", "arr")
                a("s_mov_b64 exec, -1")
            d_upto(k + 1 + hwd(k))
            mm(0, 1)
            if k + 1 < nsteps:
                a.vm_wait_if(f"T{j0+k+1}")
                tread(st, j0 + k + 1, ta, rd2, GV_T + 8 * ((k + 1) % 2))
            mm(1, 0)
            st.upto(j0 + k + 2 + HW)
            mm(1, 1)
            if t_is_A and OPT["w2n"] and k >= OPT["w2k0"] and (k - OPT["w2k0"]) % OPT["w2st"] == 0 and (k - OPT["w2k0"]) // OPT["w2st"] < OPT["w2n"]:
                lab = a.label("now2")
                a(f"s_cmp_lg_u32 s33, {(k - OPT['w2k0']) // OPT['w2st']}")
                a(f"s_cbranch_scc1 {lab}")
                for q in range(8):
                    a(f"buffer_load_dwordx4 v[248:251], v175, {rs(R_W2)}, s32 offen")
                    a(f"s_add_u32 s32, s32, {2*4096}")
                a(f"{lab}:")

    def reduce(cnt, sb):
        stamp(a, sb)
        for v in range(1, 4):
            for q in range(4):
                a.lds(f"ds_write_b128 v{GV_MISC+v}, {vr(GV_ACC+16*v+4*q,4)} offset:{q*1024}", "rw")
        lds_arrive(a, cnt, M, 1)
        stamp(a, sb + 1)
        lds_wait(a, cnt, 4, M, sleep=False)
        stamp(a, sb + 2)
        for v in range(3):
            for q in range(4):
                a.lds(f"ds_read_b128 {vr(GV_ACC+16+16*v+4*q,4)}, v{GV_MISC} offset:{v*4096+q*1024}", f"rr{v}")
        for v in range(3):
            a.lg_wait(f"rr{v}")
            for r in range(0, 16, 2):
                a(f"v_pk_add_f32 {vr(GV_ACC+r,2)}, {vr(GV_ACC+r,2)}, {vr(GV_ACC+16+16*v+r,2)}")

    lskip1, lskip2 = a.label("skipg1"), a.label("skipg1e")
    a(f"s_mul_i32 s{T1.beg}, s81, {512*3584}")
    a("s_lshl_b32 s8, s20, 7")
    a(f"s_add_u32 s{T1.beg}, s{T1.beg}, s8")
    T1.init(23, 32)
    st1 = Stream([(T1, R_W1, GV_DMA, 3584)] * 32, 0)
    a(f"s_lshl_b32 s{D.beg}, s19, 18")
    a("s_lshl_b32 s8, s81, 16")
    a(f"s_add_u32 s{D.beg}, s{D.beg}, s8")
    D.init(23, 32)
    a(f"s_lshl_b32 s8, s{S_HP}, 4")
    a(f"s_add_u32 s8, s8, s{S_SL}")
    a("s_lshl_b32 s8, s8, 4")
    a("s_add_u32 s8, s8, s81")
    a("s_lshl_b32 s8, s8, 3")
    a(f"s_add_u32 s8, s8, {WS_FKV}")
    a(f"s_add_u32 s84, s8, {WS_FKVS}")
    a.vm_wait("kvst")
    flag_set(a, "s8", M, M + 2, local=True)
    stamp(a, 5)
    st2 = Stream([(TO, R_WO, GV_DMA + 2, 1024)] * 8 + [(T2, R_W2, GV_DMA + 1, 4096)] * 28, 8)

    def slow_copy():
        if not OPT["local"]:
            return
        a(f"s_add_u32 s88, s88, {WS_KVB}")
        a(f"s_add_u32 s89, s89, {WS_KVB}")
        XF = PV_XF
        a.vmem(f"buffer_store_dwordx4 {vr(XF,4)}, v170, {rs(R_WS)}, s88 offen sc1", "kvs")
        a.vmem(f"buffer_store_dwordx4 {vr(XF+4,4)}, v170, {rs(R_WS)}, s89 offen sc1", "kvs")
        a.vmem(f"buffer_store_dwordx4 {vr(XF+8,4)}, v172, {rs(R_WS)}, s88 offen offset:1024 sc1", "kvs")
        a.vmem(f"buffer_store_dwordx4 {vr(XF+12,4)}, v172, {rs(R_WS)}, s88 offen offset:1536 sc1", "kvs")
    a(f"s_lshl_b32 s{TO.cur}, s81, 17")
    a("s_lshl_b32 s8, s22, 7")
    a(f"s_add_u32 s{TO.cur}, s{TO.cur}, s8")
    if OPT["mb"]:
        a(f"s_add_u32 s8, s87, {128*3584}")
        a.vmem(f"buffer_load_dwordx4 v[248:251], v174, {rs(R_W1)}, s8 offen", "warm")
        a(f"s_add_u32 s8, s87, {(128-8)*3584}")
        a.vmem(f"buffer_load_dwordx4 v[248:251], v174, {rs(R_W1)}, s8 offen", "warm")
    a(f"s_cmp_ge_u32 s{S_IDX}, 28")
    a(f"s_cbranch_scc1 {lskip1}")
    burst(st1, OPT["g1b"], OPT["pf1"])
    if OPT["gate"]:
        lds_wait(a, M_CNT + 36, 4, M, hint=OPT["gspin"])
    lh = a.label("hok")
    a.vm_wait_if("hpoll")
    flag_check(a, GV_Y + 8, "-1", "-1")
    a(f"s_cbranch_scc1 {lh}")
    a(f"v_lshlrev_b32 v{M}, 3, v0")
    vm_keep = list(a.vm)
    flag_wait(a, "s96", M, M + 2, "-1", "-1")
    a.vm = vm_keep
    a(f"{lh}:")
    a(f"v_mov_b32 v{M+3}, {M_CNT}")
    a(f"s_setprio {OPT['prio_gemm']}")
    stamp(a, 6)
    kloop(st1, 0, 32, True, GV_TA1, 512, GV_DB, M_CNT + 40)
    a("s_setprio 3")
    stamp(a, 7)
    slow_copy()
    st2.upto(OPT["wo0"])
    lds_wait(a, M_CNT + 40, 4, M)
    a.c("G1 epilogue")
    reduce(M_CNT + 16, 48)
    stamp(a, 51)
    c0 = -2.0 * math.sqrt(2.0 / math.pi) * LOG2E
    c1 = c0 * 0.044715
    a(f"s_mov_b32 s8, {f32bits(c1)}")
    a(f"s_mov_b32 s9, {f32bits(c1)}")
    a(f"v_mov_b32 v{M}, {f32bits(c0)}")
    a(f"v_mov_b32 v{M+1}, {f32bits(c0)}")
    TT = GV_ACC + 16
    P2 = lambda b: vr(b, 2)
    for r in range(0, 16, 2):
        a(f"v_pk_mul_f32 {P2(TT+r)}, {P2(GV_ACC+r)}, {P2(GV_ACC+r)}")
    for r in range(0, 16, 2):
        a(f"v_pk_fma_f32 {P2(TT+r)}, {P2(TT+r)}, s[8:9], {P2(M)}")
    for r in range(0, 16, 2):
        a(f"v_pk_mul_f32 {P2(TT+r)}, {P2(TT+r)}, {P2(GV_ACC+r)}")
    for r in range(16):
        a(f"v_exp_f32 v{TT+r}, v{TT+r}")
    for r in range(0, 16, 2):
        a(f"v_pk_add_f32 {P2(TT+r)}, {P2(TT+r)}, 1.0 op_sel_hi:[1,0]")
    for r in range(16):
        a(f"v_rcp_f32 v{TT+r}, v{TT+r}")
    for r in range(0, 16, 2):
        a(f"v_pk_mul_f32 {P2(TT+r)}, {P2(TT+r)}, {P2(GV_ACC+r)}")
    for r in range(8):
        a(f"v_cvt_pk_bf16_f32 v{GV_ACC+r}, v{TT+2*r}, v{TT+2*r+1}")
    a("s_mul_i32 s8, s19, 112")
    a("s_lshl_b32 s9, s20, 2")
    a("s_add_u32 s8, s8, s9")
    a("s_and_b32 s9, s81, 2")
    a("s_add_u32 s8, s8, s9")
    a("s_lshl_b32 s8, s8, 11")
    a(f"s_add_u32 s8, s8, {WS_U}")
    a.vmem(f"buffer_store_dwordx4 {vr(GV_ACC,4)}, v{GV_DB}, {rs(R_WS)}, s8 offen sc1", "ust")
    a.vmem(f"buffer_store_dwordx4 {vr(GV_ACC+4,4)}, v{GV_DB}, {rs(R_WS)}, s8 offen offset:2048 sc1", "ust")
    a("s_lshl_b32 s8, s19, 12")
    a("s_lshl_b32 s9, s20, 7")
    a("s_add_u32 s8, s8, s9")
    a("s_lshl_b32 s9, s81, 3")
    a("s_add_u32 s8, s8, s9")
    a(f"s_add_u32 s8, s8, {WS_FU}")
    a("s_mov_b32 s23, s8")
    stamp(a, 52)
    a.vm_drain()
    flag_set(a, "s23", M, M + 2)
    flag_set(a, "s84", M, M + 2) if OPT["local"] else None
    stamp(a, 8)
    a(f"s_branch {lskip2}")
    a(f"{lskip1}:")
    if OPT["help"]:
        lds_wait(a, M_CNT + 36, 4, M, hint=OPT["gspin"])
        if OPT["w1mode"] == 0:
            a(f"s_and_b32 s8, s{S_IDX}, 3")
            a("s_lshl_b32 s8, s8, 1")
            a("s_lshl_b32 s9, s81, 9")
            a("s_add_u32 s8, s8, s9")
            a(f"s_add_u32 s8, s8, {128*OPT['mwn']}")
            a("s_mul_i32 s9, s8, 3584")
            a("s_add_u32 s9, s9, s90")
            a(f"s_mov_b32 s10, {64 - 16*OPT['mwn']}")
            lh = a.label("help")
            a(f"{lh}:")
            a(f"buffer_load_dwordx4 v[248:251], v174, {rs(R_W1)}, s9 offen")
            a(f"s_add_u32 s9, s9, {8*3584}")
            a(f"s_waitcnt vmcnt({OPT['help']-1})")
            a("s_sub_u32 s10, s10, 1")
            a("s_cmp_lg_u32 s10, 0")
            a(f"s_cbranch_scc1 {lh}")
        stamp(a, 31)
        if OPT["hw2"]:
            a(f"v_lshrrev_b32 v{M}, 5, v0")
            a(f"v_and_b32 v{M+1}, 31, v0")
            a(f"v_lshlrev_b32 v{M+1}, 4, v{M+1}")
            a(f"v_lshl_add_u32 v{M}, v{M}, 12, v{M+1}")
            a(f"s_and_b32 s8, s{S_IDX}, 3")
            a("s_lshl_b32 s8, s8, 2")
            a("s_add_u32 s8, s8, s81", "helper wave 0..15")
            a("s_lshl_b32 s9, s8, 13")
            a(f"s_lshl_b32 s10, s{S_XCD}, 9")
            a("s_add_u32 s9, s9, s10")
            a("s_mov_b32 s10, 56")
            lh = a.label("help")
            a(f"{lh}:")
            a(f"buffer_load_dwordx4 v[248:251], v{M}, {rs(R_W2)}, s9 offen")
            a(f"s_add_u32 s9, s9, {32*4096}")
            a(f"s_waitcnt vmcnt({OPT['help']-1})")
            a("s_sub_u32 s10, s10, 1")
            a("s_cmp_lg_u32 s10, 0")
            a(f"s_cbranch_scc1 {lh}")
        stamp(a, 15)
    slow_copy()
    st2.issued = 0
    st2.upto(OPT["wo0"])
    a("s_waitcnt vmcnt(0)")
    flag_set(a, "s84", M, M + 2) if OPT["local"] else None
    a(f"{lskip2}:")
    a.vm = []
    a(f"s_mul_i32 s{T2.beg}, s81, {448*4096}")
    a("s_lshl_b32 s8, s21, 7")
    a(f"s_add_u32 s{T2.beg}, s{T2.beg}, s8")
    T2.init(24, 28)
    a(f"s_mul_i32 s{D.beg}, s22, 112")
    a("s_mul_i32 s8, s81, 28")
    a(f"s_add_u32 s{D.beg}, s{D.beg}, s8")
    a(f"s_lshl_b32 s{D.beg}, s{D.beg}, 11")
    a(f"s_add_u32 s{D.beg}, s{D.beg}, {WS_U}")
    D.init(24, 28)
    for j in range(8):
        a.vm_wait_if(f"T{j}")
        tread(st2, j, GV_TA3, 1024, GV_WO + 8 * j)
        a.lg_wait(f"tr{j}")
        st2.upto(j + 1 + OPT["pf"])
    stamp(a, 47)
    burst(st2, OPT["g2b"], OPT["pf"])
    for r in range(16):
        a(f"v_lshlrev_b32 v{GV_ACC+r}, 16, v15", "b2")
    a(f"v_min_u32 v{M}, 27, v0")
    a(f"v_lshrrev_b32 v{M+1}, 2, v{M}")
    a(f"v_and_b32 v{M}, 3, v{M}")
    a(f"v_lshlrev_b32 v{M}, 3, v{M}")
    a(f"v_lshl_add_u32 v{M}, v{M+1}, 7, v{M}")
    a("s_lshl_b32 s9, s22, 12")
    a("s_mul_i32 s8, s81, 896")
    a("s_add_u32 s9, s9, s8")
    a(f"s_add_u32 s9, s9, {WS_FU}")
    stamp(a, 46)
    if OPT["hw2p"]:
        lnh, lh = a.label("nohelp"), a.label("help2")
        a(f"s_cmp_lt_u32 s{S_IDX}, 28")
        a(f"s_cbranch_scc1 {lnh}")
        a(f"v_lshrrev_b32 v{GV_Y}, 5, v0")
        a(f"v_and_b32 v{GV_Y+1}, 31, v0")
        a(f"v_lshlrev_b32 v{GV_Y+1}, 4, v{GV_Y+1}")
        a(f"v_lshl_add_u32 v{GV_Y}, v{GV_Y}, 12, v{GV_Y+1}")
        a(f"s_and_b32 s8, s{S_IDX}, 3")
        a("s_lshl_b32 s8, s8, 2")
        a("s_add_u32 s8, s8, s81", "helper wave 0..15")
        a("s_lshl_b32 s32, s8, 13")
        a(f"s_lshl_b32 s8, s{S_XCD}, 9")
        a("s_add_u32 s32, s32, s8")
        a("s_mov_b32 s33, 8")
        a(f"{lh}:")
        a(f"buffer_load_dwordx2 v[{M+2}:{M+3}], v{M}, {rs(R_WS)}, s9 offen sc1")
        for q in range(7):
            a(f"buffer_load_dwordx4 v[248:251], v{GV_Y}, {rs(R_W2)}, s32 offen")
            a(f"s_add_u32 s32, s32, {32*4096}")
            a(f"s_waitcnt vmcnt({OPT['help']-1})")
        flag_check(a, M + 2, "0x0fffffff", "0")
        a(f"s_cbranch_scc1 {lnh}")
        a("s_sub_u32 s33, s33, 1")
        a("s_cmp_lg_u32 s33, 0")
        a(f"s_cbranch_scc1 {lh}")
        a(f"{lnh}:")
    flag_wait(a, "s9", M, M + 2, "0x0fffffff", "0")
    stamp(a, 9)
    a(f"v_and_b32 v{M}, 31, v0")
    a(f"v_lshlrev_b32 v{M+1}, 2, v{M}")
    a("s_mov_b32 s23, s91")
    a("s_lshl_b32 s9, s23, 2")
    a(f"s_add_u32 s9, s9, {WS_G}")
    a.vmem(f"buffer_load_dword v{GV_Y}, v{M+1}, {rs(R_WS)}, s9 offen sc1", "g")
    a("s_xor_b32 s9, s9, 128")
    a.vmem(f"buffer_load_dword v{GV_Y+2}, v{M+1}, {rs(R_WS)}, s9 offen sc1", "g")
    a("v_and_b32 v15, 31, v0")
    a("v_lshlrev_b32 v15, 10, v15")
    a(f"v_lshrrev_b32 v{M}, 5, v0")
    a(f"v_lshl_add_u32 v15, v{M}, 4, v15")
    a("s_lshl_b32 s23, s23, 10")
    a("s_lshl_b32 s8, s22, 7")
    a("s_add_u32 s23, s23, s8")
    a("s_lshr_b32 s8, s81, 1")
    a("s_lshl_b32 s8, s8, 6")
    a("s_add_u32 s23, s23, s8")
    a("s_lshl_b32 s32, s21, 16")
    a("s_lshl_b32 s8, s81, 14")
    a("s_add_u32 s32, s32, s8")
    a(f"s_add_u32 s32, s32, {WS_O}")
    a(f"v_min_u32 v{GV_Y+4}, 7, v0")
    a(f"v_lshrrev_b32 v{M}, 1, v{GV_Y+4}")
    a(f"v_and_b32 v{GV_Y+4}, 1, v{GV_Y+4}")
    a(f"v_lshlrev_b32 v{GV_Y+4}, 3, v{GV_Y+4}")
    a(f"v_lshl_add_u32 v{GV_Y+4}, v{M}, 7, v{GV_Y+4}")
    a("s_lshr_b32 s33, s21, 1")
    a("s_lshl_b32 s33, s33, 11")
    a("s_lshl_b32 s8, s81, 9")
    a("s_add_u32 s33, s33, s8")
    a("s_and_b32 s8, s21, 1")
    a("s_lshl_b32 s8, s8, 4")
    a("s_add_u32 s33, s33, s8")
    a(f"s_add_u32 s33, s33, {WS_FO}")
    a(f"v_mov_b32 v{M+3}, {M_CNT}")
    a(f"s_setprio {OPT['prio_gemm']}")
    kloop(st2, 8, 28, False, GV_TA2, 1024, GV_DA, M_CNT + 20)
    a("s_setprio 3")
    stamp(a, 10)
    a(f"buffer_load_dwordx2 v[{GV_Y+6}:{GV_Y+7}], v{GV_Y+4}, {rs(R_WS)}, s33 offen sc1")
    for b in range(2):
        a(f"v_sub_f32 v{GV_Y+2*b}, 1.0, v{GV_Y+2*b}")
        a(f"v_mov_b32 v{GV_Y+2*b+1}, v{GV_Y+2*b}")
    a("s_nop 4")
    for v in (0, 2, 1, 3):
        for r in range(0, 16, 2):
            d = GV_ACC + 16 * v + r
            a(f"v_pk_mul_f32 v[{d}:{d+1}], v[{d}:{d+1}], v[{GV_Y+2*(v&1)}:{GV_Y+2*(v&1)+1}]")
    a("s_waitcnt vmcnt(0)")
    a(f"v_cmp_ne_u64 vcc, s[{S_TAG}:{S_TAG+1}], v[{GV_Y+6}:{GV_Y+7}]")
    a("s_mov_b32 s26, vcc_lo", "heads not yet seen")
    stamp(a, 11)

    def omm(k):
        a.vm_wait_if(f"O{k}")
        for v in (1, 2, 3, 0):
            x, y = v >> 1, v & 1
            d = GV_ACC + 16 * v
            a(mfma(d, GV_WO + 8 * k + 4 * x, GV_D + 8 * k + 4 * y, d))
    for k in range(8):
        l1, l2 = a.label("op"), a.label("opok")
        a(f"s_bitcmp0_b32 s26, {k}")
        a(f"s_cbranch_scc1 {l2}")
        a(f"s_mov_b32 s17, {SPIN}")
        a(f"{l1}:")
        a(f"buffer_load_dwordx2 v[{GV_Y+6}:{GV_Y+7}], v{GV_Y+4}, {rs(R_WS)}, s33 offen sc1")
        a("s_waitcnt vmcnt(0)")
        a(f"v_cmp_ne_u64 vcc, s[{S_TAG}:{S_TAG+1}], v[{GV_Y+6}:{GV_Y+7}]")
        a("s_mov_b32 s26, vcc_lo")
        a(f"s_bitcmp0_b32 s26, {k}")
        a(f"s_cbranch_scc1 {l2}")
        spin_guard(a, l1)
        a(f"{l2}:")
        if k % 2 == 0 and k:
            a("s_add_u32 s32, s32, 4096")
        for x in range(2):
            a.vmem(f"buffer_load_dwordx4 {vr(GV_D+8*k+4*x,4)}, v{GV_DB+x}, {rs(R_WS)}, s32 offen offset:{(k%2)*2048} sc1", f"O{k}")
        if k >= OPT["olag"]:
            omm(k - OPT["olag"])
    stamp(a, 12)
    for k in range(8 - OPT["olag"], 8):
        omm(k)
    lds_wait(a, M_CNT + 20, 4, M)
    a("s_nop 2")
    stamp(a, 13)
    reduce(M_CNT + 32, 54)
    stamp(a, 57)
    for r in range(8):
        a(f"v_cvt_pk_bf16_f32 v{GV_ACC+16+r}, v{GV_ACC+2*r}, v{GV_ACC+2*r+1}")
    a.vmem(f"buffer_store_dwordx4 {vr(GV_ACC+16,4)}, v15, {rs(R_OUT)}, s23 offen", "ost")
    a.vmem(f"buffer_store_dwordx4 {vr(GV_ACC+20,4)}, v15, {rs(R_OUT)}, s23 offen offset:32", "ost")
    stamp(a, 14, True)


def descriptor(name, vgpr=256):
    return f""".section .rodata,"a"
.p2align 6
.amdhsa_kernel {name}
  .amdhsa_next_free_vgpr {vgpr}
  .amdhsa_next_free_sgpr 102
  .amdhsa_accum_offset {vgpr}
  .amdhsa_group_segment_fixed_size 0
  .amdhsa_kernarg_size 96
  .amdhsa_user_sgpr_count 2
  .amdhsa_user_sgpr_kernarg_segment_ptr 1
  .amdhsa_system_sgpr_workgroup_id_x 1
.end_amdhsa_kernel
"""


def build():
    kn = NAME + "_kernel"
    head = f"""; generated by gen/gen17.py (fused single launch)
; @launch grid=(256,1,1) block=(512,1,1) lds={LDS_TOTAL}
.amdgcn_target "amdgcn-amd-amdhsa--gfx950"
"""
    a = Asm()
    a(".text")
    a(f".globl {kn}")
    a(".p2align 8")
    a(f".type {kn},@function")
    a(f"{kn}:")
    entry(a, "L_exit")
    vm0, lg0 = list(a.vm), list(a.lg)
    a(f"s_cmp_ge_u32 s{S_WAVE}, 4")
    a("s_cbranch_scc1 L_roleb")
    proj(a, 0)
    attention(a)
    a("L_roleb:")
    a.vm, a.lg = vm0, lg0
    a("s_setprio 3")
    proj(a, 1)
    gemm_role(a)
    a("L_exit:")
    a("s_endpgm")
    a("L_code_end:")
    return head + a.text() + descriptor(kn)


if __name__ == "__main__":
    out = sys.argv[1] if len(sys.argv) > 1 else f"cdna_kernels/{NAME}.s"
    for o in sys.argv[2:]:
        if o == "stamps":
            OPT["stamps"] = True
        elif "=" in o:
            k, v = o.split("=")
            OPT[k] = int(v)
    open(out, "w").write(build())
    print("wrote", out)
```

```python
import math
import sys
from asmlib import Asm, vr, sr, f32bits

NAME = "gated_mix__mha_block__mixer_token_mlp__prompt"
OPT = dict(stamps=False, hw=2, prio_att=2, prio_gemm=0, nt=0, early=1, cpf=1, hwd0=3, hwd=3, gspin=24, g2b=18, w2k0=6, w2n=0, w2st=3, hw2=0, pt=1, ptnt=1, w1mode=0, gate=1, warm=-3, pf=4, lnpos=0, xrot=0, la=3, local=1, xx=1, mb=0, hw2p=1, tlb=0, ww=0, ptc=5, mwn=1, pf1=3, wo0=4, olag=5, help=7, hgate=1, g1b=8, r1m=0, r1s=4, r2m=1, r2s=14)

WS_H = 0x000000
WS_KV = 0x200000
WS_KVB = 0xE00000 - 0x200000
WS_U = 0x800000
WS_O = 0xA00000
WS_G = 0xC00000
WS_FH = 0xC10000
WS_FKV = 0xC20000
WS_FKVS = 0x8000
WS_FU = 0xC30000
WS_FO = 0xC40000
WS_STAMP = 0xD00000
WS_SIZE = 0x1200000

S_WAVE, S_XCD, S_IDX, S_HP, S_SL = 3, 4, 5, 6, 7
S_TAG = 14
S_LTAG = 76
R_X, R_P, R_WO, R_W1, R_W2, R_WS, R_OUT, R_B1, R_B2, R_GW = 40, 44, 48, 52, 56, 60, 64, 68, 72, 76
R_DBG = 92
R_KV = 48
LOG2E = math.log2(math.e)

NPS = 4
P_XS, P_WS, P_LN = 0, 65536, 114688
M_RED = 0
TR = 6
M_RING = 49152
KVR = 98304
KSLOT = 2080
KR = 6
KPOS = {2: 0, 3: 1, 4: 2, 5: 3, 0: 4, 1: 5}
L_Q = KVR + 6 * 4 * KSLOT
M_CNT = L_Q + 8192
L_K0 = M_CNT + 256
LDS_TOTAL = 163840
assert M_RING + 4 * TR * 2048 <= KVR and L_K0 + 2048 <= LDS_TOTAL and P_LN + 9216 <= KVR + 4 * 4 * KSLOT


def KSO(n):
    return KPOS[n % KR] * 4 * KSLOT


SPIN = 200000


def KVSC():
    return '' if OPT['local'] else 'sc1'


def NT(bit):
    return "nt " if OPT["nt"] & bit else ""


def rs(r):
    return f"s[{r}:{r+3}]"


def stamp(a, idx, final=False):
    if not OPT["stamps"]:
        return
    a("s_memrealtime s[98:99]")
    a("s_memtime s[100:101]")
    if idx == 0:
        a("v_mov_b32 v254, 0")
        a("v_mov_b32 v255, 0")
    a("s_waitcnt lgkmcnt(0)")
    a.lg = []
    a(f"v_writelane_b32 v254, s98, {idx}")
    a(f"v_writelane_b32 v255, s100, {idx}")
    if final:
        a("s_lshl_b32 s97, s2, 3")
        a(f"s_add_u32 s97, s97, s{S_WAVE}")
        a("s_lshl_b32 s97, s97, 9")
        a(f"s_add_u32 s97, s97, {WS_STAMP}")
        a("v_lshlrev_b32 v253, 3, v0")
        a(f"buffer_store_dwordx2 v[254:255], v253, {rs(R_WS)}, s97 offen")


def srd(a, r, ptr, nbytes):
    a(f"s_mov_b32 s{r}, s{ptr}")
    a(f"s_mov_b32 s{r+1}, s{ptr+1}")
    a(f"s_mov_b32 s{r+2}, {nbytes:#x}")
    a(f"s_mov_b32 s{r+3}, 0x00020000")


def mfma(d, A, B, C):
    return f"v_mfma_f32_32x32x16_bf16 {vr(d,16)}, {vr(A,4)}, {vr(B,4)}, {C if isinstance(C,str) else vr(C,16)}"


def spin_guard(a, lab):
    a("s_sub_u32 s17, s17, 1")
    a("s_cmp_lg_u32 s17, 0")
    a(f"s_cbranch_scc1 {lab}")
    a("s_endpgm")


PV_XF, PV_WF, PV_XA, PV_WA, PV_DMA = 112, 128, 160, 164, 166


def p_issue(a, c, par):
    slot = c % NPS
    a("s_and_b32 s8, s85, 7")
    a("s_add_u32 s85, s85, 1")
    a("s_mul_i32 s8, s8, s86")
    if par is None:
        a(f"s_mul_i32 s9, s87, {slot}")
        a("s_add_u32 m0, s83, s9")
    else:
        a(f"s_add_u32 m0, s83, {slot*(16384 if par == 0 else 12288)}")
    a("s_add_u32 s8, s8, s82")
    for q in range(3):
        a.vmem(f"buffer_load_dwordx4 v{PV_DMA+q}, {rs(R_P)}, s8 offen offset:{q*1024} {NT(2)}lds", f"ch{c}")
    if par is None:
        lab = a.label("no4")
        a(f"s_cmp_ge_u32 s{S_WAVE}, 4")
        a(f"s_cbranch_scc1 {lab}")
        a.vmem(f"buffer_load_dwordx4 v{PV_DMA+3}, {rs(R_P)}, s8 offen offset:3072 {NT(2)}lds", f"ch{c}A")
        a(f"{lab}:")
    elif par == 0:
        a.vmem(f"buffer_load_dwordx4 v{PV_DMA+3}, {rs(R_P)}, s8 offen offset:3072 {NT(2)}lds", f"ch{c}")


def entry(a, lexit):
    a("s_cmp_ge_u32 s2, 256")
    a(f"s_cbranch_scc1 {lexit}")
    a("s_load_dwordx16 s[16:31], s[0:1], 0")
    a("s_load_dwordx8 s[32:39], s[0:1], 64")
    a("s_memrealtime s[12:13]")
    a("v_lshrrev_b32 v1, 6, v0")
    a("v_and_b32 v0, 63, v0")
    a(f"v_readfirstlane_b32 s{S_WAVE}, v1")
    a(f"s_and_b32 s{S_XCD}, s2, 7")
    a(f"s_lshr_b32 s{S_IDX}, s2, 3")
    if OPT["local"]:
        a(f"s_and_b32 s9, s{S_IDX}, 1")
        a(f"s_lshl_b32 s8, s{S_XCD}, 1")
        a(f"s_add_u32 s{S_HP}, s8, s9")
        a(f"s_lshr_b32 s{S_SL}, s{S_IDX}, 1")
        a(f"s_mul_i32 s9, s9, {OPT['xrot']}")
        a(f"s_add_u32 s85, s9, s{S_SL}", "chunk cursor (rotation)")
        if OPT["xx"]:
            a(f"s_add_u32 s85, s85, s{S_XCD}")
    else:
        a(f"s_and_b32 s8, s{S_XCD}, 3")
        a("s_lshl_b32 s8, s8, 2")
        a(f"s_and_b32 s9, s{S_IDX}, 3")
        a(f"s_add_u32 s{S_HP}, s8, s9")
        a(f"s_lshr_b32 s8, s{S_XCD}, 2")
        a(f"s_lshr_b32 s10, s{S_IDX}, 2")
        a("s_lshl_b32 s11, s10, 1")
        a(f"s_add_u32 s{S_SL}, s8, s11")
        a(f"s_mul_i32 s9, s9, {OPT['xrot']}")
        a("s_add_u32 s85, s9, s10", "chunk cursor (rotation)")
    a(f"s_and_b32 s81, s{S_WAVE}, 3", "t")
    D = PV_DMA
    lb, lj = a.label("eb"), a.label("ej")
    a(f"s_cmp_ge_u32 s{S_WAVE}, 4")
    a(f"s_cbranch_scc1 {lb}")
    a("v_lshrrev_b32 v41, 3, v0")
    a("v_lshlrev_b32 v41, 10, v41")
    a("v_and_b32 v42, 7, v0")
    a("v_lshrrev_b32 v43, 4, v0")
    a("v_xor_b32 v42, v42, v43")
    a(f"v_lshl_add_u32 v{D}, v42, 4, v41")
    a("v_xor_b32 v42, 4, v42")
    a(f"v_lshl_add_u32 v{D+1}, v42, 4, v41")
    a(f"v_add_u32 v{D+2}, {2*7168}, v{D}")
    a(f"v_add_u32 v{D+3}, {3*7168}, v{D+1}")
    a(f"v_add_u32 v{D+1}, {7168}, v{D+1}")
    a(f"s_lshl_b32 s82, s{S_SL}, 17")
    a("s_lshl_b32 s8, s81, 15")
    a("s_add_u32 s82, s82, s8")
    a("s_lshl_b32 s83, s81, 12")
    a("s_mov_b32 s86, 128")
    a("s_mov_b32 s87, 16384")
    a("s_waitcnt lgkmcnt(0)")
    srd(a, R_P, 16, 2048 * 512 * 2)
    a(f"s_branch {lj}")
    a(f"{lb}:")
    a("v_lshrrev_b32 v41, 2, v0")
    a("v_mul_u32_u24 v41, 3072, v41")
    a("v_and_b32 v42, 3, v0")
    a(f"v_lshl_add_u32 v{D}, v42, 4, v41")
    a(f"v_mov_b32 v{D+1}, v{D}")
    a(f"v_mov_b32 v{D+2}, v{D}")
    a(f"v_mov_b32 v{D+3}, v{D}")
    a(f"s_mul_i32 s82, s81, {16*3072}")
    a(f"s_lshl_b32 s8, s{S_HP}, 6")
    a("s_add_u32 s82, s82, s8")
    a("s_mul_i32 s83, s81, 3072")
    a(f"s_add_u32 s83, s83, {P_WS}")
    a(f"s_mov_b32 s86, {64*3072}")
    a("s_mov_b32 s87, 12288")
    a("s_waitcnt lgkmcnt(0)")
    srd(a, R_P, 18, 512 * 1536 * 2)
    a(f"{lj}:")
    stamp(a, 0)
    srd(a, R_X, 16, 2048 * 512 * 2)
    srd(a, R_GW, 32, 512 * 2)
    a(f"s_lshl_b32 s8, s{S_SL}, 7")
    a(f"s_lshl_b32 s9, s{S_HP}, 3")
    a("s_add_u32 s80, s8, s9", "s80 = row0")
    a(f"s_add_u32 s8, s80, s{S_WAVE}")
    a("s_lshl_b32 s8, s8, 10")
    a("v_lshlrev_b32 v1, 4, v0", "lane*16")
    a.vmem(f"buffer_load_dwordx4 v[176:179], v1, {rs(R_X)}, s8 offen", "ln")
    a.vmem(f"buffer_load_dwordx4 v[180:183], v1, {rs(R_GW)}, 0 offen", "ln")
    if OPT["ww"]:
        a(f"s_cmp_ge_u32 s{S_WAVE}, 6")
        a("s_cselect_b32 s88, s20, s18")
        a("s_cselect_b32 s89, s21, s19")
        a(f"s_cselect_b32 s90, {512*512*2}, {512*1536*2 >> 0}") if False else None
        a(f"s_mov_b32 s90, {512*1536*2}")
        a(f"s_cselect_b32 s90, {512*512*2}, s90")
        a("s_mov_b32 s91, 0x00020000")
        a("s_cselect_b32 s8, 2, 6")
        a("s_cselect_b32 s9, 6, 0")
        a("s_mul_i32 s8, s8, s2")
        a(f"s_add_u32 s8, s8, s{S_WAVE}")
        a("s_sub_u32 s8, s8, s9")
        a("s_lshl_b32 s8, s8, 10")
        a.vmem("buffer_load_dwordx4 v[248:251], v1, s[88:91], s8 offen", "ww")
    p_issue(a, 0, None)
    srd(a, R_DBG, 36, 256)
    srd(a, R_WS, 38, WS_SIZE)
    lab = a.label("notag")
    a(f"s_or_b32 s8, s2, s{S_WAVE}")
    a("s_cmp_lg_u32 s8, 0")
    a(f"s_cbranch_scc1 {lab}")
    a("s_or_b32 s8, s12, 1")
    a("v_mov_b32 v44, s8")
    a("v_mov_b32 v45, s13")
    a("v_mov_b32 v46, 0")
    a("s_mov_b64 exec, 1")
    a(f"buffer_store_dwordx2 v[44:45], v46, {rs(R_DBG)}, 0 offen sc1")
    a("s_mov_b64 exec, -1")
    a(f"{lab}:")
    if OPT["cpf"]:
        lab = a.label("nocpf")
        a(f"s_cmp_lt_u32 s{S_WAVE}, 6")
        a(f"s_cbranch_scc1 {lab}")
        a("s_getpc_b64 s[88:89]")
        a("L_pc0:")
        a("s_mov_b32 s90, L_code_end-L_pc0")
        a("s_mov_b32 s91, 0x00020000")
        a(f"s_and_b32 s8, s{S_WAVE}, 1")
        a("s_lshl_b32 s8, s8, 5")
        a(f"s_add_u32 s8, s8, s{S_IDX}")
        a("s_lshl_b32 s8, s8, 10")
        a("buffer_load_dwordx4 v[248:251], v1, s[88:91], s8 offen")
        a(f"{lab}:")
    warm_setup(a)
    a("v_and_b32 v41, 31, v0", "i")
    a("v_lshrrev_b32 v42, 5, v0", "h'")
    a("v_bfe_u32 v43, v0, 1, 3")
    a("v_xor_b32 v44, v42, v43")
    a("v_lshlrev_b32 v45, 7, v41")
    a("s_lshl_b32 s8, s81, 12")
    a("v_add_u32 v45, s8, v45")
    a(f"v_lshl_add_u32 v{PV_XA}, v44, 4, v45")
    for ks in range(1, 4):
        a(f"v_xor_b32 v{PV_XA+ks}, {32*ks}, v{PV_XA}")
    a("v_lshlrev_b32 v44, 9, v42")
    a("v_bfe_u32 v45, v0, 2, 2")
    a("v_lshl_add_u32 v44, v45, 6, v44")
    a("v_bfe_u32 v45, v0, 4, 1")
    a("v_lshl_add_u32 v44, v45, 5, v44")
    a("v_and_b32 v45, 3, v0")
    a("v_lshl_add_u32 v44, v45, 3, v44")
    a(f"v_add_u32 v{PV_WA}, {P_WS}, v44")
    a("v_lshlrev_b32 v41, 2, v0")
    a(f"v_add_u32 v41, {M_CNT}, v41")
    a("v_mov_b32 v42, 0")
    a.lds("ds_write_b32 v41, v42", "cz")
    for r in range(80, 112):
        a(f"v_mov_b32 v{r}, 0")


def wave_reduce_add(a, regs):
    steps = ["row_shr:1 row_mask:0xf bank_mask:0xf bound_ctrl:0",
             "row_shr:2 row_mask:0xf bank_mask:0xf bound_ctrl:0",
             "row_shr:4 row_mask:0xf bank_mask:0xf bound_ctrl:0",
             "row_shr:8 row_mask:0xf bank_mask:0xf bound_ctrl:0",
             "row_bcast:15 row_mask:0xa bank_mask:0xf",
             "row_bcast:31 row_mask:0xc bank_mask:0xf"]
    for st in steps:
        a("s_nop 1" if len(regs) == 1 else "s_nop 0")
        for r in regs:
            a(f"v_add_f32_dpp v{r}, v{r}, v{r} {st}")
    a("s_nop 1")


def ln_compute(a):
    a.c("LN compute")
    a.vm_wait_if("ln")
    for i in range(4):
        a(f"v_lshlrev_b32 v{184+2*i}, 16, v{176+i}")
        a(f"v_and_b32 v{185+2*i}, 0xffff0000, v{176+i}")
        a(f"v_lshlrev_b32 v{192+2*i}, 16, v{180+i}")
        a(f"v_and_b32 v{193+2*i}, 0xffff0000, v{180+i}")
    a("v_add_f32 v200, v184, v185")
    a("v_mul_f32 v201, v184, v192")
    for i in range(1, 8):
        if i >= 2:
            a(f"v_add_f32 v200, v200, v{184+i}")
        a(f"v_fmac_f32 v201, v{184+i}, v{192+i}")
    a("s_nop 0")
    wave_reduce_add(a, [200, 201])
    a("v_readlane_b32 s8, v200, 63")
    a("v_readlane_b32 s9, v201, 63")
    a(f"v_mov_b32 v202, {f32bits(1.0/512)}")
    a(f"v_mov_b32 v214, {f32bits(-LOG2E)}")
    a("v_mul_f32 v202, s8, v202", "mean")
    a("v_mul_f32 v214, s9, v214")
    for i in range(8):
        a(f"v_sub_f32 v{184+i}, v{184+i}, v202")
    a("v_exp_f32 v214, v214")
    a("v_mul_f32 v200, v184, v184")
    for i in range(1, 8):
        a(f"v_fmac_f32 v200, v{184+i}, v{184+i}")
    wave_reduce_add(a, [200])
    a("v_readlane_b32 s8, v200, 63")
    a("v_add_f32 v214, 1.0, v214")
    a(f"v_mov_b32 v202, {f32bits(1.0/512)}")
    a(f"v_mov_b32 v203, {f32bits(1e-5)}")
    a("v_fma_f32 v202, s8, v202, v203", "var + eps")
    a("v_rsq_f32 v202, v202")
    a("v_rcp_f32 v214, v214", "g")
    for i in range(8):
        a(f"v_mul_f32 v{184+i}, v{184+i}, v202")
    for i in range(4):
        a(f"v_cvt_pk_bf16_f32 v{192+i}, v{184+2*i}, v{185+2*i}")
    a("v_mul_u32_u24 v204, 144, v0")
    a(f"s_lshl_b32 s8, s{S_WAVE}, 1")
    a(f"s_add_u32 s8, s8, {P_LN}")
    a("v_add_u32 v204, s8, v204")
    for i in range(4):
        a.lds(f"ds_write_b16 v204, v{192+i} offset:{32*i}", "lnw")
        a.lds(f"ds_write_b16_d16_hi v204, v{192+i} offset:{32*i+16}", "lnw")
    a("v_bfe_u32 v205, v0, 2, 1", "b2")
    a("v_bfe_u32 v206, v0, 3, 1", "b3")
    a("v_lshrrev_b32 v207, 4, v0")
    a("v_lshl_add_u32 v207, v207, 1, v205", "d>>3 (local) = (l>>4)*2 + b2")
    a("v_mul_u32_u24 v204, 144, v207")
    a("v_and_b32 v207, 3, v0")
    a("v_lshl_add_u32 v207, v206, 2, v207", "d&7 = b3*4 + (l&3)")
    a("v_lshl_add_u32 v204, v207, 4, v204")
    a(f"s_mul_i32 s8, s{S_WAVE}, {8*144}")
    a(f"s_add_u32 s8, s8, {P_LN}")
    a("v_add_u32 v204, s8, v204")
    a("v_lshrrev_b32 v205, 5, v0")
    a("v_lshlrev_b32 v205, 10, v205")
    a("v_and_b32 v210, 31, v0")
    a("v_lshl_add_u32 v205, v210, 4, v205")
    a(f"s_lshl_b32 s10, s{S_WAVE}, 18")
    a("s_lshr_b32 s9, s80, 4")
    a("s_lshl_b32 s9, s9, 11")
    a("s_add_u32 s10, s10, s9")
    a("s_and_b32 s9, s80, 8")
    a("s_lshl_b32 s9, s9, 6")
    a("s_add_u32 s10, s10, s9", "h store soffset")
    a(f"s_add_u32 s11, s80, s{S_WAVE}")
    a("s_lshl_b32 s11, s11, 2")
    a(f"s_add_u32 s11, s11, {WS_G}", "g store soffset")
    a("v_mov_b32 v210, 0")


def ln_store(a):
    a.c("LN store")
    a.lds("ds_read_b128 v[206:209], v204", "lnr")
    a.lg_wait("lnr")
    a.vmem(f"buffer_store_dwordx4 v[206:209], v205, {rs(R_WS)}, s10 offen sc1", "hst")
    a("s_mov_b64 exec, 1")
    a.vmem(f"buffer_store_dword v214, v210, {rs(R_WS)}, s11 offen sc1", "hst")
    a("s_mov_b64 exec, -1")
    a.vmem(f"buffer_load_dwordx2 v[216:217], v210, {rs(R_DBG)}, 0 offen sc1", "tag")


def tag_get(a):
    l1, l2 = a.label("tagl"), a.label("tagok")
    a(f"s_mov_b32 s17, {SPIN}")
    a(f"{l1}:")
    a(f"v_readfirstlane_b32 s{S_TAG}, v216")
    a(f"v_readfirstlane_b32 s{S_TAG+1}, v217")
    a(f"s_cmp_lg_u32 s{S_TAG}, 0")
    a(f"s_cbranch_scc1 {l2}")
    a(f"buffer_load_dwordx2 v[216:217], v210, {rs(R_DBG)}, 0 offen sc1")
    a("s_waitcnt vmcnt(0)")
    spin_guard(a, l1)
    a(f"{l2}:")
    a("s_getreg_b32 s8, hwreg(HW_REG_XCC_ID)")
    a("s_and_b32 s8, s8, 15")
    a("s_add_u32 s8, s8, 1")
    a("s_lshl_b32 s8, s8, 24") if OPT["local"] else a("s_mov_b32 s8, 0")
    a(f"s_mov_b32 s{S_LTAG}, s{S_TAG}")
    a(f"s_xor_b32 s{S_LTAG+1}, s{S_TAG+1}, s8", "tag valid only between workgroups of this XCD")


def flag_set(a, soff, vz, vt, local=False):
    tg = S_LTAG if local else S_TAG
    a(f"v_mov_b32 v{vt}, s{tg}")
    a(f"v_mov_b32 v{vt+1}, s{tg+1}")
    a(f"v_mov_b32 v{vz}, 0")
    a("s_mov_b64 exec, 1")
    a.vmem(f"buffer_store_dwordx2 v[{vt}:{vt+1}], v{vz}, {rs(R_WS)}, {soff} offen {'' if (local and OPT['local']) else 'sc1'}", "flag")
    a("s_mov_b64 exec, -1")


def flag_check(a, vt, mask_lo, mask_hi, tg=None):
    tg = S_TAG if tg is None else tg
    a(f"v_cmp_ne_u64 vcc, s[{tg}:{tg+1}], v[{vt}:{vt+1}]")
    a(f"s_and_b32 s10, vcc_lo, {mask_lo}")
    a(f"s_and_b32 s11, vcc_hi, {mask_hi}")
    a("s_or_b32 s10, s10, s11")
    a("s_cmp_eq_u32 s10, 0")


def flag_wait(a, soff, vaddr, vt, mask_lo, mask_hi, sleep=2):
    l1, l2 = a.label("poll"), a.label("pollok")
    a(f"s_mov_b32 s17, {SPIN}")
    a(f"{l1}:")
    a(f"buffer_load_dwordx2 v[{vt}:{vt+1}], v{vaddr}, {rs(R_WS)}, {soff} offen sc1")
    a("s_waitcnt vmcnt(0)")
    a.vm = []
    flag_check(a, vt, mask_lo, mask_hi)
    a(f"s_cbranch_scc1 {l2}")
    a(f"s_sleep {sleep}")
    spin_guard(a, l1)
    a(f"{l2}:")


def lds_arrive(a, cnt_off, vt, vone):
    a.lg_drain()
    a(f"v_mov_b32 v{vt}, {cnt_off}")
    a("s_mov_b64 exec, 1")
    a(f"ds_add_u32 v{vt}, v{vone}")
    a("s_mov_b64 exec, -1")


def lds_wait(a, cnt_off, target, vt, sleep=True, hint=0):
    lab, lab2 = a.label("sy"), a.label("syd")
    a(f"v_mov_b32 v{vt}, {cnt_off}")
    a(f"s_mov_b32 s17, {hint if hint else SPIN*8}")
    a(f"{lab}:")
    a(f"ds_read_b32 v{vt+1}, v{vt}")
    a("s_waitcnt lgkmcnt(0)")
    a.lg = []
    a(f"v_readfirstlane_b32 s8, v{vt+1}")
    a(f"s_cmp_ge_u32 s8, {target}")
    a(f"s_cbranch_scc1 {lab2}")
    if sleep:
        a("s_sleep 1")
    if hint:
        a("s_sub_u32 s17, s17, 1")
        a("s_cmp_lg_u32 s17, 0")
        a(f"s_cbranch_scc1 {lab}")
    else:
        spin_guard(a, lab)
    a(f"{lab2}:")


AV_Q, AV_O, AV_C, AV_S, AV_P, AV_K, AV_V = 16, 32, 96, 160, 192, 200, 208
AV_KA, AV_KR, AV_V0, AV_V1, AV_QA, AV_FA = 2, 3, 4, 5, 6, 7
GV_ACC, GV_D, GV_WO, GV_T, GV_Y, GV_MISC = 16, 80, 144, 208, 224, 240
GV_DMA, GV_TA1, GV_TA2, GV_TA3, GV_DB, GV_DA = 2, 5, 7, 9, 11, 13


def att_setup(a):
    a.c("attention setup")
    a(f"s_and_b32 s18, s{S_WAVE}, 1", "kh")
    a(f"s_lshr_b32 s19, s{S_WAVE}, 1", "e")
    a(f"s_lshl_b32 s20, s{S_HP}, 1")
    a("s_add_u32 s20, s20, s19", "head")
    a("s_lshl_b32 s8, s20, 17")
    a(f"s_add_u32 s8, s8, {WS_KV}")
    a(f"s_add_u32 s{R_KV}, s38, s8")
    a(f"s_addc_u32 s{R_KV+1}, s39, 0")
    a(f"s_mov_b32 s{R_KV+2}, 0x20000")
    a(f"s_mov_b32 s{R_KV+3}, 0x00020000")
    a(f"s_add_u32 s30, s{R_KV}, {WS_KVB}")
    a(f"s_addc_u32 s31, s{R_KV+1}, 0")
    a(f"s_mul_i32 s21, s{S_WAVE}, {KSLOT}")
    a(f"s_add_u32 s21, s21, {KVR}", "ring base")
    a(f"v_lshlrev_b32 v{AV_KA}, 4, v0")
    a(f"v_add_u32 v{AV_KR}, s21, v{AV_KA}")
    a("v_lshrrev_b32 v8, 5, v0")
    a("v_lshlrev_b32 v8, 8, v8")
    a("v_and_b32 v9, 15, v0")
    a("v_lshl_add_u32 v8, v9, 4, v8")
    a("v_add_u32 v8, 1024, v8")
    a("v_add_u32 v9, 512, v8")
    a("v_and_b32 v10, 27, v0")
    a("v_cmp_eq_u32 vcc, 16, v10")
    a("v_mov_b32 v11, 2064")
    a("v_mov_b32 v12, 2048")
    a("v_cndmask_b32 v11, v11, v12, vcc")
    a("v_and_b32 v10, 16, v0")
    a("v_cmp_eq_u32 vcc, 0, v10")
    a("s_lshl_b32 s8, s19, 12")
    a(f"s_add_u32 s8, s8, {L_Q}")
    a("v_cndmask_b32 v8, v11, v8, vcc")
    a("v_cndmask_b32 v9, v11, v9, vcc")
    a(f"v_add_u32 v{AV_V0}, s21, v8")
    a(f"v_add_u32 v{AV_V1}, s21, v9")
    a(f"v_add_u32 v{AV_QA}, s8, v{AV_KA}")
    a(f"s_lshl_b32 s8, s{S_SL}, 2")
    a("s_add_u32 s8, s8, 4")
    a(f"v_add_u32 v{AV_FA}, s8, v0")
    a(f"v_and_b32 v{AV_FA}, 63, v{AV_FA}")
    a(f"v_lshrrev_b32 v8, 2, v{AV_FA}")
    a(f"v_and_b32 v{AV_FA}, 3, v{AV_FA}")
    a(f"v_lshlrev_b32 v{AV_FA}, 3, v{AV_FA}")
    a(f"v_lshl_add_u32 v{AV_FA}, v8, 7, v{AV_FA}", "lane l polls tile (l + 4sl + 4) & 63")
    a("s_lshl_b32 s27, 0x555, s18", "flags of the first 6 remote tiles")
    a("s_lshl_b32 s8, s19, 10")
    a(f"s_add_u32 s8, s8, {L_K0}")
    a(f"v_add_u32 v1, s8, v{AV_KA}")
    a("v_lshrrev_b32 v8, 3, v0")
    a("v_min_u32 v8, 5, v8")
    a(f"v_mul_u32_u24 v8, {4*KSLOT}, v8")
    a("v_and_b32 v9, 7, v0")
    a("v_lshl_add_u32 v8, v9, 2, v8")
    a("v_cmp_gt_u32 vcc, 4, v9")
    a("v_add_u32 v230, s21, v8")
    a("v_mov_b32 v10, 0x3f803f80")
    a("v_cndmask_b32 v231, 0, v10, vcc")
    a(f"s_lshl_b32 s8, s{S_SL}, 1")
    a("s_add_u32 s8, s8, s18")
    a("s_lshl_b32 s9, s8, 8")
    a(f"s_add_u32 s32, s9, {WS_G}")
    a("s_lshl_b32 s9, s8, 6")
    a(f"s_add_u32 s33, s9, {WS_FH}")
    a("v_and_b32 v232, 31, v0")
    a("v_lshlrev_b32 v232, 2, v232")
    a("v_and_b32 v233, 7, v0")
    a("v_lshlrev_b32 v233, 3, v233")
    a(f"s_lshl_b32 s22, s{S_HP}, 11")
    a(f"s_add_u32 s22, s22, {WS_FKV}", "flag base")
    a(f"s_add_u32 s28, s22, {WS_FKVS}")
    a("s_lshl_b32 s23, 0x55555555, s18", "flag mask")
    a("s_mov_b32 s24, 0", "0: fast pass, 1: exact-max pass")
    a("s_mov_b32 s25, 2", "pair sync target")


def gemm_setup(a):
    a.c("GEMM setup")
    srd(a, R_WO, 20, 512 * 512 * 2)
    srd(a, R_B1, 26, 1792 * 2)
    srd(a, R_W2, 28, 1792 * 2048 * 2)
    srd(a, R_B2, 30, 2048 * 2)
    srd(a, R_OUT, 34, 2048 * 512 * 2)
    a("v_lshrrev_b32 v16, 3, v0")
    a("v_and_b32 v17, 7, v0")
    a("v_bfe_u32 v18, v0, 4, 1")
    a("v_lshlrev_b32 v18, 2, v18")
    a("v_xor_b32 v17, v17, v18")
    a("v_lshlrev_b32 v17, 4, v17")
    a(f"v_mul_u32_u24 v{GV_DMA}, 3584, v16")
    a(f"v_add_u32 v{GV_DMA}, v{GV_DMA}, v17")
    a(f"v_lshl_add_u32 v{GV_DMA+1}, v16, 12, v17")
    a(f"v_lshl_add_u32 v{GV_DMA+2}, v16, 10, v17")
    a(f"s_mul_i32 s18, s81, {TR*2048}")
    a(f"s_add_u32 s18, s18, {M_RED}", "T slot base (own reduction area; ring at +49152)")
    a("v_bfe_u32 v16, v0, 2, 2")
    a("v_lshlrev_b32 v17, 7, v16")
    a("v_bfe_u32 v16, v0, 3, 1")
    a("v_lshl_add_u32 v17, v16, 6, v17")
    a("v_bfe_u32 v16, v0, 4, 1")
    a("v_lshl_add_u32 v17, v16, 5, v17")
    a("v_add_u32 v17, s18, v17", "rows r, half swap, colhalf")
    a("v_and_b32 v16, 3, v0")
    a("v_lshl_add_u32 v18, v16, 3, v17", "+8c")
    a("v_and_b32 v16, 1, v0")
    a("v_lshl_add_u32 v19, v16, 4, v17")
    a("v_bfe_u32 v16, v0, 1, 1")
    a("v_lshl_add_u32 v19, v16, 3, v19", "+16(c&1)+8(c>>1): column permutation swap23")
    a("v_lshrrev_b32 v16, 5, v0")
    a("s_lshr_b32 s8, s81, 1", "a_w")
    a("s_and_b32 s9, s81, 1", "b_w")
    a("s_lshl_b32 s19, s8, 6")
    a("s_lshl_b32 s20, s9, 6")
    a(f"v_lshl_add_u32 v{GV_TA1}, v16, 10, v18")
    a(f"v_xor_b32 v{GV_TA1}, s19, v{GV_TA1}")
    a(f"v_xor_b32 v{GV_TA1+1}, 64, v{GV_TA1}")
    a(f"v_lshl_add_u32 v{GV_TA2}, v16, 9, v18")
    a(f"v_xor_b32 v{GV_TA2}, s20, v{GV_TA2}")
    a(f"v_xor_b32 v{GV_TA2+1}, 64, v{GV_TA2}")
    a(f"v_lshl_add_u32 v{GV_TA3}, v16, 9, v19")
    a(f"v_xor_b32 v{GV_TA3}, s19, v{GV_TA3}")
    a(f"v_xor_b32 v{GV_TA3+1}, 64, v{GV_TA3}")
    a("s_lshl_b32 s19, s8, 10")
    a("s_lshl_b32 s20, s9, 10")
    a("v_lshlrev_b32 v16, 4, v0")
    a(f"v_add_u32 v{GV_DB}, s20, v16")
    a(f"v_xor_b32 v{GV_DB+1}, 1024, v{GV_DB}")
    a(f"v_add_u32 v{GV_DA}, s19, v16")
    a(f"v_xor_b32 v{GV_DA+1}, 1024, v{GV_DA}")
    for v in range(1, 4):
        a(f"s_xor_b32 s8, s81, {v}")
        a("s_mul_i32 s8, s8, 12288")
        a(f"s_add_u32 s8, s8, {M_RED + (v-1)*4096}")
        a(f"v_add_u32 v{GV_MISC+v}, s8, v16")
    a("s_mul_i32 s8, s81, 12288")
    a(f"s_add_u32 s8, s8, {M_RED}")
    a(f"v_add_u32 v{GV_MISC}, s8, v16")
    a(f"s_lshr_b32 s8, s{S_XCD}, 1")
    a("s_mul_i32 s8, s8, 7", "7p")
    a(f"s_and_b32 s9, s{S_XCD}, 1")
    a("s_lshl_b32 s9, s9, 2", "4*odd")
    a(f"s_lshr_b32 s23, s{S_IDX}, 3", "j")
    a("s_add_u32 s20, s8, s9")
    a("s_add_u32 s20, s20, s23", "ft (j<3)")
    a("s_add_u32 s8, s8, 3")
    a(f"s_and_b32 s19, s{S_IDX}, 7")
    a(f"s_and_b32 s21, s{S_IDX}, 3")
    a("s_add_u32 s9, s9, s21")
    a("s_cmp_eq_u32 s23, 3")
    a("s_cselect_b32 s20, s8, s20", "ft")
    a("s_cselect_b32 s19, s9, s19", "dt (G1)")
    a(f"s_and_b32 s23, s23, {OPT['r1m']}")
    a(f"s_lshl_b32 s23, s23, {OPT['r1s']}", "rot G1 (h sharers)")
    a(f"s_lshr_b32 s22, s{S_IDX}, 2", "dt (G2)")
    a(f"s_and_b32 s9, s21, {OPT['r2m']}")
    a(f"s_mul_i32 s9, s9, {OPT['r2s']}")
    a(f"s_lshl_b32 s8, s{S_XCD}, 2")
    a("s_add_u32 s21, s8, s21", "st")
    a("s_mul_i32 s8, s22, 7")
    a("s_lshr_b32 s8, s8, 1")
    a("s_add_u32 s24, s9, s8")
    a("s_sub_u32 s9, s24, 28")
    a("s_cmp_ge_u32 s24, 28")
    a("s_cselect_b32 s24, s9, s24", "rot G2")


def bias_loads(a):
    a("v_lshrrev_b32 v64, 5, v0")
    a("v_lshlrev_b32 v64, 3, v64")
    a("s_lshl_b32 s8, s20, 7")
    a("s_lshr_b32 s9, s81, 1")
    a("s_lshl_b32 s9, s9, 6")
    a("s_add_u32 s8, s8, s9")
    for g in range(4):
        a.vmem(f"buffer_load_dwordx2 {vr(GV_Y+2*g,2)}, v64, {rs(R_B1)}, s8 offen offset:{16*g}", "b1")
    a("v_and_b32 v65, 31, v0")
    a("v_lshlrev_b32 v65, 1, v65")
    a("s_lshl_b32 s8, s21, 6")
    a("s_and_b32 s9, s81, 1")
    a("s_lshl_b32 s9, s9, 5")
    a("s_add_u32 s91, s8, s9", "first row of own output sub-tile")
    a("s_lshl_b32 s8, s91, 1")
    a.vmem(f"buffer_load_ushort v15, v65, {rs(R_B2)}, s8 offen", "b2")
    a(f"v_lshlrev_b32 v{GV_MISC+4}, 3, v0")
    a("s_lshl_b32 s96, s81, 9")
    a(f"s_add_u32 s96, s96, {WS_FH}")


def warm_setup(a):
    srd(a, R_W1, 24, 2048 * 1792 * 2)
    a("v_lshrrev_b32 v174, 5, v0")
    a("v_mul_u32_u24 v174, 3584, v174")
    a("v_and_b32 v175, 31, v0")
    a("v_lshl_add_u32 v174, v175, 4, v174")
    a(f"s_lshr_b32 s8, s{S_XCD}, 1")
    a("s_mul_i32 s8, s8, 7")
    a(f"s_and_b32 s9, s{S_XCD}, 1")
    a("s_mul_i32 s9, s9, 3")
    a("s_add_u32 s8, s8, s9")
    a("s_lshl_b32 s90, s8, 7")
    a(f"s_lshl_b32 s8, s{S_IDX}, 3")
    a(f"s_add_u32 s8, s8, s{S_WAVE}")
    a("s_lshr_b32 s9, s8, 6")
    a("s_lshl_b32 s9, s9, 9")
    a("s_and_b32 s8, s8, 63")
    a("s_lshl_b32 s8, s8, 1")
    a("s_add_u32 s8, s8, s9")
    a("s_mul_i32 s8, s8, 3584")
    a("s_add_u32 s8, s8, s90")
    a("s_mov_b32 s87, s8")


def epi_addr(a, par):
    a(f"s_lshl_b32 s84, s{S_SL}, 2")
    a("s_add_u32 s84, s84, s81", "tile")
    a("v_lshlrev_b32 v170, 4, v0")
    if par == 0:
        a("s_lshl_b32 s8, s81, 10")
        a(f"s_add_u32 s8, s8, {L_Q}")
        a("v_add_u32 v171, s8, v170")
    else:
        a(f"s_lshl_b32 s88, s{S_HP}, 18")
        a("s_lshl_b32 s9, s84, 11")
        a("s_add_u32 s88, s88, s9")
        a(f"s_add_u32 s88, s88, {WS_KV}")
        a("s_add_u32 s89, s88, 0x20000")
        a("v_lshrrev_b32 v171, 5, v0")
        a("v_lshlrev_b32 v171, 8, v171")
        a("v_and_b32 v172, 15, v0")
        a("v_lshl_add_u32 v171, v172, 4, v171", "h'*256 + i*16")
        a("v_bfe_u32 v173, v0, 4, 1", "e")
        a("v_lshl_add_u32 v172, v173, 17, v171", "global V voffset")
        a("s_and_b32 s8, s81, 1")
        a(f"s_mul_i32 s8, s8, {KSLOT}")
        a("s_lshr_b32 s9, s81, 1")
        a(f"s_mul_i32 s9, s9, {4*KSLOT}")
        a("s_add_u32 s8, s8, s9")
        a(f"s_add_u32 s8, s8, {KVR + KSO(0)}")
        a(f"v_mul_u32_u24 v173, {2*KSLOT}, v173")
        a("v_add3_u32 v173, v173, v171, s8", "LDS V addr")
        a("v_add_u32 v171, s8, v170", "LDS K addr")


def proj(a, par):
    a.c(f"projection role {par}")
    ACC = 96 if par == 0 else 80
    XF, WF, XA, WA = PV_XF, PV_WF, PV_XA, PV_WA
    vm = []
    for t in a.vm:
        if t.endswith("A"):
            if par == 0:
                vm.append(t[:-1])
        else:
            vm.append(t)
    a.vm = vm
    if OPT["tlb"]:
        pages = ([(38, o) for o in (0x200000, 0x400000, 0xC00000, 0x000000, 0x800000, 0xA00000, 0xE00000, 0x1000000)] + [(34, 0)]) if par == 0 \
            else ([(24, o) for o in (0, 0x200000, 0x400000, 0x600000)] + [(28, o) for o in (0, 0x200000, 0x400000, 0x600000)] + [(20, 0), (26, 0), (30, 0)])
        for (ptr, off) in pages:
            if off:
                a(f"s_add_u32 s10, s{ptr}, {off}")
                a(f"s_addc_u32 s11, s{ptr+1}, 0")
                a("s_load_dword s97, s[10:11], 0")
            else:
                a(f"s_load_dword s97, s[{ptr}:{ptr+1}], 0")
    att_setup(a) if par == 0 else gemm_setup(a)
    epi_addr(a, par)

    def pretouch():
        nt = "nt" if OPT["ptnt"] else ""
        if not OPT["local"] or OPT["pt"] == 0:
            pass
        elif par == 1:
            a.vmem(f"buffer_load_dwordx4 v[248:251], v170, {rs(R_WS)}, s88 offen {nt}", "pt")
            a.vmem(f"buffer_load_dwordx4 v[248:251], v170, {rs(R_WS)}, s89 offen {nt}", "pt")
        else:
            a(f"s_lshl_b32 s8, s{S_HP}, 18")
            a("s_lshl_b32 s9, s84, 11")
            a("s_add_u32 s8, s8, s9")
            a(f"s_add_u32 s8, s8, {WS_KV}")
            a("s_add_u32 s9, s8, 0x20000")
            a.vmem(f"buffer_load_dwordx4 v[248:251], v170, {rs(R_WS)}, s8 offen offset:1024 {nt}", "pt")
            a.vmem(f"buffer_load_dwordx4 v[248:251], v170, {rs(R_WS)}, s9 offen offset:1024 {nt}", "pt")
            a.vmem(f"buffer_load_dwordx2 v[248:249], v{AV_FA}, {rs(R_WS)}, s22 offen {nt}", "pt")
        if OPT["w1mode"] == 0:
            for q in range(OPT["mwn"]):
                a(f"s_add_u32 s8, s87, {q*128*3584}")
                a.vmem(f"buffer_load_dwordx4 v[248:251], v174, {rs(R_W1)}, s8 offen", "warm")
    segs = [0] if par == 0 else [1, 2]
    SETS = [(XF, WF), (16, 32)]

    def reads(c):
        slot = c % NPS
        xf, wf = SETS[c % 2]
        L = []
        for ks in range(4):
            L.append(f"ds_read_b128 {vr(xf+4*ks,4)}, v{XA+ks} offset:{P_XS + slot*16384}")
            for si, seg in enumerate(segs):
                off = slot * 12288 + ks * 3072 + seg * 1024
                w = wf + 8 * ks + 4 * si
                L.append(f"ds_read_b64_tr_b16 {vr(w,2)}, v{WA} offset:{off}")
                L.append(f"ds_read_b64_tr_b16 {vr(w+2,2)}, v{WA} offset:{off+256}")
        return L

    def mms(c):
        xf, wf = SETS[c % 2]
        L = []
        for ks in range(4):
            L.append(mfma(ACC, wf + 8 * ks, xf + 4 * ks, ACC))
            if par == 1:
                L.append(mfma(ACC + 16, xf + 4 * ks, wf + 8 * ks + 4, ACC + 16))
        return L

    p_issue(a, 1, par)
    if OPT["ptc"] < 0:
        pretouch()
    if OPT["lnpos"] == 0:
        ln_compute(a)
    LA = OPT["la"]
    for c in range(2, LA - 1):
        p_issue(a, c, par)
    stamp(a, 2)
    a.vm_wait("ch0")
    a("s_barrier")
    stamp(a, 32)
    for x in reads(0):
        a.lds(x, "r")
    p_issue(a, LA - 1, par)
    if OPT["lnpos"] == 1:
        ln_compute(a)
    LNS = 0
    for c in range(8):
        a.c(f"chunk {c}")
        a.lg_drain()
        R, Mm = [], mms(c)
        a(Mm.pop(0))
        if c + 1 < 8:
            a.vm_wait(f"ch{c+1}")
            a("s_barrier")
            stamp(a, 33 + c)
            R = reads(c + 1)
        per = 4
        while Mm or R:
            for x in R[:per]:
                a.lds(x, "r")
            R = R[per:]
            if Mm:
                a(Mm.pop(0))
        if c == LNS:
            ln_store(a)
        if c + LA < 8:
            p_issue(a, c + LA, par)
        if c == LNS + LA - 1:
            tag_get(a)
            if par == 1:
                lab = a.label("nofh")
                a("s_cmp_lg_u32 s81, 0")
                a(f"s_cbranch_scc1 {lab}")
                a(f"s_add_u32 s8, s80, {WS_FH}")
                n0 = len(a.vm)
                flag_set(a, "s8", 218, 220)
                a.vm = a.vm[:n0]
                a(f"{lab}:")
        if c == OPT["ptc"]:
            pretouch()
        if c == 1 and par == 1:
            bias_loads(a)
    stamp(a, 3)
    a.c("projection epilogue")
    if par == 0:
        a(f"s_mov_b32 s8, {f32bits(0.25*LOG2E)}")
        a(f"s_mov_b32 s9, {f32bits(0.25*LOG2E)}")
        a("s_nop 9")
        for r in range(0, 16, 2):
            a(f"v_pk_mul_f32 {vr(ACC+r,2)}, {vr(ACC+r,2)}, s[8:9]")
        for r in range(8):
            a(f"v_cvt_pk_bf16_f32 v{XF+r}, v{ACC+2*r}, v{ACC+2*r+1}")
        a.lds(f"ds_write_b128 v171, {vr(XF,4)}", "qw")
        a.lds(f"ds_write_b128 v171, {vr(XF+4,4)} offset:4096", "qw")
    else:
        a("s_nop 10")
        for r in range(16):
            a(f"v_cvt_pk_bf16_f32 v{XF+r}, v{ACC+2*r}, v{ACC+2*r+1}")
        a.lds(f"ds_write_b128 v171, {vr(XF,4)}", "kw")
        a.lds(f"ds_write_b128 v171, {vr(XF+4,4)} offset:{2*KSLOT}", "kw")
        lab = a.label("nok0")
        a("s_cmp_lg_u32 s81, 0")
        a(f"s_cbranch_scc1 {lab}")
        a(f"ds_write_b128 v171, {vr(XF,4)} offset:{L_K0-KVR-KSO(0)}")
        a(f"ds_write_b128 v171, {vr(XF+4,4)} offset:{L_K0-KVR-KSO(0)+1024}")
        a(f"{lab}:")
        a.lds(f"ds_write_b128 v173, {vr(XF+8,4)} offset:1024", "kw")
        a.lds(f"ds_write_b128 v173, {vr(XF+12,4)} offset:1536", "kw")
    a.lg_drain()
    a("s_barrier")
    if par == 1:
        a.vmem(f"buffer_store_dwordx4 {vr(XF,4)}, v170, {rs(R_WS)}, s88 offen {KVSC()}", "kvst")
        a.vmem(f"buffer_store_dwordx4 {vr(XF+4,4)}, v170, {rs(R_WS)}, s89 offen {KVSC()}", "kvst")
        a.vmem(f"buffer_store_dwordx4 {vr(XF+8,4)}, v172, {rs(R_WS)}, s88 offen offset:1024 {KVSC()}", "kvst")
        a.vmem(f"buffer_store_dwordx4 {vr(XF+12,4)}, v172, {rs(R_WS)}, s88 offen offset:1536 {KVSC()}", "kvst")


def attn_body(a, u_list, extra):
    kb = lambda n: n % 2
    for (n, i, pn, pi, nn, ni, par) in u_list:
        cur, nxt = AV_S + 16 * par, AV_S + 16 * (1 - par)
        E = lambda r: a(f"v_exp_f32 v{cur+r}, v{cur+r}")
        C = lambda r: a(f"v_cvt_pk_bf16_f32 v{AV_P+r}, v{cur+2*r}, v{cur+2*r+1}")
        E(0)
        E(1)
        if pn is not None:
            a(mfma(AV_O + 16 * pi, AV_V + 8 * kb(pn) + 4, AV_P + 4, AV_O + 16 * pi))
        extra(n, i, 0)
        for r in range(2, 8):
            E(r)
        if nn is not None:
            a(mfma(nxt, AV_K + 4 * kb(nn), AV_Q + 4 * ni, AV_C + 16 * ni))
            extra(n, i, 1)
        else:
            a("s_nop 0")
        for r in range(4):
            C(r)
        for r in range(8, 12):
            E(r)
        a(mfma(AV_O + 16 * i, AV_V + 8 * kb(n), AV_P, "0" if n == 0 else AV_O + 16 * i))
        extra(n, i, 2)
        for r in range(12, 16):
            E(r)
        for r in range(4, 8):
            C(r)


def attention(a):
    a.c("attention role")
    KS = "s12"

    def rd(n):
        so, b = KSO(n), n % 2
        return [f"ds_read_b128 {vr(AV_K+4*b,4)}, v{AV_KR} offset:{so}",
                f"ds_read_b128 {vr(AV_V+8*b,4)}, v{AV_V0} offset:{so}",
                f"ds_read_b128 {vr(AV_V+8*b+4,4)}, v{AV_V1} offset:{so}"]

    def dma(n):
        return [f"s_add_u32 m0, s21, {KSO(n)}",
                f"buffer_load_dwordx4 v{AV_KA}, {rs(R_KV)}, {KS} offen sc1 lds",
                f"buffer_load_dwordx4 v{AV_KA}, {rs(R_KV)}, {KS} offen offset:1024 sc1 lds",
                f"s_add_u32 {KS}, {KS}, 4096",
                f"s_and_b32 {KS}, {KS}, 0x1ffff"]

    def kv_wait(mlo, mhi):
        l1, l2, l3 = a.label("kvp"), a.label("kvok"), a.label("kvs")
        a(f"s_mov_b32 s17, {SPIN}")
        a(f"{l1}:")
        a(f"buffer_load_dwordx2 v[8:9], v{AV_FA}, {rs(R_WS)}, s22 offen sc1")
        a(f"buffer_load_dwordx2 v[10:11], v{AV_FA}, {rs(R_WS)}, s28 offen sc1")
        a("s_waitcnt vmcnt(0)")
        flag_check(a, 8, mlo, mhi, S_LTAG)
        a(f"s_cbranch_scc1 {l2}")
        flag_check(a, 10, mlo, mhi)
        a(f"s_cbranch_scc1 {l3}")
        a("s_sleep 1")
        spin_guard(a, l1)
        a(f"{l3}:")
        a(f"s_mov_b32 s{R_KV}, s30")
        a(f"s_mov_b32 s{R_KV+1}, s31")
        a("s_mov_b32 s22, s28", "from now on only the written-through flags count")
        a(f"s_mov_b32 s{S_LTAG+1}, s{S_TAG+1}")
        a(f"{l2}:")

    a(f"s_setprio {OPT['prio_att']}")
    a("ds_write_b32 v230, v231 offset:2048")
    for i in range(4):
        a(f"ds_read_b128 {vr(AV_Q+4*i,4)}, v{AV_QA} offset:{i*1024}")
    a(f"ds_read_b128 {vr(AV_S,4)}, v1", "K tile 0 of my head")
    stamp(a, 4)
    a.c("max estimate from own key tile 0")
    a("s_waitcnt lgkmcnt(0)")
    for i in range(4):
        a(mfma(AV_C + 16 * i, AV_S, AV_Q + 4 * i, "0"))
    for x in rd(0):
        a(x)
    a("s_nop 5")
    for i in range(4):
        a(f"v_max3_f32 v{12+i}, v{AV_C+16*i}, v{AV_C+16*i+1}, v{AV_C+16*i+2}")
        for r in range(6):
            a(f"v_max3_f32 v{12+i}, v{AV_C+16*i+3+2*r}, v{AV_C+16*i+4+2*r}, v{12+i}")
        a(f"v_max_f32 v{12+i}, v{AV_C+16*i+15}, v{12+i}")
    lredo = a.label("redo")
    a(f"{lredo}:")
    for i in range(4):
        a(f"v_mov_b32 v{8+i}, v{12+i}")
    a("s_nop 1")
    for i in range(4):
        a(f"v_permlane32_swap_b32 v{12+i}, v{8+i}")
    a("s_nop 1")
    for i in range(4):
        a(f"v_max_f32 v{12+i}, v{12+i}, v{8+i}")
    for i in range(4):
        a(f"v_sub_f32 v{AV_C+16*i}, 0, v{12+i}")
        a(f"v_sub_f32 v{AV_C+16*i+1}, 0, v{12+i}")
    for r in range(2, 16, 2):
        a(f"v_mov_b64 {vr(AV_C+r,2)}, {vr(AV_C,2)}")
    a("s_nop 0")
    a("s_waitcnt lgkmcnt(0)")
    a(mfma(AV_S, AV_K, AV_Q, AV_C))
    for i in range(1, 4):
        for r in range(2, 16, 2):
            a(f"v_mov_b64 {vr(AV_C+16*i+r,2)}, {vr(AV_C+16*i,2)}")
    stamp(a, 5)
    a.c("phase A: own tiles")
    ul = []
    for u in range(8):
        n, i = u // 4, u % 4
        pn, pi = (None, None) if u == 0 else ((u - 1) // 4, (u - 1) % 4)
        nn, ni = ((u + 1) // 4, (u + 1) % 4) if u < 7 else (None, None)
        ul.append((n, i, pn, pi, nn, ni, u % 2))

    fl = []
    for n_ in range(2, 2 + KR):
        d = dma(n_)
        fl.append([d[0], d[1]] if n_ == 2 else [d[3], d[4], d[0], d[1]])
        fl.append([d[2]])
    lw1, lw1b = a.label("kvw"), a.label("kvwb")

    def extraA(n, i, slot):
        if n == 0 and (i, slot) in ((0, 1), (0, 2), (1, 0)):
            a(rd(1)[[(0, 1), (0, 2), (1, 0)].index((i, slot))])
        if n == 0 and (i, slot) == (1, 1):
            a(f"buffer_load_dwordx2 v[8:9], v{AV_FA}, {rs(R_WS)}, s22 offen sc1")
        if n == 0 and (i, slot) == (1, 2):
            a(f"buffer_load_dwordx2 v[228:229], v233, {rs(R_WS)}, s33 offen sc1")
        if n == 0 and (i, slot) == (3, 0):
            a("s_waitcnt lgkmcnt(0)")
        if n == 0 and (i, slot) == (3, 1):
            a("s_waitcnt vmcnt(0)")
            flag_check(a, 8, "s23", "s23", S_LTAG)
            a("s_cselect_b32 s13, 0, 5", "s13 == s16 -> remaining flags still to be checked")
            a("s_and_b32 s10, vcc_lo, s27")
            a(f"s_cbranch_scc1 {lw1}")
            a(f"{lw1b}:")
        k = None
        if n == 0 and (i, slot) == (3, 2):
            k = 0
        elif n == 1:
            k = 1 + 3 * i + slot - (1 if (i, slot) == (3, 2) else 0)
        if k is not None:
            grp = fl[k]
            if len(grp) > 1:
                for x in grp[:-1]:
                    a(x)
                a("s_nop 0")
            a(grp[-1])
    a(f"s_lshl_b32 {KS}, s{S_SL}, 2")
    a(f"s_add_u32 {KS}, {KS}, s18")
    a(f"s_add_u32 {KS}, {KS}, 4")
    a(f"s_lshl_b32 {KS}, {KS}, 11")
    a(f"s_and_b32 {KS}, {KS}, 0x1ffff")
    a(f"v_mov_b32 v224, {M_CNT+36}")
    a("v_mov_b32 v225, 1")
    attn_body(a, ul, extraA)
    stamp(a, 6)
    a(dma(2)[3])
    a(dma(2)[4])
    lg1 = a.label("gok")
    flag_check(a, 228, "-1", "-1")
    a(f"s_cbranch_scc1 {lg1}")
    flag_wait(a, "s33", 233, 228, "-1", "-1")
    a(f"{lg1}:")
    a(f"buffer_load_dwordx2 v[8:9], v{AV_FA}, {rs(R_WS)}, s22 offen sc1")
    a(f"buffer_load_dword v226, v232, {rs(R_WS)}, s32 offen sc1")
    a(f"buffer_load_dword v227, v232, {rs(R_WS)}, s32 offen offset:128 sc1")
    a("s_mov_b64 exec, 1")
    a("ds_add_u32 v224, v225", "release the GEMM waves")
    a("s_mov_b64 exec, -1")
    a(f"s_waitcnt vmcnt({2*(KR-1)+3})")
    for x in rd(2):
        a(x)
    a("s_mov_b32 s16, 5")
    stamp(a, 7)
    a("s_waitcnt lgkmcnt(0)")
    a(mfma(AV_S, AV_K, AV_Q, AV_C))
    a("s_nop 10")
    lloop = a.label("attn")
    a(".p2align 6")
    a(f"{lloop}:")
    ul = []
    for u in range(24):
        n, i = 2 + u // 4, u % 4
        pn, pi = 2 + (u - 1) // 4, (u - 1) % 4
        nn, ni = 2 + (u + 1) // 4, (u + 1) % 4
        ul.append((n, i, pn, pi, nn, ni, u % 2))

    lchk, lback = a.label("chk"), a.label("chkb")

    def extraL(n, i, slot):
        d, r = dma(n + KR), rd(n + 1)
        sched = {(0, 0): f"s_waitcnt vmcnt({2*(KR-2)})", (0, 1): r[0], (0, 2): r[1], (1, 0): r[2],
                 (1, 1): d[0], (1, 2): d[1], (2, 0): d[2], (2, 1): d[3], (2, 2): d[4],
                 (3, 0): "s_waitcnt lgkmcnt(0)"}
        if n == 2 and (i, slot) == (1, 0):
            a("s_cmp_eq_u32 s16, s13")
        if n == 2 and (i, slot) == (1, 1):
            a(f"s_cbranch_scc1 {lchk}")
            a(f"{lback}:")
        if (i, slot) in sched:
            a(sched[(i, slot)])
        if OPT["stamps"] and n == 2 and (i, slot) == (2, 2):
            a("s_memrealtime s[98:99]")
            a("s_memtime s[100:101]")
        if OPT["stamps"] and n == 2 and (i, slot) == (3, 1):
            a("s_add_u32 m0, s16, 40")
            a("s_nop 0")
            a("v_writelane_b32 v254, s98, m0")
            a("v_writelane_b32 v255, s100, m0")
        if n == 6 and (i, slot) == (3, 1):
            a("s_sub_u32 s16, s16, 1")
        if n == 6 and (i, slot) == (3, 2):
            a("s_cmp_eq_u32 s16, 1")
        if n == 7 and (i, slot) == (0, 0):
            a("s_cselect_b32 s26, 0, 0x20000")
        if n == 7 and (i, slot) == (3, 1):
            a(f"s_mov_b32 s{R_KV+2}, s26", "last iteration: DMA out of range (no traffic)")
        if n == 7 and (i, slot) == (3, 2):
            a("s_cmp_lg_u32 s16, 0")
    attn_body(a, ul, extraL)
    a(f"s_cbranch_scc1 {lloop}")
    a("s_nop 0")
    a(mfma(AV_O + 48, AV_V + 8 + 4, AV_P + 4, AV_O + 48))
    stamp(a, 8)
    a.c("check + combine")
    a("v_lshlrev_b32 v9, 2, v0")
    a("v_add_u32 v9, s21, v9", "own area, lane*4")
    a(f"s_xor_b32 s8, s{S_WAVE}, 1")
    a(f"s_mul_i32 s8, s8, {KSLOT}")
    a(f"s_add_u32 s8, s8, {KVR}")
    a(f"v_add_u32 v10, s8, v{AV_KA}", "partner area")
    a("v_lshlrev_b32 v11, 2, v0")
    a("v_add_u32 v11, s8, v11")
    a("s_waitcnt vmcnt(0)")
    a("s_nop 2")
    a(f"v_add_f32 v8, v{AV_O+8}, v{AV_O+24}")
    a(f"v_add_f32 v1, v{AV_O+40}, v{AV_O+56}")
    a("v_add_f32 v8, v8, v1")
    a(f"v_mov_b32 v1, {f32bits(2.0**60)}")
    a("v_cmp_nlt_f32 vcc, v8, v1")
    a("s_cmp_lg_u64 vcc, 0")
    a("s_cselect_b32 s8, 0x10001, 1")
    a("v_mov_b32 v1, s8")
    lk1, ljoin = a.label("kh1"), a.label("khj")
    a("s_cmp_eq_u32 s18, 1")
    a(f"s_cbranch_scc1 {lk1}")

    def send(o, j):
        a(f"ds_write_b128 v{AV_KR}, {vr(o,4)} offset:{KSO(2*j)}")
        a(f"ds_write_b128 v{AV_KR}, {vr(o+4,4)} offset:{KSO(2*j)+1024}")
        a(f"ds_write_b32 v9, v{o+8} offset:{KSO(2*j+1)}")
    for j in range(2):
        send(AV_O + 16 * (2 + j), j)
    a(f"s_branch {ljoin}")
    a(f"{lk1}:")
    for j in range(2):
        send(AV_O + 16 * j, j)
    a("s_waitcnt lgkmcnt(0)")
    for j in range(2):
        for r in range(9):
            a(f"v_mov_b32 v{AV_O+16*j+r}, v{AV_O+16*(2+j)+r}")
    a(f"{ljoin}:")
    lab, lab2 = a.label("asy"), a.label("asyd")
    a("s_lshl_b32 s8, s19, 2")
    a(f"s_add_u32 s8, s8, {M_CNT}")
    a("v_mov_b32 v8, s8")
    a("s_mov_b64 exec, 1")
    a("ds_add_u32 v8, v1")
    a("s_mov_b64 exec, -1")
    a(f"s_mov_b32 s17, {SPIN*16}")
    a(f"{lab}:")
    a("ds_read_b32 v9, v8")
    a("s_waitcnt lgkmcnt(0)")
    a("v_readfirstlane_b32 s8, v9")
    a("s_and_b32 s9, s8, 0xffff")
    a("s_cmp_ge_u32 s9, s25")
    a(f"s_cbranch_scc1 {lab2}")
    spin_guard(a, lab)
    a(f"{lab2}:")
    stamp(a, 48)
    lok, lslow = a.label("aok"), a.label("aslow")
    a("s_lshr_b32 s9, s8, 16")
    a("s_cmp_lg_u32 s9, 0")
    a(f"s_cbranch_scc1 {lslow}")
    a(f"{lok}:")
    for j in range(2):
        t = AV_S + 16 * j
        a(f"ds_read_b128 {vr(t,4)}, v10 offset:{KSO(2*j)}")
        a(f"ds_read_b128 {vr(t+4,4)}, v10 offset:{KSO(2*j)+1024}")
        a(f"ds_read_b32 v{t+8}, v11 offset:{KSO(2*j+1)}")
    a(f"s_lshl_b32 s8, s{S_SL}, 1")
    a("s_add_u32 s8, s8, s18")
    a("s_lshl_b32 s8, s8, 5")
    a("s_add_u32 s8, s8, s20", "st*32 + head")
    a(f"s_lshl_b32 s9, s{S_SL}, 4")
    a(f"s_add_u32 s9, s9, s{S_HP}")
    a("s_lshl_b32 s9, s9, 3")
    a("s_add_u32 s9, s9, s18")
    a("s_lshl_b32 s9, s9, 1")
    a("s_add_u32 s9, s9, s19")
    a("s_lshl_b32 s9, s9, 3")
    a(f"s_add_u32 s9, s9, {WS_FO}")
    a("s_lshl_b32 s8, s8, 11")
    a(f"s_add_u32 s8, s8, {WS_O}")
    a("s_waitcnt lgkmcnt(0)")
    for j in range(2):
        a(f"v_add_f32 v{AV_O+16*j+8}, v{AV_O+16*j+8}, v{AV_S+16*j+8}")
    for j in range(2):
        a(f"v_rcp_f32 v{AV_O+16*j+8}, v{AV_O+16*j+8}")
    for j in range(2):
        for r in range(8):
            a(f"v_add_f32 v{AV_O+16*j+r}, v{AV_O+16*j+r}, v{AV_S+16*j+r}")
    for j in range(2):
        a(f"v_mul_f32 v{AV_O+16*j+8}, v{AV_O+16*j+8}, v{226+j}", "g / l")
    for j in range(2):
        for r in range(8):
            a(f"v_mul_f32 v{AV_O+16*j+r}, v{AV_O+16*j+r}, v{AV_O+16*j+8}")
        for r in range(4):
            a(f"v_cvt_pk_bf16_f32 v{AV_P+4*j+r}, v{AV_O+16*j+2*r}, v{AV_O+16*j+2*r+1}")
        a(f"buffer_store_dwordx4 {vr(AV_P+4*j,4)}, v{AV_KA}, {rs(R_WS)}, s8 offen offset:{j*1024} sc1")
    stamp(a, 49)
    a(f"v_mov_b32 v10, s{S_TAG}")
    a(f"v_mov_b32 v11, s{S_TAG+1}")
    a("v_mov_b32 v9, 0")
    a("s_mov_b64 exec, 1")
    a("s_waitcnt vmcnt(0)")
    a(f"buffer_store_dwordx2 v[10:11], v9, {rs(R_WS)}, s9 offen sc1")
    a("s_mov_b64 exec, -1")
    stamp(a, 9, True)
    a("s_endpgm")
    a(f"{lw1}:")
    kv_wait("s27", "0")
    a(f"s_branch {lw1b}")
    a(f"{lchk}:")
    a("s_waitcnt vmcnt(0)")
    flag_check(a, 8, "s23", "s23", S_LTAG)
    a(f"s_cbranch_scc1 {lback}")
    kv_wait("s23", "s23")
    a(f"s_branch {lback}")
    a(f"{lslow}:")
    a("s_cmp_lg_u32 s24, 0")
    a(f"s_cbranch_scc1 {lok}")
    a("s_mov_b32 s24, 1")
    a("s_mov_b32 s25, 4")
    a(f"s_mov_b32 s{R_KV+2}, 0x20000")
    kv_wait("-1", "-1")
    for i in range(4):
        a(f"v_mov_b32 v{12+i}, 0xff800000")
    a("s_mov_b32 s8, 0")
    lmax = a.label("maxloop")
    a(f"{lmax}:")
    a(f"buffer_load_dwordx4 {vr(AV_K,4)}, v{AV_KA}, {rs(R_KV)}, s8 offen sc1")
    a("s_waitcnt vmcnt(0)")
    for i in range(4):
        a(mfma(AV_C + 16 * i, AV_K, AV_Q + 4 * i, "0"))
    a("s_nop 9")
    for i in range(4):
        for r in range(8):
            a(f"v_max3_f32 v{12+i}, v{AV_C+16*i+2*r}, v{AV_C+16*i+2*r+1}, v{12+i}")
    a("s_add_u32 s8, s8, 2048")
    a("s_cmp_lt_u32 s8, 0x20000")
    a(f"s_cbranch_scc1 {lmax}")
    a(f"s_lshl_b32 {KS}, s{S_SL}, 2")
    a(f"s_add_u32 {KS}, {KS}, s18")
    a(f"s_lshl_b32 {KS}, {KS}, 11")
    for n in range(2):
        d = dma(n)
        a(d[0])
        a("s_nop 0")
        for x in d[1:]:
            a(x)
    a("s_waitcnt vmcnt(0)")
    for x in rd(0):
        a(x)
    a(f"s_branch {lredo}")


class Rot:
    def __init__(self, a, cur, beg, end, stride):
        self.a, self.cur, self.beg, self.end, self.stride = a, cur, beg, end, stride

    def init(self, srot, n):
        a = self.a
        a(f"s_add_u32 s{self.end}, s{self.beg}, {n*self.stride}")
        a(f"s_mul_i32 s{self.cur}, s{srot}, {self.stride}")
        a(f"s_add_u32 s{self.cur}, s{self.cur}, s{self.beg}")

    def adv(self):
        a = self.a
        a(f"s_add_u32 s{self.cur}, s{self.cur}, {self.stride}")
        if self.beg is not None:
            a(f"s_cmp_eq_u32 s{self.cur}, s{self.end}")
            a(f"s_cselect_b32 s{self.cur}, s{self.beg}, s{self.cur}")


def gemm_role(a):
    HW = OPT["hw"]
    NB = 4
    assert HW < NB and HW + 1 <= TR
    a.c("GEMM role")
    stamp(a, 4)
    a.vmem(f"buffer_load_dwordx2 v[{GV_Y+8}:{GV_Y+9}], v{GV_MISC+4}, {rs(R_WS)}, s96 offen sc1", "hpoll")
    a("v_mov_b32 v1, 1")
    for g in range(4):
        for hh in range(2):
            a(f"v_lshlrev_b32 v{GV_ACC+4*g+2*hh}, 16, v{GV_Y+2*g+hh}")
            a(f"v_and_b32 v{GV_ACC+4*g+2*hh+1}, 0xffff0000, v{GV_Y+2*g+hh}")
    M = GV_MISC + 4
    T1 = Rot(a, 25, 26, 27, 16 * 3584)
    T2 = Rot(a, 25, 26, 27, 16 * 4096)
    TO = Rot(a, 31, None, None, 16 * 1024)
    D = Rot(a, 28, 29, 30, 2048)

    assert M_RING - M_RED == 49152 and TR == 6

    class Stream:
        def __init__(self, items, r0):
            self.items = items
            self.issued = 0
            self.r0 = r0

        def off(self, j):
            if self.r0 <= j < self.r0 + 6:
                return (j - self.r0) * 2048
            return 49152 + (j % TR) * 2048

        def upto(self, n):
            while self.issued < min(n, len(self.items)):
                j = self.issued
                rot, rsrc, vreg, rstr = self.items[j]
                a(f"s_add_u32 m0, s18, {self.off(j)}")
                a(f"s_add_u32 s8, s{rot.cur}, {8*rstr - 1024}")
                a.vmem(f"buffer_load_dwordx4 v{vreg}, {rs(rsrc)}, s{rot.cur} offen {NT(1)}lds", f"T{j}")
                a.vmem(f"buffer_load_dwordx4 v{vreg}, {rs(rsrc)}, s8 offen offset:1024 {NT(1)}lds", f"T{j}")
                rot.adv()
                self.issued += 1

    def d_issue(k, da):
        buf = k % NB
        for x in range(2):
            a.vmem(f"buffer_load_dwordx4 {vr(GV_D+8*buf+4*x,4)}, v{da+x}, {rs(R_WS)}, s{D.cur} offen sc1", f"D{k}")
        D.adv()

    def tread(st, j, ta, rd2, dst):
        for x in range(2):
            a.lds(f"ds_read_b64_tr_b16 {vr(dst+4*x,2)}, v{ta+x} offset:{st.off(j)}", f"tr{j}")
            a.lds(f"ds_read_b64_tr_b16 {vr(dst+4*x+2,2)}, v{ta+x} offset:{st.off(j)+rd2}", f"tr{j}")

    def burst(st, n, win):
        while st.issued < n:
            if st.issued - win >= 0:
                a.vm_wait_if(f"T{st.issued - win}")
            st.upto(st.issued + 1)

    def kloop(st, j0, nsteps, t_is_A, ta, rd2, da, cnt):
        pre = st.issued - j0
        hwd = lambda k: OPT["hwd0"] if k + 2 + HW <= pre else OPT["hwd"]
        dn = [0]

        def d_upto(n):
            while dn[0] < min(n, nsteps):
                d_issue(dn[0], da)
                dn[0] += 1
        d_upto(hwd(0))
        a.vm_wait_if(f"T{j0}")
        tread(st, j0, ta, rd2, GV_T)
        for k in range(nsteps):
            tb, db = GV_T + 8 * (k % 2), GV_D + 8 * (k % NB)

            def mm(x, y):
                if t_is_A:
                    d = GV_ACC + 16 * (2 * x + y)
                    a(mfma(d, tb + 4 * x, db + 4 * y, "0" if (k == 0 and d != GV_ACC) else d))
                else:
                    d = GV_ACC + 16 * (2 * y + x)
                    a(mfma(d, db + 4 * y, tb + 4 * x, "0" if (k == 0 and d != GV_ACC) else d))
            a.vm_wait_if(f"D{k}")
            a.lg_wait(f"tr{j0+k}")
            if k % 4 == 0:
                stamp(a, (16 if t_is_A else 24) + k // 4)
            mm(0, 0)
            if k == 5:
                a("s_mov_b64 exec, 1")
                a.lds(f"ds_add_u32 v{M+3}, v1 offset:{cnt - M_CNT}", "arr")
                a("s_mov_b64 exec, -1")
            d_upto(k + 1 + hwd(k))
            mm(0, 1)
            if k + 1 < nsteps:
                a.vm_wait_if(f"T{j0+k+1}")
                tread(st, j0 + k + 1, ta, rd2, GV_T + 8 * ((k + 1) % 2))
            mm(1, 0)
            st.upto(j0 + k + 2 + HW)
            mm(1, 1)
            if t_is_A and OPT["w2n"] and k >= OPT["w2k0"] and (k - OPT["w2k0"]) % OPT["w2st"] == 0 and (k - OPT["w2k0"]) // OPT["w2st"] < OPT["w2n"]:
                lab = a.label("now2")
                a(f"s_cmp_lg_u32 s33, {(k - OPT['w2k0']) // OPT['w2st']}")
                a(f"s_cbranch_scc1 {lab}")
                for q in range(8):
                    a(f"buffer_load_dwordx4 v[248:251], v175, {rs(R_W2)}, s32 offen")
                    a(f"s_add_u32 s32, s32, {2*4096}")
                a(f"{lab}:")

    def reduce(cnt, sb):
        stamp(a, sb)
        for v in range(1, 4):
            for q in range(4):
                a.lds(f"ds_write_b128 v{GV_MISC+v}, {vr(GV_ACC+16*v+4*q,4)} offset:{q*1024}", "rw")
        lds_arrive(a, cnt, M, 1)
        stamp(a, sb + 1)
        lds_wait(a, cnt, 4, M, sleep=False)
        stamp(a, sb + 2)
        for v in range(3):
            for q in range(4):
                a.lds(f"ds_read_b128 {vr(GV_ACC+16+16*v+4*q,4)}, v{GV_MISC} offset:{v*4096+q*1024}", f"rr{v}")
        for v in range(3):
            a.lg_wait(f"rr{v}")
            for r in range(0, 16, 2):
                a(f"v_pk_add_f32 {vr(GV_ACC+r,2)}, {vr(GV_ACC+r,2)}, {vr(GV_ACC+16+16*v+r,2)}")

    lskip1, lskip2 = a.label("skipg1"), a.label("skipg1e")
    a(f"s_mul_i32 s{T1.beg}, s81, {512*3584}")
    a("s_lshl_b32 s8, s20, 7")
    a(f"s_add_u32 s{T1.beg}, s{T1.beg}, s8")
    T1.init(23, 32)
    st1 = Stream([(T1, R_W1, GV_DMA, 3584)] * 32, 0)
    a(f"s_lshl_b32 s{D.beg}, s19, 18")
    a("s_lshl_b32 s8, s81, 16")
    a(f"s_add_u32 s{D.beg}, s{D.beg}, s8")
    D.init(23, 32)
    a(f"s_lshl_b32 s8, s{S_HP}, 4")
    a(f"s_add_u32 s8, s8, s{S_SL}")
    a("s_lshl_b32 s8, s8, 4")
    a("s_add_u32 s8, s8, s81")
    a("s_lshl_b32 s8, s8, 3")
    a(f"s_add_u32 s8, s8, {WS_FKV}")
    a(f"s_add_u32 s84, s8, {WS_FKVS}")
    a.vm_wait("kvst")
    flag_set(a, "s8", M, M + 2, local=True)
    stamp(a, 5)
    st2 = Stream([(TO, R_WO, GV_DMA + 2, 1024)] * 8 + [(T2, R_W2, GV_DMA + 1, 4096)] * 28, 8)

    def slow_copy():
        if not OPT["local"]:
            return
        a(f"s_add_u32 s88, s88, {WS_KVB}")
        a(f"s_add_u32 s89, s89, {WS_KVB}")
        XF = PV_XF
        a.vmem(f"buffer_store_dwordx4 {vr(XF,4)}, v170, {rs(R_WS)}, s88 offen sc1", "kvs")
        a.vmem(f"buffer_store_dwordx4 {vr(XF+4,4)}, v170, {rs(R_WS)}, s89 offen sc1", "kvs")
        a.vmem(f"buffer_store_dwordx4 {vr(XF+8,4)}, v172, {rs(R_WS)}, s88 offen offset:1024 sc1", "kvs")
        a.vmem(f"buffer_store_dwordx4 {vr(XF+12,4)}, v172, {rs(R_WS)}, s88 offen offset:1536 sc1", "kvs")
    a(f"s_lshl_b32 s{TO.cur}, s81, 17")
    a("s_lshl_b32 s8, s22, 7")
    a(f"s_add_u32 s{TO.cur}, s{TO.cur}, s8")
    if OPT["mb"]:
        a(f"s_add_u32 s8, s87, {128*3584}")
        a.vmem(f"buffer_load_dwordx4 v[248:251], v174, {rs(R_W1)}, s8 offen", "warm")
        a(f"s_add_u32 s8, s87, {(128-8)*3584}")
        a.vmem(f"buffer_load_dwordx4 v[248:251], v174, {rs(R_W1)}, s8 offen", "warm")
    a(f"s_cmp_ge_u32 s{S_IDX}, 28")
    a(f"s_cbranch_scc1 {lskip1}")
    burst(st1, OPT["g1b"], OPT["pf1"])
    if OPT["gate"]:
        lds_wait(a, M_CNT + 36, 4, M, hint=OPT["gspin"])
    lh = a.label("hok")
    a.vm_wait_if("hpoll")
    flag_check(a, GV_Y + 8, "-1", "-1")
    a(f"s_cbranch_scc1 {lh}")
    a(f"v_lshlrev_b32 v{M}, 3, v0")
    vm_keep = list(a.vm)
    flag_wait(a, "s96", M, M + 2, "-1", "-1")
    a.vm = vm_keep
    a(f"{lh}:")
    a(f"v_mov_b32 v{M+3}, {M_CNT}")
    a(f"s_setprio {OPT['prio_gemm']}")
    stamp(a, 6)
    kloop(st1, 0, 32, True, GV_TA1, 512, GV_DB, M_CNT + 40)
    a("s_setprio 3")
    stamp(a, 7)
    slow_copy()
    st2.upto(OPT["wo0"])
    lds_wait(a, M_CNT + 40, 4, M)
    a.c("G1 epilogue")
    reduce(M_CNT + 16, 48)
    stamp(a, 51)
    c0 = -2.0 * math.sqrt(2.0 / math.pi) * LOG2E
    c1 = c0 * 0.044715
    a(f"s_mov_b32 s8, {f32bits(c1)}")
    a(f"s_mov_b32 s9, {f32bits(c1)}")
    a(f"v_mov_b32 v{M}, {f32bits(c0)}")
    a(f"v_mov_b32 v{M+1}, {f32bits(c0)}")
    TT = GV_ACC + 16
    P2 = lambda b: vr(b, 2)
    for r in range(0, 16, 2):
        a(f"v_pk_mul_f32 {P2(TT+r)}, {P2(GV_ACC+r)}, {P2(GV_ACC+r)}")
    for r in range(0, 16, 2):
        a(f"v_pk_fma_f32 {P2(TT+r)}, {P2(TT+r)}, s[8:9], {P2(M)}")
    for r in range(0, 16, 2):
        a(f"v_pk_mul_f32 {P2(TT+r)}, {P2(TT+r)}, {P2(GV_ACC+r)}")
    for r in range(16):
        a(f"v_exp_f32 v{TT+r}, v{TT+r}")
    for r in range(0, 16, 2):
        a(f"v_pk_add_f32 {P2(TT+r)}, {P2(TT+r)}, 1.0 op_sel_hi:[1,0]")
    for r in range(16):
        a(f"v_rcp_f32 v{TT+r}, v{TT+r}")
    for r in range(0, 16, 2):
        a(f"v_pk_mul_f32 {P2(TT+r)}, {P2(TT+r)}, {P2(GV_ACC+r)}")
    for r in range(8):
        a(f"v_cvt_pk_bf16_f32 v{GV_ACC+r}, v{TT+2*r}, v{TT+2*r+1}")
    a("s_mul_i32 s8, s19, 112")
    a("s_lshl_b32 s9, s20, 2")
    a("s_add_u32 s8, s8, s9")
    a("s_and_b32 s9, s81, 2")
    a("s_add_u32 s8, s8, s9")
    a("s_lshl_b32 s8, s8, 11")
    a(f"s_add_u32 s8, s8, {WS_U}")
    a.vmem(f"buffer_store_dwordx4 {vr(GV_ACC,4)}, v{GV_DB}, {rs(R_WS)}, s8 offen sc1", "ust")
    a.vmem(f"buffer_store_dwordx4 {vr(GV_ACC+4,4)}, v{GV_DB}, {rs(R_WS)}, s8 offen offset:2048 sc1", "ust")
    a("s_lshl_b32 s8, s19, 12")
    a("s_lshl_b32 s9, s20, 7")
    a("s_add_u32 s8, s8, s9")
    a("s_lshl_b32 s9, s81, 3")
    a("s_add_u32 s8, s8, s9")
    a(f"s_add_u32 s8, s8, {WS_FU}")
    a("s_mov_b32 s23, s8")
    stamp(a, 52)
    a.vm_drain()
    flag_set(a, "s23", M, M + 2)
    flag_set(a, "s84", M, M + 2) if OPT["local"] else None
    stamp(a, 8)
    a(f"s_branch {lskip2}")
    a(f"{lskip1}:")
    if OPT["help"]:
        lds_wait(a, M_CNT + 36, 4, M, hint=OPT["gspin"])
        if OPT["w1mode"] == 0:
            a(f"s_and_b32 s8, s{S_IDX}, 3")
            a("s_lshl_b32 s8, s8, 1")
            a("s_lshl_b32 s9, s81, 9")
            a("s_add_u32 s8, s8, s9")
            a(f"s_add_u32 s8, s8, {128*OPT['mwn']}")
            a("s_mul_i32 s9, s8, 3584")
            a("s_add_u32 s9, s9, s90")
            a(f"s_mov_b32 s10, {64 - 16*OPT['mwn']}")
            lh = a.label("help")
            a(f"{lh}:")
            a(f"buffer_load_dwordx4 v[248:251], v174, {rs(R_W1)}, s9 offen")
            a(f"s_add_u32 s9, s9, {8*3584}")
            a(f"s_waitcnt vmcnt({OPT['help']-1})")
            a("s_sub_u32 s10, s10, 1")
            a("s_cmp_lg_u32 s10, 0")
            a(f"s_cbranch_scc1 {lh}")
        stamp(a, 31)
        if OPT["hw2"]:
            a(f"v_lshrrev_b32 v{M}, 5, v0")
            a(f"v_and_b32 v{M+1}, 31, v0")
            a(f"v_lshlrev_b32 v{M+1}, 4, v{M+1}")
            a(f"v_lshl_add_u32 v{M}, v{M}, 12, v{M+1}")
            a(f"s_and_b32 s8, s{S_IDX}, 3")
            a("s_lshl_b32 s8, s8, 2")
            a("s_add_u32 s8, s8, s81", "helper wave 0..15")
            a("s_lshl_b32 s9, s8, 13")
            a(f"s_lshl_b32 s10, s{S_XCD}, 9")
            a("s_add_u32 s9, s9, s10")
            a("s_mov_b32 s10, 56")
            lh = a.label("help")
            a(f"{lh}:")
            a(f"buffer_load_dwordx4 v[248:251], v{M}, {rs(R_W2)}, s9 offen")
            a(f"s_add_u32 s9, s9, {32*4096}")
            a(f"s_waitcnt vmcnt({OPT['help']-1})")
            a("s_sub_u32 s10, s10, 1")
            a("s_cmp_lg_u32 s10, 0")
            a(f"s_cbranch_scc1 {lh}")
        stamp(a, 15)
    slow_copy()
    st2.issued = 0
    st2.upto(OPT["wo0"])
    a("s_waitcnt vmcnt(0)")
    flag_set(a, "s84", M, M + 2) if OPT["local"] else None
    a(f"{lskip2}:")
    a.vm = []
    a(f"s_mul_i32 s{T2.beg}, s81, {448*4096}")
    a("s_lshl_b32 s8, s21, 7")
    a(f"s_add_u32 s{T2.beg}, s{T2.beg}, s8")
    T2.init(24, 28)
    a(f"s_mul_i32 s{D.beg}, s22, 112")
    a("s_mul_i32 s8, s81, 28")
    a(f"s_add_u32 s{D.beg}, s{D.beg}, s8")
    a(f"s_lshl_b32 s{D.beg}, s{D.beg}, 11")
    a(f"s_add_u32 s{D.beg}, s{D.beg}, {WS_U}")
    D.init(24, 28)
    for j in range(8):
        a.vm_wait_if(f"T{j}")
        tread(st2, j, GV_TA3, 1024, GV_WO + 8 * j)
        a.lg_wait(f"tr{j}")
        st2.upto(j + 1 + OPT["pf"])
    stamp(a, 47)
    burst(st2, OPT["g2b"], OPT["pf"])
    for r in range(16):
        a(f"v_lshlrev_b32 v{GV_ACC+r}, 16, v15", "b2")
    a(f"v_min_u32 v{M}, 27, v0")
    a(f"v_lshrrev_b32 v{M+1}, 2, v{M}")
    a(f"v_and_b32 v{M}, 3, v{M}")
    a(f"v_lshlrev_b32 v{M}, 3, v{M}")
    a(f"v_lshl_add_u32 v{M}, v{M+1}, 7, v{M}")
    a("s_lshl_b32 s9, s22, 12")
    a("s_mul_i32 s8, s81, 896")
    a("s_add_u32 s9, s9, s8")
    a(f"s_add_u32 s9, s9, {WS_FU}")
    stamp(a, 46)
    if OPT["hw2p"]:
        lnh, lh = a.label("nohelp"), a.label("help2")
        a(f"s_cmp_lt_u32 s{S_IDX}, 28")
        a(f"s_cbranch_scc1 {lnh}")
        a(f"v_lshrrev_b32 v{GV_Y}, 5, v0")
        a(f"v_and_b32 v{GV_Y+1}, 31, v0")
        a(f"v_lshlrev_b32 v{GV_Y+1}, 4, v{GV_Y+1}")
        a(f"v_lshl_add_u32 v{GV_Y}, v{GV_Y}, 12, v{GV_Y+1}")
        a(f"s_and_b32 s8, s{S_IDX}, 3")
        a("s_lshl_b32 s8, s8, 2")
        a("s_add_u32 s8, s8, s81", "helper wave 0..15")
        a("s_lshl_b32 s32, s8, 13")
        a(f"s_lshl_b32 s8, s{S_XCD}, 9")
        a("s_add_u32 s32, s32, s8")
        a("s_mov_b32 s33, 8")
        a(f"{lh}:")
        a(f"buffer_load_dwordx2 v[{M+2}:{M+3}], v{M}, {rs(R_WS)}, s9 offen sc1")
        for q in range(7):
            a(f"buffer_load_dwordx4 v[248:251], v{GV_Y}, {rs(R_W2)}, s32 offen")
            a(f"s_add_u32 s32, s32, {32*4096}")
            a(f"s_waitcnt vmcnt({OPT['help']-1})")
        flag_check(a, M + 2, "0x0fffffff", "0")
        a(f"s_cbranch_scc1 {lnh}")
        a("s_sub_u32 s33, s33, 1")
        a("s_cmp_lg_u32 s33, 0")
        a(f"s_cbranch_scc1 {lh}")
        a(f"{lnh}:")
    flag_wait(a, "s9", M, M + 2, "0x0fffffff", "0")
    stamp(a, 9)
    a(f"v_and_b32 v{M}, 31, v0")
    a(f"v_lshlrev_b32 v{M+1}, 2, v{M}")
    a("s_mov_b32 s23, s91")
    a("s_lshl_b32 s9, s23, 2")
    a(f"s_add_u32 s9, s9, {WS_G}")
    a.vmem(f"buffer_load_dword v{GV_Y}, v{M+1}, {rs(R_WS)}, s9 offen sc1", "g")
    a("s_xor_b32 s9, s9, 128")
    a.vmem(f"buffer_load_dword v{GV_Y+2}, v{M+1}, {rs(R_WS)}, s9 offen sc1", "g")
    a("v_and_b32 v15, 31, v0")
    a("v_lshlrev_b32 v15, 10, v15")
    a(f"v_lshrrev_b32 v{M}, 5, v0")
    a(f"v_lshl_add_u32 v15, v{M}, 4, v15")
    a("s_lshl_b32 s23, s23, 10")
    a("s_lshl_b32 s8, s22, 7")
    a("s_add_u32 s23, s23, s8")
    a("s_lshr_b32 s8, s81, 1")
    a("s_lshl_b32 s8, s8, 6")
    a("s_add_u32 s23, s23, s8")
    a("s_lshl_b32 s32, s21, 16")
    a("s_lshl_b32 s8, s81, 14")
    a("s_add_u32 s32, s32, s8")
    a(f"s_add_u32 s32, s32, {WS_O}")
    a(f"v_min_u32 v{GV_Y+4}, 7, v0")
    a(f"v_lshrrev_b32 v{M}, 1, v{GV_Y+4}")
    a(f"v_and_b32 v{GV_Y+4}, 1, v{GV_Y+4}")
    a(f"v_lshlrev_b32 v{GV_Y+4}, 3, v{GV_Y+4}")
    a(f"v_lshl_add_u32 v{GV_Y+4}, v{M}, 7, v{GV_Y+4}")
    a("s_lshr_b32 s33, s21, 1")
    a("s_lshl_b32 s33, s33, 11")
    a("s_lshl_b32 s8, s81, 9")
    a("s_add_u32 s33, s33, s8")
    a("s_and_b32 s8, s21, 1")
    a("s_lshl_b32 s8, s8, 4")
    a("s_add_u32 s33, s33, s8")
    a(f"s_add_u32 s33, s33, {WS_FO}")
    a(f"v_mov_b32 v{M+3}, {M_CNT}")
    a(f"s_setprio {OPT['prio_gemm']}")
    kloop(st2, 8, 28, False, GV_TA2, 1024, GV_DA, M_CNT + 20)
    a("s_setprio 3")
    stamp(a, 10)
    a(f"buffer_load_dwordx2 v[{GV_Y+6}:{GV_Y+7}], v{GV_Y+4}, {rs(R_WS)}, s33 offen sc1")
    for b in range(2):
        a(f"v_sub_f32 v{GV_Y+2*b}, 1.0, v{GV_Y+2*b}")
        a(f"v_mov_b32 v{GV_Y+2*b+1}, v{GV_Y+2*b}")
    a("s_nop 4")
    for v in (0, 2, 1, 3):
        for r in range(0, 16, 2):
            d = GV_ACC + 16 * v + r
            a(f"v_pk_mul_f32 v[{d}:{d+1}], v[{d}:{d+1}], v[{GV_Y+2*(v&1)}:{GV_Y+2*(v&1)+1}]")
    a("s_waitcnt vmcnt(0)")
    a(f"v_cmp_ne_u64 vcc, s[{S_TAG}:{S_TAG+1}], v[{GV_Y+6}:{GV_Y+7}]")
    a("s_mov_b32 s26, vcc_lo", "heads not yet seen")
    stamp(a, 11)

    def omm(k):
        a.vm_wait_if(f"O{k}")
        for v in (1, 2, 3, 0):
            x, y = v >> 1, v & 1
            d = GV_ACC + 16 * v
            a(mfma(d, GV_WO + 8 * k + 4 * x, GV_D + 8 * k + 4 * y, d))
    for k in range(8):
        l1, l2 = a.label("op"), a.label("opok")
        a(f"s_bitcmp0_b32 s26, {k}")
        a(f"s_cbranch_scc1 {l2}")
        a(f"s_mov_b32 s17, {SPIN}")
        a(f"{l1}:")
        a(f"buffer_load_dwordx2 v[{GV_Y+6}:{GV_Y+7}], v{GV_Y+4}, {rs(R_WS)}, s33 offen sc1")
        a("s_waitcnt vmcnt(0)")
        a(f"v_cmp_ne_u64 vcc, s[{S_TAG}:{S_TAG+1}], v[{GV_Y+6}:{GV_Y+7}]")
        a("s_mov_b32 s26, vcc_lo")
        a(f"s_bitcmp0_b32 s26, {k}")
        a(f"s_cbranch_scc1 {l2}")
        spin_guard(a, l1)
        a(f"{l2}:")
        if k % 2 == 0 and k:
            a("s_add_u32 s32, s32, 4096")
        for x in range(2):
            a.vmem(f"buffer_load_dwordx4 {vr(GV_D+8*k+4*x,4)}, v{GV_DB+x}, {rs(R_WS)}, s32 offen offset:{(k%2)*2048} sc1", f"O{k}")
        if k >= OPT["olag"]:
            omm(k - OPT["olag"])
    stamp(a, 12)
    for k in range(8 - OPT["olag"], 8):
        omm(k)
    lds_wait(a, M_CNT + 20, 4, M)
    a("s_nop 2")
    stamp(a, 13)
    reduce(M_CNT + 32, 54)
    stamp(a, 57)
    for r in range(8):
        a(f"v_cvt_pk_bf16_f32 v{GV_ACC+16+r}, v{GV_ACC+2*r}, v{GV_ACC+2*r+1}")
    a.vmem(f"buffer_store_dwordx4 {vr(GV_ACC+16,4)}, v15, {rs(R_OUT)}, s23 offen", "ost")
    a.vmem(f"buffer_store_dwordx4 {vr(GV_ACC+20,4)}, v15, {rs(R_OUT)}, s23 offen offset:32", "ost")
    stamp(a, 14, True)


def descriptor(name, vgpr=256):
    return f""".section .rodata,"a"
.p2align 6
.amdhsa_kernel {name}
  .amdhsa_next_free_vgpr {vgpr}
  .amdhsa_next_free_sgpr 102
  .amdhsa_accum_offset {vgpr}
  .amdhsa_group_segment_fixed_size 0
  .amdhsa_kernarg_size 96
  .amdhsa_user_sgpr_count 2
  .amdhsa_user_sgpr_kernarg_segment_ptr 1
  .amdhsa_system_sgpr_workgroup_id_x 1
.end_amdhsa_kernel
"""


def build():
    kn = NAME + "_kernel"
    head = f"""; generated by gen/gen16.py (fused single launch)
; @launch grid=(256,1,1) block=(512,1,1) lds={LDS_TOTAL}
.amdgcn_target "amdgcn-amd-amdhsa--gfx950"
"""
    a = Asm()
    a(".text")
    a(f".globl {kn}")
    a(".p2align 8")
    a(f".type {kn},@function")
    a(f"{kn}:")
    entry(a, "L_exit")
    vm0, lg0 = list(a.vm), list(a.lg)
    a(f"s_cmp_ge_u32 s{S_WAVE}, 4")
    a("s_cbranch_scc1 L_roleb")
    proj(a, 0)
    attention(a)
    a("L_roleb:")
    a.vm, a.lg = vm0, lg0
    a("s_setprio 3")
    proj(a, 1)
    gemm_role(a)
    a("L_exit:")
    a("s_endpgm")
    a("L_code_end:")
    return head + a.text() + descriptor(kn)


if __name__ == "__main__":
    out = sys.argv[1] if len(sys.argv) > 1 else f"cdna_kernels/{NAME}.s"
    for o in sys.argv[2:]:
        if o == "stamps":
            OPT["stamps"] = True
        elif "=" in o:
            k, v = o.split("=")
            OPT[k] = int(v)
    open(out, "w").write(build())
    print("wrote", out)
```

```python
import math
import sys
from asmlib import Asm, vr, sr, f32bits

NAME = "gated_mix__mha_block__mixer_token_mlp__prompt"
OPT = dict(stamps=False, hw=2, prio_att=2, prio_gemm=0, nt=0, early=1, cpf=1, hwd0=3, hwd=3, gspin=24, g2b=18, w2k0=6, w2n=0, w2st=3, hw2=0, pt=1, ptnt=1, w1mode=0, gate=1, warm=-3, pf=3, lnpos=0, lnc=0, suc=2, tk=0, tk0=4, tks=2, xrot=0, la=3, local=1, xx=1, mb=0, hw2p=1, tlb=0, ww=0, ptc=5, mwn=1, pf1=3, wo0=3, olag=5, help=7, hgate=1, g1b=8, r1m=0, r1s=4, r2m=0, r2s=14)

WS_H = 0x000000
WS_KV = 0x200000
WS_KVB = 0xE00000 - 0x200000
WS_U = 0x800000
WS_O = 0xA00000
WS_G = 0xC00000
WS_FH = 0xC10000
WS_FKV = 0xC20000
WS_FKVS = 0x8000
WS_FU = 0xC30000
WS_FO = 0xC40000
WS_STAMP = 0xD00000
WS_SIZE = 0x1200000

S_WAVE, S_XCD, S_IDX, S_HP, S_SL = 3, 4, 5, 6, 7
S_TAG = 14
S_LTAG = 76
R_X, R_P, R_WO, R_W1, R_W2, R_WS, R_OUT, R_B1, R_B2, R_GW = 40, 44, 48, 52, 56, 60, 64, 68, 72, 76
R_DBG = 92
R_KV = 48
LOG2E = math.log2(math.e)

NPS = 4
P_XS, P_WS, P_LN = 0, 65536, 114688
M_RED = 0
TR = 6
M_RING = 49152
KVR = 98304
KSLOT = 2080
KR = 6
KPOS = {2: 0, 3: 1, 4: 2, 5: 3, 0: 4, 1: 5}
L_Q = KVR + 6 * 4 * KSLOT
M_CNT = L_Q + 8192
L_K0 = M_CNT + 256
LDS_TOTAL = 163840
assert M_RING + 4 * TR * 2048 <= KVR and L_K0 + 2048 <= LDS_TOTAL and P_LN + 9216 <= KVR + 4 * 4 * KSLOT


def KSO(n):
    return KPOS[n % KR] * 4 * KSLOT


SPIN = 200000


def KVSC():
    return '' if OPT['local'] else 'sc1'


def NT(bit):
    return "nt " if OPT["nt"] & bit else ""


def rs(r):
    return f"s[{r}:{r+3}]"


ROLE = [2]


def stamp(a, idx, final=False):
    if OPT.get("ms") is not None:
        if OPT["ms"] == idx + 100 * ROLE[0]:
            a("s_memrealtime s[98:99]")
            a("s_waitcnt lgkmcnt(0)")
            a.lg = []
        if final and (OPT["ms"] >= 100) == (ROLE[0] == 1):
            lab = a.label("pad")
            a(f"{lab}:")
            a("s_memrealtime s[100:101]")
            a("s_waitcnt lgkmcnt(0)")
            a("s_sub_u32 s100, s100, s98")
            a("s_cmp_lt_u32 s100, 4000")
            a(f"s_cbranch_scc1 {lab}")
    if not OPT["stamps"]:
        return
    a("s_memrealtime s[98:99]")
    a("s_memtime s[100:101]")
    if idx == 0:
        a("v_mov_b32 v254, 0")
        a("v_mov_b32 v255, 0")
    a("s_waitcnt lgkmcnt(0)")
    a.lg = []
    a(f"v_writelane_b32 v254, s98, {idx}")
    a(f"v_writelane_b32 v255, s100, {idx}")
    if final:
        a("s_lshl_b32 s97, s2, 3")
        a(f"s_add_u32 s97, s97, s{S_WAVE}")
        a("s_lshl_b32 s97, s97, 9")
        a(f"s_add_u32 s97, s97, {WS_STAMP}")
        a("v_lshlrev_b32 v253, 3, v0")
        a(f"buffer_store_dwordx2 v[254:255], v253, {rs(R_WS)}, s97 offen")


def srd(a, r, ptr, nbytes):
    a(f"s_mov_b32 s{r}, s{ptr}")
    a(f"s_mov_b32 s{r+1}, s{ptr+1}")
    a(f"s_mov_b32 s{r+2}, {nbytes:#x}")
    a(f"s_mov_b32 s{r+3}, 0x00020000")


def mfma(d, A, B, C):
    return f"v_mfma_f32_32x32x16_bf16 {vr(d,16)}, {vr(A,4)}, {vr(B,4)}, {C if isinstance(C,str) else vr(C,16)}"


def spin_guard(a, lab):
    a("s_sub_u32 s17, s17, 1")
    a("s_cmp_lg_u32 s17, 0")
    a(f"s_cbranch_scc1 {lab}")
    a("s_endpgm")


PV_XF, PV_WF, PV_XA, PV_WA, PV_DMA = 112, 128, 160, 164, 166


def p_issue(a, c, par):
    slot = c % NPS
    a("s_and_b32 s8, s85, 7")
    a("s_add_u32 s85, s85, 1")
    a("s_mul_i32 s8, s8, s86")
    if par is None:
        a(f"s_mul_i32 s9, s87, {slot}")
        a("s_add_u32 m0, s83, s9")
    else:
        a(f"s_add_u32 m0, s83, {slot*(16384 if par == 0 else 12288)}")
    a("s_add_u32 s8, s8, s82")
    for q in range(3):
        a.vmem(f"buffer_load_dwordx4 v{PV_DMA+q}, {rs(R_P)}, s8 offen offset:{q*1024} {NT(2)}lds", f"ch{c}")
    if par is None:
        lab = a.label("no4")
        a(f"s_cmp_ge_u32 s{S_WAVE}, 4")
        a(f"s_cbranch_scc1 {lab}")
        a.vmem(f"buffer_load_dwordx4 v{PV_DMA+3}, {rs(R_P)}, s8 offen offset:3072 {NT(2)}lds", f"ch{c}A")
        a(f"{lab}:")
    elif par == 0:
        a.vmem(f"buffer_load_dwordx4 v{PV_DMA+3}, {rs(R_P)}, s8 offen offset:3072 {NT(2)}lds", f"ch{c}")


def entry(a, lexit):
    a("s_cmp_ge_u32 s2, 256")
    a(f"s_cbranch_scc1 {lexit}")
    a("s_load_dwordx16 s[16:31], s[0:1], 0")
    a("s_load_dwordx8 s[32:39], s[0:1], 64")
    a("s_memrealtime s[12:13]")
    a("v_lshrrev_b32 v1, 6, v0")
    a("v_and_b32 v0, 63, v0")
    a(f"v_readfirstlane_b32 s{S_WAVE}, v1")
    a(f"s_and_b32 s{S_XCD}, s2, 7")
    a(f"s_lshr_b32 s{S_IDX}, s2, 3")
    if OPT["local"]:
        a(f"s_and_b32 s9, s{S_IDX}, 1")
        a(f"s_lshl_b32 s8, s{S_XCD}, 1")
        a(f"s_add_u32 s{S_HP}, s8, s9")
        a(f"s_lshr_b32 s{S_SL}, s{S_IDX}, 1")
        a(f"s_mul_i32 s9, s9, {OPT['xrot']}")
        a(f"s_add_u32 s85, s9, s{S_SL}", "chunk cursor (rotation)")
        if OPT["xx"]:
            a(f"s_add_u32 s85, s85, s{S_XCD}")
    else:
        a(f"s_and_b32 s8, s{S_XCD}, 3")
        a("s_lshl_b32 s8, s8, 2")
        a(f"s_and_b32 s9, s{S_IDX}, 3")
        a(f"s_add_u32 s{S_HP}, s8, s9")
        a(f"s_lshr_b32 s8, s{S_XCD}, 2")
        a(f"s_lshr_b32 s10, s{S_IDX}, 2")
        a("s_lshl_b32 s11, s10, 1")
        a(f"s_add_u32 s{S_SL}, s8, s11")
        a(f"s_mul_i32 s9, s9, {OPT['xrot']}")
        a("s_add_u32 s85, s9, s10", "chunk cursor (rotation)")
    a(f"s_and_b32 s81, s{S_WAVE}, 3", "t")
    a("v_lshlrev_b32 v1, 4, v0", "lane*16")
    if OPT["cpf"]:
        lab = a.label("nocpf")
        a(f"s_cmp_lt_u32 s{S_WAVE}, 6")
        a(f"s_cbranch_scc1 {lab}")
        a("s_getpc_b64 s[88:89]")
        a("L_pc0:")
        a("s_mov_b32 s90, L_code_end-L_pc0")
        a("s_mov_b32 s91, 0x00020000")
        a(f"s_and_b32 s8, s{S_WAVE}, 1")
        a("s_lshl_b32 s8, s8, 5")
        a(f"s_add_u32 s8, s8, s{S_IDX}")
        a("s_lshl_b32 s8, s8, 10")
        a("buffer_load_dwordx4 v[248:251], v1, s[88:91], s8 offen")
        a(f"{lab}:")
    D = PV_DMA
    lb, lj = a.label("eb"), a.label("ej")
    a(f"s_cmp_ge_u32 s{S_WAVE}, 4")
    a(f"s_cbranch_scc1 {lb}")
    a("v_lshrrev_b32 v41, 3, v0")
    a("v_lshlrev_b32 v41, 10, v41")
    a("v_and_b32 v42, 7, v0")
    a("v_lshrrev_b32 v43, 4, v0")
    a("v_xor_b32 v42, v42, v43")
    a(f"v_lshl_add_u32 v{D}, v42, 4, v41")
    a("v_xor_b32 v42, 4, v42")
    a(f"v_lshl_add_u32 v{D+1}, v42, 4, v41")
    a(f"v_add_u32 v{D+2}, {2*7168}, v{D}")
    a(f"v_add_u32 v{D+3}, {3*7168}, v{D+1}")
    a(f"v_add_u32 v{D+1}, {7168}, v{D+1}")
    a(f"s_lshl_b32 s82, s{S_SL}, 17")
    a("s_lshl_b32 s8, s81, 15")
    a("s_add_u32 s82, s82, s8")
    a("s_lshl_b32 s83, s81, 12")
    a("s_mov_b32 s86, 128")
    a("s_mov_b32 s87, 16384")
    a("s_waitcnt lgkmcnt(0)")
    srd(a, R_P, 16, 2048 * 512 * 2)
    a(f"s_branch {lj}")
    a(f"{lb}:")
    a("v_lshrrev_b32 v41, 2, v0")
    a("v_mul_u32_u24 v41, 3072, v41")
    a("v_and_b32 v42, 3, v0")
    a(f"v_lshl_add_u32 v{D}, v42, 4, v41")
    a(f"v_mov_b32 v{D+1}, v{D}")
    a(f"v_mov_b32 v{D+2}, v{D}")
    a(f"v_mov_b32 v{D+3}, v{D}")
    a(f"s_mul_i32 s82, s81, {16*3072}")
    a(f"s_lshl_b32 s8, s{S_HP}, 6")
    a("s_add_u32 s82, s82, s8")
    a("s_mul_i32 s83, s81, 3072")
    a(f"s_add_u32 s83, s83, {P_WS}")
    a(f"s_mov_b32 s86, {64*3072}")
    a("s_mov_b32 s87, 12288")
    a("s_waitcnt lgkmcnt(0)")
    srd(a, R_P, 18, 512 * 1536 * 2)
    a(f"{lj}:")
    stamp(a, 0)
    p_issue(a, 0, None)
    p_issue(a, 1, None)
    srd(a, R_X, 16, 2048 * 512 * 2)
    srd(a, R_GW, 32, 512 * 2)
    a(f"s_lshl_b32 s8, s{S_SL}, 7")
    a(f"s_lshl_b32 s9, s{S_HP}, 3")
    a("s_add_u32 s80, s8, s9", "s80 = row0")
    srd(a, R_DBG, 36, 256)
    srd(a, R_WS, 38, WS_SIZE)
    lab = a.label("notag")
    a(f"s_or_b32 s8, s2, s{S_WAVE}")
    a("s_cmp_lg_u32 s8, 0")
    a(f"s_cbranch_scc1 {lab}")
    a("s_or_b32 s8, s12, 1")
    a("v_mov_b32 v44, s8")
    a("v_mov_b32 v45, s13")
    a("v_mov_b32 v46, 0")
    a("s_mov_b64 exec, 1")
    a(f"buffer_store_dwordx2 v[44:45], v46, {rs(R_DBG)}, 0 offen sc1")
    a("s_mov_b64 exec, -1")
    a(f"{lab}:")
    a("v_and_b32 v41, 31, v0", "i")
    a("v_lshrrev_b32 v42, 5, v0", "h'")
    a("v_bfe_u32 v43, v0, 1, 3")
    a("v_xor_b32 v44, v42, v43")
    a("v_lshlrev_b32 v45, 7, v41")
    a("s_lshl_b32 s8, s81, 12")
    a("v_add_u32 v45, s8, v45")
    a(f"v_lshl_add_u32 v{PV_XA}, v44, 4, v45")
    for ks in range(1, 4):
        a(f"v_xor_b32 v{PV_XA+ks}, {32*ks}, v{PV_XA}")
    a("v_lshlrev_b32 v44, 9, v42")
    a("v_bfe_u32 v45, v0, 2, 2")
    a("v_lshl_add_u32 v44, v45, 6, v44")
    a("v_bfe_u32 v45, v0, 4, 1")
    a("v_lshl_add_u32 v44, v45, 5, v44")
    a("v_and_b32 v45, 3, v0")
    a("v_lshl_add_u32 v44, v45, 3, v44")
    a(f"v_add_u32 v{PV_WA}, {P_WS}, v44")
    a("v_lshlrev_b32 v41, 2, v0")
    a(f"v_add_u32 v41, {M_CNT}, v41")
    a("v_mov_b32 v42, 0")
    a.lds("ds_write_b32 v41, v42", "cz")
    a(f"s_add_u32 s8, s80, s{S_WAVE}")
    a("s_lshl_b32 s8, s8, 10")
    a.vmem(f"buffer_load_dwordx4 v[176:179], v1, {rs(R_X)}, s8 offen", "ln")
    a.vmem(f"buffer_load_dwordx4 v[180:183], v1, {rs(R_GW)}, 0 offen", "ln")


def wave_reduce_add(a, regs):
    steps = ["row_shr:1 row_mask:0xf bank_mask:0xf bound_ctrl:0",
             "row_shr:2 row_mask:0xf bank_mask:0xf bound_ctrl:0",
             "row_shr:4 row_mask:0xf bank_mask:0xf bound_ctrl:0",
             "row_shr:8 row_mask:0xf bank_mask:0xf bound_ctrl:0",
             "row_bcast:15 row_mask:0xa bank_mask:0xf",
             "row_bcast:31 row_mask:0xc bank_mask:0xf"]
    for st in steps:
        a("s_nop 1" if len(regs) == 1 else "s_nop 0")
        for r in regs:
            a(f"v_add_f32_dpp v{r}, v{r}, v{r} {st}")
    a("s_nop 1")


def ln_compute(a):
    a.c("LN compute")
    a.vm_wait_if("ln")
    for i in range(4):
        a(f"v_lshlrev_b32 v{184+2*i}, 16, v{176+i}")
        a(f"v_and_b32 v{185+2*i}, 0xffff0000, v{176+i}")
        a(f"v_lshlrev_b32 v{192+2*i}, 16, v{180+i}")
        a(f"v_and_b32 v{193+2*i}, 0xffff0000, v{180+i}")
    a("v_add_f32 v200, v184, v185")
    a("v_mul_f32 v201, v184, v192")
    for i in range(1, 8):
        if i >= 2:
            a(f"v_add_f32 v200, v200, v{184+i}")
        a(f"v_fmac_f32 v201, v{184+i}, v{192+i}")
    a("s_nop 0")
    wave_reduce_add(a, [200, 201])
    a("v_readlane_b32 s8, v200, 63")
    a("v_readlane_b32 s9, v201, 63")
    a(f"v_mov_b32 v202, {f32bits(1.0/512)}")
    a(f"v_mov_b32 v214, {f32bits(-LOG2E)}")
    a("v_mul_f32 v202, s8, v202", "mean")
    a("v_mul_f32 v214, s9, v214")
    for i in range(8):
        a(f"v_sub_f32 v{184+i}, v{184+i}, v202")
    a("v_exp_f32 v214, v214")
    a("v_mul_f32 v200, v184, v184")
    for i in range(1, 8):
        a(f"v_fmac_f32 v200, v{184+i}, v{184+i}")
    wave_reduce_add(a, [200])
    a("v_readlane_b32 s8, v200, 63")
    a("v_add_f32 v214, 1.0, v214")
    a(f"v_mov_b32 v202, {f32bits(1.0/512)}")
    a(f"v_mov_b32 v203, {f32bits(1e-5)}")
    a("v_fma_f32 v202, s8, v202, v203", "var + eps")
    a("v_rsq_f32 v202, v202")
    a("v_rcp_f32 v214, v214", "g")
    for i in range(8):
        a(f"v_mul_f32 v{184+i}, v{184+i}, v202")
    for i in range(4):
        a(f"v_cvt_pk_bf16_f32 v{192+i}, v{184+2*i}, v{185+2*i}")
    a("v_mul_u32_u24 v204, 144, v0")
    a(f"s_lshl_b32 s8, s{S_WAVE}, 1")
    a(f"s_add_u32 s8, s8, {P_LN}")
    a("v_add_u32 v204, s8, v204")
    for i in range(4):
        a.lds(f"ds_write_b16 v204, v{192+i} offset:{32*i}", "lnw")
        a.lds(f"ds_write_b16_d16_hi v204, v{192+i} offset:{32*i+16}", "lnw")
    a("v_bfe_u32 v205, v0, 2, 1", "b2")
    a("v_bfe_u32 v206, v0, 3, 1", "b3")
    a("v_lshrrev_b32 v207, 4, v0")
    a("v_lshl_add_u32 v207, v207, 1, v205", "d>>3 (local) = (l>>4)*2 + b2")
    a("v_mul_u32_u24 v204, 144, v207")
    a("v_and_b32 v207, 3, v0")
    a("v_lshl_add_u32 v207, v206, 2, v207", "d&7 = b3*4 + (l&3)")
    a("v_lshl_add_u32 v204, v207, 4, v204")
    a(f"s_mul_i32 s8, s{S_WAVE}, {8*144}")
    a(f"s_add_u32 s8, s8, {P_LN}")
    a("v_add_u32 v204, s8, v204")
    a("v_lshrrev_b32 v205, 5, v0")
    a("v_lshlrev_b32 v205, 10, v205")
    a("v_and_b32 v210, 31, v0")
    a("v_lshl_add_u32 v205, v210, 4, v205")
    a(f"s_lshl_b32 s10, s{S_WAVE}, 18")
    a("s_lshr_b32 s9, s80, 4")
    a("s_lshl_b32 s9, s9, 11")
    a("s_add_u32 s10, s10, s9")
    a("s_and_b32 s9, s80, 8")
    a("s_lshl_b32 s9, s9, 6")
    a("s_add_u32 s10, s10, s9", "h store soffset")
    a(f"s_add_u32 s11, s80, s{S_WAVE}")
    a("s_lshl_b32 s11, s11, 2")
    a(f"s_add_u32 s11, s11, {WS_G}", "g store soffset")
    a("v_mov_b32 v210, 0")


def ln_store(a):
    a.c("LN store")
    a.lds("ds_read_b128 v[206:209], v204", "lnr")
    a.lg_wait("lnr")
    a.vmem(f"buffer_store_dwordx4 v[206:209], v205, {rs(R_WS)}, s10 offen sc1", "hst")
    a("s_mov_b64 exec, 1")
    a.vmem(f"buffer_store_dword v214, v210, {rs(R_WS)}, s11 offen sc1", "hst")
    a("s_mov_b64 exec, -1")
    a.vmem(f"buffer_load_dwordx2 v[216:217], v210, {rs(R_DBG)}, 0 offen sc1", "tag")


def tag_get(a):
    l1, l2 = a.label("tagl"), a.label("tagok")
    a(f"s_mov_b32 s17, {SPIN}")
    a(f"{l1}:")
    a(f"v_readfirstlane_b32 s{S_TAG}, v216")
    a(f"v_readfirstlane_b32 s{S_TAG+1}, v217")
    a(f"s_cmp_lg_u32 s{S_TAG}, 0")
    a(f"s_cbranch_scc1 {l2}")
    a(f"buffer_load_dwordx2 v[216:217], v210, {rs(R_DBG)}, 0 offen sc1")
    a("s_waitcnt vmcnt(0)")
    spin_guard(a, l1)
    a(f"{l2}:")
    a("s_getreg_b32 s8, hwreg(HW_REG_XCC_ID)")
    a("s_and_b32 s8, s8, 15")
    a("s_add_u32 s8, s8, 1")
    a("s_lshl_b32 s8, s8, 24") if OPT["local"] else a("s_mov_b32 s8, 0")
    a(f"s_mov_b32 s{S_LTAG}, s{S_TAG}")
    a(f"s_xor_b32 s{S_LTAG+1}, s{S_TAG+1}, s8", "tag valid only between workgroups of this XCD")


def flag_set(a, soff, vz, vt, local=False):
    tg = S_LTAG if local else S_TAG
    a(f"v_mov_b32 v{vt}, s{tg}")
    a(f"v_mov_b32 v{vt+1}, s{tg+1}")
    a(f"v_mov_b32 v{vz}, 0")
    a("s_mov_b64 exec, 1")
    a.vmem(f"buffer_store_dwordx2 v[{vt}:{vt+1}], v{vz}, {rs(R_WS)}, {soff} offen {'' if (local and OPT['local']) else 'sc1'}", "flag")
    a("s_mov_b64 exec, -1")


def flag_check(a, vt, mask_lo, mask_hi, tg=None):
    tg = S_TAG if tg is None else tg
    a(f"v_cmp_ne_u64 vcc, s[{tg}:{tg+1}], v[{vt}:{vt+1}]")
    a(f"s_and_b32 s10, vcc_lo, {mask_lo}")
    a(f"s_and_b32 s11, vcc_hi, {mask_hi}")
    a("s_or_b32 s10, s10, s11")
    a("s_cmp_eq_u32 s10, 0")


def flag_wait(a, soff, vaddr, vt, mask_lo, mask_hi, sleep=2):
    l1, l2 = a.label("poll"), a.label("pollok")
    a(f"s_mov_b32 s17, {SPIN}")
    a(f"{l1}:")
    a(f"buffer_load_dwordx2 v[{vt}:{vt+1}], v{vaddr}, {rs(R_WS)}, {soff} offen sc1")
    a("s_waitcnt vmcnt(0)")
    a.vm = []
    flag_check(a, vt, mask_lo, mask_hi)
    a(f"s_cbranch_scc1 {l2}")
    a(f"s_sleep {sleep}")
    spin_guard(a, l1)
    a(f"{l2}:")


def lds_arrive(a, cnt_off, vt, vone):
    a.lg_drain()
    a(f"v_mov_b32 v{vt}, {cnt_off}")
    a("s_mov_b64 exec, 1")
    a(f"ds_add_u32 v{vt}, v{vone}")
    a("s_mov_b64 exec, -1")


def lds_wait(a, cnt_off, target, vt, sleep=True, hint=0):
    lab, lab2 = a.label("sy"), a.label("syd")
    a(f"v_mov_b32 v{vt}, {cnt_off}")
    a(f"s_mov_b32 s17, {hint if hint else SPIN*8}")
    a(f"{lab}:")
    a(f"ds_read_b32 v{vt+1}, v{vt}")
    a("s_waitcnt lgkmcnt(0)")
    a.lg = []
    a(f"v_readfirstlane_b32 s8, v{vt+1}")
    a(f"s_cmp_ge_u32 s8, {target}")
    a(f"s_cbranch_scc1 {lab2}")
    if sleep:
        a("s_sleep 1")
    if hint:
        a("s_sub_u32 s17, s17, 1")
        a("s_cmp_lg_u32 s17, 0")
        a(f"s_cbranch_scc1 {lab}")
    else:
        spin_guard(a, lab)
    a(f"{lab2}:")


AV_Q, AV_O, AV_C, AV_S, AV_P, AV_K, AV_V = 16, 32, 96, 160, 192, 200, 208
AV_KA, AV_KR, AV_V0, AV_V1, AV_QA, AV_FA = 2, 3, 4, 5, 6, 7
GV_ACC, GV_D, GV_WO, GV_T, GV_Y, GV_MISC = 16, 80, 144, 208, 224, 240
GV_DMA, GV_TA1, GV_TA2, GV_TA3, GV_DB, GV_DA = 2, 5, 7, 9, 11, 13


def att_setup(a):
    a.c("attention setup")
    a(f"s_and_b32 s18, s{S_WAVE}, 1", "kh")
    a(f"s_lshr_b32 s19, s{S_WAVE}, 1", "e")
    a(f"s_lshl_b32 s20, s{S_HP}, 1")
    a("s_add_u32 s20, s20, s19", "head")
    a("s_lshl_b32 s8, s20, 17")
    a(f"s_add_u32 s8, s8, {WS_KV}")
    a(f"s_add_u32 s{R_KV}, s38, s8")
    a(f"s_addc_u32 s{R_KV+1}, s39, 0")
    a(f"s_mov_b32 s{R_KV+2}, 0x20000")
    a(f"s_mov_b32 s{R_KV+3}, 0x00020000")
    a(f"s_add_u32 s30, s{R_KV}, {WS_KVB}")
    a(f"s_addc_u32 s31, s{R_KV+1}, 0")
    a(f"s_mul_i32 s21, s{S_WAVE}, {KSLOT}")
    a(f"s_add_u32 s21, s21, {KVR}", "ring base")
    a(f"v_lshlrev_b32 v{AV_KA}, 4, v0")
    a(f"v_add_u32 v{AV_KR}, s21, v{AV_KA}")
    a("v_lshrrev_b32 v8, 5, v0")
    a("v_lshlrev_b32 v8, 8, v8")
    a("v_and_b32 v9, 15, v0")
    a("v_lshl_add_u32 v8, v9, 4, v8")
    a("v_add_u32 v8, 1024, v8")
    a("v_add_u32 v9, 512, v8")
    a("v_and_b32 v10, 27, v0")
    a("v_cmp_eq_u32 vcc, 16, v10")
    a("v_mov_b32 v11, 2064")
    a("v_mov_b32 v12, 2048")
    a("v_cndmask_b32 v11, v11, v12, vcc")
    a("v_and_b32 v10, 16, v0")
    a("v_cmp_eq_u32 vcc, 0, v10")
    a("s_lshl_b32 s8, s19, 12")
    a(f"s_add_u32 s8, s8, {L_Q}")
    a("v_cndmask_b32 v8, v11, v8, vcc")
    a("v_cndmask_b32 v9, v11, v9, vcc")
    a(f"v_add_u32 v{AV_V0}, s21, v8")
    a(f"v_add_u32 v{AV_V1}, s21, v9")
    a(f"v_add_u32 v{AV_QA}, s8, v{AV_KA}")
    a(f"s_lshl_b32 s8, s{S_SL}, 2")
    a("s_add_u32 s8, s8, 4")
    a(f"v_add_u32 v{AV_FA}, s8, v0")
    a(f"v_and_b32 v{AV_FA}, 63, v{AV_FA}")
    a(f"v_lshrrev_b32 v8, 2, v{AV_FA}")
    a(f"v_and_b32 v{AV_FA}, 3, v{AV_FA}")
    a(f"v_lshlrev_b32 v{AV_FA}, 3, v{AV_FA}")
    a(f"v_lshl_add_u32 v{AV_FA}, v8, 7, v{AV_FA}", "lane l polls tile (l + 4sl + 4) & 63")
    a("s_lshl_b32 s27, 0x555, s18", "flags of the first 6 remote tiles")
    a("s_lshl_b32 s8, s19, 10")
    a(f"s_add_u32 s8, s8, {L_K0}")
    a(f"v_add_u32 v1, s8, v{AV_KA}")
    a("v_lshrrev_b32 v8, 3, v0")
    a("v_min_u32 v8, 5, v8")
    a(f"v_mul_u32_u24 v8, {4*KSLOT}, v8")
    a("v_and_b32 v9, 7, v0")
    a("v_lshl_add_u32 v8, v9, 2, v8")
    a("v_cmp_gt_u32 vcc, 4, v9")
    a("v_add_u32 v230, s21, v8")
    a("v_mov_b32 v10, 0x3f803f80")
    a("v_cndmask_b32 v231, 0, v10, vcc")
    a(f"s_lshl_b32 s8, s{S_SL}, 1")
    a("s_add_u32 s8, s8, s18")
    a("s_lshl_b32 s9, s8, 8")
    a(f"s_add_u32 s32, s9, {WS_G}")
    a("s_lshl_b32 s9, s8, 6")
    a(f"s_add_u32 s33, s9, {WS_FH}")
    a("v_and_b32 v232, 31, v0")
    a("v_lshlrev_b32 v232, 2, v232")
    a("v_and_b32 v233, 7, v0")
    a("v_lshlrev_b32 v233, 3, v233")
    a(f"s_lshl_b32 s22, s{S_HP}, 11")
    a(f"s_add_u32 s22, s22, {WS_FKV}", "flag base")
    a(f"s_add_u32 s28, s22, {WS_FKVS}")
    a("s_lshl_b32 s23, 0x55555555, s18", "flag mask")
    a("s_mov_b32 s24, 0", "0: fast pass, 1: exact-max pass")
    a("s_mov_b32 s25, 2", "pair sync target")


def gemm_setup(a):
    a.c("GEMM setup")
    srd(a, R_WO, 20, 512 * 512 * 2)
    srd(a, R_B1, 26, 1792 * 2)
    srd(a, R_W2, 28, 1792 * 2048 * 2)
    srd(a, R_B2, 30, 2048 * 2)
    srd(a, R_OUT, 34, 2048 * 512 * 2)
    a("v_lshrrev_b32 v64, 3, v0")
    a("v_and_b32 v65, 7, v0")
    a("v_bfe_u32 v66, v0, 4, 1")
    a("v_lshlrev_b32 v66, 2, v66")
    a("v_xor_b32 v65, v65, v66")
    a("v_lshlrev_b32 v65, 4, v65")
    a(f"v_mul_u32_u24 v{GV_DMA}, 3584, v64")
    a(f"v_add_u32 v{GV_DMA}, v{GV_DMA}, v65")
    a(f"v_lshl_add_u32 v{GV_DMA+1}, v64, 12, v65")
    a(f"v_lshl_add_u32 v{GV_DMA+2}, v64, 10, v65")
    a(f"s_mul_i32 s18, s81, {TR*2048}")
    a(f"s_add_u32 s18, s18, {M_RED}", "T slot base (own reduction area; ring at +49152)")
    a("v_bfe_u32 v64, v0, 2, 2")
    a("v_lshlrev_b32 v65, 7, v64")
    a("v_bfe_u32 v64, v0, 3, 1")
    a("v_lshl_add_u32 v65, v64, 6, v65")
    a("v_bfe_u32 v64, v0, 4, 1")
    a("v_lshl_add_u32 v65, v64, 5, v65")
    a("v_add_u32 v65, s18, v65", "rows r, half swap, colhalf")
    a("v_and_b32 v64, 3, v0")
    a("v_lshl_add_u32 v66, v64, 3, v65", "+8c")
    a("v_and_b32 v64, 1, v0")
    a("v_lshl_add_u32 v67, v64, 4, v65")
    a("v_bfe_u32 v64, v0, 1, 1")
    a("v_lshl_add_u32 v67, v64, 3, v67", "+16(c&1)+8(c>>1): column permutation swap23")
    a("v_lshrrev_b32 v64, 5, v0")
    a("s_lshr_b32 s8, s81, 1", "a_w")
    a("s_and_b32 s9, s81, 1", "b_w")
    a("s_lshl_b32 s19, s8, 6")
    a("s_lshl_b32 s20, s9, 6")
    a(f"v_lshl_add_u32 v{GV_TA1}, v64, 10, v66")
    a(f"v_xor_b32 v{GV_TA1}, s19, v{GV_TA1}")
    a(f"v_xor_b32 v{GV_TA1+1}, 64, v{GV_TA1}")
    a(f"v_lshl_add_u32 v{GV_TA2}, v64, 9, v66")
    a(f"v_xor_b32 v{GV_TA2}, s20, v{GV_TA2}")
    a(f"v_xor_b32 v{GV_TA2+1}, 64, v{GV_TA2}")
    a(f"v_lshl_add_u32 v{GV_TA3}, v64, 9, v67")
    a(f"v_xor_b32 v{GV_TA3}, s19, v{GV_TA3}")
    a(f"v_xor_b32 v{GV_TA3+1}, 64, v{GV_TA3}")
    a("s_lshl_b32 s19, s8, 10")
    a("s_lshl_b32 s20, s9, 10")
    a("v_lshlrev_b32 v64, 4, v0")
    a(f"v_add_u32 v{GV_DB}, s20, v64")
    a(f"v_xor_b32 v{GV_DB+1}, 1024, v{GV_DB}")
    a(f"v_add_u32 v{GV_DA}, s19, v64")
    a(f"v_xor_b32 v{GV_DA+1}, 1024, v{GV_DA}")
    for v in range(1, 4):
        a(f"s_xor_b32 s8, s81, {v}")
        a("s_mul_i32 s8, s8, 12288")
        a(f"s_add_u32 s8, s8, {M_RED + (v-1)*4096}")
        a(f"v_add_u32 v{GV_MISC+v}, s8, v64")
    a("s_mul_i32 s8, s81, 12288")
    a(f"s_add_u32 s8, s8, {M_RED}")
    a(f"v_add_u32 v{GV_MISC}, s8, v64")
    a(f"s_lshr_b32 s8, s{S_XCD}, 1")
    a("s_mul_i32 s8, s8, 7", "7p")
    a(f"s_and_b32 s9, s{S_XCD}, 1")
    a("s_lshl_b32 s9, s9, 2", "4*odd")
    a(f"s_lshr_b32 s23, s{S_IDX}, 3", "j")
    a("s_add_u32 s20, s8, s9")
    a("s_add_u32 s20, s20, s23", "ft (j<3)")
    a("s_add_u32 s8, s8, 3")
    a(f"s_and_b32 s19, s{S_IDX}, 7")
    a(f"s_and_b32 s21, s{S_IDX}, 3")
    a("s_add_u32 s9, s9, s21")
    a("s_cmp_eq_u32 s23, 3")
    a("s_cselect_b32 s20, s8, s20", "ft")
    a("s_cselect_b32 s19, s9, s19", "dt (G1)")
    a(f"s_and_b32 s23, s23, {OPT['r1m']}")
    a(f"s_lshl_b32 s23, s23, {OPT['r1s']}", "rot G1 (h sharers)")
    a(f"s_lshr_b32 s22, s{S_IDX}, 2", "dt (G2)")
    a(f"s_and_b32 s9, s21, {OPT['r2m']}")
    a(f"s_mul_i32 s9, s9, {OPT['r2s']}")
    a(f"s_lshl_b32 s8, s{S_XCD}, 2")
    a("s_add_u32 s21, s8, s21", "st")
    a("s_mul_i32 s8, s22, 7")
    a("s_lshr_b32 s8, s8, 1")
    a("s_add_u32 s24, s9, s8")
    a("s_sub_u32 s9, s24, 28")
    a("s_cmp_ge_u32 s24, 28")
    a("s_cselect_b32 s24, s9, s24", "rot G2")


def bias_loads(a):
    a("v_lshrrev_b32 v64, 5, v0")
    a("v_lshlrev_b32 v64, 3, v64")
    a("s_lshl_b32 s8, s20, 7")
    a("s_lshr_b32 s9, s81, 1")
    a("s_lshl_b32 s9, s9, 6")
    a("s_add_u32 s8, s8, s9")
    for g in range(4):
        a.vmem(f"buffer_load_dwordx2 {vr(GV_Y+2*g,2)}, v64, {rs(R_B1)}, s8 offen offset:{16*g}", "b1")
    a("v_and_b32 v65, 31, v0")
    a("v_lshlrev_b32 v65, 1, v65")
    a("s_lshl_b32 s8, s21, 6")
    a("s_and_b32 s9, s81, 1")
    a("s_lshl_b32 s9, s9, 5")
    a("s_add_u32 s91, s8, s9", "first row of own output sub-tile")
    a("s_lshl_b32 s8, s91, 1")
    a.vmem(f"buffer_load_ushort v15, v65, {rs(R_B2)}, s8 offen", "b2")
    a(f"v_lshlrev_b32 v{GV_MISC+4}, 3, v0")
    a("s_lshl_b32 s96, s81, 9")
    a(f"s_add_u32 s96, s96, {WS_FH}")


def warm_setup(a):
    srd(a, R_W1, 24, 2048 * 1792 * 2)
    a("v_lshrrev_b32 v174, 5, v0")
    a("v_mul_u32_u24 v174, 3584, v174")
    a("v_and_b32 v175, 31, v0")
    a("v_lshl_add_u32 v174, v175, 4, v174")
    a(f"s_lshr_b32 s8, s{S_XCD}, 1")
    a("s_mul_i32 s8, s8, 7")
    a(f"s_and_b32 s9, s{S_XCD}, 1")
    a("s_mul_i32 s9, s9, 3")
    a("s_add_u32 s8, s8, s9")
    a("s_lshl_b32 s90, s8, 7")
    a(f"s_lshl_b32 s8, s{S_IDX}, 3")
    a(f"s_add_u32 s8, s8, s{S_WAVE}")
    a("s_lshr_b32 s9, s8, 6")
    a("s_lshl_b32 s9, s9, 9")
    a("s_and_b32 s8, s8, 63")
    a("s_lshl_b32 s8, s8, 1")
    a("s_add_u32 s8, s8, s9")
    a("s_mul_i32 s8, s8, 3584")
    a("s_add_u32 s8, s8, s90")
    a("s_mov_b32 s87, s8")


def epi_addr(a, par):
    a(f"s_lshl_b32 s84, s{S_SL}, 2")
    a("s_add_u32 s84, s84, s81", "tile")
    a("v_lshlrev_b32 v170, 4, v0")
    if par == 0:
        a("s_lshl_b32 s8, s81, 10")
        a(f"s_add_u32 s8, s8, {L_Q}")
        a("v_add_u32 v171, s8, v170")
    else:
        a(f"s_lshl_b32 s88, s{S_HP}, 18")
        a("s_lshl_b32 s9, s84, 11")
        a("s_add_u32 s88, s88, s9")
        a(f"s_add_u32 s88, s88, {WS_KV}")
        a("s_add_u32 s89, s88, 0x20000")
        a("v_lshrrev_b32 v171, 5, v0")
        a("v_lshlrev_b32 v171, 8, v171")
        a("v_and_b32 v172, 15, v0")
        a("v_lshl_add_u32 v171, v172, 4, v171", "h'*256 + i*16")
        a("v_bfe_u32 v173, v0, 4, 1", "e")
        a("v_lshl_add_u32 v172, v173, 17, v171", "global V voffset")
        a("s_and_b32 s8, s81, 1")
        a(f"s_mul_i32 s8, s8, {KSLOT}")
        a("s_lshr_b32 s9, s81, 1")
        a(f"s_mul_i32 s9, s9, {4*KSLOT}")
        a("s_add_u32 s8, s8, s9")
        a(f"s_add_u32 s8, s8, {KVR + KSO(0)}")
        a(f"v_mul_u32_u24 v173, {2*KSLOT}, v173")
        a("v_add3_u32 v173, v173, v171, s8", "LDS V addr")
        a("v_add_u32 v171, s8, v170", "LDS K addr")


def proj(a, par):
    a.c(f"projection role {par}")
    ACC = 96 if par == 0 else 80
    XF, WF, XA, WA = PV_XF, PV_WF, PV_XA, PV_WA
    vm = []
    for t in a.vm:
        if t.endswith("A"):
            if par == 0:
                vm.append(t[:-1])
        else:
            vm.append(t)
    a.vm = vm

    def pretouch():
        nt = "nt" if OPT["ptnt"] else ""
        if not OPT["local"] or OPT["pt"] == 0:
            pass
        elif par == 1:
            a.vmem(f"buffer_load_dwordx4 v[248:251], v170, {rs(R_WS)}, s88 offen {nt}", "pt")
            a.vmem(f"buffer_load_dwordx4 v[248:251], v170, {rs(R_WS)}, s89 offen {nt}", "pt")
        else:
            a(f"s_lshl_b32 s8, s{S_HP}, 18")
            a("s_lshl_b32 s9, s84, 11")
            a("s_add_u32 s8, s8, s9")
            a(f"s_add_u32 s8, s8, {WS_KV}")
            a("s_add_u32 s9, s8, 0x20000")
            a.vmem(f"buffer_load_dwordx4 v[248:251], v170, {rs(R_WS)}, s8 offen offset:1024 {nt}", "pt")
            a.vmem(f"buffer_load_dwordx4 v[248:251], v170, {rs(R_WS)}, s9 offen offset:1024 {nt}", "pt")
            a.vmem(f"buffer_load_dwordx2 v[248:249], v{AV_FA}, {rs(R_WS)}, s22 offen {nt}", "pt")
        if OPT["w1mode"] == 0:
            for q in range(OPT["mwn"]):
                a(f"s_add_u32 s8, s87, {q*128*3584}")
                a.vmem(f"buffer_load_dwordx4 v[248:251], v174, {rs(R_W1)}, s8 offen", "warm")
    segs = [0] if par == 0 else [1, 2]
    SETS = [(XF, WF), (16, 32)]

    def reads(c):
        slot = c % NPS
        xf, wf = SETS[c % 2]
        L = []
        for ks in range(4):
            L.append(f"ds_read_b128 {vr(xf+4*ks,4)}, v{XA+ks} offset:{P_XS + slot*16384}")
            for si, seg in enumerate(segs):
                off = slot * 12288 + ks * 3072 + seg * 1024
                w = wf + 8 * ks + 4 * si
                L.append(f"ds_read_b64_tr_b16 {vr(w,2)}, v{WA} offset:{off}")
                L.append(f"ds_read_b64_tr_b16 {vr(w+2,2)}, v{WA} offset:{off+256}")
        return L

    def mms(c):
        xf, wf = SETS[c % 2]
        L = []
        for ks in range(4):
            z = (c == 0 and ks == 0)
            L.append(mfma(ACC, wf + 8 * ks, xf + 4 * ks, "0" if z else ACC))
            if par == 1:
                L.append(mfma(ACC + 16, xf + 4 * ks, wf + 8 * ks + 4, "0" if z else ACC + 16))
        return L

    LA = OPT["la"]
    for c in range(2, LA - 1):
        p_issue(a, c, par)
    stamp(a, 2)
    a.vm_wait("ch0")
    a("s_barrier")
    stamp(a, 32)
    for x in reads(0):
        a.lds(x, "r")
    p_issue(a, LA - 1, par)
    LNS = OPT["lnc"] + 1
    for c in range(8):
        a.c(f"chunk {c}")
        a.lg_drain()
        R, Mm = [], mms(c)
        a(Mm.pop(0))
        if c + 1 < 8:
            a.vm_wait(f"ch{c+1}")
            a("s_barrier")
            stamp(a, 33 + c)
            R = reads(c + 1)
        per = 4
        while Mm or R:
            for x in R[:per]:
                a.lds(x, "r")
            R = R[per:]
            if Mm:
                a(Mm.pop(0))
        if c == LNS:
            ln_store(a)
        if c + LA < 8:
            p_issue(a, c + LA, par)
        if c == LNS + LA - 1:
            tag_get(a)
            if par == 1:
                lab = a.label("nofh")
                a("s_cmp_lg_u32 s81, 0")
                a(f"s_cbranch_scc1 {lab}")
                a(f"s_add_u32 s8, s80, {WS_FH}")
                n0 = len(a.vm)
                flag_set(a, "s8", 218, 220)
                a.vm = a.vm[:n0]
                a(f"{lab}:")
        if c == OPT["lnc"]:
            ln_compute(a)
        if c == OPT["suc"] - 1:
            warm_setup(a)
            epi_addr(a, par)
        if c == OPT["suc"]:
            att_setup(a) if par == 0 else gemm_setup(a)
        if c == OPT["ptc"]:
            pretouch()
        if c == OPT["suc"] + 1 and par == 1:
            bias_loads(a)
    stamp(a, 3)
    a.c("projection epilogue")
    if par == 0:
        a(f"s_mov_b32 s8, {f32bits(0.25*LOG2E)}")
        a(f"s_mov_b32 s9, {f32bits(0.25*LOG2E)}")
        a("s_nop 9")
        for r in range(0, 16, 2):
            a(f"v_pk_mul_f32 {vr(ACC+r,2)}, {vr(ACC+r,2)}, s[8:9]")
        for r in range(8):
            a(f"v_cvt_pk_bf16_f32 v{XF+r}, v{ACC+2*r}, v{ACC+2*r+1}")
        a.lds(f"ds_write_b128 v171, {vr(XF,4)}", "qw")
        a.lds(f"ds_write_b128 v171, {vr(XF+4,4)} offset:4096", "qw")
    else:
        a("s_nop 10")
        for r in range(16):
            a(f"v_cvt_pk_bf16_f32 v{XF+r}, v{ACC+2*r}, v{ACC+2*r+1}")
        a.lds(f"ds_write_b128 v171, {vr(XF,4)}", "kw")
        a.lds(f"ds_write_b128 v171, {vr(XF+4,4)} offset:{2*KSLOT}", "kw")
        lab = a.label("nok0")
        a("s_cmp_lg_u32 s81, 0")
        a(f"s_cbranch_scc1 {lab}")
        a(f"ds_write_b128 v171, {vr(XF,4)} offset:{L_K0-KVR-KSO(0)}")
        a(f"ds_write_b128 v171, {vr(XF+4,4)} offset:{L_K0-KVR-KSO(0)+1024}")
        a(f"{lab}:")
        a.lds(f"ds_write_b128 v173, {vr(XF+8,4)} offset:1024", "kw")
        a.lds(f"ds_write_b128 v173, {vr(XF+12,4)} offset:1536", "kw")
    a.lg_drain()
    a("s_barrier")
    if par == 1:
        a.vmem(f"buffer_store_dwordx4 {vr(XF,4)}, v170, {rs(R_WS)}, s88 offen {KVSC()}", "kvst")
        a.vmem(f"buffer_store_dwordx4 {vr(XF+4,4)}, v170, {rs(R_WS)}, s89 offen {KVSC()}", "kvst")
        a.vmem(f"buffer_store_dwordx4 {vr(XF+8,4)}, v172, {rs(R_WS)}, s88 offen offset:1024 {KVSC()}", "kvst")
        a.vmem(f"buffer_store_dwordx4 {vr(XF+12,4)}, v172, {rs(R_WS)}, s88 offen offset:1536 {KVSC()}", "kvst")


def attn_body(a, u_list, extra):
    kb = lambda n: n % 2
    for (n, i, pn, pi, nn, ni, par) in u_list:
        cur, nxt = AV_S + 16 * par, AV_S + 16 * (1 - par)
        E = lambda r: a(f"v_exp_f32 v{cur+r}, v{cur+r}")
        C = lambda r: a(f"v_cvt_pk_bf16_f32 v{AV_P+r}, v{cur+2*r}, v{cur+2*r+1}")
        E(0)
        E(1)
        if pn is not None:
            a(mfma(AV_O + 16 * pi, AV_V + 8 * kb(pn) + 4, AV_P + 4, AV_O + 16 * pi))
        extra(n, i, 0)
        for r in range(2, 8):
            E(r)
        if nn is not None:
            a(mfma(nxt, AV_K + 4 * kb(nn), AV_Q + 4 * ni, AV_C + 16 * ni))
            extra(n, i, 1)
        else:
            a("s_nop 0")
        for r in range(4):
            C(r)
        for r in range(8, 12):
            E(r)
        a(mfma(AV_O + 16 * i, AV_V + 8 * kb(n), AV_P, "0" if n == 0 else AV_O + 16 * i))
        extra(n, i, 2)
        for r in range(12, 16):
            E(r)
        for r in range(4, 8):
            C(r)


def attention(a):
    a.c("attention role")
    KS = "s12"

    def rd(n):
        so, b = KSO(n), n % 2
        return [f"ds_read_b128 {vr(AV_K+4*b,4)}, v{AV_KR} offset:{so}",
                f"ds_read_b128 {vr(AV_V+8*b,4)}, v{AV_V0} offset:{so}",
                f"ds_read_b128 {vr(AV_V+8*b+4,4)}, v{AV_V1} offset:{so}"]

    def dma(n):
        return [f"s_add_u32 m0, s21, {KSO(n)}",
                f"buffer_load_dwordx4 v{AV_KA}, {rs(R_KV)}, {KS} offen sc1 lds",
                f"buffer_load_dwordx4 v{AV_KA}, {rs(R_KV)}, {KS} offen offset:1024 sc1 lds",
                f"s_add_u32 {KS}, {KS}, 4096",
                f"s_and_b32 {KS}, {KS}, 0x1ffff"]

    def kv_wait(mlo, mhi):
        l1, l2, l3 = a.label("kvp"), a.label("kvok"), a.label("kvs")
        a(f"s_mov_b32 s17, {SPIN}")
        a(f"{l1}:")
        a(f"buffer_load_dwordx2 v[8:9], v{AV_FA}, {rs(R_WS)}, s22 offen sc1")
        a(f"buffer_load_dwordx2 v[10:11], v{AV_FA}, {rs(R_WS)}, s28 offen sc1")
        a("s_waitcnt vmcnt(0)")
        flag_check(a, 8, mlo, mhi, S_LTAG)
        a(f"s_cbranch_scc1 {l2}")
        flag_check(a, 10, mlo, mhi)
        a(f"s_cbranch_scc1 {l3}")
        a("s_sleep 1")
        spin_guard(a, l1)
        a(f"{l3}:")
        a(f"s_mov_b32 s{R_KV}, s30")
        a(f"s_mov_b32 s{R_KV+1}, s31")
        a("s_mov_b32 s22, s28", "from now on only the written-through flags count")
        a(f"s_mov_b32 s{S_LTAG+1}, s{S_TAG+1}")
        a(f"{l2}:")

    a(f"s_setprio {OPT['prio_att']}")
    a("ds_write_b32 v230, v231 offset:2048")
    for i in range(4):
        a(f"ds_read_b128 {vr(AV_Q+4*i,4)}, v{AV_QA} offset:{i*1024}")
    a(f"ds_read_b128 {vr(AV_S,4)}, v1", "K tile 0 of my head")
    stamp(a, 4)
    a.c("max estimate from own key tile 0")
    a("s_waitcnt lgkmcnt(0)")
    for i in range(4):
        a(mfma(AV_C + 16 * i, AV_S, AV_Q + 4 * i, "0"))
    for x in rd(0):
        a(x)
    a("s_nop 5")
    for i in range(4):
        a(f"v_max3_f32 v{12+i}, v{AV_C+16*i}, v{AV_C+16*i+1}, v{AV_C+16*i+2}")
        for r in range(6):
            a(f"v_max3_f32 v{12+i}, v{AV_C+16*i+3+2*r}, v{AV_C+16*i+4+2*r}, v{12+i}")
        a(f"v_max_f32 v{12+i}, v{AV_C+16*i+15}, v{12+i}")
    lredo = a.label("redo")
    a(f"{lredo}:")
    for i in range(4):
        a(f"v_mov_b32 v{8+i}, v{12+i}")
    a("s_nop 1")
    for i in range(4):
        a(f"v_permlane32_swap_b32 v{12+i}, v{8+i}")
    a("s_nop 1")
    for i in range(4):
        a(f"v_max_f32 v{12+i}, v{12+i}, v{8+i}")
    for i in range(4):
        a(f"v_sub_f32 v{AV_C+16*i}, 0, v{12+i}")
        a(f"v_sub_f32 v{AV_C+16*i+1}, 0, v{12+i}")
    for r in range(2, 16, 2):
        a(f"v_mov_b64 {vr(AV_C+r,2)}, {vr(AV_C,2)}")
    a("s_nop 0")
    a("s_waitcnt lgkmcnt(0)")
    a(mfma(AV_S, AV_K, AV_Q, AV_C))
    for i in range(1, 4):
        for r in range(2, 16, 2):
            a(f"v_mov_b64 {vr(AV_C+16*i+r,2)}, {vr(AV_C+16*i,2)}")
    stamp(a, 5)
    a.c("phase A: own tiles")
    ul = []
    for u in range(8):
        n, i = u // 4, u % 4
        pn, pi = (None, None) if u == 0 else ((u - 1) // 4, (u - 1) % 4)
        nn, ni = ((u + 1) // 4, (u + 1) % 4) if u < 7 else (None, None)
        ul.append((n, i, pn, pi, nn, ni, u % 2))

    fl = []
    for n_ in range(2, 2 + KR):
        d = dma(n_)
        fl.append([d[0], d[1]] if n_ == 2 else [d[3], d[4], d[0], d[1]])
        fl.append([d[2]])
    lw1, lw1b = a.label("kvw"), a.label("kvwb")

    def extraA(n, i, slot):
        if n == 0 and (i, slot) in ((0, 1), (0, 2), (1, 0)):
            a(rd(1)[[(0, 1), (0, 2), (1, 0)].index((i, slot))])
        if n == 0 and (i, slot) == (1, 1):
            a(f"buffer_load_dwordx2 v[8:9], v{AV_FA}, {rs(R_WS)}, s22 offen sc1")
        if n == 0 and (i, slot) == (1, 2):
            a(f"buffer_load_dwordx2 v[228:229], v233, {rs(R_WS)}, s33 offen sc1")
        if n == 0 and (i, slot) == (3, 0):
            a("s_waitcnt lgkmcnt(0)")
        if n == 0 and (i, slot) == (3, 1):
            a("s_waitcnt vmcnt(0)")
            flag_check(a, 8, "s23", "s23", S_LTAG)
            a("s_cselect_b32 s13, 0, 5", "s13 == s16 -> remaining flags still to be checked")
            a("s_and_b32 s10, vcc_lo, s27")
            a(f"s_cbranch_scc1 {lw1}")
            a(f"{lw1b}:")
        k = None
        if n == 0 and (i, slot) == (3, 2):
            k = 0
        elif n == 1:
            k = 1 + 3 * i + slot - (1 if (i, slot) == (3, 2) else 0)
        if k is not None:
            grp = fl[k]
            if len(grp) > 1:
                for x in grp[:-1]:
                    a(x)
                a("s_nop 0")
            a(grp[-1])
    a(f"s_lshl_b32 {KS}, s{S_SL}, 2")
    a(f"s_add_u32 {KS}, {KS}, s18")
    a(f"s_add_u32 {KS}, {KS}, 4")
    a(f"s_lshl_b32 {KS}, {KS}, 11")
    a(f"s_and_b32 {KS}, {KS}, 0x1ffff")
    a(f"v_mov_b32 v224, {M_CNT+36}")
    a("v_mov_b32 v225, 1")
    attn_body(a, ul, extraA)
    stamp(a, 6)
    a(dma(2)[3])
    a(dma(2)[4])
    lg1 = a.label("gok")
    flag_check(a, 228, "-1", "-1")
    a(f"s_cbranch_scc1 {lg1}")
    flag_wait(a, "s33", 233, 228, "-1", "-1")
    a(f"{lg1}:")
    a(f"buffer_load_dwordx2 v[8:9], v{AV_FA}, {rs(R_WS)}, s22 offen sc1")
    a(f"buffer_load_dword v226, v232, {rs(R_WS)}, s32 offen sc1")
    a(f"buffer_load_dword v227, v232, {rs(R_WS)}, s32 offen offset:128 sc1")
    a("s_mov_b64 exec, 1")
    a("ds_add_u32 v224, v225", "release the GEMM waves")
    a("s_mov_b64 exec, -1")
    a(f"s_waitcnt vmcnt({2*(KR-1)+3})")
    for x in rd(2):
        a(x)
    a("s_mov_b32 s16, 5")
    stamp(a, 7)
    a("s_waitcnt lgkmcnt(0)")
    a(mfma(AV_S, AV_K, AV_Q, AV_C))
    a("s_nop 10")
    lloop = a.label("attn")
    a(".p2align 6")
    a(f"{lloop}:")
    ul = []
    for u in range(24):
        n, i = 2 + u // 4, u % 4
        pn, pi = 2 + (u - 1) // 4, (u - 1) % 4
        nn, ni = 2 + (u + 1) // 4, (u + 1) % 4
        ul.append((n, i, pn, pi, nn, ni, u % 2))

    lchk, lback = a.label("chk"), a.label("chkb")

    def extraL(n, i, slot):
        d, r = dma(n + KR), rd(n + 1)
        sched = {(0, 0): f"s_waitcnt vmcnt({2*(KR-2)})", (0, 1): r[0], (0, 2): r[1], (1, 0): r[2],
                 (1, 1): d[0], (1, 2): d[1], (2, 0): d[2], (2, 1): d[3], (2, 2): d[4],
                 (3, 0): "s_waitcnt lgkmcnt(0)"}
        if n == 2 and (i, slot) == (1, 0):
            a("s_cmp_eq_u32 s16, s13")
        if n == 2 and (i, slot) == (1, 1):
            a(f"s_cbranch_scc1 {lchk}")
            a(f"{lback}:")
        if (i, slot) in sched:
            a(sched[(i, slot)])
        if OPT["stamps"] and n == 2 and (i, slot) == (2, 2):
            a("s_memrealtime s[98:99]")
            a("s_memtime s[100:101]")
        if OPT["stamps"] and n == 2 and (i, slot) == (3, 1):
            a("s_add_u32 m0, s16, 40")
            a("s_nop 0")
            a("v_writelane_b32 v254, s98, m0")
            a("v_writelane_b32 v255, s100, m0")
        if n == 6 and (i, slot) == (3, 1):
            a("s_sub_u32 s16, s16, 1")
        if n == 6 and (i, slot) == (3, 2):
            a("s_cmp_eq_u32 s16, 1")
        if n == 7 and (i, slot) == (0, 0):
            a("s_cselect_b32 s26, 0, 0x20000")
        if n == 7 and (i, slot) == (3, 1):
            a(f"s_mov_b32 s{R_KV+2}, s26", "last iteration: DMA out of range (no traffic)")
        if n == 7 and (i, slot) == (3, 2):
            a("s_cmp_lg_u32 s16, 0")
    attn_body(a, ul, extraL)
    a(f"s_cbranch_scc1 {lloop}")
    a("s_nop 0")
    a(mfma(AV_O + 48, AV_V + 8 + 4, AV_P + 4, AV_O + 48))
    stamp(a, 8)
    a.c("check + combine")
    a("v_lshlrev_b32 v9, 2, v0")
    a("v_add_u32 v9, s21, v9", "own area, lane*4")
    a(f"s_xor_b32 s8, s{S_WAVE}, 1")
    a(f"s_mul_i32 s8, s8, {KSLOT}")
    a(f"s_add_u32 s8, s8, {KVR}")
    a(f"v_add_u32 v10, s8, v{AV_KA}", "partner area")
    a("v_lshlrev_b32 v11, 2, v0")
    a("v_add_u32 v11, s8, v11")
    a("s_waitcnt vmcnt(0)")
    a("s_nop 2")
    a(f"v_add_f32 v8, v{AV_O+8}, v{AV_O+24}")
    a(f"v_add_f32 v1, v{AV_O+40}, v{AV_O+56}")
    a("v_add_f32 v8, v8, v1")
    a(f"v_mov_b32 v1, {f32bits(2.0**60)}")
    a("v_cmp_nlt_f32 vcc, v8, v1")
    a("s_cmp_lg_u64 vcc, 0")
    a("s_cselect_b32 s8, 0x10001, 1")
    a("v_mov_b32 v1, s8")
    lk1, ljoin = a.label("kh1"), a.label("khj")
    a("s_cmp_eq_u32 s18, 1")
    a(f"s_cbranch_scc1 {lk1}")

    def send(o, j):
        a(f"ds_write_b128 v{AV_KR}, {vr(o,4)} offset:{KSO(2*j)}")
        a(f"ds_write_b128 v{AV_KR}, {vr(o+4,4)} offset:{KSO(2*j)+1024}")
        a(f"ds_write_b32 v9, v{o+8} offset:{KSO(2*j+1)}")
    for j in range(2):
        send(AV_O + 16 * (2 + j), j)
    a(f"s_branch {ljoin}")
    a(f"{lk1}:")
    for j in range(2):
        send(AV_O + 16 * j, j)
    a("s_waitcnt lgkmcnt(0)")
    for j in range(2):
        for r in range(9):
            a(f"v_mov_b32 v{AV_O+16*j+r}, v{AV_O+16*(2+j)+r}")
    a(f"{ljoin}:")
    lab, lab2 = a.label("asy"), a.label("asyd")
    a("s_lshl_b32 s8, s19, 2")
    a(f"s_add_u32 s8, s8, {M_CNT}")
    a("v_mov_b32 v8, s8")
    a("s_mov_b64 exec, 1")
    a("ds_add_u32 v8, v1")
    a("s_mov_b64 exec, -1")
    a(f"s_mov_b32 s17, {SPIN*16}")
    a(f"{lab}:")
    a("ds_read_b32 v9, v8")
    a("s_waitcnt lgkmcnt(0)")
    a("v_readfirstlane_b32 s8, v9")
    a("s_and_b32 s9, s8, 0xffff")
    a("s_cmp_ge_u32 s9, s25")
    a(f"s_cbranch_scc1 {lab2}")
    spin_guard(a, lab)
    a(f"{lab2}:")
    stamp(a, 48)
    lok, lslow = a.label("aok"), a.label("aslow")
    a("s_lshr_b32 s9, s8, 16")
    a("s_cmp_lg_u32 s9, 0")
    a(f"s_cbranch_scc1 {lslow}")
    a(f"{lok}:")
    for j in range(2):
        t = AV_S + 16 * j
        a(f"ds_read_b128 {vr(t,4)}, v10 offset:{KSO(2*j)}")
        a(f"ds_read_b128 {vr(t+4,4)}, v10 offset:{KSO(2*j)+1024}")
        a(f"ds_read_b32 v{t+8}, v11 offset:{KSO(2*j+1)}")
    a(f"s_lshl_b32 s8, s{S_SL}, 1")
    a("s_add_u32 s8, s8, s18")
    a("s_lshl_b32 s8, s8, 5")
    a("s_add_u32 s8, s8, s20", "st*32 + head")
    a(f"s_lshl_b32 s9, s{S_SL}, 4")
    a(f"s_add_u32 s9, s9, s{S_HP}")
    a("s_lshl_b32 s9, s9, 3")
    a("s_add_u32 s9, s9, s18")
    a("s_lshl_b32 s9, s9, 1")
    a("s_add_u32 s9, s9, s19")
    a("s_lshl_b32 s9, s9, 3")
    a(f"s_add_u32 s9, s9, {WS_FO}")
    a("s_lshl_b32 s8, s8, 11")
    a(f"s_add_u32 s8, s8, {WS_O}")
    a("s_waitcnt lgkmcnt(0)")
    for j in range(2):
        a(f"v_add_f32 v{AV_O+16*j+8}, v{AV_O+16*j+8}, v{AV_S+16*j+8}")
    for j in range(2):
        a(f"v_rcp_f32 v{AV_O+16*j+8}, v{AV_O+16*j+8}")
    for j in range(2):
        for r in range(8):
            a(f"v_add_f32 v{AV_O+16*j+r}, v{AV_O+16*j+r}, v{AV_S+16*j+r}")
    for j in range(2):
        a(f"v_mul_f32 v{AV_O+16*j+8}, v{AV_O+16*j+8}, v{226+j}", "g / l")
    for j in range(2):
        for r in range(8):
            a(f"v_mul_f32 v{AV_O+16*j+r}, v{AV_O+16*j+r}, v{AV_O+16*j+8}")
        for r in range(4):
            a(f"v_cvt_pk_bf16_f32 v{AV_P+4*j+r}, v{AV_O+16*j+2*r}, v{AV_O+16*j+2*r+1}")
        a(f"buffer_store_dwordx4 {vr(AV_P+4*j,4)}, v{AV_KA}, {rs(R_WS)}, s8 offen offset:{j*1024} sc1")
    stamp(a, 49)
    a(f"v_mov_b32 v10, s{S_TAG}")
    a(f"v_mov_b32 v11, s{S_TAG+1}")
    a("v_mov_b32 v9, 0")
    a("s_mov_b64 exec, 1")
    a("s_waitcnt vmcnt(0)")
    a(f"buffer_store_dwordx2 v[10:11], v9, {rs(R_WS)}, s9 offen sc1")
    a("s_mov_b64 exec, -1")
    stamp(a, 9, True)
    a("s_endpgm")
    a(f"{lw1}:")
    kv_wait("s27", "0")
    a(f"s_branch {lw1b}")
    a(f"{lchk}:")
    a("s_waitcnt vmcnt(0)")
    flag_check(a, 8, "s23", "s23", S_LTAG)
    a(f"s_cbranch_scc1 {lback}")
    kv_wait("s23", "s23")
    a(f"s_branch {lback}")
    a(f"{lslow}:")
    a("s_cmp_lg_u32 s24, 0")
    a(f"s_cbranch_scc1 {lok}")
    a("s_mov_b32 s24, 1")
    a("s_mov_b32 s25, 4")
    a(f"s_mov_b32 s{R_KV+2}, 0x20000")
    kv_wait("-1", "-1")
    for i in range(4):
        a(f"v_mov_b32 v{12+i}, 0xff800000")
    a("s_mov_b32 s8, 0")
    lmax = a.label("maxloop")
    a(f"{lmax}:")
    a(f"buffer_load_dwordx4 {vr(AV_K,4)}, v{AV_KA}, {rs(R_KV)}, s8 offen sc1")
    a("s_waitcnt vmcnt(0)")
    for i in range(4):
        a(mfma(AV_C + 16 * i, AV_K, AV_Q + 4 * i, "0"))
    a("s_nop 9")
    for i in range(4):
        for r in range(8):
            a(f"v_max3_f32 v{12+i}, v{AV_C+16*i+2*r}, v{AV_C+16*i+2*r+1}, v{12+i}")
    a("s_add_u32 s8, s8, 2048")
    a("s_cmp_lt_u32 s8, 0x20000")
    a(f"s_cbranch_scc1 {lmax}")
    a(f"s_lshl_b32 {KS}, s{S_SL}, 2")
    a(f"s_add_u32 {KS}, {KS}, s18")
    a(f"s_lshl_b32 {KS}, {KS}, 11")
    for n in range(2):
        d = dma(n)
        a(d[0])
        a("s_nop 0")
        for x in d[1:]:
            a(x)
    a("s_waitcnt vmcnt(0)")
    for x in rd(0):
        a(x)
    a(f"s_branch {lredo}")


class Rot:
    def __init__(self, a, cur, beg, end, stride):
        self.a, self.cur, self.beg, self.end, self.stride = a, cur, beg, end, stride

    def init(self, srot, n):
        a = self.a
        a(f"s_add_u32 s{self.end}, s{self.beg}, {n*self.stride}")
        a(f"s_mul_i32 s{self.cur}, s{srot}, {self.stride}")
        a(f"s_add_u32 s{self.cur}, s{self.cur}, s{self.beg}")

    def adv(self):
        a = self.a
        a(f"s_add_u32 s{self.cur}, s{self.cur}, {self.stride}")
        if self.beg is not None:
            a(f"s_cmp_eq_u32 s{self.cur}, s{self.end}")
            a(f"s_cselect_b32 s{self.cur}, s{self.beg}, s{self.cur}")


def gemm_role(a):
    HW = OPT["hw"]
    NB = 4
    assert HW < NB and HW + 1 <= TR
    a.c("GEMM role")
    stamp(a, 4)
    a.vmem(f"buffer_load_dwordx2 v[{GV_Y+8}:{GV_Y+9}], v{GV_MISC+4}, {rs(R_WS)}, s96 offen sc1", "hpoll")
    a("v_mov_b32 v1, 1")
    for g in range(4):
        for hh in range(2):
            a(f"v_lshlrev_b32 v{GV_ACC+4*g+2*hh}, 16, v{GV_Y+2*g+hh}")
            a(f"v_and_b32 v{GV_ACC+4*g+2*hh+1}, 0xffff0000, v{GV_Y+2*g+hh}")
    M = GV_MISC + 4
    T1 = Rot(a, 25, 26, 27, 16 * 3584)
    T2 = Rot(a, 25, 26, 27, 16 * 4096)
    TO = Rot(a, 31, None, None, 16 * 1024)
    D = Rot(a, 28, 29, 30, 2048)

    assert M_RING - M_RED == 49152 and TR == 6

    class Stream:
        def __init__(self, items, r0):
            self.items = items
            self.issued = 0
            self.r0 = r0

        def off(self, j):
            if self.r0 <= j < self.r0 + 6:
                return (j - self.r0) * 2048
            return 49152 + (j % TR) * 2048

        def upto(self, n):
            while self.issued < min(n, len(self.items)):
                j = self.issued
                rot, rsrc, vreg, rstr = self.items[j]
                a(f"s_add_u32 m0, s18, {self.off(j)}")
                a(f"s_add_u32 s8, s{rot.cur}, {8*rstr - 1024}")
                a.vmem(f"buffer_load_dwordx4 v{vreg}, {rs(rsrc)}, s{rot.cur} offen {NT(1)}lds", f"T{j}")
                a.vmem(f"buffer_load_dwordx4 v{vreg}, {rs(rsrc)}, s8 offen offset:1024 {NT(1)}lds", f"T{j}")
                rot.adv()
                self.issued += 1

    def d_issue(k, da):
        buf = k % NB
        for x in range(2):
            a.vmem(f"buffer_load_dwordx4 {vr(GV_D+8*buf+4*x,4)}, v{da+x}, {rs(R_WS)}, s{D.cur} offen sc1", f"D{k}")
        D.adv()

    def tread(st, j, ta, rd2, dst):
        for x in range(2):
            a.lds(f"ds_read_b64_tr_b16 {vr(dst+4*x,2)}, v{ta+x} offset:{st.off(j)}", f"tr{j}")
            a.lds(f"ds_read_b64_tr_b16 {vr(dst+4*x+2,2)}, v{ta+x} offset:{st.off(j)+rd2}", f"tr{j}")

    def burst(st, n, win):
        while st.issued < n:
            if st.issued - win >= 0:
                a.vm_wait_if(f"T{st.issued - win}")
            st.upto(st.issued + 1)

    def kloop(st, j0, nsteps, t_is_A, ta, rd2, da, cnt):
        pre = st.issued - j0
        hwd = lambda k: OPT["hwd0"] if k + 2 + HW <= pre else OPT["hwd"]
        dn = [0]

        def d_upto(n):
            while dn[0] < min(n, nsteps):
                d_issue(dn[0], da)
                dn[0] += 1
        d_upto(hwd(0))
        a.vm_wait_if(f"T{j0}")
        tread(st, j0, ta, rd2, GV_T)
        for k in range(nsteps):
            tb, db = GV_T + 8 * (k % 2), GV_D + 8 * (k % NB)

            def mm(x, y):
                if t_is_A:
                    d = GV_ACC + 16 * (2 * x + y)
                    a(mfma(d, tb + 4 * x, db + 4 * y, "0" if (k == 0 and d != GV_ACC) else d))
                else:
                    d = GV_ACC + 16 * (2 * y + x)
                    a(mfma(d, db + 4 * y, tb + 4 * x, "0" if (k == 0 and d != GV_ACC) else d))
            a.vm_wait_if(f"D{k}")
            a.lg_wait(f"tr{j0+k}")
            if k % 4 == 0:
                stamp(a, (16 if t_is_A else 24) + k // 4)
            mm(0, 0)
            if k == 5:
                a("s_mov_b64 exec, 1")
                a.lds(f"ds_add_u32 v{M+3}, v1 offset:{cnt - M_CNT}", "arr")
                a("s_mov_b64 exec, -1")
            d_upto(k + 1 + hwd(k))
            mm(0, 1)
            if k + 1 < nsteps:
                a.vm_wait_if(f"T{j0+k+1}")
                tread(st, j0 + k + 1, ta, rd2, GV_T + 8 * ((k + 1) % 2))
            mm(1, 0)
            st.upto(j0 + k + 2 + HW)
            mm(1, 1)
            if t_is_A and OPT["tk"] and k >= OPT["tk0"] and (k - OPT["tk0"]) % OPT["tks"] == 0:
                q = (k - OPT["tk0"]) // OPT["tks"]
                if q < 8:
                    a.vmem(f"buffer_load_dwordx4 v[248:251], v175, {rs(R_W2)}, s32 offen", "tk")
                    a(f"s_add_u32 s32, s32, {2*4096}")
                elif q < 13 and OPT["tk"] > 1:
                    a.vmem(f"buffer_load_dwordx4 v[248:251], v170, {rs(R_WO)}, s33 offen", "tk")
                    a("s_add_u32 s33, s33, 1024")

    def reduce(cnt, sb):
        stamp(a, sb)
        for v in range(1, 4):
            for q in range(4):
                a.lds(f"ds_write_b128 v{GV_MISC+v}, {vr(GV_ACC+16*v+4*q,4)} offset:{q*1024}", "rw")
        lds_arrive(a, cnt, M, 1)
        stamp(a, sb + 1)
        lds_wait(a, cnt, 4, M, sleep=False)
        stamp(a, sb + 2)
        for v in range(3):
            for q in range(4):
                a.lds(f"ds_read_b128 {vr(GV_ACC+16+16*v+4*q,4)}, v{GV_MISC} offset:{v*4096+q*1024}", f"rr{v}")
        for v in range(3):
            a.lg_wait(f"rr{v}")
            for r in range(0, 16, 2):
                a(f"v_pk_add_f32 {vr(GV_ACC+r,2)}, {vr(GV_ACC+r,2)}, {vr(GV_ACC+16+16*v+r,2)}")

    lskip1, lskip2 = a.label("skipg1"), a.label("skipg1e")
    a(f"s_mul_i32 s{T1.beg}, s81, {512*3584}")
    a("s_lshl_b32 s8, s20, 7")
    a(f"s_add_u32 s{T1.beg}, s{T1.beg}, s8")
    T1.init(23, 32)
    st1 = Stream([(T1, R_W1, GV_DMA, 3584)] * 32, 0)
    a(f"s_lshl_b32 s{D.beg}, s19, 18")
    a("s_lshl_b32 s8, s81, 16")
    a(f"s_add_u32 s{D.beg}, s{D.beg}, s8")
    D.init(23, 32)
    a(f"s_lshl_b32 s8, s{S_HP}, 4")
    a(f"s_add_u32 s8, s8, s{S_SL}")
    a("s_lshl_b32 s8, s8, 4")
    a("s_add_u32 s8, s8, s81")
    a("s_lshl_b32 s8, s8, 3")
    a(f"s_add_u32 s8, s8, {WS_FKV}")
    a(f"s_add_u32 s84, s8, {WS_FKVS}")
    a.vm_wait("kvst")
    flag_set(a, "s8", M, M + 2, local=True)
    stamp(a, 5)
    st2 = Stream([(TO, R_WO, GV_DMA + 2, 1024)] * 8 + [(T2, R_W2, GV_DMA + 1, 4096)] * 28, 8)

    def slow_copy():
        if not OPT["local"]:
            return
        a(f"s_add_u32 s88, s88, {WS_KVB}")
        a(f"s_add_u32 s89, s89, {WS_KVB}")
        XF = PV_XF
        a.vmem(f"buffer_store_dwordx4 {vr(XF,4)}, v170, {rs(R_WS)}, s88 offen sc1", "kvs")
        a.vmem(f"buffer_store_dwordx4 {vr(XF+4,4)}, v170, {rs(R_WS)}, s89 offen sc1", "kvs")
        a.vmem(f"buffer_store_dwordx4 {vr(XF+8,4)}, v172, {rs(R_WS)}, s88 offen offset:1024 sc1", "kvs")
        a.vmem(f"buffer_store_dwordx4 {vr(XF+12,4)}, v172, {rs(R_WS)}, s88 offen offset:1536 sc1", "kvs")
    a(f"s_lshl_b32 s{TO.cur}, s81, 17")
    a("s_lshl_b32 s8, s22, 7")
    a(f"s_add_u32 s{TO.cur}, s{TO.cur}, s8")
    if OPT["mb"]:
        a(f"s_add_u32 s8, s87, {128*3584}")
        a.vmem(f"buffer_load_dwordx4 v[248:251], v174, {rs(R_W1)}, s8 offen", "warm")
        a(f"s_add_u32 s8, s87, {(128-8)*3584}")
        a.vmem(f"buffer_load_dwordx4 v[248:251], v174, {rs(R_W1)}, s8 offen", "warm")
    a(f"s_cmp_ge_u32 s{S_IDX}, 28")
    a(f"s_cbranch_scc1 {lskip1}")
    burst(st1, OPT["g1b"], OPT["pf1"])
    if OPT["gate"]:
        lds_wait(a, M_CNT + 36, 4, M, hint=OPT["gspin"])
    if OPT["tk"]:
        a("v_lshrrev_b32 v175, 5, v0")
        a(f"v_and_b32 v{M}, 31, v0")
        a(f"v_lshlrev_b32 v{M}, 4, v{M}")
        a(f"v_lshl_add_u32 v175, v175, 12, v{M}")
        a(f"s_lshl_b32 s32, s{S_IDX}, 2")
        a("s_add_u32 s32, s32, s81")
        a("s_mul_i32 s33, s32, 5120")
        a("s_lshl_b32 s32, s32, 16")
        a(f"s_lshl_b32 s8, s{S_XCD}, 9")
        a("s_add_u32 s32, s32, s8")
    lh = a.label("hok")
    a.vm_wait_if("hpoll")
    flag_check(a, GV_Y + 8, "-1", "-1")
    a(f"s_cbranch_scc1 {lh}")
    a(f"v_lshlrev_b32 v{M}, 3, v0")
    vm_keep = list(a.vm)
    flag_wait(a, "s96", M, M + 2, "-1", "-1")
    a.vm = vm_keep
    a(f"{lh}:")
    a(f"v_mov_b32 v{M+3}, {M_CNT}")
    a(f"s_setprio {OPT['prio_gemm']}")
    stamp(a, 6)
    kloop(st1, 0, 32, True, GV_TA1, 512, GV_DB, M_CNT + 40)
    a("s_setprio 3")
    stamp(a, 7)
    slow_copy()
    st2.upto(OPT["wo0"])
    lds_wait(a, M_CNT + 40, 4, M)
    a.c("G1 epilogue")
    reduce(M_CNT + 16, 48)
    stamp(a, 51)
    c0 = -2.0 * math.sqrt(2.0 / math.pi) * LOG2E
    c1 = c0 * 0.044715
    a(f"s_mov_b32 s8, {f32bits(c1)}")
    a(f"s_mov_b32 s9, {f32bits(c1)}")
    a(f"v_mov_b32 v{M}, {f32bits(c0)}")
    a(f"v_mov_b32 v{M+1}, {f32bits(c0)}")
    TT = GV_ACC + 16
    P2 = lambda b: vr(b, 2)
    for r in range(0, 16, 2):
        a(f"v_pk_mul_f32 {P2(TT+r)}, {P2(GV_ACC+r)}, {P2(GV_ACC+r)}")
    for r in range(0, 16, 2):
        a(f"v_pk_fma_f32 {P2(TT+r)}, {P2(TT+r)}, s[8:9], {P2(M)}")
    for r in range(0, 16, 2):
        a(f"v_pk_mul_f32 {P2(TT+r)}, {P2(TT+r)}, {P2(GV_ACC+r)}")
    for r in range(16):
        a(f"v_exp_f32 v{TT+r}, v{TT+r}")
    for r in range(0, 16, 2):
        a(f"v_pk_add_f32 {P2(TT+r)}, {P2(TT+r)}, 1.0 op_sel_hi:[1,0]")
    for r in range(16):
        a(f"v_rcp_f32 v{TT+r}, v{TT+r}")
    for r in range(0, 16, 2):
        a(f"v_pk_mul_f32 {P2(TT+r)}, {P2(TT+r)}, {P2(GV_ACC+r)}")
    for r in range(8):
        a(f"v_cvt_pk_bf16_f32 v{GV_ACC+r}, v{TT+2*r}, v{TT+2*r+1}")
    a("s_mul_i32 s8, s19, 112")
    a("s_lshl_b32 s9, s20, 2")
    a("s_add_u32 s8, s8, s9")
    a("s_and_b32 s9, s81, 2")
    a("s_add_u32 s8, s8, s9")
    a("s_lshl_b32 s8, s8, 11")
    a(f"s_add_u32 s8, s8, {WS_U}")
    a.vmem(f"buffer_store_dwordx4 {vr(GV_ACC,4)}, v{GV_DB}, {rs(R_WS)}, s8 offen sc1", "ust")
    a.vmem(f"buffer_store_dwordx4 {vr(GV_ACC+4,4)}, v{GV_DB}, {rs(R_WS)}, s8 offen offset:2048 sc1", "ust")
    a("s_lshl_b32 s8, s19, 12")
    a("s_lshl_b32 s9, s20, 7")
    a("s_add_u32 s8, s8, s9")
    a("s_lshl_b32 s9, s81, 3")
    a("s_add_u32 s8, s8, s9")
    a(f"s_add_u32 s8, s8, {WS_FU}")
    a("s_mov_b32 s23, s8")
    stamp(a, 52)
    a.vm_drain()
    flag_set(a, "s23", M, M + 2)
    flag_set(a, "s84", M, M + 2) if OPT["local"] else None
    stamp(a, 8)
    a(f"s_branch {lskip2}")
    a(f"{lskip1}:")
    if OPT["help"]:
        lds_wait(a, M_CNT + 36, 4, M, hint=OPT["gspin"])
        if OPT["w1mode"] == 0:
            a(f"s_and_b32 s8, s{S_IDX}, 3")
            a("s_lshl_b32 s8, s8, 1")
            a("s_lshl_b32 s9, s81, 9")
            a("s_add_u32 s8, s8, s9")
            a(f"s_add_u32 s8, s8, {128*OPT['mwn']}")
            a("s_mul_i32 s9, s8, 3584")
            a("s_add_u32 s9, s9, s90")
            a(f"s_mov_b32 s10, {64 - 16*OPT['mwn']}")
            lh = a.label("help")
            a(f"{lh}:")
            a(f"buffer_load_dwordx4 v[248:251], v174, {rs(R_W1)}, s9 offen")
            a(f"s_add_u32 s9, s9, {8*3584}")
            a(f"s_waitcnt vmcnt({OPT['help']-1})")
            a("s_sub_u32 s10, s10, 1")
            a("s_cmp_lg_u32 s10, 0")
            a(f"s_cbranch_scc1 {lh}")
        stamp(a, 31)
        if OPT["hw2"]:
            a(f"v_lshrrev_b32 v{M}, 5, v0")
            a(f"v_and_b32 v{M+1}, 31, v0")
            a(f"v_lshlrev_b32 v{M+1}, 4, v{M+1}")
            a(f"v_lshl_add_u32 v{M}, v{M}, 12, v{M+1}")
            a(f"s_and_b32 s8, s{S_IDX}, 3")
            a("s_lshl_b32 s8, s8, 2")
            a("s_add_u32 s8, s8, s81", "helper wave 0..15")
            a("s_lshl_b32 s9, s8, 13")
            a(f"s_lshl_b32 s10, s{S_XCD}, 9")
            a("s_add_u32 s9, s9, s10")
            a("s_mov_b32 s10, 56")
            lh = a.label("help")
            a(f"{lh}:")
            a(f"buffer_load_dwordx4 v[248:251], v{M}, {rs(R_W2)}, s9 offen")
            a(f"s_add_u32 s9, s9, {32*4096}")
            a(f"s_waitcnt vmcnt({OPT['help']-1})")
            a("s_sub_u32 s10, s10, 1")
            a("s_cmp_lg_u32 s10, 0")
            a(f"s_cbranch_scc1 {lh}")
        stamp(a, 15)
    slow_copy()
    st2.issued = 0
    st2.upto(OPT["wo0"])
    a("s_waitcnt vmcnt(0)")
    flag_set(a, "s84", M, M + 2) if OPT["local"] else None
    a(f"{lskip2}:")
    a.vm = []
    a(f"s_mul_i32 s{T2.beg}, s81, {448*4096}")
    a("s_lshl_b32 s8, s21, 7")
    a(f"s_add_u32 s{T2.beg}, s{T2.beg}, s8")
    T2.init(24, 28)
    a(f"s_mul_i32 s{D.beg}, s22, 112")
    a("s_mul_i32 s8, s81, 28")
    a(f"s_add_u32 s{D.beg}, s{D.beg}, s8")
    a(f"s_lshl_b32 s{D.beg}, s{D.beg}, 11")
    a(f"s_add_u32 s{D.beg}, s{D.beg}, {WS_U}")
    D.init(24, 28)
    for j in range(8):
        a.vm_wait_if(f"T{j}")
        tread(st2, j, GV_TA3, 1024, GV_WO + 8 * j)
        a.lg_wait(f"tr{j}")
        st2.upto(j + 1 + OPT["pf"])
    stamp(a, 47)
    burst(st2, OPT["g2b"], OPT["pf"])
    for r in range(16):
        a(f"v_lshlrev_b32 v{GV_ACC+r}, 16, v15", "b2")
    a(f"v_min_u32 v{M}, 27, v0")
    a(f"v_lshrrev_b32 v{M+1}, 2, v{M}")
    a(f"v_and_b32 v{M}, 3, v{M}")
    a(f"v_lshlrev_b32 v{M}, 3, v{M}")
    a(f"v_lshl_add_u32 v{M}, v{M+1}, 7, v{M}")
    a("s_lshl_b32 s9, s22, 12")
    a("s_mul_i32 s8, s81, 896")
    a("s_add_u32 s9, s9, s8")
    a(f"s_add_u32 s9, s9, {WS_FU}")
    stamp(a, 46)
    if OPT["hw2p"]:
        lnh, lh = a.label("nohelp"), a.label("help2")
        a(f"s_cmp_lt_u32 s{S_IDX}, 28")
        a(f"s_cbranch_scc1 {lnh}")
        a(f"v_lshrrev_b32 v{GV_Y}, 5, v0")
        a(f"v_and_b32 v{GV_Y+1}, 31, v0")
        a(f"v_lshlrev_b32 v{GV_Y+1}, 4, v{GV_Y+1}")
        a(f"v_lshl_add_u32 v{GV_Y}, v{GV_Y}, 12, v{GV_Y+1}")
        a(f"s_and_b32 s8, s{S_IDX}, 3")
        a("s_lshl_b32 s8, s8, 2")
        a("s_add_u32 s8, s8, s81", "helper wave 0..15")
        a("s_lshl_b32 s32, s8, 13")
        a(f"s_lshl_b32 s8, s{S_XCD}, 9")
        a("s_add_u32 s32, s32, s8")
        a("s_mov_b32 s33, 8")
        a(f"{lh}:")
        a(f"buffer_load_dwordx2 v[{M+2}:{M+3}], v{M}, {rs(R_WS)}, s9 offen sc1")
        for q in range(7):
            a(f"buffer_load_dwordx4 v[248:251], v{GV_Y}, {rs(R_W2)}, s32 offen")
            a(f"s_add_u32 s32, s32, {32*4096}")
            a(f"s_waitcnt vmcnt({OPT['help']-1})")
        flag_check(a, M + 2, "0x0fffffff", "0")
        a(f"s_cbranch_scc1 {lnh}")
        a("s_sub_u32 s33, s33, 1")
        a("s_cmp_lg_u32 s33, 0")
        a(f"s_cbranch_scc1 {lh}")
        a(f"{lnh}:")
    flag_wait(a, "s9", M, M + 2, "0x0fffffff", "0")
    stamp(a, 9)
    a(f"v_and_b32 v{M}, 31, v0")
    a(f"v_lshlrev_b32 v{M+1}, 2, v{M}")
    a("s_mov_b32 s23, s91")
    a("s_lshl_b32 s9, s23, 2")
    a(f"s_add_u32 s9, s9, {WS_G}")
    a.vmem(f"buffer_load_dword v{GV_Y}, v{M+1}, {rs(R_WS)}, s9 offen sc1", "g")
    a("s_xor_b32 s9, s9, 128")
    a.vmem(f"buffer_load_dword v{GV_Y+2}, v{M+1}, {rs(R_WS)}, s9 offen sc1", "g")
    a("v_and_b32 v15, 31, v0")
    a("v_lshlrev_b32 v15, 10, v15")
    a(f"v_lshrrev_b32 v{M}, 5, v0")
    a(f"v_lshl_add_u32 v15, v{M}, 4, v15")
    a("s_lshl_b32 s23, s23, 10")
    a("s_lshl_b32 s8, s22, 7")
    a("s_add_u32 s23, s23, s8")
    a("s_lshr_b32 s8, s81, 1")
    a("s_lshl_b32 s8, s8, 6")
    a("s_add_u32 s23, s23, s8")
    a("s_lshl_b32 s32, s21, 16")
    a("s_lshl_b32 s8, s81, 14")
    a("s_add_u32 s32, s32, s8")
    a(f"s_add_u32 s32, s32, {WS_O}")
    a(f"v_min_u32 v{GV_Y+4}, 7, v0")
    a(f"v_lshrrev_b32 v{M}, 1, v{GV_Y+4}")
    a(f"v_and_b32 v{GV_Y+4}, 1, v{GV_Y+4}")
    a(f"v_lshlrev_b32 v{GV_Y+4}, 3, v{GV_Y+4}")
    a(f"v_lshl_add_u32 v{GV_Y+4}, v{M}, 7, v{GV_Y+4}")
    a("s_lshr_b32 s33, s21, 1")
    a("s_lshl_b32 s33, s33, 11")
    a("s_lshl_b32 s8, s81, 9")
    a("s_add_u32 s33, s33, s8")
    a("s_and_b32 s8, s21, 1")
    a("s_lshl_b32 s8, s8, 4")
    a("s_add_u32 s33, s33, s8")
    a(f"s_add_u32 s33, s33, {WS_FO}")
    a(f"v_mov_b32 v{M+3}, {M_CNT}")
    a(f"s_setprio {OPT['prio_gemm']}")
    kloop(st2, 8, 28, False, GV_TA2, 1024, GV_DA, M_CNT + 20)
    a("s_setprio 3")
    stamp(a, 10)
    a(f"buffer_load_dwordx2 v[{GV_Y+6}:{GV_Y+7}], v{GV_Y+4}, {rs(R_WS)}, s33 offen sc1")
    for b in range(2):
        a(f"v_sub_f32 v{GV_Y+2*b}, 1.0, v{GV_Y+2*b}")
        a(f"v_mov_b32 v{GV_Y+2*b+1}, v{GV_Y+2*b}")
    a("s_nop 4")
    for v in (0, 2, 1, 3):
        for r in range(0, 16, 2):
            d = GV_ACC + 16 * v + r
            a(f"v_pk_mul_f32 v[{d}:{d+1}], v[{d}:{d+1}], v[{GV_Y+2*(v&1)}:{GV_Y+2*(v&1)+1}]")
    a("s_waitcnt vmcnt(0)")
    a(f"v_cmp_ne_u64 vcc, s[{S_TAG}:{S_TAG+1}], v[{GV_Y+6}:{GV_Y+7}]")
    a("s_mov_b32 s26, vcc_lo", "heads not yet seen")
    stamp(a, 11)

    def omm(k):
        a.vm_wait_if(f"O{k}")
        for v in (1, 2, 3, 0):
            x, y = v >> 1, v & 1
            d = GV_ACC + 16 * v
            a(mfma(d, GV_WO + 8 * k + 4 * x, GV_D + 8 * k + 4 * y, d))
    for k in range(8):
        l1, l2 = a.label("op"), a.label("opok")
        a(f"s_bitcmp0_b32 s26, {k}")
        a(f"s_cbranch_scc1 {l2}")
        a(f"s_mov_b32 s17, {SPIN}")
        a(f"{l1}:")
        a(f"buffer_load_dwordx2 v[{GV_Y+6}:{GV_Y+7}], v{GV_Y+4}, {rs(R_WS)}, s33 offen sc1")
        a("s_waitcnt vmcnt(0)")
        a(f"v_cmp_ne_u64 vcc, s[{S_TAG}:{S_TAG+1}], v[{GV_Y+6}:{GV_Y+7}]")
        a("s_mov_b32 s26, vcc_lo")
        a(f"s_bitcmp0_b32 s26, {k}")
        a(f"s_cbranch_scc1 {l2}")
        spin_guard(a, l1)
        a(f"{l2}:")
        if k % 2 == 0 and k:
            a("s_add_u32 s32, s32, 4096")
        for x in range(2):
            a.vmem(f"buffer_load_dwordx4 {vr(GV_D+8*k+4*x,4)}, v{GV_DB+x}, {rs(R_WS)}, s32 offen offset:{(k%2)*2048} sc1", f"O{k}")
        if k >= OPT["olag"]:
            omm(k - OPT["olag"])
    stamp(a, 12)
    for k in range(8 - OPT["olag"], 8):
        omm(k)
    lds_wait(a, M_CNT + 20, 4, M)
    a("s_nop 2")
    stamp(a, 13)
    reduce(M_CNT + 32, 54)
    stamp(a, 57)
    for r in range(8):
        a(f"v_cvt_pk_bf16_f32 v{GV_ACC+16+r}, v{GV_ACC+2*r}, v{GV_ACC+2*r+1}")
    a.vmem(f"buffer_store_dwordx4 {vr(GV_ACC+16,4)}, v15, {rs(R_OUT)}, s23 offen", "ost")
    a.vmem(f"buffer_store_dwordx4 {vr(GV_ACC+20,4)}, v15, {rs(R_OUT)}, s23 offen offset:32", "ost")
    stamp(a, 14, True)


def descriptor(name, vgpr=256):
    return f""".section .rodata,"a"
.p2align 6
.amdhsa_kernel {name}
  .amdhsa_next_free_vgpr {vgpr}
  .amdhsa_next_free_sgpr 102
  .amdhsa_accum_offset {vgpr}
  .amdhsa_group_segment_fixed_size 0
  .amdhsa_kernarg_size 96
  .amdhsa_user_sgpr_count 2
  .amdhsa_user_sgpr_kernarg_segment_ptr 1
  .amdhsa_system_sgpr_workgroup_id_x 1
.end_amdhsa_kernel
"""


def build():
    kn = NAME + "_kernel"
    head = f"""; generated by gen/gen17.py (fused single launch)
; @launch grid=(256,1,1) block=(512,1,1) lds={LDS_TOTAL}
.amdgcn_target "amdgcn-amd-amdhsa--gfx950"
"""
    a = Asm()
    a(".text")
    a(f".globl {kn}")
    a(".p2align 8")
    a(f".type {kn},@function")
    a(f"{kn}:")
    entry(a, "L_exit")
    vm0, lg0 = list(a.vm), list(a.lg)
    a(f"s_cmp_ge_u32 s{S_WAVE}, 4")
    a("s_cbranch_scc1 L_roleb")
    ROLE[0] = 1
    proj(a, 0)
    attention(a)
    ROLE[0] = 0
    a("L_roleb:")
    a.vm, a.lg = vm0, lg0
    a("s_setprio 3")
    proj(a, 1)
    gemm_role(a)
    a("L_exit:")
    a("s_endpgm")
    a("L_code_end:")
    return head + a.text() + descriptor(kn)


if __name__ == "__main__":
    out = sys.argv[1] if len(sys.argv) > 1 else f"cdna_kernels/{NAME}.s"
    for o in sys.argv[2:]:
        if o == "stamps":
            OPT["stamps"] = True
        elif "=" in o:
            k, v = o.split("=")
            OPT[k] = int(v)
    open(out, "w").write(build())
    print("wrote", out)
```

```python
import math
import sys
from asmlib import Asm, vr, sr, f32bits

NAME = "gated_mix__mha_block__mixer_token_mlp__prompt"
OPT = dict(stamps=False, hw=2, prio_att=2, prio_gemm=0, nt=0, early=1, cpf=1, hwd0=3, hwd=3, gspin=24, g2b=18, w2k0=6, w2n=0, w2st=3, hw2=0, pt=1, ptnt=1, w1mode=0, gate=1, warm=-3, pf=3, lnpos=0, lnc=0, suc=2, tk=0, mwc=5, tk0=4, tks=2, xrot=0, la=3, local=1, xx=1, mb=0, hw2p=1, tlb=0, ww=0, ptc=5, mwn=1, pf1=3, wo0=3, olag=5, help=7, hgate=1, g1b=8, r1m=0, r1s=4, r2m=0, r2s=14)

WS_H = 0x000000
WS_KV = 0x200000
WS_KVB = 0xE00000 - 0x200000
WS_U = 0x800000
WS_O = 0xA00000
WS_G = 0xC00000
WS_FH = 0xC10000
WS_FKV = 0xC20000
WS_FKVS = 0x8000
WS_FU = 0xC30000
WS_FO = 0xC40000
WS_STAMP = 0xD00000
WS_SIZE = 0x1200000

S_WAVE, S_XCD, S_IDX, S_HP, S_SL = 3, 4, 5, 6, 7
S_TAG = 14
S_LTAG = 76
R_X, R_P, R_WO, R_W1, R_W2, R_WS, R_OUT, R_B1, R_B2, R_GW = 40, 44, 48, 52, 56, 60, 64, 68, 72, 76
R_DBG = 92
R_KV = 48
LOG2E = math.log2(math.e)

NPS = 4
P_XS, P_WS, P_LN = 0, 65536, 114688
M_RED = 0
TR = 6
M_RING = 49152
KVR = 98304
KSLOT = 2080
KR = 6
KPOS = {2: 0, 3: 1, 4: 2, 5: 3, 0: 4, 1: 5}
L_Q = KVR + 6 * 4 * KSLOT
M_CNT = L_Q + 8192
L_K0 = M_CNT + 256
LDS_TOTAL = 163840
assert M_RING + 4 * TR * 2048 <= KVR and L_K0 + 2048 <= LDS_TOTAL and P_LN + 9216 <= KVR + 4 * 4 * KSLOT


def KSO(n):
    return KPOS[n % KR] * 4 * KSLOT


SPIN = 200000


def KVSC():
    return '' if OPT['local'] else 'sc1'


def NT(bit):
    return "nt " if OPT["nt"] & bit else ""


def rs(r):
    return f"s[{r}:{r+3}]"


ROLE = [2]


def stamp(a, idx, final=False):
    if OPT.get("ms") is not None:
        if OPT["ms"] == idx + 100 * ROLE[0]:
            a("s_memrealtime s[98:99]")
            a("s_waitcnt lgkmcnt(0)")
            a.lg = []
        if final and (OPT["ms"] >= 100) == (ROLE[0] == 1):
            lab = a.label("pad")
            a(f"{lab}:")
            a("s_memrealtime s[100:101]")
            a("s_waitcnt lgkmcnt(0)")
            a("s_sub_u32 s100, s100, s98")
            a("s_cmp_lt_u32 s100, 4000")
            a(f"s_cbranch_scc1 {lab}")
    if not OPT["stamps"]:
        return
    a("s_memrealtime s[98:99]")
    a("s_memtime s[100:101]")
    if idx == 0:
        a("v_mov_b32 v254, 0")
        a("v_mov_b32 v255, 0")
    a("s_waitcnt lgkmcnt(0)")
    a.lg = []
    a(f"v_writelane_b32 v254, s98, {idx}")
    a(f"v_writelane_b32 v255, s100, {idx}")
    if final:
        a("s_lshl_b32 s97, s2, 3")
        a(f"s_add_u32 s97, s97, s{S_WAVE}")
        a("s_lshl_b32 s97, s97, 9")
        a(f"s_add_u32 s97, s97, {WS_STAMP}")
        a("v_lshlrev_b32 v253, 3, v0")
        a(f"buffer_store_dwordx2 v[254:255], v253, {rs(R_WS)}, s97 offen")


def srd(a, r, ptr, nbytes):
    a(f"s_mov_b32 s{r}, s{ptr}")
    a(f"s_mov_b32 s{r+1}, s{ptr+1}")
    a(f"s_mov_b32 s{r+2}, {nbytes:#x}")
    a(f"s_mov_b32 s{r+3}, 0x00020000")


def mfma(d, A, B, C):
    return f"v_mfma_f32_32x32x16_bf16 {vr(d,16)}, {vr(A,4)}, {vr(B,4)}, {C if isinstance(C,str) else vr(C,16)}"


def spin_guard(a, lab):
    a("s_sub_u32 s17, s17, 1")
    a("s_cmp_lg_u32 s17, 0")
    a(f"s_cbranch_scc1 {lab}")
    a("s_endpgm")


PV_XF, PV_WF, PV_XA, PV_WA, PV_DMA = 112, 128, 160, 164, 166


def p_issue(a, c, par):
    slot = c % NPS
    a("s_and_b32 s8, s85, 7")
    a("s_add_u32 s85, s85, 1")
    a("s_mul_i32 s8, s8, s86")
    if par is None:
        a(f"s_mul_i32 s9, s87, {slot}")
        a("s_add_u32 m0, s83, s9")
    else:
        a(f"s_add_u32 m0, s83, {slot*(16384 if par == 0 else 12288)}")
    a("s_add_u32 s8, s8, s82")
    for q in range(3):
        a.vmem(f"buffer_load_dwordx4 v{PV_DMA+q}, {rs(R_P)}, s8 offen offset:{q*1024} {NT(2)}lds", f"ch{c}")
    if par is None:
        lab = a.label("no4")
        a(f"s_cmp_ge_u32 s{S_WAVE}, 4")
        a(f"s_cbranch_scc1 {lab}")
        a.vmem(f"buffer_load_dwordx4 v{PV_DMA+3}, {rs(R_P)}, s8 offen offset:3072 {NT(2)}lds", f"ch{c}A")
        a(f"{lab}:")
    elif par == 0:
        a.vmem(f"buffer_load_dwordx4 v{PV_DMA+3}, {rs(R_P)}, s8 offen offset:3072 {NT(2)}lds", f"ch{c}")


def entry(a, lexit):
    a("s_cmp_ge_u32 s2, 256")
    a(f"s_cbranch_scc1 {lexit}")
    a("s_load_dwordx16 s[16:31], s[0:1], 0")
    a("s_load_dwordx8 s[32:39], s[0:1], 64")
    a("s_memrealtime s[12:13]")
    a("v_lshrrev_b32 v1, 6, v0")
    a("v_and_b32 v0, 63, v0")
    a(f"v_readfirstlane_b32 s{S_WAVE}, v1")
    a(f"s_and_b32 s{S_XCD}, s2, 7")
    a(f"s_lshr_b32 s{S_IDX}, s2, 3")
    if OPT["local"]:
        a(f"s_and_b32 s9, s{S_IDX}, 1")
        a(f"s_lshl_b32 s8, s{S_XCD}, 1")
        a(f"s_add_u32 s{S_HP}, s8, s9")
        a(f"s_lshr_b32 s{S_SL}, s{S_IDX}, 1")
        a(f"s_mul_i32 s9, s9, {OPT['xrot']}")
        a(f"s_add_u32 s85, s9, s{S_SL}", "chunk cursor (rotation)")
        if OPT["xx"]:
            a(f"s_add_u32 s85, s85, s{S_XCD}")
    else:
        a(f"s_and_b32 s8, s{S_XCD}, 3")
        a("s_lshl_b32 s8, s8, 2")
        a(f"s_and_b32 s9, s{S_IDX}, 3")
        a(f"s_add_u32 s{S_HP}, s8, s9")
        a(f"s_lshr_b32 s8, s{S_XCD}, 2")
        a(f"s_lshr_b32 s10, s{S_IDX}, 2")
        a("s_lshl_b32 s11, s10, 1")
        a(f"s_add_u32 s{S_SL}, s8, s11")
        a(f"s_mul_i32 s9, s9, {OPT['xrot']}")
        a("s_add_u32 s85, s9, s10", "chunk cursor (rotation)")
    a(f"s_and_b32 s81, s{S_WAVE}, 3", "t")
    a("v_lshlrev_b32 v1, 4, v0", "lane*16")
    if OPT["cpf"]:
        lab = a.label("nocpf")
        a(f"s_cmp_lt_u32 s{S_WAVE}, 6")
        a(f"s_cbranch_scc1 {lab}")
        a("s_getpc_b64 s[88:89]")
        a("L_pc0:")
        a("s_mov_b32 s90, L_code_end-L_pc0")
        a("s_mov_b32 s91, 0x00020000")
        a(f"s_and_b32 s8, s{S_WAVE}, 1")
        a("s_lshl_b32 s8, s8, 5")
        a(f"s_add_u32 s8, s8, s{S_IDX}")
        a("s_lshl_b32 s8, s8, 10")
        a("buffer_load_dwordx4 v[248:251], v1, s[88:91], s8 offen")
        a(f"{lab}:")
    D = PV_DMA
    lb, lj = a.label("eb"), a.label("ej")
    a(f"s_cmp_ge_u32 s{S_WAVE}, 4")
    a(f"s_cbranch_scc1 {lb}")
    a("v_lshrrev_b32 v41, 3, v0")
    a("v_lshlrev_b32 v41, 10, v41")
    a("v_and_b32 v42, 7, v0")
    a("v_lshrrev_b32 v43, 4, v0")
    a("v_xor_b32 v42, v42, v43")
    a(f"v_lshl_add_u32 v{D}, v42, 4, v41")
    a("v_xor_b32 v42, 4, v42")
    a(f"v_lshl_add_u32 v{D+1}, v42, 4, v41")
    a(f"v_add_u32 v{D+2}, {2*7168}, v{D}")
    a(f"v_add_u32 v{D+3}, {3*7168}, v{D+1}")
    a(f"v_add_u32 v{D+1}, {7168}, v{D+1}")
    a(f"s_lshl_b32 s82, s{S_SL}, 17")
    a("s_lshl_b32 s8, s81, 15")
    a("s_add_u32 s82, s82, s8")
    a("s_lshl_b32 s83, s81, 12")
    a("s_mov_b32 s86, 128")
    a("s_mov_b32 s87, 16384")
    a("s_waitcnt lgkmcnt(0)")
    srd(a, R_P, 16, 2048 * 512 * 2)
    a(f"s_branch {lj}")
    a(f"{lb}:")
    a("v_lshrrev_b32 v41, 2, v0")
    a("v_mul_u32_u24 v41, 3072, v41")
    a("v_and_b32 v42, 3, v0")
    a(f"v_lshl_add_u32 v{D}, v42, 4, v41")
    a(f"v_mov_b32 v{D+1}, v{D}")
    a(f"v_mov_b32 v{D+2}, v{D}")
    a(f"v_mov_b32 v{D+3}, v{D}")
    a(f"s_mul_i32 s82, s81, {16*3072}")
    a(f"s_lshl_b32 s8, s{S_HP}, 6")
    a("s_add_u32 s82, s82, s8")
    a("s_mul_i32 s83, s81, 3072")
    a(f"s_add_u32 s83, s83, {P_WS}")
    a(f"s_mov_b32 s86, {64*3072}")
    a("s_mov_b32 s87, 12288")
    a("s_waitcnt lgkmcnt(0)")
    srd(a, R_P, 18, 512 * 1536 * 2)
    a(f"{lj}:")
    stamp(a, 0)
    p_issue(a, 0, None)
    p_issue(a, 1, None)
    srd(a, R_X, 16, 2048 * 512 * 2)
    srd(a, R_GW, 32, 512 * 2)
    a(f"s_lshl_b32 s8, s{S_SL}, 7")
    a(f"s_lshl_b32 s9, s{S_HP}, 3")
    a("s_add_u32 s80, s8, s9", "s80 = row0")
    srd(a, R_DBG, 36, 256)
    srd(a, R_WS, 38, WS_SIZE)
    lab = a.label("notag")
    a(f"s_or_b32 s8, s2, s{S_WAVE}")
    a("s_cmp_lg_u32 s8, 0")
    a(f"s_cbranch_scc1 {lab}")
    a("s_or_b32 s8, s12, 1")
    a("v_mov_b32 v44, s8")
    a("v_mov_b32 v45, s13")
    a("v_mov_b32 v46, 0")
    a("s_mov_b64 exec, 1")
    a(f"buffer_store_dwordx2 v[44:45], v46, {rs(R_DBG)}, 0 offen sc1")
    a("s_mov_b64 exec, -1")
    a(f"{lab}:")
    a("v_and_b32 v41, 31, v0", "i")
    a("v_lshrrev_b32 v42, 5, v0", "h'")
    a("v_bfe_u32 v43, v0, 1, 3")
    a("v_xor_b32 v44, v42, v43")
    a("v_lshlrev_b32 v45, 7, v41")
    a("s_lshl_b32 s8, s81, 12")
    a("v_add_u32 v45, s8, v45")
    a(f"v_lshl_add_u32 v{PV_XA}, v44, 4, v45")
    for ks in range(1, 4):
        a(f"v_xor_b32 v{PV_XA+ks}, {32*ks}, v{PV_XA}")
    a("v_lshlrev_b32 v44, 9, v42")
    a("v_bfe_u32 v45, v0, 2, 2")
    a("v_lshl_add_u32 v44, v45, 6, v44")
    a("v_bfe_u32 v45, v0, 4, 1")
    a("v_lshl_add_u32 v44, v45, 5, v44")
    a("v_and_b32 v45, 3, v0")
    a("v_lshl_add_u32 v44, v45, 3, v44")
    a(f"v_add_u32 v{PV_WA}, {P_WS}, v44")
    a("v_lshlrev_b32 v41, 2, v0")
    a(f"v_add_u32 v41, {M_CNT}, v41")
    a("v_mov_b32 v42, 0")
    a.lds("ds_write_b32 v41, v42", "cz")
    a(f"s_add_u32 s8, s80, s{S_WAVE}")
    a("s_lshl_b32 s8, s8, 10")
    a.vmem(f"buffer_load_dwordx4 v[176:179], v1, {rs(R_X)}, s8 offen", "ln")
    a.vmem(f"buffer_load_dwordx4 v[180:183], v1, {rs(R_GW)}, 0 offen", "ln")


def wave_reduce_add(a, regs):
    steps = ["row_shr:1 row_mask:0xf bank_mask:0xf bound_ctrl:0",
             "row_shr:2 row_mask:0xf bank_mask:0xf bound_ctrl:0",
             "row_shr:4 row_mask:0xf bank_mask:0xf bound_ctrl:0",
             "row_shr:8 row_mask:0xf bank_mask:0xf bound_ctrl:0",
             "row_bcast:15 row_mask:0xa bank_mask:0xf",
             "row_bcast:31 row_mask:0xc bank_mask:0xf"]
    for st in steps:
        a("s_nop 1" if len(regs) == 1 else "s_nop 0")
        for r in regs:
            a(f"v_add_f32_dpp v{r}, v{r}, v{r} {st}")
    a("s_nop 1")


def ln_compute(a):
    a.c("LN compute")
    a.vm_wait_if("ln")
    for i in range(4):
        a(f"v_lshlrev_b32 v{184+2*i}, 16, v{176+i}")
        a(f"v_and_b32 v{185+2*i}, 0xffff0000, v{176+i}")
        a(f"v_lshlrev_b32 v{192+2*i}, 16, v{180+i}")
        a(f"v_and_b32 v{193+2*i}, 0xffff0000, v{180+i}")
    a("v_add_f32 v200, v184, v185")
    a("v_mul_f32 v201, v184, v192")
    for i in range(1, 8):
        if i >= 2:
            a(f"v_add_f32 v200, v200, v{184+i}")
        a(f"v_fmac_f32 v201, v{184+i}, v{192+i}")
    a("s_nop 0")
    wave_reduce_add(a, [200, 201])
    a("v_readlane_b32 s8, v200, 63")
    a("v_readlane_b32 s9, v201, 63")
    a(f"v_mov_b32 v202, {f32bits(1.0/512)}")
    a(f"v_mov_b32 v214, {f32bits(-LOG2E)}")
    a("v_mul_f32 v202, s8, v202", "mean")
    a("v_mul_f32 v214, s9, v214")
    for i in range(8):
        a(f"v_sub_f32 v{184+i}, v{184+i}, v202")
    a("v_exp_f32 v214, v214")
    a("v_mul_f32 v200, v184, v184")
    for i in range(1, 8):
        a(f"v_fmac_f32 v200, v{184+i}, v{184+i}")
    wave_reduce_add(a, [200])
    a("v_readlane_b32 s8, v200, 63")
    a("v_add_f32 v214, 1.0, v214")
    a(f"v_mov_b32 v202, {f32bits(1.0/512)}")
    a(f"v_mov_b32 v203, {f32bits(1e-5)}")
    a("v_fma_f32 v202, s8, v202, v203", "var + eps")
    a("v_rsq_f32 v202, v202")
    a("v_rcp_f32 v214, v214", "g")
    for i in range(8):
        a(f"v_mul_f32 v{184+i}, v{184+i}, v202")
    for i in range(4):
        a(f"v_cvt_pk_bf16_f32 v{192+i}, v{184+2*i}, v{185+2*i}")
    a("v_mul_u32_u24 v204, 144, v0")
    a(f"s_lshl_b32 s8, s{S_WAVE}, 1")
    a(f"s_add_u32 s8, s8, {P_LN}")
    a("v_add_u32 v204, s8, v204")
    for i in range(4):
        a.lds(f"ds_write_b16 v204, v{192+i} offset:{32*i}", "lnw")
        a.lds(f"ds_write_b16_d16_hi v204, v{192+i} offset:{32*i+16}", "lnw")
    a("v_bfe_u32 v205, v0, 2, 1", "b2")
    a("v_bfe_u32 v206, v0, 3, 1", "b3")
    a("v_lshrrev_b32 v207, 4, v0")
    a("v_lshl_add_u32 v207, v207, 1, v205", "d>>3 (local) = (l>>4)*2 + b2")
    a("v_mul_u32_u24 v204, 144, v207")
    a("v_and_b32 v207, 3, v0")
    a("v_lshl_add_u32 v207, v206, 2, v207", "d&7 = b3*4 + (l&3)")
    a("v_lshl_add_u32 v204, v207, 4, v204")
    a(f"s_mul_i32 s8, s{S_WAVE}, {8*144}")
    a(f"s_add_u32 s8, s8, {P_LN}")
    a("v_add_u32 v204, s8, v204")
    a("v_lshrrev_b32 v205, 5, v0")
    a("v_lshlrev_b32 v205, 10, v205")
    a("v_and_b32 v210, 31, v0")
    a("v_lshl_add_u32 v205, v210, 4, v205")
    a(f"s_lshl_b32 s10, s{S_WAVE}, 18")
    a("s_lshr_b32 s9, s80, 4")
    a("s_lshl_b32 s9, s9, 11")
    a("s_add_u32 s10, s10, s9")
    a("s_and_b32 s9, s80, 8")
    a("s_lshl_b32 s9, s9, 6")
    a("s_add_u32 s10, s10, s9", "h store soffset")
    a(f"s_add_u32 s11, s80, s{S_WAVE}")
    a("s_lshl_b32 s11, s11, 2")
    a(f"s_add_u32 s11, s11, {WS_G}", "g store soffset")
    a("v_mov_b32 v210, 0")


def ln_store(a):
    a.c("LN store")
    a.lds("ds_read_b128 v[206:209], v204", "lnr")
    a.lg_wait("lnr")
    a.vmem(f"buffer_store_dwordx4 v[206:209], v205, {rs(R_WS)}, s10 offen sc1", "hst")
    a("s_mov_b64 exec, 1")
    a.vmem(f"buffer_store_dword v214, v210, {rs(R_WS)}, s11 offen sc1", "hst")
    a("s_mov_b64 exec, -1")
    a.vmem(f"buffer_load_dwordx2 v[216:217], v210, {rs(R_DBG)}, 0 offen sc1", "tag")


def tag_get(a):
    l1, l2 = a.label("tagl"), a.label("tagok")
    a(f"s_mov_b32 s17, {SPIN}")
    a(f"{l1}:")
    a(f"v_readfirstlane_b32 s{S_TAG}, v216")
    a(f"v_readfirstlane_b32 s{S_TAG+1}, v217")
    a(f"s_cmp_lg_u32 s{S_TAG}, 0")
    a(f"s_cbranch_scc1 {l2}")
    a(f"buffer_load_dwordx2 v[216:217], v210, {rs(R_DBG)}, 0 offen sc1")
    a("s_waitcnt vmcnt(0)")
    spin_guard(a, l1)
    a(f"{l2}:")
    a("s_getreg_b32 s8, hwreg(HW_REG_XCC_ID)")
    a("s_and_b32 s8, s8, 15")
    a("s_add_u32 s8, s8, 1")
    a("s_lshl_b32 s8, s8, 24") if OPT["local"] else a("s_mov_b32 s8, 0")
    a(f"s_mov_b32 s{S_LTAG}, s{S_TAG}")
    a(f"s_xor_b32 s{S_LTAG+1}, s{S_TAG+1}, s8", "tag valid only between workgroups of this XCD")


def flag_set(a, soff, vz, vt, local=False):
    tg = S_LTAG if local else S_TAG
    a(f"v_mov_b32 v{vt}, s{tg}")
    a(f"v_mov_b32 v{vt+1}, s{tg+1}")
    a(f"v_mov_b32 v{vz}, 0")
    a("s_mov_b64 exec, 1")
    a.vmem(f"buffer_store_dwordx2 v[{vt}:{vt+1}], v{vz}, {rs(R_WS)}, {soff} offen {'' if (local and OPT['local']) else 'sc1'}", "flag")
    a("s_mov_b64 exec, -1")


def flag_check(a, vt, mask_lo, mask_hi, tg=None):
    tg = S_TAG if tg is None else tg
    a(f"v_cmp_ne_u64 vcc, s[{tg}:{tg+1}], v[{vt}:{vt+1}]")
    a(f"s_and_b32 s10, vcc_lo, {mask_lo}")
    a(f"s_and_b32 s11, vcc_hi, {mask_hi}")
    a("s_or_b32 s10, s10, s11")
    a("s_cmp_eq_u32 s10, 0")


def flag_wait(a, soff, vaddr, vt, mask_lo, mask_hi, sleep=2):
    l1, l2 = a.label("poll"), a.label("pollok")
    a(f"s_mov_b32 s17, {SPIN}")
    a(f"{l1}:")
    a(f"buffer_load_dwordx2 v[{vt}:{vt+1}], v{vaddr}, {rs(R_WS)}, {soff} offen sc1")
    a("s_waitcnt vmcnt(0)")
    a.vm = []
    flag_check(a, vt, mask_lo, mask_hi)
    a(f"s_cbranch_scc1 {l2}")
    a(f"s_sleep {sleep}")
    spin_guard(a, l1)
    a(f"{l2}:")


def lds_arrive(a, cnt_off, vt, vone):
    a.lg_drain()
    a(f"v_mov_b32 v{vt}, {cnt_off}")
    a("s_mov_b64 exec, 1")
    a(f"ds_add_u32 v{vt}, v{vone}")
    a("s_mov_b64 exec, -1")


def lds_wait(a, cnt_off, target, vt, sleep=True, hint=0):
    lab, lab2 = a.label("sy"), a.label("syd")
    a(f"v_mov_b32 v{vt}, {cnt_off}")
    a(f"s_mov_b32 s17, {hint if hint else SPIN*8}")
    a(f"{lab}:")
    a(f"ds_read_b32 v{vt+1}, v{vt}")
    a("s_waitcnt lgkmcnt(0)")
    a.lg = []
    a(f"v_readfirstlane_b32 s8, v{vt+1}")
    a(f"s_cmp_ge_u32 s8, {target}")
    a(f"s_cbranch_scc1 {lab2}")
    if sleep:
        a("s_sleep 1")
    if hint:
        a("s_sub_u32 s17, s17, 1")
        a("s_cmp_lg_u32 s17, 0")
        a(f"s_cbranch_scc1 {lab}")
    else:
        spin_guard(a, lab)
    a(f"{lab2}:")


AV_Q, AV_O, AV_C, AV_S, AV_P, AV_K, AV_V = 16, 32, 96, 160, 192, 200, 208
AV_KA, AV_KR, AV_V0, AV_V1, AV_QA, AV_FA = 2, 3, 4, 5, 6, 7
GV_ACC, GV_D, GV_WO, GV_T, GV_Y, GV_MISC = 16, 80, 144, 208, 224, 240
GV_DMA, GV_TA1, GV_TA2, GV_TA3, GV_DB, GV_DA = 2, 5, 7, 9, 11, 13


def att_setup(a):
    a.c("attention setup")
    a(f"s_and_b32 s18, s{S_WAVE}, 1", "kh")
    a(f"s_lshr_b32 s19, s{S_WAVE}, 1", "e")
    a(f"s_lshl_b32 s20, s{S_HP}, 1")
    a("s_add_u32 s20, s20, s19", "head")
    a("s_lshl_b32 s8, s20, 17")
    a(f"s_add_u32 s8, s8, {WS_KV}")
    a(f"s_add_u32 s{R_KV}, s38, s8")
    a(f"s_addc_u32 s{R_KV+1}, s39, 0")
    a(f"s_mov_b32 s{R_KV+2}, 0x20000")
    a(f"s_mov_b32 s{R_KV+3}, 0x00020000")
    a(f"s_add_u32 s30, s{R_KV}, {WS_KVB}")
    a(f"s_addc_u32 s31, s{R_KV+1}, 0")
    a(f"s_mul_i32 s21, s{S_WAVE}, {KSLOT}")
    a(f"s_add_u32 s21, s21, {KVR}", "ring base")
    a(f"v_lshlrev_b32 v{AV_KA}, 4, v0")
    a(f"v_add_u32 v{AV_KR}, s21, v{AV_KA}")
    a("v_lshrrev_b32 v8, 5, v0")
    a("v_lshlrev_b32 v8, 8, v8")
    a("v_and_b32 v9, 15, v0")
    a("v_lshl_add_u32 v8, v9, 4, v8")
    a("v_add_u32 v8, 1024, v8")
    a("v_add_u32 v9, 512, v8")
    a("v_and_b32 v10, 27, v0")
    a("v_cmp_eq_u32 vcc, 16, v10")
    a("v_mov_b32 v11, 2064")
    a("v_mov_b32 v12, 2048")
    a("v_cndmask_b32 v11, v11, v12, vcc")
    a("v_and_b32 v10, 16, v0")
    a("v_cmp_eq_u32 vcc, 0, v10")
    a("s_lshl_b32 s8, s19, 12")
    a(f"s_add_u32 s8, s8, {L_Q}")
    a("v_cndmask_b32 v8, v11, v8, vcc")
    a("v_cndmask_b32 v9, v11, v9, vcc")
    a(f"v_add_u32 v{AV_V0}, s21, v8")
    a(f"v_add_u32 v{AV_V1}, s21, v9")
    a(f"v_add_u32 v{AV_QA}, s8, v{AV_KA}")
    a(f"s_lshl_b32 s8, s{S_SL}, 2")
    a("s_add_u32 s8, s8, 4")
    a(f"v_add_u32 v{AV_FA}, s8, v0")
    a(f"v_and_b32 v{AV_FA}, 63, v{AV_FA}")
    a(f"v_lshrrev_b32 v8, 2, v{AV_FA}")
    a(f"v_and_b32 v{AV_FA}, 3, v{AV_FA}")
    a(f"v_lshlrev_b32 v{AV_FA}, 3, v{AV_FA}")
    a(f"v_lshl_add_u32 v{AV_FA}, v8, 7, v{AV_FA}", "lane l polls tile (l + 4sl + 4) & 63")
    a("s_lshl_b32 s27, 0x555, s18", "flags of the first 6 remote tiles")
    a("s_lshl_b32 s8, s19, 10")
    a(f"s_add_u32 s8, s8, {L_K0}")
    a(f"v_add_u32 v1, s8, v{AV_KA}")
    a("v_lshrrev_b32 v8, 3, v0")
    a("v_min_u32 v8, 5, v8")
    a(f"v_mul_u32_u24 v8, {4*KSLOT}, v8")
    a("v_and_b32 v9, 7, v0")
    a("v_lshl_add_u32 v8, v9, 2, v8")
    a("v_cmp_gt_u32 vcc, 4, v9")
    a("v_add_u32 v230, s21, v8")
    a("v_mov_b32 v10, 0x3f803f80")
    a("v_cndmask_b32 v231, 0, v10, vcc")
    a(f"s_lshl_b32 s8, s{S_SL}, 1")
    a("s_add_u32 s8, s8, s18")
    a("s_lshl_b32 s9, s8, 8")
    a(f"s_add_u32 s32, s9, {WS_G}")
    a("s_lshl_b32 s9, s8, 6")
    a(f"s_add_u32 s33, s9, {WS_FH}")
    a("v_and_b32 v232, 31, v0")
    a("v_lshlrev_b32 v232, 2, v232")
    a("v_and_b32 v233, 7, v0")
    a("v_lshlrev_b32 v233, 3, v233")
    a(f"s_lshl_b32 s22, s{S_HP}, 11")
    a(f"s_add_u32 s22, s22, {WS_FKV}", "flag base")
    a(f"s_add_u32 s28, s22, {WS_FKVS}")
    a("s_lshl_b32 s23, 0x55555555, s18", "flag mask")
    a("s_mov_b32 s24, 0", "0: fast pass, 1: exact-max pass")
    a("s_mov_b32 s25, 2", "pair sync target")


def gemm_setup(a):
    a.c("GEMM setup")
    srd(a, R_WO, 20, 512 * 512 * 2)
    srd(a, R_B1, 26, 1792 * 2)
    srd(a, R_W2, 28, 1792 * 2048 * 2)
    srd(a, R_B2, 30, 2048 * 2)
    srd(a, R_OUT, 34, 2048 * 512 * 2)
    a("v_lshrrev_b32 v64, 3, v0")
    a("v_and_b32 v65, 7, v0")
    a("v_bfe_u32 v66, v0, 4, 1")
    a("v_lshlrev_b32 v66, 2, v66")
    a("v_xor_b32 v65, v65, v66")
    a("v_lshlrev_b32 v65, 4, v65")
    a(f"v_mul_u32_u24 v{GV_DMA}, 3584, v64")
    a(f"v_add_u32 v{GV_DMA}, v{GV_DMA}, v65")
    a(f"v_lshl_add_u32 v{GV_DMA+1}, v64, 12, v65")
    a(f"v_lshl_add_u32 v{GV_DMA+2}, v64, 10, v65")
    a(f"s_mul_i32 s18, s81, {TR*2048}")
    a(f"s_add_u32 s18, s18, {M_RED}", "T slot base (own reduction area; ring at +49152)")
    a("v_bfe_u32 v64, v0, 2, 2")
    a("v_lshlrev_b32 v65, 7, v64")
    a("v_bfe_u32 v64, v0, 3, 1")
    a("v_lshl_add_u32 v65, v64, 6, v65")
    a("v_bfe_u32 v64, v0, 4, 1")
    a("v_lshl_add_u32 v65, v64, 5, v65")
    a("v_add_u32 v65, s18, v65", "rows r, half swap, colhalf")
    a("v_and_b32 v64, 3, v0")
    a("v_lshl_add_u32 v66, v64, 3, v65", "+8c")
    a("v_and_b32 v64, 1, v0")
    a("v_lshl_add_u32 v67, v64, 4, v65")
    a("v_bfe_u32 v64, v0, 1, 1")
    a("v_lshl_add_u32 v67, v64, 3, v67", "+16(c&1)+8(c>>1): column permutation swap23")
    a("v_lshrrev_b32 v64, 5, v0")
    a("s_lshr_b32 s8, s81, 1", "a_w")
    a("s_and_b32 s9, s81, 1", "b_w")
    a("s_lshl_b32 s19, s8, 6")
    a("s_lshl_b32 s20, s9, 6")
    a(f"v_lshl_add_u32 v{GV_TA1}, v64, 10, v66")
    a(f"v_xor_b32 v{GV_TA1}, s19, v{GV_TA1}")
    a(f"v_xor_b32 v{GV_TA1+1}, 64, v{GV_TA1}")
    a(f"v_lshl_add_u32 v{GV_TA2}, v64, 9, v66")
    a(f"v_xor_b32 v{GV_TA2}, s20, v{GV_TA2}")
    a(f"v_xor_b32 v{GV_TA2+1}, 64, v{GV_TA2}")
    a(f"v_lshl_add_u32 v{GV_TA3}, v64, 9, v67")
    a(f"v_xor_b32 v{GV_TA3}, s19, v{GV_TA3}")
    a(f"v_xor_b32 v{GV_TA3+1}, 64, v{GV_TA3}")
    a("s_lshl_b32 s19, s8, 10")
    a("s_lshl_b32 s20, s9, 10")
    a("v_lshlrev_b32 v64, 4, v0")
    a(f"v_add_u32 v{GV_DB}, s20, v64")
    a(f"v_xor_b32 v{GV_DB+1}, 1024, v{GV_DB}")
    a(f"v_add_u32 v{GV_DA}, s19, v64")
    a(f"v_xor_b32 v{GV_DA+1}, 1024, v{GV_DA}")
    for v in range(1, 4):
        a(f"s_xor_b32 s8, s81, {v}")
        a("s_mul_i32 s8, s8, 12288")
        a(f"s_add_u32 s8, s8, {M_RED + (v-1)*4096}")
        a(f"v_add_u32 v{GV_MISC+v}, s8, v64")
    a("s_mul_i32 s8, s81, 12288")
    a(f"s_add_u32 s8, s8, {M_RED}")
    a(f"v_add_u32 v{GV_MISC}, s8, v64")
    a(f"s_lshr_b32 s8, s{S_XCD}, 1")
    a("s_mul_i32 s8, s8, 7", "7p")
    a(f"s_and_b32 s9, s{S_XCD}, 1")
    a("s_lshl_b32 s9, s9, 2", "4*odd")
    a(f"s_lshr_b32 s23, s{S_IDX}, 3", "j")
    a("s_add_u32 s20, s8, s9")
    a("s_add_u32 s20, s20, s23", "ft (j<3)")
    a("s_add_u32 s8, s8, 3")
    a(f"s_and_b32 s19, s{S_IDX}, 7")
    a(f"s_and_b32 s21, s{S_IDX}, 3")
    a("s_add_u32 s9, s9, s21")
    a("s_cmp_eq_u32 s23, 3")
    a("s_cselect_b32 s20, s8, s20", "ft")
    a("s_cselect_b32 s19, s9, s19", "dt (G1)")
    a(f"s_and_b32 s23, s23, {OPT['r1m']}")
    a(f"s_lshl_b32 s23, s23, {OPT['r1s']}", "rot G1 (h sharers)")
    a(f"s_lshr_b32 s22, s{S_IDX}, 2", "dt (G2)")
    a(f"s_and_b32 s9, s21, {OPT['r2m']}")
    a(f"s_mul_i32 s9, s9, {OPT['r2s']}")
    a(f"s_lshl_b32 s8, s{S_XCD}, 2")
    a("s_add_u32 s21, s8, s21", "st")
    a("s_mul_i32 s8, s22, 7")
    a("s_lshr_b32 s8, s8, 1")
    a("s_add_u32 s24, s9, s8")
    a("s_sub_u32 s9, s24, 28")
    a("s_cmp_ge_u32 s24, 28")
    a("s_cselect_b32 s24, s9, s24", "rot G2")


def bias_loads(a):
    a("v_lshrrev_b32 v64, 5, v0")
    a("v_lshlrev_b32 v64, 3, v64")
    a("s_lshl_b32 s8, s20, 7")
    a("s_lshr_b32 s9, s81, 1")
    a("s_lshl_b32 s9, s9, 6")
    a("s_add_u32 s8, s8, s9")
    for g in range(4):
        a.vmem(f"buffer_load_dwordx2 {vr(GV_Y+2*g,2)}, v64, {rs(R_B1)}, s8 offen offset:{16*g}", "b1")
    a("v_and_b32 v65, 31, v0")
    a("v_lshlrev_b32 v65, 1, v65")
    a("s_lshl_b32 s8, s21, 6")
    a("s_and_b32 s9, s81, 1")
    a("s_lshl_b32 s9, s9, 5")
    a("s_add_u32 s91, s8, s9", "first row of own output sub-tile")
    a("s_lshl_b32 s8, s91, 1")
    a.vmem(f"buffer_load_ushort v15, v65, {rs(R_B2)}, s8 offen", "b2")
    a(f"v_lshlrev_b32 v{GV_MISC+4}, 3, v0")
    a("s_lshl_b32 s96, s81, 9")
    a(f"s_add_u32 s96, s96, {WS_FH}")


def warm_setup(a):
    srd(a, R_W1, 24, 2048 * 1792 * 2)
    a("v_lshrrev_b32 v174, 5, v0")
    a("v_mul_u32_u24 v174, 3584, v174")
    a("v_and_b32 v175, 31, v0")
    a("v_lshl_add_u32 v174, v175, 4, v174")
    a(f"s_lshr_b32 s8, s{S_XCD}, 1")
    a("s_mul_i32 s8, s8, 7")
    a(f"s_and_b32 s9, s{S_XCD}, 1")
    a("s_mul_i32 s9, s9, 3")
    a("s_add_u32 s8, s8, s9")
    a("s_lshl_b32 s90, s8, 7")
    a(f"s_lshl_b32 s8, s{S_IDX}, 3")
    a(f"s_add_u32 s8, s8, s{S_WAVE}")
    a("s_lshr_b32 s9, s8, 6")
    a("s_lshl_b32 s9, s9, 9")
    a("s_and_b32 s8, s8, 63")
    a("s_lshl_b32 s8, s8, 1")
    a("s_add_u32 s8, s8, s9")
    a("s_mul_i32 s8, s8, 3584")
    a("s_add_u32 s8, s8, s90")
    a("s_mov_b32 s87, s8")


def epi_addr(a, par):
    a(f"s_lshl_b32 s84, s{S_SL}, 2")
    a("s_add_u32 s84, s84, s81", "tile")
    a("v_lshlrev_b32 v170, 4, v0")
    if par == 0:
        a("s_lshl_b32 s8, s81, 10")
        a(f"s_add_u32 s8, s8, {L_Q}")
        a("v_add_u32 v171, s8, v170")
    else:
        a(f"s_lshl_b32 s88, s{S_HP}, 18")
        a("s_lshl_b32 s9, s84, 11")
        a("s_add_u32 s88, s88, s9")
        a(f"s_add_u32 s88, s88, {WS_KV}")
        a("s_add_u32 s89, s88, 0x20000")
        a("v_lshrrev_b32 v171, 5, v0")
        a("v_lshlrev_b32 v171, 8, v171")
        a("v_and_b32 v172, 15, v0")
        a("v_lshl_add_u32 v171, v172, 4, v171", "h'*256 + i*16")
        a("v_bfe_u32 v173, v0, 4, 1", "e")
        a("v_lshl_add_u32 v172, v173, 17, v171", "global V voffset")
        a("s_and_b32 s8, s81, 1")
        a(f"s_mul_i32 s8, s8, {KSLOT}")
        a("s_lshr_b32 s9, s81, 1")
        a(f"s_mul_i32 s9, s9, {4*KSLOT}")
        a("s_add_u32 s8, s8, s9")
        a(f"s_add_u32 s8, s8, {KVR + KSO(0)}")
        a(f"v_mul_u32_u24 v173, {2*KSLOT}, v173")
        a("v_add3_u32 v173, v173, v171, s8", "LDS V addr")
        a("v_add_u32 v171, s8, v170", "LDS K addr")


def proj(a, par):
    a.c(f"projection role {par}")
    ACC = 96 if par == 0 else 80
    XF, WF, XA, WA = PV_XF, PV_WF, PV_XA, PV_WA
    vm = []
    for t in a.vm:
        if t.endswith("A"):
            if par == 0:
                vm.append(t[:-1])
        else:
            vm.append(t)
    a.vm = vm

    def pretouch():
        nt = "nt" if OPT["ptnt"] else ""
        if not OPT["local"] or OPT["pt"] == 0:
            pass
        elif par == 1:
            a.vmem(f"buffer_load_dwordx4 v[248:251], v170, {rs(R_WS)}, s88 offen {nt}", "pt")
            a.vmem(f"buffer_load_dwordx4 v[248:251], v170, {rs(R_WS)}, s89 offen {nt}", "pt")
        else:
            a(f"s_lshl_b32 s8, s{S_HP}, 18")
            a("s_lshl_b32 s9, s84, 11")
            a("s_add_u32 s8, s8, s9")
            a(f"s_add_u32 s8, s8, {WS_KV}")
            a("s_add_u32 s9, s8, 0x20000")
            a.vmem(f"buffer_load_dwordx4 v[248:251], v170, {rs(R_WS)}, s8 offen offset:1024 {nt}", "pt")
            a.vmem(f"buffer_load_dwordx4 v[248:251], v170, {rs(R_WS)}, s9 offen offset:1024 {nt}", "pt")
            a.vmem(f"buffer_load_dwordx2 v[248:249], v{AV_FA}, {rs(R_WS)}, s22 offen {nt}", "pt")

    def miniwarm():
        if OPT["w1mode"] == 0:
            for q in range(OPT["mwn"]):
                a(f"s_add_u32 s8, s87, {q*128*3584}")
                a.vmem(f"buffer_load_dwordx4 v[248:251], v174, {rs(R_W1)}, s8 offen", "warm")
    segs = [0] if par == 0 else [1, 2]
    SETS = [(XF, WF), (16, 32)]

    def reads(c):
        slot = c % NPS
        xf, wf = SETS[c % 2]
        L = []
        for ks in range(4):
            L.append(f"ds_read_b128 {vr(xf+4*ks,4)}, v{XA+ks} offset:{P_XS + slot*16384}")
            for si, seg in enumerate(segs):
                off = slot * 12288 + ks * 3072 + seg * 1024
                w = wf + 8 * ks + 4 * si
                L.append(f"ds_read_b64_tr_b16 {vr(w,2)}, v{WA} offset:{off}")
                L.append(f"ds_read_b64_tr_b16 {vr(w+2,2)}, v{WA} offset:{off+256}")
        return L

    def mms(c):
        xf, wf = SETS[c % 2]
        L = []
        for ks in range(4):
            z = (c == 0 and ks == 0)
            L.append(mfma(ACC, wf + 8 * ks, xf + 4 * ks, "0" if z else ACC))
            if par == 1:
                L.append(mfma(ACC + 16, xf + 4 * ks, wf + 8 * ks + 4, "0" if z else ACC + 16))
        return L

    LA = OPT["la"]
    for c in range(2, LA - 1):
        p_issue(a, c, par)
    stamp(a, 2)
    a.vm_wait("ch0")
    a("s_barrier")
    stamp(a, 32)
    for x in reads(0):
        a.lds(x, "r")
    p_issue(a, LA - 1, par)
    LNS = OPT["lnc"] + 1
    for c in range(8):
        a.c(f"chunk {c}")
        a.lg_drain()
        R, Mm = [], mms(c)
        a(Mm.pop(0))
        if c + 1 < 8:
            a.vm_wait(f"ch{c+1}")
            a("s_barrier")
            stamp(a, 33 + c)
            R = reads(c + 1)
        per = 4
        while Mm or R:
            for x in R[:per]:
                a.lds(x, "r")
            R = R[per:]
            if Mm:
                a(Mm.pop(0))
        if c == LNS:
            ln_store(a)
        if c + LA < 8:
            p_issue(a, c + LA, par)
        if c == LNS + LA - 1:
            tag_get(a)
            if par == 1:
                lab = a.label("nofh")
                a("s_cmp_lg_u32 s81, 0")
                a(f"s_cbranch_scc1 {lab}")
                a(f"s_add_u32 s8, s80, {WS_FH}")
                n0 = len(a.vm)
                flag_set(a, "s8", 218, 220)
                a.vm = a.vm[:n0]
                a(f"{lab}:")
        if c == OPT["lnc"]:
            ln_compute(a)
        if c == OPT["suc"] - 1:
            warm_setup(a)
            epi_addr(a, par)
        if c == OPT["suc"]:
            att_setup(a) if par == 0 else gemm_setup(a)
        if c == OPT["ptc"]:
            pretouch()
        if c == OPT["mwc"]:
            miniwarm()
        if c == OPT["suc"] + 1 and par == 1:
            bias_loads(a)
    stamp(a, 3)
    a.c("projection epilogue")
    if par == 0:
        a(f"s_mov_b32 s8, {f32bits(0.25*LOG2E)}")
        a(f"s_mov_b32 s9, {f32bits(0.25*LOG2E)}")
        a("s_nop 9")
        for r in range(0, 16, 2):
            a(f"v_pk_mul_f32 {vr(ACC+r,2)}, {vr(ACC+r,2)}, s[8:9]")
        for r in range(8):
            a(f"v_cvt_pk_bf16_f32 v{XF+r}, v{ACC+2*r}, v{ACC+2*r+1}")
        a.lds(f"ds_write_b128 v171, {vr(XF,4)}", "qw")
        a.lds(f"ds_write_b128 v171, {vr(XF+4,4)} offset:4096", "qw")
    else:
        a("s_nop 10")
        for r in range(16):
            a(f"v_cvt_pk_bf16_f32 v{XF+r}, v{ACC+2*r}, v{ACC+2*r+1}")
        a.lds(f"ds_write_b128 v171, {vr(XF,4)}", "kw")
        a.lds(f"ds_write_b128 v171, {vr(XF+4,4)} offset:{2*KSLOT}", "kw")
        lab = a.label("nok0")
        a("s_cmp_lg_u32 s81, 0")
        a(f"s_cbranch_scc1 {lab}")
        a(f"ds_write_b128 v171, {vr(XF,4)} offset:{L_K0-KVR-KSO(0)}")
        a(f"ds_write_b128 v171, {vr(XF+4,4)} offset:{L_K0-KVR-KSO(0)+1024}")
        a(f"{lab}:")
        a.lds(f"ds_write_b128 v173, {vr(XF+8,4)} offset:1024", "kw")
        a.lds(f"ds_write_b128 v173, {vr(XF+12,4)} offset:1536", "kw")
    a.lg_drain()
    a("s_barrier")
    if par == 1:
        a.vmem(f"buffer_store_dwordx4 {vr(XF,4)}, v170, {rs(R_WS)}, s88 offen {KVSC()}", "kvst")
        a.vmem(f"buffer_store_dwordx4 {vr(XF+4,4)}, v170, {rs(R_WS)}, s89 offen {KVSC()}", "kvst")
        a.vmem(f"buffer_store_dwordx4 {vr(XF+8,4)}, v172, {rs(R_WS)}, s88 offen offset:1024 {KVSC()}", "kvst")
        a.vmem(f"buffer_store_dwordx4 {vr(XF+12,4)}, v172, {rs(R_WS)}, s88 offen offset:1536 {KVSC()}", "kvst")


def attn_body(a, u_list, extra):
    kb = lambda n: n % 2
    for (n, i, pn, pi, nn, ni, par) in u_list:
        cur, nxt = AV_S + 16 * par, AV_S + 16 * (1 - par)
        E = lambda r: a(f"v_exp_f32 v{cur+r}, v{cur+r}")
        C = lambda r: a(f"v_cvt_pk_bf16_f32 v{AV_P+r}, v{cur+2*r}, v{cur+2*r+1}")
        E(0)
        E(1)
        if pn is not None:
            a(mfma(AV_O + 16 * pi, AV_V + 8 * kb(pn) + 4, AV_P + 4, AV_O + 16 * pi))
        extra(n, i, 0)
        for r in range(2, 8):
            E(r)
        if nn is not None:
            a(mfma(nxt, AV_K + 4 * kb(nn), AV_Q + 4 * ni, AV_C + 16 * ni))
            extra(n, i, 1)
        else:
            a("s_nop 0")
        for r in range(4):
            C(r)
        for r in range(8, 12):
            E(r)
        a(mfma(AV_O + 16 * i, AV_V + 8 * kb(n), AV_P, "0" if n == 0 else AV_O + 16 * i))
        extra(n, i, 2)
        for r in range(12, 16):
            E(r)
        for r in range(4, 8):
            C(r)


def attention(a):
    a.c("attention role")
    KS = "s12"

    def rd(n):
        so, b = KSO(n), n % 2
        return [f"ds_read_b128 {vr(AV_K+4*b,4)}, v{AV_KR} offset:{so}",
                f"ds_read_b128 {vr(AV_V+8*b,4)}, v{AV_V0} offset:{so}",
                f"ds_read_b128 {vr(AV_V+8*b+4,4)}, v{AV_V1} offset:{so}"]

    def dma(n):
        return [f"s_add_u32 m0, s21, {KSO(n)}",
                f"buffer_load_dwordx4 v{AV_KA}, {rs(R_KV)}, {KS} offen sc1 lds",
                f"buffer_load_dwordx4 v{AV_KA}, {rs(R_KV)}, {KS} offen offset:1024 sc1 lds",
                f"s_add_u32 {KS}, {KS}, 4096",
                f"s_and_b32 {KS}, {KS}, 0x1ffff"]

    def kv_wait(mlo, mhi):
        l1, l2, l3 = a.label("kvp"), a.label("kvok"), a.label("kvs")
        a(f"s_mov_b32 s17, {SPIN}")
        a(f"{l1}:")
        a(f"buffer_load_dwordx2 v[8:9], v{AV_FA}, {rs(R_WS)}, s22 offen sc1")
        a(f"buffer_load_dwordx2 v[10:11], v{AV_FA}, {rs(R_WS)}, s28 offen sc1")
        a("s_waitcnt vmcnt(0)")
        flag_check(a, 8, mlo, mhi, S_LTAG)
        a(f"s_cbranch_scc1 {l2}")
        flag_check(a, 10, mlo, mhi)
        a(f"s_cbranch_scc1 {l3}")
        a("s_sleep 1")
        spin_guard(a, l1)
        a(f"{l3}:")
        a(f"s_mov_b32 s{R_KV}, s30")
        a(f"s_mov_b32 s{R_KV+1}, s31")
        a("s_mov_b32 s22, s28", "from now on only the written-through flags count")
        a(f"s_mov_b32 s{S_LTAG+1}, s{S_TAG+1}")
        a(f"{l2}:")

    a(f"s_setprio {OPT['prio_att']}")
    a("ds_write_b32 v230, v231 offset:2048")
    for i in range(4):
        a(f"ds_read_b128 {vr(AV_Q+4*i,4)}, v{AV_QA} offset:{i*1024}")
    a(f"ds_read_b128 {vr(AV_S,4)}, v1", "K tile 0 of my head")
    stamp(a, 4)
    a.c("max estimate from own key tile 0")
    a("s_waitcnt lgkmcnt(0)")
    for i in range(4):
        a(mfma(AV_C + 16 * i, AV_S, AV_Q + 4 * i, "0"))
    for x in rd(0):
        a(x)
    a("s_nop 5")
    for i in range(4):
        a(f"v_max3_f32 v{12+i}, v{AV_C+16*i}, v{AV_C+16*i+1}, v{AV_C+16*i+2}")
        for r in range(6):
            a(f"v_max3_f32 v{12+i}, v{AV_C+16*i+3+2*r}, v{AV_C+16*i+4+2*r}, v{12+i}")
        a(f"v_max_f32 v{12+i}, v{AV_C+16*i+15}, v{12+i}")
    lredo = a.label("redo")
    a(f"{lredo}:")
    for i in range(4):
        a(f"v_mov_b32 v{8+i}, v{12+i}")
    a("s_nop 1")
    for i in range(4):
        a(f"v_permlane32_swap_b32 v{12+i}, v{8+i}")
    a("s_nop 1")
    for i in range(4):
        a(f"v_max_f32 v{12+i}, v{12+i}, v{8+i}")
    for i in range(4):
        a(f"v_sub_f32 v{AV_C+16*i}, 0, v{12+i}")
        a(f"v_sub_f32 v{AV_C+16*i+1}, 0, v{12+i}")
    for r in range(2, 16, 2):
        a(f"v_mov_b64 {vr(AV_C+r,2)}, {vr(AV_C,2)}")
    a("s_nop 0")
    a("s_waitcnt lgkmcnt(0)")
    a(mfma(AV_S, AV_K, AV_Q, AV_C))
    for i in range(1, 4):
        for r in range(2, 16, 2):
            a(f"v_mov_b64 {vr(AV_C+16*i+r,2)}, {vr(AV_C+16*i,2)}")
    stamp(a, 5)
    a.c("phase A: own tiles")
    ul = []
    for u in range(8):
        n, i = u // 4, u % 4
        pn, pi = (None, None) if u == 0 else ((u - 1) // 4, (u - 1) % 4)
        nn, ni = ((u + 1) // 4, (u + 1) % 4) if u < 7 else (None, None)
        ul.append((n, i, pn, pi, nn, ni, u % 2))

    fl = []
    for n_ in range(2, 2 + KR):
        d = dma(n_)
        fl.append([d[0], d[1]] if n_ == 2 else [d[3], d[4], d[0], d[1]])
        fl.append([d[2]])
    lw1, lw1b = a.label("kvw"), a.label("kvwb")

    def extraA(n, i, slot):
        if n == 0 and (i, slot) in ((0, 1), (0, 2), (1, 0)):
            a(rd(1)[[(0, 1), (0, 2), (1, 0)].index((i, slot))])
        if n == 0 and (i, slot) == (1, 1):
            a(f"buffer_load_dwordx2 v[8:9], v{AV_FA}, {rs(R_WS)}, s22 offen sc1")
        if n == 0 and (i, slot) == (1, 2):
            a(f"buffer_load_dwordx2 v[228:229], v233, {rs(R_WS)}, s33 offen sc1")
        if n == 0 and (i, slot) == (3, 0):
            a("s_waitcnt lgkmcnt(0)")
        if n == 0 and (i, slot) == (3, 1):
            a("s_waitcnt vmcnt(0)")
            flag_check(a, 8, "s23", "s23", S_LTAG)
            a("s_cselect_b32 s13, 0, 5", "s13 == s16 -> remaining flags still to be checked")
            a("s_and_b32 s10, vcc_lo, s27")
            a(f"s_cbranch_scc1 {lw1}")
            a(f"{lw1b}:")
        k = None
        if n == 0 and (i, slot) == (3, 2):
            k = 0
        elif n == 1:
            k = 1 + 3 * i + slot - (1 if (i, slot) == (3, 2) else 0)
        if k is not None:
            grp = fl[k]
            if len(grp) > 1:
                for x in grp[:-1]:
                    a(x)
                a("s_nop 0")
            a(grp[-1])
    a(f"s_lshl_b32 {KS}, s{S_SL}, 2")
    a(f"s_add_u32 {KS}, {KS}, s18")
    a(f"s_add_u32 {KS}, {KS}, 4")
    a(f"s_lshl_b32 {KS}, {KS}, 11")
    a(f"s_and_b32 {KS}, {KS}, 0x1ffff")
    a(f"v_mov_b32 v224, {M_CNT+36}")
    a("v_mov_b32 v225, 1")
    attn_body(a, ul, extraA)
    stamp(a, 6)
    a(dma(2)[3])
    a(dma(2)[4])
    lg1 = a.label("gok")
    flag_check(a, 228, "-1", "-1")
    a(f"s_cbranch_scc1 {lg1}")
    flag_wait(a, "s33", 233, 228, "-1", "-1")
    a(f"{lg1}:")
    a(f"buffer_load_dwordx2 v[8:9], v{AV_FA}, {rs(R_WS)}, s22 offen sc1")
    a(f"buffer_load_dword v226, v232, {rs(R_WS)}, s32 offen sc1")
    a(f"buffer_load_dword v227, v232, {rs(R_WS)}, s32 offen offset:128 sc1")
    a("s_mov_b64 exec, 1")
    a("ds_add_u32 v224, v225", "release the GEMM waves")
    a("s_mov_b64 exec, -1")
    a(f"s_waitcnt vmcnt({2*(KR-1)+3})")
    for x in rd(2):
        a(x)
    a("s_mov_b32 s16, 5")
    stamp(a, 7)
    a("s_waitcnt lgkmcnt(0)")
    a(mfma(AV_S, AV_K, AV_Q, AV_C))
    a("s_nop 10")
    lloop = a.label("attn")
    a(".p2align 6")
    a(f"{lloop}:")
    ul = []
    for u in range(24):
        n, i = 2 + u // 4, u % 4
        pn, pi = 2 + (u - 1) // 4, (u - 1) % 4
        nn, ni = 2 + (u + 1) // 4, (u + 1) % 4
        ul.append((n, i, pn, pi, nn, ni, u % 2))

    lchk, lback = a.label("chk"), a.label("chkb")

    def extraL(n, i, slot):
        d, r = dma(n + KR), rd(n + 1)
        sched = {(0, 0): f"s_waitcnt vmcnt({2*(KR-2)})", (0, 1): r[0], (0, 2): r[1], (1, 0): r[2],
                 (1, 1): d[0], (1, 2): d[1], (2, 0): d[2], (2, 1): d[3], (2, 2): d[4],
                 (3, 0): "s_waitcnt lgkmcnt(0)"}
        if n == 2 and (i, slot) == (1, 0):
            a("s_cmp_eq_u32 s16, s13")
        if n == 2 and (i, slot) == (1, 1):
            a(f"s_cbranch_scc1 {lchk}")
            a(f"{lback}:")
        if (i, slot) in sched:
            a(sched[(i, slot)])
        if OPT["stamps"] and n == 2 and (i, slot) == (2, 2):
            a("s_memrealtime s[98:99]")
            a("s_memtime s[100:101]")
        if OPT["stamps"] and n == 2 and (i, slot) == (3, 1):
            a("s_add_u32 m0, s16, 40")
            a("s_nop 0")
            a("v_writelane_b32 v254, s98, m0")
            a("v_writelane_b32 v255, s100, m0")
        if n == 6 and (i, slot) == (3, 1):
            a("s_sub_u32 s16, s16, 1")
        if n == 6 and (i, slot) == (3, 2):
            a("s_cmp_eq_u32 s16, 1")
        if n == 7 and (i, slot) == (0, 0):
            a("s_cselect_b32 s26, 0, 0x20000")
        if n == 7 and (i, slot) == (3, 1):
            a(f"s_mov_b32 s{R_KV+2}, s26", "last iteration: DMA out of range (no traffic)")
        if n == 7 and (i, slot) == (3, 2):
            a("s_cmp_lg_u32 s16, 0")
    attn_body(a, ul, extraL)
    a(f"s_cbranch_scc1 {lloop}")
    a("s_nop 0")
    a(mfma(AV_O + 48, AV_V + 8 + 4, AV_P + 4, AV_O + 48))
    stamp(a, 8)
    a.c("check + combine")
    a("v_lshlrev_b32 v9, 2, v0")
    a("v_add_u32 v9, s21, v9", "own area, lane*4")
    a(f"s_xor_b32 s8, s{S_WAVE}, 1")
    a(f"s_mul_i32 s8, s8, {KSLOT}")
    a(f"s_add_u32 s8, s8, {KVR}")
    a(f"v_add_u32 v10, s8, v{AV_KA}", "partner area")
    a("v_lshlrev_b32 v11, 2, v0")
    a("v_add_u32 v11, s8, v11")
    a("s_waitcnt vmcnt(0)")
    a("s_nop 2")
    a(f"v_add_f32 v8, v{AV_O+8}, v{AV_O+24}")
    a(f"v_add_f32 v1, v{AV_O+40}, v{AV_O+56}")
    a("v_add_f32 v8, v8, v1")
    a(f"v_mov_b32 v1, {f32bits(2.0**60)}")
    a("v_cmp_nlt_f32 vcc, v8, v1")
    a("s_cmp_lg_u64 vcc, 0")
    a("s_cselect_b32 s8, 0x10001, 1")
    a("v_mov_b32 v1, s8")
    lk1, ljoin = a.label("kh1"), a.label("khj")
    a("s_cmp_eq_u32 s18, 1")
    a(f"s_cbranch_scc1 {lk1}")

    def send(o, j):
        a(f"ds_write_b128 v{AV_KR}, {vr(o,4)} offset:{KSO(2*j)}")
        a(f"ds_write_b128 v{AV_KR}, {vr(o+4,4)} offset:{KSO(2*j)+1024}")
        a(f"ds_write_b32 v9, v{o+8} offset:{KSO(2*j+1)}")
    for j in range(2):
        send(AV_O + 16 * (2 + j), j)
    a(f"s_branch {ljoin}")
    a(f"{lk1}:")
    for j in range(2):
        send(AV_O + 16 * j, j)
    a("s_waitcnt lgkmcnt(0)")
    for j in range(2):
        for r in range(9):
            a(f"v_mov_b32 v{AV_O+16*j+r}, v{AV_O+16*(2+j)+r}")
    a(f"{ljoin}:")
    lab, lab2 = a.label("asy"), a.label("asyd")
    a("s_lshl_b32 s8, s19, 2")
    a(f"s_add_u32 s8, s8, {M_CNT}")
    a("v_mov_b32 v8, s8")
    a("s_mov_b64 exec, 1")
    a("ds_add_u32 v8, v1")
    a("s_mov_b64 exec, -1")
    a(f"s_mov_b32 s17, {SPIN*16}")
    a(f"{lab}:")
    a("ds_read_b32 v9, v8")
    a("s_waitcnt lgkmcnt(0)")
    a("v_readfirstlane_b32 s8, v9")
    a("s_and_b32 s9, s8, 0xffff")
    a("s_cmp_ge_u32 s9, s25")
    a(f"s_cbranch_scc1 {lab2}")
    spin_guard(a, lab)
    a(f"{lab2}:")
    stamp(a, 48)
    lok, lslow = a.label("aok"), a.label("aslow")
    a("s_lshr_b32 s9, s8, 16")
    a("s_cmp_lg_u32 s9, 0")
    a(f"s_cbranch_scc1 {lslow}")
    a(f"{lok}:")
    for j in range(2):
        t = AV_S + 16 * j
        a(f"ds_read_b128 {vr(t,4)}, v10 offset:{KSO(2*j)}")
        a(f"ds_read_b128 {vr(t+4,4)}, v10 offset:{KSO(2*j)+1024}")
        a(f"ds_read_b32 v{t+8}, v11 offset:{KSO(2*j+1)}")
    a(f"s_lshl_b32 s8, s{S_SL}, 1")
    a("s_add_u32 s8, s8, s18")
    a("s_lshl_b32 s8, s8, 5")
    a("s_add_u32 s8, s8, s20", "st*32 + head")
    a(f"s_lshl_b32 s9, s{S_SL}, 4")
    a(f"s_add_u32 s9, s9, s{S_HP}")
    a("s_lshl_b32 s9, s9, 3")
    a("s_add_u32 s9, s9, s18")
    a("s_lshl_b32 s9, s9, 1")
    a("s_add_u32 s9, s9, s19")
    a("s_lshl_b32 s9, s9, 3")
    a(f"s_add_u32 s9, s9, {WS_FO}")
    a("s_lshl_b32 s8, s8, 11")
    a(f"s_add_u32 s8, s8, {WS_O}")
    a("s_waitcnt lgkmcnt(0)")
    for j in range(2):
        a(f"v_add_f32 v{AV_O+16*j+8}, v{AV_O+16*j+8}, v{AV_S+16*j+8}")
    for j in range(2):
        a(f"v_rcp_f32 v{AV_O+16*j+8}, v{AV_O+16*j+8}")
    for j in range(2):
        for r in range(8):
            a(f"v_add_f32 v{AV_O+16*j+r}, v{AV_O+16*j+r}, v{AV_S+16*j+r}")
    for j in range(2):
        a(f"v_mul_f32 v{AV_O+16*j+8}, v{AV_O+16*j+8}, v{226+j}", "g / l")
    for j in range(2):
        for r in range(8):
            a(f"v_mul_f32 v{AV_O+16*j+r}, v{AV_O+16*j+r}, v{AV_O+16*j+8}")
        for r in range(4):
            a(f"v_cvt_pk_bf16_f32 v{AV_P+4*j+r}, v{AV_O+16*j+2*r}, v{AV_O+16*j+2*r+1}")
        a(f"buffer_store_dwordx4 {vr(AV_P+4*j,4)}, v{AV_KA}, {rs(R_WS)}, s8 offen offset:{j*1024} sc1")
    stamp(a, 49)
    a(f"v_mov_b32 v10, s{S_TAG}")
    a(f"v_mov_b32 v11, s{S_TAG+1}")
    a("v_mov_b32 v9, 0")
    a("s_mov_b64 exec, 1")
    a("s_waitcnt vmcnt(0)")
    a(f"buffer_store_dwordx2 v[10:11], v9, {rs(R_WS)}, s9 offen sc1")
    a("s_mov_b64 exec, -1")
    stamp(a, 9, True)
    a("s_endpgm")
    a(f"{lw1}:")
    kv_wait("s27", "0")
    a(f"s_branch {lw1b}")
    a(f"{lchk}:")
    a("s_waitcnt vmcnt(0)")
    flag_check(a, 8, "s23", "s23", S_LTAG)
    a(f"s_cbranch_scc1 {lback}")
    kv_wait("s23", "s23")
    a(f"s_branch {lback}")
    a(f"{lslow}:")
    a("s_cmp_lg_u32 s24, 0")
    a(f"s_cbranch_scc1 {lok}")
    a("s_mov_b32 s24, 1")
    a("s_mov_b32 s25, 4")
    a(f"s_mov_b32 s{R_KV+2}, 0x20000")
    kv_wait("-1", "-1")
    for i in range(4):
        a(f"v_mov_b32 v{12+i}, 0xff800000")
    a("s_mov_b32 s8, 0")
    lmax = a.label("maxloop")
    a(f"{lmax}:")
    a(f"buffer_load_dwordx4 {vr(AV_K,4)}, v{AV_KA}, {rs(R_KV)}, s8 offen sc1")
    a("s_waitcnt vmcnt(0)")
    for i in range(4):
        a(mfma(AV_C + 16 * i, AV_K, AV_Q + 4 * i, "0"))
    a("s_nop 9")
    for i in range(4):
        for r in range(8):
            a(f"v_max3_f32 v{12+i}, v{AV_C+16*i+2*r}, v{AV_C+16*i+2*r+1}, v{12+i}")
    a("s_add_u32 s8, s8, 2048")
    a("s_cmp_lt_u32 s8, 0x20000")
    a(f"s_cbranch_scc1 {lmax}")
    a(f"s_lshl_b32 {KS}, s{S_SL}, 2")
    a(f"s_add_u32 {KS}, {KS}, s18")
    a(f"s_lshl_b32 {KS}, {KS}, 11")
    for n in range(2):
        d = dma(n)
        a(d[0])
        a("s_nop 0")
        for x in d[1:]:
            a(x)
    a("s_waitcnt vmcnt(0)")
    for x in rd(0):
        a(x)
    a(f"s_branch {lredo}")


class Rot:
    def __init__(self, a, cur, beg, end, stride):
        self.a, self.cur, self.beg, self.end, self.stride = a, cur, beg, end, stride

    def init(self, srot, n):
        a = self.a
        a(f"s_add_u32 s{self.end}, s{self.beg}, {n*self.stride}")
        a(f"s_mul_i32 s{self.cur}, s{srot}, {self.stride}")
        a(f"s_add_u32 s{self.cur}, s{self.cur}, s{self.beg}")

    def adv(self):
        a = self.a
        a(f"s_add_u32 s{self.cur}, s{self.cur}, {self.stride}")
        if self.beg is not None:
            a(f"s_cmp_eq_u32 s{self.cur}, s{self.end}")
            a(f"s_cselect_b32 s{self.cur}, s{self.beg}, s{self.cur}")


def gemm_role(a):
    HW = OPT["hw"]
    NB = 4
    assert HW < NB and HW + 1 <= TR
    a.c("GEMM role")
    stamp(a, 4)
    a.vmem(f"buffer_load_dwordx2 v[{GV_Y+8}:{GV_Y+9}], v{GV_MISC+4}, {rs(R_WS)}, s96 offen sc1", "hpoll")
    a("v_mov_b32 v1, 1")
    for g in range(4):
        for hh in range(2):
            a(f"v_lshlrev_b32 v{GV_ACC+4*g+2*hh}, 16, v{GV_Y+2*g+hh}")
            a(f"v_and_b32 v{GV_ACC+4*g+2*hh+1}, 0xffff0000, v{GV_Y+2*g+hh}")
    M = GV_MISC + 4
    T1 = Rot(a, 25, 26, 27, 16 * 3584)
    T2 = Rot(a, 25, 26, 27, 16 * 4096)
    TO = Rot(a, 31, None, None, 16 * 1024)
    D = Rot(a, 28, 29, 30, 2048)

    assert M_RING - M_RED == 49152 and TR == 6

    class Stream:
        def __init__(self, items, r0):
            self.items = items
            self.issued = 0
            self.r0 = r0

        def off(self, j):
            if self.r0 <= j < self.r0 + 6:
                return (j - self.r0) * 2048
            return 49152 + (j % TR) * 2048

        def upto(self, n):
            while self.issued < min(n, len(self.items)):
                j = self.issued
                rot, rsrc, vreg, rstr = self.items[j]
                a(f"s_add_u32 m0, s18, {self.off(j)}")
                a(f"s_add_u32 s8, s{rot.cur}, {8*rstr - 1024}")
                a.vmem(f"buffer_load_dwordx4 v{vreg}, {rs(rsrc)}, s{rot.cur} offen {NT(1)}lds", f"T{j}")
                a.vmem(f"buffer_load_dwordx4 v{vreg}, {rs(rsrc)}, s8 offen offset:1024 {NT(1)}lds", f"T{j}")
                rot.adv()
                self.issued += 1

    def d_issue(k, da):
        buf = k % NB
        for x in range(2):
            a.vmem(f"buffer_load_dwordx4 {vr(GV_D+8*buf+4*x,4)}, v{da+x}, {rs(R_WS)}, s{D.cur} offen sc1", f"D{k}")
        D.adv()

    def tread(st, j, ta, rd2, dst):
        for x in range(2):
            a.lds(f"ds_read_b64_tr_b16 {vr(dst+4*x,2)}, v{ta+x} offset:{st.off(j)}", f"tr{j}")
            a.lds(f"ds_read_b64_tr_b16 {vr(dst+4*x+2,2)}, v{ta+x} offset:{st.off(j)+rd2}", f"tr{j}")

    def burst(st, n, win):
        while st.issued < n:
            if st.issued - win >= 0:
                a.vm_wait_if(f"T{st.issued - win}")
            st.upto(st.issued + 1)

    def kloop(st, j0, nsteps, t_is_A, ta, rd2, da, cnt):
        pre = st.issued - j0
        hwd = lambda k: OPT["hwd0"] if k + 2 + HW <= pre else OPT["hwd"]
        dn = [0]

        def d_upto(n):
            while dn[0] < min(n, nsteps):
                d_issue(dn[0], da)
                dn[0] += 1
        d_upto(hwd(0))
        a.vm_wait_if(f"T{j0}")
        tread(st, j0, ta, rd2, GV_T)
        for k in range(nsteps):
            tb, db = GV_T + 8 * (k % 2), GV_D + 8 * (k % NB)

            def mm(x, y):
                if t_is_A:
                    d = GV_ACC + 16 * (2 * x + y)
                    a(mfma(d, tb + 4 * x, db + 4 * y, "0" if (k == 0 and d != GV_ACC) else d))
                else:
                    d = GV_ACC + 16 * (2 * y + x)
                    a(mfma(d, db + 4 * y, tb + 4 * x, "0" if (k == 0 and d != GV_ACC) else d))
            a.vm_wait_if(f"D{k}")
            a.lg_wait(f"tr{j0+k}")
            if k % 4 == 0:
                stamp(a, (16 if t_is_A else 24) + k // 4)
            mm(0, 0)
            if k == 5:
                a("s_mov_b64 exec, 1")
                a.lds(f"ds_add_u32 v{M+3}, v1 offset:{cnt - M_CNT}", "arr")
                a("s_mov_b64 exec, -1")
            d_upto(k + 1 + hwd(k))
            mm(0, 1)
            if k + 1 < nsteps:
                a.vm_wait_if(f"T{j0+k+1}")
                tread(st, j0 + k + 1, ta, rd2, GV_T + 8 * ((k + 1) % 2))
            mm(1, 0)
            st.upto(j0 + k + 2 + HW)
            mm(1, 1)
            if t_is_A and OPT["tk"] and k >= OPT["tk0"] and (k - OPT["tk0"]) % OPT["tks"] == 0:
                q = (k - OPT["tk0"]) // OPT["tks"]
                if q < 8:
                    a.vmem(f"buffer_load_dwordx4 v[248:251], v175, {rs(R_W2)}, s32 offen", "tk")
                    a(f"s_add_u32 s32, s32, {2*4096}")
                elif q < 13 and OPT["tk"] > 1:
                    a.vmem(f"buffer_load_dwordx4 v[248:251], v170, {rs(R_WO)}, s33 offen", "tk")
                    a("s_add_u32 s33, s33, 1024")

    def reduce(cnt, sb):
        stamp(a, sb)
        for v in range(1, 4):
            for q in range(4):
                a.lds(f"ds_write_b128 v{GV_MISC+v}, {vr(GV_ACC+16*v+4*q,4)} offset:{q*1024}", "rw")
        lds_arrive(a, cnt, M, 1)
        stamp(a, sb + 1)
        lds_wait(a, cnt, 4, M, sleep=False)
        stamp(a, sb + 2)
        for v in range(3):
            for q in range(4):
                a.lds(f"ds_read_b128 {vr(GV_ACC+16+16*v+4*q,4)}, v{GV_MISC} offset:{v*4096+q*1024}", f"rr{v}")
        for v in range(3):
            a.lg_wait(f"rr{v}")
            for r in range(0, 16, 2):
                a(f"v_pk_add_f32 {vr(GV_ACC+r,2)}, {vr(GV_ACC+r,2)}, {vr(GV_ACC+16+16*v+r,2)}")

    lskip1, lskip2 = a.label("skipg1"), a.label("skipg1e")
    a(f"s_mul_i32 s{T1.beg}, s81, {512*3584}")
    a("s_lshl_b32 s8, s20, 7")
    a(f"s_add_u32 s{T1.beg}, s{T1.beg}, s8")
    T1.init(23, 32)
    st1 = Stream([(T1, R_W1, GV_DMA, 3584)] * 32, 0)
    a(f"s_lshl_b32 s{D.beg}, s19, 18")
    a("s_lshl_b32 s8, s81, 16")
    a(f"s_add_u32 s{D.beg}, s{D.beg}, s8")
    D.init(23, 32)
    a(f"s_lshl_b32 s8, s{S_HP}, 4")
    a(f"s_add_u32 s8, s8, s{S_SL}")
    a("s_lshl_b32 s8, s8, 4")
    a("s_add_u32 s8, s8, s81")
    a("s_lshl_b32 s8, s8, 3")
    a(f"s_add_u32 s8, s8, {WS_FKV}")
    a(f"s_add_u32 s84, s8, {WS_FKVS}")
    a.vm_wait("kvst")
    flag_set(a, "s8", M, M + 2, local=True)
    stamp(a, 5)
    st2 = Stream([(TO, R_WO, GV_DMA + 2, 1024)] * 8 + [(T2, R_W2, GV_DMA + 1, 4096)] * 28, 8)

    def slow_copy():
        if not OPT["local"]:
            return
        a(f"s_add_u32 s88, s88, {WS_KVB}")
        a(f"s_add_u32 s89, s89, {WS_KVB}")
        XF = PV_XF
        a.vmem(f"buffer_store_dwordx4 {vr(XF,4)}, v170, {rs(R_WS)}, s88 offen sc1", "kvs")
        a.vmem(f"buffer_store_dwordx4 {vr(XF+4,4)}, v170, {rs(R_WS)}, s89 offen sc1", "kvs")
        a.vmem(f"buffer_store_dwordx4 {vr(XF+8,4)}, v172, {rs(R_WS)}, s88 offen offset:1024 sc1", "kvs")
        a.vmem(f"buffer_store_dwordx4 {vr(XF+12,4)}, v172, {rs(R_WS)}, s88 offen offset:1536 sc1", "kvs")
    a(f"s_lshl_b32 s{TO.cur}, s81, 17")
    a("s_lshl_b32 s8, s22, 7")
    a(f"s_add_u32 s{TO.cur}, s{TO.cur}, s8")
    if OPT["mb"]:
        a(f"s_add_u32 s8, s87, {128*3584}")
        a.vmem(f"buffer_load_dwordx4 v[248:251], v174, {rs(R_W1)}, s8 offen", "warm")
        a(f"s_add_u32 s8, s87, {(128-8)*3584}")
        a.vmem(f"buffer_load_dwordx4 v[248:251], v174, {rs(R_W1)}, s8 offen", "warm")
    a(f"s_cmp_ge_u32 s{S_IDX}, 28")
    a(f"s_cbranch_scc1 {lskip1}")
    burst(st1, OPT["g1b"], OPT["pf1"])
    if OPT["gate"]:
        lds_wait(a, M_CNT + 36, 4, M, hint=OPT["gspin"])
    if OPT["tk"]:
        a("v_lshrrev_b32 v175, 5, v0")
        a(f"v_and_b32 v{M}, 31, v0")
        a(f"v_lshlrev_b32 v{M}, 4, v{M}")
        a(f"v_lshl_add_u32 v175, v175, 12, v{M}")
        a(f"s_lshl_b32 s32, s{S_IDX}, 2")
        a("s_add_u32 s32, s32, s81")
        a("s_mul_i32 s33, s32, 5120")
        a("s_lshl_b32 s32, s32, 16")
        a(f"s_lshl_b32 s8, s{S_XCD}, 9")
        a("s_add_u32 s32, s32, s8")
    lh = a.label("hok")
    a.vm_wait_if("hpoll")
    flag_check(a, GV_Y + 8, "-1", "-1")
    a(f"s_cbranch_scc1 {lh}")
    a(f"v_lshlrev_b32 v{M}, 3, v0")
    vm_keep = list(a.vm)
    flag_wait(a, "s96", M, M + 2, "-1", "-1")
    a.vm = vm_keep
    a(f"{lh}:")
    a(f"v_mov_b32 v{M+3}, {M_CNT}")
    a(f"s_setprio {OPT['prio_gemm']}")
    stamp(a, 6)
    kloop(st1, 0, 32, True, GV_TA1, 512, GV_DB, M_CNT + 40)
    a("s_setprio 3")
    stamp(a, 7)
    slow_copy()
    st2.upto(OPT["wo0"])
    lds_wait(a, M_CNT + 40, 4, M)
    a.c("G1 epilogue")
    reduce(M_CNT + 16, 48)
    stamp(a, 51)
    c0 = -2.0 * math.sqrt(2.0 / math.pi) * LOG2E
    c1 = c0 * 0.044715
    a(f"s_mov_b32 s8, {f32bits(c1)}")
    a(f"s_mov_b32 s9, {f32bits(c1)}")
    a(f"v_mov_b32 v{M}, {f32bits(c0)}")
    a(f"v_mov_b32 v{M+1}, {f32bits(c0)}")
    TT = GV_ACC + 16
    P2 = lambda b: vr(b, 2)
    for r in range(0, 16, 2):
        a(f"v_pk_mul_f32 {P2(TT+r)}, {P2(GV_ACC+r)}, {P2(GV_ACC+r)}")
    for r in range(0, 16, 2):
        a(f"v_pk_fma_f32 {P2(TT+r)}, {P2(TT+r)}, s[8:9], {P2(M)}")
    for r in range(0, 16, 2):
        a(f"v_pk_mul_f32 {P2(TT+r)}, {P2(TT+r)}, {P2(GV_ACC+r)}")
    for r in range(16):
        a(f"v_exp_f32 v{TT+r}, v{TT+r}")
    for r in range(0, 16, 2):
        a(f"v_pk_add_f32 {P2(TT+r)}, {P2(TT+r)}, 1.0 op_sel_hi:[1,0]")
    for r in range(16):
        a(f"v_rcp_f32 v{TT+r}, v{TT+r}")
    for r in range(0, 16, 2):
        a(f"v_pk_mul_f32 {P2(TT+r)}, {P2(TT+r)}, {P2(GV_ACC+r)}")
    for r in range(8):
        a(f"v_cvt_pk_bf16_f32 v{GV_ACC+r}, v{TT+2*r}, v{TT+2*r+1}")
    a("s_mul_i32 s8, s19, 112")
    a("s_lshl_b32 s9, s20, 2")
    a("s_add_u32 s8, s8, s9")
    a("s_and_b32 s9, s81, 2")
    a("s_add_u32 s8, s8, s9")
    a("s_lshl_b32 s8, s8, 11")
    a(f"s_add_u32 s8, s8, {WS_U}")
    a.vmem(f"buffer_store_dwordx4 {vr(GV_ACC,4)}, v{GV_DB}, {rs(R_WS)}, s8 offen sc1", "ust")
    a.vmem(f"buffer_store_dwordx4 {vr(GV_ACC+4,4)}, v{GV_DB}, {rs(R_WS)}, s8 offen offset:2048 sc1", "ust")
    a("s_lshl_b32 s8, s19, 12")
    a("s_lshl_b32 s9, s20, 7")
    a("s_add_u32 s8, s8, s9")
    a("s_lshl_b32 s9, s81, 3")
    a("s_add_u32 s8, s8, s9")
    a(f"s_add_u32 s8, s8, {WS_FU}")
    a("s_mov_b32 s23, s8")
    stamp(a, 52)
    a.vm_drain()
    flag_set(a, "s23", M, M + 2)
    flag_set(a, "s84", M, M + 2) if OPT["local"] else None
    stamp(a, 8)
    a(f"s_branch {lskip2}")
    a(f"{lskip1}:")
    if OPT["help"]:
        lds_wait(a, M_CNT + 36, 4, M, hint=OPT["gspin"])
        if OPT["w1mode"] == 0:
            a(f"s_and_b32 s8, s{S_IDX}, 3")
            a("s_lshl_b32 s8, s8, 1")
            a("s_lshl_b32 s9, s81, 9")
            a("s_add_u32 s8, s8, s9")
            a(f"s_add_u32 s8, s8, {128*OPT['mwn']}")
            a("s_mul_i32 s9, s8, 3584")
            a("s_add_u32 s9, s9, s90")
            a(f"s_mov_b32 s10, {64 - 16*OPT['mwn']}")
            lh = a.label("help")
            a(f"{lh}:")
            a(f"buffer_load_dwordx4 v[248:251], v174, {rs(R_W1)}, s9 offen")
            a(f"s_add_u32 s9, s9, {8*3584}")
            a(f"s_waitcnt vmcnt({OPT['help']-1})")
            a("s_sub_u32 s10, s10, 1")
            a("s_cmp_lg_u32 s10, 0")
            a(f"s_cbranch_scc1 {lh}")
        stamp(a, 31)
        if OPT["hw2"]:
            a(f"v_lshrrev_b32 v{M}, 5, v0")
            a(f"v_and_b32 v{M+1}, 31, v0")
            a(f"v_lshlrev_b32 v{M+1}, 4, v{M+1}")
            a(f"v_lshl_add_u32 v{M}, v{M}, 12, v{M+1}")
            a(f"s_and_b32 s8, s{S_IDX}, 3")
            a("s_lshl_b32 s8, s8, 2")
            a("s_add_u32 s8, s8, s81", "helper wave 0..15")
            a("s_lshl_b32 s9, s8, 13")
            a(f"s_lshl_b32 s10, s{S_XCD}, 9")
            a("s_add_u32 s9, s9, s10")
            a("s_mov_b32 s10, 56")
            lh = a.label("help")
            a(f"{lh}:")
            a(f"buffer_load_dwordx4 v[248:251], v{M}, {rs(R_W2)}, s9 offen")
            a(f"s_add_u32 s9, s9, {32*4096}")
            a(f"s_waitcnt vmcnt({OPT['help']-1})")
            a("s_sub_u32 s10, s10, 1")
            a("s_cmp_lg_u32 s10, 0")
            a(f"s_cbranch_scc1 {lh}")
        stamp(a, 15)
    slow_copy()
    st2.issued = 0
    st2.upto(OPT["wo0"])
    a("s_waitcnt vmcnt(0)")
    flag_set(a, "s84", M, M + 2) if OPT["local"] else None
    a(f"{lskip2}:")
    a.vm = []
    a(f"s_mul_i32 s{T2.beg}, s81, {448*4096}")
    a("s_lshl_b32 s8, s21, 7")
    a(f"s_add_u32 s{T2.beg}, s{T2.beg}, s8")
    T2.init(24, 28)
    a(f"s_mul_i32 s{D.beg}, s22, 112")
    a("s_mul_i32 s8, s81, 28")
    a(f"s_add_u32 s{D.beg}, s{D.beg}, s8")
    a(f"s_lshl_b32 s{D.beg}, s{D.beg}, 11")
    a(f"s_add_u32 s{D.beg}, s{D.beg}, {WS_U}")
    D.init(24, 28)
    for j in range(8):
        a.vm_wait_if(f"T{j}")
        tread(st2, j, GV_TA3, 1024, GV_WO + 8 * j)
        a.lg_wait(f"tr{j}")
        st2.upto(j + 1 + OPT["pf"])
    stamp(a, 47)
    burst(st2, OPT["g2b"], OPT["pf"])
    for r in range(16):
        a(f"v_lshlrev_b32 v{GV_ACC+r}, 16, v15", "b2")
    a(f"v_min_u32 v{M}, 27, v0")
    a(f"v_lshrrev_b32 v{M+1}, 2, v{M}")
    a(f"v_and_b32 v{M}, 3, v{M}")
    a(f"v_lshlrev_b32 v{M}, 3, v{M}")
    a(f"v_lshl_add_u32 v{M}, v{M+1}, 7, v{M}")
    a("s_lshl_b32 s9, s22, 12")
    a("s_mul_i32 s8, s81, 896")
    a("s_add_u32 s9, s9, s8")
    a(f"s_add_u32 s9, s9, {WS_FU}")
    stamp(a, 46)
    if OPT["hw2p"]:
        lnh, lh = a.label("nohelp"), a.label("help2")
        a(f"s_cmp_lt_u32 s{S_IDX}, 28")
        a(f"s_cbranch_scc1 {lnh}")
        a(f"v_lshrrev_b32 v{GV_Y}, 5, v0")
        a(f"v_and_b32 v{GV_Y+1}, 31, v0")
        a(f"v_lshlrev_b32 v{GV_Y+1}, 4, v{GV_Y+1}")
        a(f"v_lshl_add_u32 v{GV_Y}, v{GV_Y}, 12, v{GV_Y+1}")
        a(f"s_and_b32 s8, s{S_IDX}, 3")
        a("s_lshl_b32 s8, s8, 2")
        a("s_add_u32 s8, s8, s81", "helper wave 0..15")
        a("s_lshl_b32 s32, s8, 13")
        a(f"s_lshl_b32 s8, s{S_XCD}, 9")
        a("s_add_u32 s32, s32, s8")
        a("s_mov_b32 s33, 8")
        a(f"{lh}:")
        a(f"buffer_load_dwordx2 v[{M+2}:{M+3}], v{M}, {rs(R_WS)}, s9 offen sc1")
        for q in range(7):
            a(f"buffer_load_dwordx4 v[248:251], v{GV_Y}, {rs(R_W2)}, s32 offen")
            a(f"s_add_u32 s32, s32, {32*4096}")
            a(f"s_waitcnt vmcnt({OPT['help']-1})")
        flag_check(a, M + 2, "0x0fffffff", "0")
        a(f"s_cbranch_scc1 {lnh}")
        a("s_sub_u32 s33, s33, 1")
        a("s_cmp_lg_u32 s33, 0")
        a(f"s_cbranch_scc1 {lh}")
        a(f"{lnh}:")
    flag_wait(a, "s9", M, M + 2, "0x0fffffff", "0")
    stamp(a, 9)
    a(f"v_and_b32 v{M}, 31, v0")
    a(f"v_lshlrev_b32 v{M+1}, 2, v{M}")
    a("s_mov_b32 s23, s91")
    a("s_lshl_b32 s9, s23, 2")
    a(f"s_add_u32 s9, s9, {WS_G}")
    a.vmem(f"buffer_load_dword v{GV_Y}, v{M+1}, {rs(R_WS)}, s9 offen sc1", "g")
    a("s_xor_b32 s9, s9, 128")
    a.vmem(f"buffer_load_dword v{GV_Y+2}, v{M+1}, {rs(R_WS)}, s9 offen sc1", "g")
    a("v_and_b32 v15, 31, v0")
    a("v_lshlrev_b32 v15, 10, v15")
    a(f"v_lshrrev_b32 v{M}, 5, v0")
    a(f"v_lshl_add_u32 v15, v{M}, 4, v15")
    a("s_lshl_b32 s23, s23, 10")
    a("s_lshl_b32 s8, s22, 7")
    a("s_add_u32 s23, s23, s8")
    a("s_lshr_b32 s8, s81, 1")
    a("s_lshl_b32 s8, s8, 6")
    a("s_add_u32 s23, s23, s8")
    a("s_lshl_b32 s32, s21, 16")
    a("s_lshl_b32 s8, s81, 14")
    a("s_add_u32 s32, s32, s8")
    a(f"s_add_u32 s32, s32, {WS_O}")
    a(f"v_min_u32 v{GV_Y+4}, 7, v0")
    a(f"v_lshrrev_b32 v{M}, 1, v{GV_Y+4}")
    a(f"v_and_b32 v{GV_Y+4}, 1, v{GV_Y+4}")
    a(f"v_lshlrev_b32 v{GV_Y+4}, 3, v{GV_Y+4}")
    a(f"v_lshl_add_u32 v{GV_Y+4}, v{M}, 7, v{GV_Y+4}")
    a("s_lshr_b32 s33, s21, 1")
    a("s_lshl_b32 s33, s33, 11")
    a("s_lshl_b32 s8, s81, 9")
    a("s_add_u32 s33, s33, s8")
    a("s_and_b32 s8, s21, 1")
    a("s_lshl_b32 s8, s8, 4")
    a("s_add_u32 s33, s33, s8")
    a(f"s_add_u32 s33, s33, {WS_FO}")
    a(f"v_mov_b32 v{M+3}, {M_CNT}")
    a(f"s_setprio {OPT['prio_gemm']}")
    kloop(st2, 8, 28, False, GV_TA2, 1024, GV_DA, M_CNT + 20)
    a("s_setprio 3")
    stamp(a, 10)
    a(f"buffer_load_dwordx2 v[{GV_Y+6}:{GV_Y+7}], v{GV_Y+4}, {rs(R_WS)}, s33 offen sc1")
    for b in range(2):
        a(f"v_sub_f32 v{GV_Y+2*b}, 1.0, v{GV_Y+2*b}")
        a(f"v_mov_b32 v{GV_Y+2*b+1}, v{GV_Y+2*b}")
    a("s_nop 4")
    for v in (0, 2, 1, 3):
        for r in range(0, 16, 2):
            d = GV_ACC + 16 * v + r
            a(f"v_pk_mul_f32 v[{d}:{d+1}], v[{d}:{d+1}], v[{GV_Y+2*(v&1)}:{GV_Y+2*(v&1)+1}]")
    a("s_waitcnt vmcnt(0)")
    a(f"v_cmp_ne_u64 vcc, s[{S_TAG}:{S_TAG+1}], v[{GV_Y+6}:{GV_Y+7}]")
    a("s_mov_b32 s26, vcc_lo", "heads not yet seen")
    stamp(a, 11)

    def omm(k):
        a.vm_wait_if(f"O{k}")
        for v in (1, 2, 3, 0):
            x, y = v >> 1, v & 1
            d = GV_ACC + 16 * v
            a(mfma(d, GV_WO + 8 * k + 4 * x, GV_D + 8 * k + 4 * y, d))
    for k in range(8):
        l1, l2 = a.label("op"), a.label("opok")
        a(f"s_bitcmp0_b32 s26, {k}")
        a(f"s_cbranch_scc1 {l2}")
        a(f"s_mov_b32 s17, {SPIN}")
        a(f"{l1}:")
        a(f"buffer_load_dwordx2 v[{GV_Y+6}:{GV_Y+7}], v{GV_Y+4}, {rs(R_WS)}, s33 offen sc1")
        a("s_waitcnt vmcnt(0)")
        a(f"v_cmp_ne_u64 vcc, s[{S_TAG}:{S_TAG+1}], v[{GV_Y+6}:{GV_Y+7}]")
        a("s_mov_b32 s26, vcc_lo")
        a(f"s_bitcmp0_b32 s26, {k}")
        a(f"s_cbranch_scc1 {l2}")
        spin_guard(a, l1)
        a(f"{l2}:")
        if k % 2 == 0 and k:
            a("s_add_u32 s32, s32, 4096")
        for x in range(2):
            a.vmem(f"buffer_load_dwordx4 {vr(GV_D+8*k+4*x,4)}, v{GV_DB+x}, {rs(R_WS)}, s32 offen offset:{(k%2)*2048} sc1", f"O{k}")
        if k >= OPT["olag"]:
            omm(k - OPT["olag"])
    stamp(a, 12)
    for k in range(8 - OPT["olag"], 8):
        omm(k)
    lds_wait(a, M_CNT + 20, 4, M)
    a("s_nop 2")
    stamp(a, 13)
    reduce(M_CNT + 32, 54)
    stamp(a, 57)
    for r in range(8):
        a(f"v_cvt_pk_bf16_f32 v{GV_ACC+16+r}, v{GV_ACC+2*r}, v{GV_ACC+2*r+1}")
    a.vmem(f"buffer_store_dwordx4 {vr(GV_ACC+16,4)}, v15, {rs(R_OUT)}, s23 offen", "ost")
    a.vmem(f"buffer_store_dwordx4 {vr(GV_ACC+20,4)}, v15, {rs(R_OUT)}, s23 offen offset:32", "ost")
    stamp(a, 14, True)


def descriptor(name, vgpr=256):
    return f""".section .rodata,"a"
.p2align 6
.amdhsa_kernel {name}
  .amdhsa_next_free_vgpr {vgpr}
  .amdhsa_next_free_sgpr 102
  .amdhsa_accum_offset {vgpr}
  .amdhsa_group_segment_fixed_size 0
  .amdhsa_kernarg_size 96
  .amdhsa_user_sgpr_count 2
  .amdhsa_user_sgpr_kernarg_segment_ptr 1
  .amdhsa_system_sgpr_workgroup_id_x 1
.end_amdhsa_kernel
"""


def build():
    kn = NAME + "_kernel"
    head = f"""; generated by gen/gen17.py (fused single launch)
; @launch grid=(256,1,1) block=(512,1,1) lds={LDS_TOTAL}
.amdgcn_target "amdgcn-amd-amdhsa--gfx950"
"""
    a = Asm()
    a(".text")
    a(f".globl {kn}")
    a(".p2align 8")
    a(f".type {kn},@function")
    a(f"{kn}:")
    entry(a, "L_exit")
    vm0, lg0 = list(a.vm), list(a.lg)
    a(f"s_cmp_ge_u32 s{S_WAVE}, 4")
    a("s_cbranch_scc1 L_roleb")
    ROLE[0] = 1
    proj(a, 0)
    attention(a)
    ROLE[0] = 0
    a("L_roleb:")
    a.vm, a.lg = vm0, lg0
    a("s_setprio 3")
    proj(a, 1)
    gemm_role(a)
    a("L_exit:")
    a("s_endpgm")
    a("L_code_end:")
    return head + a.text() + descriptor(kn)


if __name__ == "__main__":
    out = sys.argv[1] if len(sys.argv) > 1 else f"cdna_kernels/{NAME}.s"
    for o in sys.argv[2:]:
        if o == "stamps":
            OPT["stamps"] = True
        elif "=" in o:
            k, v = o.split("=")
            OPT[k] = int(v)
    open(out, "w").write(build())
    print("wrote", out)
```
